```python
import torch

def _softmax(x, axis=-1):
    return torch.softmax(x, dim=axis)

def _gelu(x):
    return torch.nn.functional.gelu(x, approximate='tanh')

def _silu(x):
    return torch.nn.functional.silu(x)

def _sigmoid(x):
    return torch.sigmoid(x)

def _layernorm(x, axis=-1, eps=1e-05):
    m = x.mean(dim=axis, keepdim=True)
    v = x.var(dim=axis, keepdim=True, unbiased=False)
    return (x - m) / torch.sqrt(v + eps)

def _scatter_add(tgt, idx, src, axis=0):
    return tgt.clone().index_add_(axis, idx, src)

def _segment_sum(src, seg, n):
    out = torch.zeros((n,) + src.shape[1:], dtype=src.dtype)
    return out.index_add_(0, seg, src)

def _pad(x, pw):
    flat = tuple((v for pair in reversed(pw) for v in pair))
    return torch.nn.functional.pad(x, flat)
kernel_name = 'adaLN_cond__sliding_block_cached__glu_gated_bilinear__prompt'

def setup_inputs():

    _w = lambda a: (lambda t: t.to(torch.bfloat16) if t.is_floating_point() else t)(torch.as_tensor(a))

    def _A_setup():
        B, Sq, D = (1, 2048, 512)
        Hq, Hkv, Sk, Dh = (32, 32, 2048, 128)
        assert Hq % Hkv == 0, (Hq, Hkv)
        return {'x': _w((lambda *s: torch.randn(*s, dtype=torch.bfloat16) * 0.05)(B, Sq, D)), 'k_cache': _w((lambda *s: torch.randn(*s, dtype=torch.bfloat16) * 1.6)(B, Hkv, Sk, Dh)), 'v_cache': _w((lambda *s: torch.randn(*s, dtype=torch.bfloat16) * 0.8)(B, Hkv, Sk, Dh)), 'wq': _w((lambda *s: torch.randn(*s, dtype=torch.bfloat16) * 1.6)(D, Hq * Dh) * D ** (-0.5)), 'wo': _w((lambda *s: torch.randn(*s, dtype=torch.bfloat16) * 0.8)(Hq * Dh, D) * (Hq * Dh) ** (-0.5))}
    _A_in = _A_setup()

    def _B_setup():
        B, S, D, F = (1, 2048, 512, 1376)
        return {'x': _w((lambda *s: torch.randn(*s, dtype=torch.bfloat16) * 0.05)(B, S, D)), 'w_gate': _w((lambda *s: torch.randn(*s, dtype=torch.bfloat16) * 0.4)(D, F) * D ** (-0.5)), 'w_up': _w((lambda *s: torch.randn(*s, dtype=torch.bfloat16) * 0.4)(D, F) * D ** (-0.5)), 'w_down': _w((lambda *s: torch.randn(*s, dtype=torch.bfloat16) * 0.4)(F, D) * F ** (-0.5))}
    _B_in = _B_setup()
    return {'A_x': _A_in['x'], 'A_k_cache': _A_in['k_cache'], 'A_v_cache': _A_in['v_cache'], 'A_wq': _A_in['wq'], 'A_wo': _A_in['wo'], 'B_x': _B_in['x'], 'B_w_gate': _B_in['w_gate'], 'B_w_up': _B_in['w_up'], 'B_w_down': _B_in['w_down'], 'c': _w((lambda *s: torch.randn(*s, dtype=torch.bfloat16) * 0.2)(1, 512) * 8.0), 'w_mod': _w((lambda *s: torch.randn(*s, dtype=torch.bfloat16) * 0.2)(512, 6 * 512) * 512 ** (-0.5) * 8.0)}

def reference(A_x, A_k_cache, A_v_cache, A_wq, A_wo, B_x, B_w_gate, B_w_up, B_w_down, c, w_mod):

    def _A_ref(x, k_cache, v_cache, wq, wo):
        B, Sq, D = x.shape
        Hq, Dh = (32, 128)
        Hkv, Sk = (k_cache.shape[1], k_cache.shape[2])
        W = min(4096, max(256, Sk // 4))
        rep = Hq // Hkv
        q = (lambda x, *d: x.permute(*d))((x @ wq).reshape(B, Sq, Hq, Dh), 0, 2, 1, 3)
        k = (lambda x, n, axis: torch.repeat_interleave(x, n, dim=axis))(k_cache[:, :, Sk - W:, :], rep, axis=1)
        v = (lambda x, n, axis: torch.repeat_interleave(x, n, dim=axis))(v_cache[:, :, Sk - W:, :], rep, axis=1)
        scores = torch.einsum('bhqd,bhkd->bhqk', q, k) * Dh ** (-0.5)
        p = _softmax(scores, axis=-1)
        o = torch.einsum('bhqk,bhkd->bhqd', p, v)
        return (lambda x, *d: x.permute(*d))(o, 0, 2, 1, 3).reshape(B, Sq, Hq * Dh) @ wo

    def _B_ref(x, w_gate, w_up, w_down):
        g = torch.einsum('bsd,df->bsf', x, w_gate)
        u = torch.einsum('bsd,df->bsf', x, w_up)
        h = g * u
        return torch.einsum('bsf,fd->bsd', h, w_down)
    x = A_x
    mod = (_silu(c) @ w_mod).reshape(c.shape[0], 6, 1, -1)
    sa, ca, ga, sb, cb, gb = (mod[:, 0].clone(), mod[:, 1].clone(), mod[:, 2].clone(), mod[:, 3].clone(), mod[:, 4].clone(), mod[:, 5].clone())
    h = _layernorm(x, axis=-1) * (1 + ca) + sa
    x = x + ga * _A_ref(h, A_k_cache, A_v_cache, A_wq, A_wo)
    h = _layernorm(x, axis=-1) * (1 + cb) + sb
    x = x + gb * _B_ref(h, B_w_gate, B_w_up, B_w_down)
    return x
```

```python
import os
import k01, k2, k3, k45
def kernels():
    st = bool(os.environ.get('STAMPS'))
    ks = []
    for n, f in (('k0_kernel', k01.k0), ('k1_kernel', k01.k1), ('k2_kernel', lambda n: k2.k2(n, st)), ('k3_kernel', k3.k3), ('k3b_kernel', k3.k3b), ('k4_kernel', k45.k4), ('k5_kernel', k45.k5)):
        b, m = f(n)
        ks.append((n, b, m))
    return ks
```

```python
import re

TRANS = ('v_exp_f32', 'v_log_f32', 'v_rcp_f32', 'v_rsq_f32', 'v_sqrt_f32', 'v_sin_f32', 'v_cos_f32', 'v_rcp_iflag_f32')
_reg_re = re.compile(r'^(-|abs\()?([vas])(\d+|\[(\d+):(\d+)\])\)?$')


def regs_of(tok):
    tok = tok.strip()
    if tok in ('vcc',):
        return [('s', 'vcc')]
    if tok in ('vcc_lo', 'vcc_hi'):
        return [('s', 'vcc')]
    if tok == 'exec':
        return [('s', 'exec')]
    if tok == 'm0':
        return [('s', 'm0')]
    m = _reg_re.match(tok)
    if not m:
        return []
    k = m.group(2)
    if m.group(4) is not None:
        return [(k, i) for i in range(int(m.group(4)), int(m.group(5)) + 1)]
    return [(k, int(m.group(3)))]


class Ins:
    __slots__ = ('text', 'op', 'ops', 'mods', 'r', 'w', 'cls', 'tag', 'waittag', 'vm_wait', 'lgkm_wait', 'nops',
                 'passes', 'srcc', 'srcab', 'note', 'pre')

    def __init__(self, text, tag=None):
        self.text = text
        self.tag = tag
        self.waittag = None
        self.vm_wait = None
        self.lgkm_wait = None
        self.nops = 0
        self.passes = 0
        self.srcc = []
        self.srcab = []
        self.note = None
        body = text.split(';')[0].strip()
        parts = body.split(None, 1)
        self.op = parts[0]
        rest = parts[1] if len(parts) > 1 else ''
        toks = [t.strip() for t in rest.split(',')] if rest else []
        self.mods = ''
        if toks:
            last = toks[-1].split(None, 1)
            if len(last) > 1 and not last[0].startswith('hwreg') and not self.op.startswith('s_waitcnt'):
                toks[-1] = last[0]
                self.mods = last[1]
        self.ops = toks
        self.classify()

    def classify(self):
        op, ops, mods = self.op, self.ops, self.mods
        R = lambda idx: [x for i in idx for x in regs_of(ops[i])]
        n = len(ops)
        allr = R(range(n))
        self.r, self.w = [], []
        if op.startswith('v_mfma'):
            self.cls = 'mfma'
            self.w = R([0])
            self.srcab = R([1, 2])
            self.srcc = R([3])
            self.r = self.srcab + self.srcc
            self.passes = 8 if ('32x32x16' in op or '32x32x8' in op) else 4
        elif op.startswith('ds_read') or op.startswith('ds_bpermute') or op.startswith('ds_swizzle') or op.startswith('ds_permute'):
            self.cls = 'ds'
            self.w = R([0])
            self.r = R(range(1, n))
        elif op.startswith('ds_write') or op.startswith('ds_'):
            self.cls = 'ds'
            self.r = allr
        elif op.startswith('buffer_load') or op.startswith('global_load'):
            self.cls = 'vmem'
            if 'lds' in mods.split() or op.startswith('global_load_lds'):
                self.r = allr + [('s', 'm0')]
            else:
                self.w = R([0])
                self.r = R(range(1, n))
        elif op.startswith('buffer_store') or op.startswith('global_store'):
            self.cls = 'vmem'
            self.r = allr
        elif op.startswith('buffer_atomic') or op.startswith('global_atomic'):
            self.cls = 'vmem'
            self.r = allr
            if 'sc0' in mods.split():
                self.w = R([0])
        elif op.startswith('buffer_wbl2') or op.startswith('buffer_inv'):
            self.cls = 'vmem'
        elif op.startswith('s_load') or op.startswith('s_buffer_load'):
            self.cls = 'smem'
            self.w = R([0])
            self.r = R(range(1, n))
        elif op in ('s_memtime', 's_memrealtime'):
            self.cls = 'smem'
            self.w = R([0])
        elif op in ('s_waitcnt', 's_barrier', 's_nop', 's_endpgm', 's_setprio', 's_sleep', 's_branch') or op.startswith('s_cbranch'):
            self.cls = 'ctl'
        elif op.startswith('s_cmp') or op.startswith('s_bitcmp'):
            self.cls = 'salu'
            self.r = allr
        elif op.startswith('s_'):
            self.cls = 'salu'
            self.w = R([0])
            self.r = R(range(1, n))
            if 'saveexec' in op:
                self.w += [('s', 'exec')]
                self.r += [('s', 'exec')]
            if op in ('s_addk_i32', 's_mulk_i32'):
                self.r += self.w
        elif op.startswith('v_'):
            self.cls = 'valu'
            if op.startswith('v_cmp'):
                self.w = R([0])
                self.r = R(range(1, n))
            elif op.startswith('v_permlane') and 'swap' in op:
                self.w = R([0, 1])
                self.r = R([0, 1])
            elif op.startswith(('v_add_co', 'v_sub_co', 'v_addc_co', 'v_subb_co', 'v_subrev_co', 'v_div_scale')):
                self.w = R([0, 1])
                self.r = R(range(2, n))
            else:
                self.w = R([0])
                self.r = R(range(1, n))
                if op.startswith(('v_fmac', 'v_mac', 'v_pk_fmac', 'v_dot2c', 'v_writelane')):
                    self.r += self.w
                if op.startswith('v_cndmask') and n == 3:
                    self.r += [('s', 'vcc')]
            if 'dpp' in op or 'row_' in mods or 'quad_perm' in mods:
                self.r += self.w if 'bound_ctrl' not in mods else []
        else:
            raise ValueError('unknown instruction: ' + self.text)

    def is_trans(self):
        return self.op.replace('_e32', '').replace('_e64', '') in TRANS

    def is_dpp(self):
        return 'dpp' in self.op or 'row_' in self.mods or 'quad_perm' in self.mods

    def is_dma(self):
        return self.cls == 'vmem' and ('lds' in self.mods.split() or self.op.startswith('global_load_lds'))


class Label:
    def __init__(self, name):
        self.name = name


class Raw:
    def __init__(self, text):
        self.text = text


class Loop:
    def __init__(self, body, count):
        self.body = body
        self.count = count


class WaitVm:
    def __init__(self, tag):
        self.tag = tag
        self.n = None


class Fence:
    pass


class Block:
    def __init__(self):
        self.items = []
        self._stack = [self.items]
        self._lab = 0

    def __call__(self, text, tag=None):
        out = None
        for line in text.strip().split('\n'):
            line = line.strip()
            if not line or line.startswith(';'):
                continue
            if line.endswith(':'):
                self._stack[-1].append(Label(line[:-1]))
            else:
                out = Ins(line, tag)
                self._stack[-1].append(out)
        return out

    def add(self, item):
        self._stack[-1].append(item)

    def label(self, name):
        self._stack[-1].append(Label(name))

    def waitvm(self, tag):
        self._stack[-1].append(WaitVm(tag))

    def fence(self):
        self('s_waitcnt vmcnt(0) lgkmcnt(0)')

    def loop_begin(self):
        self._stack.append([])

    def loop_end(self, count):
        body = self._stack.pop()
        self._stack[-1].append(Loop(body, count))


def _trace(items, reps=3):
    out = []
    for it in items:
        if isinstance(it, Loop):
            for _ in range(min(it.count, reps)):
                out.extend(_trace(it.body, reps))
        else:
            out.append(it)
    return out


def _parse_wait(ins):
    vm = re.search(r'vmcnt\((\d+)\)', ins.text)
    lg = re.search(r'lgkmcnt\((\d+)\)', ins.text)
    return (int(vm.group(1)) if vm else None, int(lg.group(1)) if lg else None)


def insert_waits(items):
    changed = True
    rounds = 0
    while changed:
        changed = False
        rounds += 1
        assert rounds < 50
        vmq, lgq = [], []
        for it in _trace(items):
            if isinstance(it, WaitVm):
                idx = None
                for i, (q, _) in enumerate(vmq):
                    if q.tag == it.tag:
                        idx = i
                need = None if idx is None else len(vmq) - 1 - idx
                if need is not None and (it.n is None or need < it.n):
                    it.n = need
                    changed = True
                if it.n is not None:
                    del vmq[:max(0, len(vmq) - it.n)]
                continue
            if not isinstance(it, Ins):
                continue
            touched = set(it.r) | set(it.w)
            if it.op == 's_waitcnt':
                vm, lg = _parse_wait(it)
                if vm is not None:
                    del vmq[:max(0, len(vmq) - vm)]
                if lg is not None:
                    if lg == 0:
                        lgq.clear()
                    elif not any(q.cls == 'smem' for q, _ in lgq):
                        del lgq[:max(0, len(lgq) - lg)]
                continue
            need = None
            for i, (q, d) in enumerate(vmq):
                if d & touched:
                    need = len(vmq) - 1 - i
            if need is not None and (it.vm_wait is None or need < it.vm_wait):
                it.vm_wait = need
                changed = True
            if it.vm_wait is not None:
                del vmq[:max(0, len(vmq) - it.vm_wait)]
            need = None
            for i, (q, d) in enumerate(lgq):
                if d & touched:
                    need = len(lgq) - 1 - i
                    if any(x.cls == 'smem' for x, _ in lgq):
                        need = 0
            if need is not None and (it.lgkm_wait is None or need < it.lgkm_wait):
                it.lgkm_wait = need
                changed = True
            if it.lgkm_wait is not None:
                if it.lgkm_wait == 0:
                    lgq.clear()
                else:
                    del lgq[:max(0, len(lgq) - it.lgkm_wait)]
            if it.cls == 'vmem':
                vmq.append((it, set(it.w)))
                if len(vmq) > 63:
                    del vmq[0]
            elif it.cls in ('ds', 'smem'):
                lgq.append((it, set(it.w)))
            if it.op == 's_endpgm':
                vmq.clear(); lgq.clear()


def _states(it):
    n = 0
    if isinstance(it, Ins):
        if it.op == 's_nop':
            n = int(it.ops[0]) + 1
        else:
            n = 1
        if it.vm_wait is not None or it.lgkm_wait is not None:
            n += 1
        n += it.nops
    elif isinstance(it, WaitVm):
        n = 1 if it.n is not None else 0
    return n


def required_gap(p, c):
    need = 0
    pw, pr = set(p.w), set(p.r)
    cr, cw = set(c.r), set(c.w)
    vreg = lambda s: {x for x in s if x[0] in 'va'}
    sreg = lambda s: {x for x in s if x[0] == 's'}
    if p.cls == 'mfma':
        big = p.passes == 8
        if c.cls == 'mfma':
            if pw & set(c.srcab):
                need = max(need, 12 if big else 8)
            if pw & set(c.srcc):
                if not (set(c.srcc) == pw and c.passes == p.passes):
                    need = max(need, 10 if big else 6)
            elif pw & cw:
                need = max(need, 10 if big else 6)
        elif c.cls in ('valu', 'vmem', 'ds'):
            if pw & (cr | cw):
                need = max(need, 12 if big else 8)
            if c.cls == 'valu' and set(p.srcc) & cw:
                need = max(need, 7 if big else 3)
    if p.cls == 'valu':
        if c.cls == 'mfma' and vreg(pw) & cr:
            need = max(need, 2)
        if c.cls == 'vmem' and sreg(pw) & cr:
            need = max(need, 5)
        if c.cls == 'valu' and sreg(pw) & cr:
            need = max(need, 4 if c.op.startswith(('v_readlane', 'v_writelane')) else 2)
        if c.cls in ('salu', 'smem') and sreg(pw) & cr:
            need = max(need, 3)
        if c.cls == 'valu' and vreg(pw) & cr:
            if c.op.startswith(('v_readfirstlane', 'v_readlane')):
                need = max(need, 1)
            if c.op.startswith('v_permlane') or c.is_dpp():
                need = max(need, 2)
            if p.is_trans() and not c.is_trans():
                need = max(need, 1)
        if p.is_trans() and c.cls in ('vmem', 'ds') and vreg(pw) & cr:
            need = max(need, 1)
    if p.cls == 'vmem' and ('store' in p.op or 'atomic' in p.op) and ('x4' in p.op or 'x3' in p.op):
        data = set(regs_of(p.ops[0])) if p.op.startswith('buffer') else set(regs_of(p.ops[1]))
        if data & cw:
            need = max(need, 2)
    if p.cls == 'salu' and ('s', 'm0') in pw and c.is_dma():
        need = max(need, 1)
    if p.cls == 'salu' and ('s', 'exec') in pw and c.cls == 'valu' and (c.is_dpp() or c.op.startswith('v_permlane')):
        need = max(need, 1)
    return need


def insert_nops(items, log=None):
    changed = True
    rounds = 0
    while changed:
        changed = False
        rounds += 1
        assert rounds < 50
        tr = [x for x in _trace(items) if isinstance(x, (Ins, WaitVm))]
        for i, c in enumerate(tr):
            if not isinstance(c, Ins):
                continue
            pre = c.nops + (1 if (c.vm_wait is not None or c.lgkm_wait is not None) else 0)
            dist = pre
            j = i - 1
            while j >= 0 and dist < 12:
                p = tr[j]
                if isinstance(p, Ins):
                    need = required_gap(p, c)
                    if need > dist:
                        c.nops += need - dist
                        if log is not None:
                            log.append('nop +%d before "%s" (after "%s")' % (need - dist, c.text, p.text))
                        dist = need
                        changed = True
                dist += _states(p)
                j -= 1


def _nop_text(n):
    out = []
    while n > 0:
        k = min(n, 16)
        out.append('  s_nop %d' % (k - 1))
        n -= k
    return out


def emit(items, out):
    for it in items:
        if isinstance(it, Loop):
            emit(it.body, out)
        elif isinstance(it, Label):
            out.append(it.name + ':')
        elif isinstance(it, Raw):
            out.append(it.text)
        elif isinstance(it, WaitVm):
            if it.n is not None:
                out.append('  s_waitcnt vmcnt(%d)' % it.n)
        else:
            w = []
            if it.vm_wait is not None:
                w.append('vmcnt(%d)' % it.vm_wait)
            if it.lgkm_wait is not None:
                w.append('lgkmcnt(%d)' % min(it.lgkm_wait, 15))
            out.extend(_nop_text(it.nops))
            if w:
                out.append('  s_waitcnt ' + ' '.join(w))
            out.append('  ' + it.text)


def finalize(block, log=None):
    insert_waits(block.items)
    insert_nops(block.items, log)
    out = []
    emit(block.items, out)
    return '\n'.join(out) + '\n'


def kernel_header(name):
    return '.globl %s\n.p2align 8\n.type %s,@function\n%s:\n' % (name, name, name)


def kernel_descriptor(name, vgpr, agpr=0, sgpr=102):
    acc = (vgpr + 3) // 4 * 4
    tot = acc + agpr if agpr else vgpr
    return """.p2align 6
.amdhsa_kernel %s
  .amdhsa_next_free_vgpr %d
  .amdhsa_next_free_sgpr %d
  .amdhsa_accum_offset %d
  .amdhsa_group_segment_fixed_size 0
  .amdhsa_kernarg_size 112
  .amdhsa_user_sgpr_count 2
  .amdhsa_user_sgpr_kernarg_segment_ptr 1
  .amdhsa_system_sgpr_workgroup_id_x 1
  .amdhsa_float_denorm_mode_32 3
.end_amdhsa_kernel
""" % (name, tot, sgpr, acc)
```

```python
from asm import *

KNAME = 'adaLN_cond__sliding_block_cached__glu_gated_bilinear__prompt'

A_X, A_K, A_V, A_WQ, A_WO, B_X, B_WG, B_WU, B_WD, A_C, W_MOD, D_OUT, D_DBG, D_WS = [8 * i for i in range(14)]

WS_MOD = 0x0
WS_H = 0x100000
WS_O = 0x400000
WS_PART = 0x1400000
WS_X1 = 0x2400000
WS_H2 = 0x2600000
WS_HH = 0x2800000
WS_BYTES = 0x10000000

LOG2E = 1.4426950408889634
QSCALE = LOG2E / (128.0 ** 0.5)


def f32(x):
    import struct
    return '0x%08x' % struct.unpack('<I', struct.pack('<f', x))[0]


def srd(b, base, karg, nbytes):
    b('s_load_dwordx2 s[%d:%d], s[0:1], %d' % (base, base + 1, karg))


def finish_srd(b, base, nbytes):
    b('s_mov_b32 s%d, 0x%x' % (base + 2, nbytes))
    b('s_mov_b32 s%d, 0x20000' % (base + 3))


def exit_if_ge(b, n, label):
    b('s_cmp_ge_u32 s2, %d' % n)
    b('s_cbranch_scc1 %s' % label)


def row_ror8_add(b, dst, src):
    b('v_add_f32_dpp v%d, v%d, v%d row_ror:8 row_mask:0xf bank_mask:0xf' % (dst, src, src))


def xor16_32_add(b, x, tmp):
    b('v_mov_b32 v%d, v%d' % (tmp, x))
    b('v_permlane16_swap_b32 v%d, v%d' % (x, tmp))
    b('v_add_f32 v%d, v%d, v%d' % (x, x, tmp))
    b('v_mov_b32 v%d, v%d' % (tmp, x))
    b('v_permlane32_swap_b32 v%d, v%d' % (x, tmp))
    b('v_add_f32 v%d, v%d, v%d' % (x, x, tmp))
```

```python
from common import *


def k0(name):
    b = Block()
    exit_if_ge(b, 96, name + '_end')
    srd(b, 8, A_C, 0); srd(b, 12, W_MOD, 0); srd(b, 16, D_WS, 0)
    b('v_and_b32 v1, 3, v0')
    b('v_lshrrev_b32 v2, 2, v0')
    b('v_lshlrev_b32 v3, 4, v2')
    b('s_mov_b32 s20, %d' % (8 * 6144))
    b('v_mul_lo_u32 v4, v2, s20')
    b('v_lshlrev_b32 v5, 4, v1')
    b('v_add_u32 v4, v4, v5')
    b('s_lshl_b32 s21, s2, 6')
    b('s_waitcnt lgkmcnt(0)')
    finish_srd(b, 8, 1024); finish_srd(b, 12, 512 * 6144); finish_srd(b, 16, WS_BYTES)
    b('buffer_load_dwordx4 v[8:11], v3, s[8:11], 0 offen')
    for i in range(8):
        if i:
            b('s_add_u32 s21, s21, 6144')
        b('buffer_load_dwordx4 v[%d:%d], v4, s[12:15], s21 offen' % (32 + 4 * i, 35 + 4 * i))
    for p in range(4):
        b('v_lshlrev_b32 v%d, 16, v%d' % (16 + 2 * p, 8 + p))
        b('v_and_b32 v%d, 0xffff0000, v%d' % (17 + 2 * p, 8 + p))
    for i in range(8):
        b('v_mul_f32 v%d, %s, v%d' % (24 + i, f32(-LOG2E), 16 + i))
    for i in range(8):
        b('v_exp_f32 v%d, v%d' % (24 + i, 24 + i))
    for i in range(8):
        b('v_add_f32 v%d, 1.0, v%d' % (24 + i, 24 + i))
    for i in range(8):
        b('v_rcp_f32 v%d, v%d' % (24 + i, 24 + i))
    for i in range(8):
        b('v_mul_f32 v%d, v%d, v%d' % (16 + i, 16 + i, 24 + i))
    for p in range(4):
        b('v_cvt_pk_bf16_f32 v%d, v%d, v%d' % (24 + p, 16 + 2 * p, 17 + 2 * p))
    for p in range(4):
        b('v_lshlrev_b32 v%d, 16, v%d' % (16 + 2 * p, 24 + p))
        b('v_and_b32 v%d, 0xffff0000, v%d' % (17 + 2 * p, 24 + p))
    for i in range(8):
        for p in range(4):
            w = 32 + 4 * i + p
            b('v_lshlrev_b32 v72, 16, v%d' % w)
            b('v_and_b32 v73, 0xffff0000, v%d' % w)
            if i == 0:
                b('v_mul_f32 v%d, v%d, v72' % (64 + 2 * p, 16 + i))
                b('v_mul_f32 v%d, v%d, v73' % (65 + 2 * p, 16 + i))
            else:
                b('v_fmac_f32 v%d, v%d, v72' % (64 + 2 * p, 16 + i))
                b('v_fmac_f32 v%d, v%d, v73' % (65 + 2 * p, 16 + i))
    b('v_lshlrev_b32 v6, 7, v2')
    b('v_lshlrev_b32 v7, 5, v1')
    b('v_add_u32 v6, v6, v7')
    b('ds_write_b128 v6, v[64:67]')
    b('ds_write_b128 v6, v[68:71] offset:16')
    b('s_waitcnt lgkmcnt(0)')
    b('s_barrier')
    b('v_and_b32 v1, 31, v0')
    b('v_lshrrev_b32 v2, 5, v0')
    b('v_lshlrev_b32 v6, 10, v2')
    b('v_lshlrev_b32 v7, 2, v1')
    b('v_add_u32 v6, v6, v7')
    for i in range(8):
        b('ds_read_b32 v%d, v6 offset:%d' % (32 + i, 128 * i))
    b('v_add_f32 v32, v32, v33')
    for i in range(2, 8):
        b('v_add_f32 v32, v32, v%d' % (32 + i))
    b('v_lshlrev_b32 v6, 7, v2')
    b('v_add_u32 v6, v6, v7')
    b('ds_write_b32 v6, v32 offset:8192')
    b('s_waitcnt lgkmcnt(0)')
    b('s_barrier')
    b('v_cmp_gt_u32 vcc, 32, v0')
    b('s_and_saveexec_b64 s[22:23], vcc')
    b('s_cbranch_execz %s_end' % name)
    for i in range(8):
        b('ds_read_b32 v%d, v7 offset:%d' % (32 + i, 8192 + 128 * i))
    b('v_add_f32 v32, v32, v33')
    for i in range(2, 8):
        b('v_add_f32 v32, v32, v%d' % (32 + i))
    b('v_cvt_pk_bf16_f32 v32, v32, v32')
    b('v_and_b32 v32, 0xffff0000, v32')
    b('s_lshl_b32 s21, s2, 7')
    b('buffer_store_dword v32, v7, s[16:19], s21 offen offset:%d' % WS_MOD)
    b.label(name + '_end')
    b('s_endpgm')
    return b, dict(vgpr=80, agpr=0, lds=9216 + 1024, grid=96, block=256)


def ln_thread_ids(b):
    b('v_and_b32 v1, 7, v0')
    b('v_lshrrev_b32 v2, 3, v0')
    b('s_lshr_b32 s20, s2, 2')
    b('s_and_b32 s21, s2, 3')
    b('s_lshl_b32 s21, s21, 3')


def ln_x_offsets(b, dst):
    b('v_lshlrev_b32 v%d, 10, v1' % dst)
    b('v_lshrrev_b32 v5, 1, v2')
    b('v_lshlrev_b32 v5, 6, v5')
    b('v_add_u32 v%d, v%d, v5' % (dst, dst))
    b('v_and_b32 v5, 1, v2')
    b('v_lshlrev_b32 v5, 3, v5')
    b('v_add_u32 v%d, v%d, v5' % (dst, dst))


def ln_mod_offsets(b, dst):
    b('v_lshrrev_b32 v5, 1, v2')
    b('v_lshlrev_b32 v%d, 7, v5' % dst)
    b('v_and_b32 v5, 1, v2')
    b('v_lshlrev_b32 v5, 4, v5')
    b('v_add_u32 v%d, v%d, v5' % (dst, dst))


def ln_bf_offsets(b, dst):
    b('v_lshrrev_b32 v5, 1, v2')
    b('v_lshlrev_b32 v%d, 11, v5' % dst)
    b('v_and_b32 v5, 1, v2')
    b('v_lshlrev_b32 v5, 9, v5')
    b('v_add_u32 v%d, v%d, v5' % (dst, dst))
    b('v_add_u32 v5, s21, v1')
    b('v_lshlrev_b32 v5, 4, v5')
    b('v_add_u32 v%d, v%d, v5' % (dst, dst))


def row_reduce(b, x, tmp, lds_off, wave_v, r_v):
    b('v_add_f32_dpp v%d, v%d, v%d row_ror:8 row_mask:0xf bank_mask:0xf' % (tmp, x, x))
    b('v_mov_b32 v%d, v%d' % (x, tmp))
    xor16_32_add(b, x, tmp)
    b('ds_write_b32 v%d, v%d offset:%d' % (wave_v, x, lds_off))
    b('s_waitcnt lgkmcnt(0)')
    b('s_barrier')
    b('ds_read_b128 v[%d:%d], v%d offset:%d' % (tmp, tmp + 3, r_v, lds_off))
    b('v_add_f32 v%d, v%d, v%d' % (tmp, tmp, tmp + 1))
    b('v_add_f32 v%d, v%d, v%d' % (tmp + 2, tmp + 2, tmp + 3))
    b('v_add_f32 v%d, v%d, v%d' % (x, tmp, tmp + 2))


def layernorm16(b, X, T):
    b('v_lshrrev_b32 v%d, 6, v0' % (T + 6))
    b('v_lshlrev_b32 v%d, 2, v%d' % (T + 6, T + 6))
    b('v_lshlrev_b32 v%d, 4, v1' % (T + 7))
    b('v_add_u32 v%d, v%d, v%d' % (T + 6, T + 6, T + 7))
    S = T + 4
    b('v_add_f32 v%d, v%d, v%d' % (S, X, X + 1))
    for i in range(2, 16):
        b('v_add_f32 v%d, v%d, v%d' % (S, S, X + i))
    row_reduce(b, S, T, 0, T + 6, T + 7)
    b('v_mul_f32 v%d, %s, v%d' % (S, f32(1.0 / 512), S))
    for i in range(16):
        b('v_sub_f32 v%d, v%d, v%d' % (X + i, X + i, S))
    b('v_mul_f32 v%d, v%d, v%d' % (S, X, X))
    for i in range(1, 16):
        b('v_fmac_f32 v%d, v%d, v%d' % (S, X + i, X + i))
    row_reduce(b, S, T, 128, T + 6, T + 7)
    b('v_mov_b32 v%d, %s' % (T, f32(1e-5)))
    b('v_fmac_f32 v%d, %s, v%d' % (T, f32(1.0 / 512), S))
    b('v_rsq_f32 v%d, v%d' % (T, T))
    for i in range(16):
        b('v_mul_f32 v%d, v%d, v%d' % (X + i, X + i, T))


def k1(name):
    b = Block()
    exit_if_ge(b, 256, name + '_end')
    srd(b, 8, A_X, 0); srd(b, 16, D_WS, 0)
    ln_thread_ids(b)
    ln_x_offsets(b, 3)
    ln_mod_offsets(b, 4)
    ln_bf_offsets(b, 6)
    b('s_lshl_b32 s22, s2, 13')
    b('s_waitcnt lgkmcnt(0)')
    finish_srd(b, 8, 2048 * 1024); finish_srd(b, 16, WS_BYTES)
    for j in range(4):
        b('buffer_load_dwordx2 v[%d:%d], v3, s[8:11], s22 offen offset:%d' % (8 + 2 * j, 9 + 2 * j, 16 * j))
    for j in range(4):
        b('buffer_load_dwordx4 v[%d:%d], v4, s[16:19], 0 offen offset:%d' % (48 + 4 * j, 51 + 4 * j, WS_MOD + 32 * j))
        b('buffer_load_dwordx4 v[%d:%d], v4, s[16:19], 0 offen offset:%d' % (64 + 4 * j, 67 + 4 * j, WS_MOD + 2048 + 32 * j))
    X = 16
    for p in range(8):
        b('v_lshlrev_b32 v%d, 16, v%d' % (X + 2 * p, 8 + p))
        b('v_and_b32 v%d, 0xffff0000, v%d' % (X + 2 * p + 1, 8 + p))
    layernorm16(b, X, 32)
    for i in range(16):
        b('v_add_f32 v%d, 1.0, v%d' % (64 + i, 64 + i))
    for p in range(8):
        b('v_cvt_pk_bf16_f32 v%d, v%d, v%d' % (40, 64 + 2 * p, 65 + 2 * p))
        b('v_lshlrev_b32 v%d, 16, v40' % (64 + 2 * p))
        b('v_and_b32 v%d, 0xffff0000, v40' % (65 + 2 * p))
    for i in range(16):
        b('v_fma_f32 v%d, v%d, v%d, v%d' % (X + i, X + i, 64 + i, 48 + i))
        b('v_mul_f32 v%d, %s, v%d' % (X + i, f32(QSCALE), X + i))
    for p in range(8):
        b('v_cvt_pk_bf16_f32 v%d, v%d, v%d' % (8 + p, X + 2 * p, X + 2 * p + 1))
    b('s_lshl_b32 s22, s20, 15')
    b('s_add_u32 s22, s22, 0x%x' % WS_H)
    b('buffer_store_dwordx4 v[8:11], v6, s[16:19], s22 offen')
    b('buffer_store_dwordx4 v[12:15], v6, s[16:19], s22 offen offset:1024')
    b.label(name + '_end')
    b('s_endpgm')
    return b, dict(vgpr=80, agpr=0, lds=256, grid=256, block=256)
```

```python
from common import *

S_WQ, S_K, S_V, S_WS = 8, 12, 16, 20
S_HEAD, S_QT, S_W, S_ROT = 24, 25, 26, 27
S_W8K, S_W4K = 28, 29
S_WB = 32
S_HB = 36
S_T0, S_T1, S_T2 = 40, 41, 42
S_OB = 43
S_MODE = 44
S_KVB = 45
S_CH = 46
S_STAMP = 60

V_WOFF = 2
V_KOFF = 6
V_VOFF = 10
V_H = 11
V_WA = 16
V_VA = 20
V_KA = 24
V_L = 32
V_LANE16 = 36
V_OOFF = 37
V_T = 40
V_Q = 64
V_ACC = 128
V_S = 128
V_NEG = 160
V_P = 192
V_M = 208
A_O = 0
A_KF = 128
A_VF = 160

SLOT = 32768
MAX_OFF = 24.0
L_LIMIT = 2.0 ** 80


def vr(base, n=1):
    return 'v%d' % base if n == 1 else 'v[%d:%d]' % (base, base + n - 1)


def ar(base, n=1):
    return 'a%d' % base if n == 1 else 'a[%d:%d]' % (base, base + n - 1)


class Sched:
    def __init__(self):
        self.m = {}
        self.f = {}

    def mfma(self, slot, text):
        assert slot not in self.m
        self.m[slot] = text

    def add(self, slot, item, tag=None):
        self.f.setdefault(slot, []).append((item, tag))

    def emit(self, b, lo, hi):
        for s in range(lo, hi):
            if s in self.m:
                b(self.m[s])
            for item, tag in self.f.get(s, []):
                if callable(item):
                    item(b)
                else:
                    b(item, tag)


def kv_slot(i):
    return (i + 4) % 5


def dma_kv(i, w4k=S_W4K):
    out = []
    base = kv_slot(i) * SLOT
    out.append(('s_add_u32 s%d, s%d, %d' % (S_CH, S_QT, i), None))
    out.append(('s_and_b32 s%d, s%d, 7' % (S_CH, S_CH), None))
    out.append(('s_add_u32 m0, s%d, %d' % (w4k, base), None))
    out.append(('s_lshl_b32 s%d, s%d, 14' % (S_CH, S_CH), None))
    out.append(('s_add_u32 s%d, s%d, s%d' % (S_CH, S_CH, w4k), None))
    for ii in range(4):
        out.append(('buffer_load_dwordx4 v%d, s[%d:%d], s%d offen offset:%d lds' % (V_KOFF + ii, S_K, S_K + 3, S_CH, ii * 1024), 'C%d' % i))
    out.append(('s_add_u32 m0, s%d, %d' % (w4k, base + 16384), None))
    for ii in range(4):
        out.append(('buffer_load_dwordx4 v%d, s[%d:%d], s%d offen offset:%d lds' % (V_VOFF, S_V, S_V + 3, S_CH, ii * 1024), 'C%d' % i))
    return out


def dma_w(p):
    out = []
    for half in range(2):
        out.append(('s_add_u32 m0, s%d, %d' % (S_W8K, p * SLOT + half * 4096), None))
        if half:
            out.append(('s_add_u32 s%d, s%d, %d' % (S_T0, S_WB + p, 4 * 32768), None))
        for ii in range(4):
            out.append(('buffer_load_dwordx4 v%d, s[%d:%d], s%d offen offset:%d lds' %
                        (V_WOFF + ii, S_WQ, S_WQ + 3, S_T0 if half else S_WB + p, ii * 1024), 'W%d' % p))
    return out


def h_load(s):
    p = s // 8
    out = []
    for qq in range(2):
        out.append(('buffer_load_dwordx4 %s, v%d, s[%d:%d], s%d offen offset:%d' %
                    (ar(8 * s + 4 * qq, 4), V_H + 2 * qq + ((s & 7) >> 2), S_WS, S_WS + 3, S_HB + p, (s & 3) * 1024), None))
    return out


def stamp(b, i, on):
    if on:
        b('s_memtime s[%d:%d]' % (S_STAMP + 2 * i, S_STAMP + 2 * i + 1))
        b('s_waitcnt lgkmcnt(0)')


def setup(b):
    srd(b, S_WQ, A_WQ, 0); srd(b, S_K, A_K, 0); srd(b, S_V, A_V, 0); srd(b, S_WS, D_WS, 0)
    b('s_and_b32 s%d, s2, 7' % S_T0)
    b('s_lshr_b32 s%d, s2, 3' % S_T1)
    b('s_lshl_b32 s%d, s%d, 2' % (S_T0, S_T0))
    b('s_lshr_b32 s%d, s%d, 3' % (S_ROT, S_T1))
    b('s_add_u32 s%d, s%d, s%d' % (S_HEAD, S_T0, S_ROT))
    b('s_and_b32 s%d, s%d, 7' % (S_QT, S_T1))
    b('s_add_u32 s%d, s%d, s%d' % (S_ROT, S_ROT, S_QT))
    b('s_and_b32 s%d, s%d, 3' % (S_ROT, S_ROT))
    b('v_lshrrev_b32 v1, 6, v0')
    b('v_and_b32 v0, 63, v0')
    b('v_readfirstlane_b32 s%d, v1' % S_W)
    T = V_T
    b('v_lshrrev_b32 v%d, 4, v0' % T)
    b('v_and_b32 v%d, 15, v0' % (T + 1))
    b('v_lshlrev_b32 v%d, 2, v%d' % (T + 2, T))
    b('v_xor_b32 v%d, v%d, v%d' % (T + 2, T + 2, T + 1))
    b('v_lshlrev_b32 v%d, 4, v%d' % (T + 2, T + 2))
    b('v_lshlrev_b32 v%d, 8, v%d' % (T + 3, T))
    b('v_add_u32 v%d, v%d, v%d' % (V_VOFF, T + 2, T + 3))
    b('v_lshlrev_b32 v%d, 13, v%d' % (T + 3, T))
    b('v_add_u32 v%d, v%d, v%d' % (V_WOFF, T + 2, T + 3))
    for ii in range(1, 4):
        b('v_add_u32 v%d, %d, v%d' % (V_WOFF + ii, ii * (32768 - 1024), V_WOFF))
    for ii in range(4):
        b('v_add_u32 v%d, %d, v%d' % (T + 2, 4 * ii, T))
        b('v_xor_b32 v%d, v%d, v%d' % (T + 2, T + 2, T + 1))
        b('v_lshlrev_b32 v%d, 4, v%d' % (T + 2, T + 2))
        b('v_lshlrev_b32 v%d, 8, v%d' % (T + 3, T))
        b('v_add_u32 v%d, v%d, v%d' % (V_KOFF + ii, T + 2, T + 3))
    b('v_lshlrev_b32 v%d, 4, v0' % V_LANE16)
    b('v_bfe_u32 v%d, v0, 4, 1' % (T + 2))
    b('v_lshlrev_b32 v%d, 17, v%d' % (V_OOFF, T + 2))
    b('v_lshrrev_b32 v%d, 5, v0' % (T + 2))
    b('v_lshlrev_b32 v%d, 9, v%d' % (T + 2, T + 2))
    b('v_add_u32 v%d, v%d, v%d' % (V_OOFF, V_OOFF, T + 2))
    b('v_and_b32 v%d, 15, v0' % (T + 2))
    b('v_lshlrev_b32 v%d, 4, v%d' % (T + 2, T + 2))
    b('v_add_u32 v%d, v%d, v%d' % (V_OOFF, V_OOFF, T + 2))
    for qq in range(2):
        for half in range(2):
            b('v_add_u32 v%d, %d, v%d' % (V_H + 2 * qq + half, qq * 32768 + half * 4096, V_LANE16))
    b('v_lshrrev_b32 v%d, 5, v0' % T)
    b('v_lshlrev_b32 v%d, 2, v%d' % (T + 1, T))
    b('v_bfe_u32 v%d, v0, 2, 2' % (T + 2))
    b('v_add_u32 v%d, v%d, v%d' % (T + 1, T + 1, T + 2))
    b('v_lshlrev_b32 v%d, 8, v%d' % (T + 1, T + 1))
    b('v_bfe_u32 v%d, v0, 4, 1' % (T + 3))
    b('v_lshlrev_b32 v%d, 5, v%d' % (T + 3, T + 3))
    b('v_add_u32 v%d, v%d, v%d' % (T + 1, T + 1, T + 3))
    b('v_and_b32 v%d, 3, v0' % (T + 3))
    b('v_lshlrev_b32 v%d, 3, v%d' % (T + 4, T + 3))
    b('v_and_b32 v%d, 1, v0' % (T + 5))
    b('v_lshlrev_b32 v%d, 4, v%d' % (T + 5, T + 5))
    b('v_bfe_u32 v%d, v0, 1, 1' % (T + 6))
    b('v_lshlrev_b32 v%d, 3, v%d' % (T + 6, T + 6))
    b('v_add_u32 v%d, v%d, v%d' % (T + 5, T + 5, T + 6))
    for db in range(4):
        b('v_xor_b32 v%d, %d, v%d' % (T + 6, db, T + 2))
        b('v_lshlrev_b32 v%d, 6, v%d' % (T + 6, T + 6))
        b('v_add_u32 v%d, v%d, v%d' % (T + 6, T + 6, T + 1))
        b('v_add_u32 v%d, v%d, v%d' % (V_VA + db, T + 6, T + 4))
        b('v_add_u32 v%d, v%d, v%d' % (V_WA + db, T + 6, T + 5))
    b('v_and_b32 v%d, 31, v0' % (T + 1))
    b('v_and_b32 v%d, 15, v0' % (T + 2))
    b('v_xor_b32 v%d, v%d, v%d' % (T + 2, T + 2, T))
    b('v_lshlrev_b32 v%d, 8, v%d' % (T + 1, T + 1))
    for tt in range(8):
        b('v_xor_b32 v%d, %d, v%d' % (T + 3, 2 * tt, T + 2))
        b('v_lshlrev_b32 v%d, 4, v%d' % (T + 3, T + 3))
        b('v_add_u32 v%d, v%d, v%d' % (V_KA + tt, T + 3, T + 1))
    b('s_lshl_b32 s%d, s%d, 13' % (S_W8K, S_W))
    b('s_lshl_b32 s%d, s%d, 12' % (S_W4K, S_W))
    b('s_waitcnt lgkmcnt(0)')
    b('s_lshl_b32 s%d, s%d, 8' % (S_T0, S_HEAD))
    b('s_add_u32 s%d, s%d, s%d' % (S_WQ, S_WQ, S_T0))
    b('s_addc_u32 s%d, s%d, 0' % (S_WQ + 1, S_WQ + 1))
    b('s_sub_u32 s%d, %d, s%d' % (S_WQ + 2, 512 * 8192, S_T0))
    b('s_mov_b32 s%d, 0x20000' % (S_WQ + 3))
    b('s_lshl_b32 s%d, s%d, 19' % (S_T0, S_HEAD))
    b('s_add_u32 s%d, s%d, %d' % (S_T0, S_T0, 1536 * 256))
    for s in (S_K, S_V):
        b('s_add_u32 s%d, s%d, s%d' % (s, s, S_T0))
        b('s_addc_u32 s%d, s%d, 0' % (s + 1, s + 1))
        finish_srd(b, s, 512 * 256)
    finish_srd(b, S_WS, WS_BYTES)
    b('s_lshl_b32 s%d, s%d, 3' % (S_T0, S_QT))
    b('s_lshl_b32 s%d, s%d, 1' % (S_T1, S_W))
    b('s_add_u32 s%d, s%d, s%d' % (S_T0, S_T0, S_T1))
    b('s_lshl_b32 s%d, s%d, 15' % (S_T1, S_T0))
    b('s_add_u32 s%d, s%d, 0x%x' % (S_T1, S_T1, WS_H))
    b('s_lshl_b32 s%d, s%d, 18' % (S_T2, S_W))
    for p in range(4):
        b('s_add_u32 s%d, s%d, %d' % (S_CH, S_ROT, p))
        b('s_and_b32 s%d, s%d, 3' % (S_CH, S_CH))
        b('s_lshl_b32 s%d, s%d, 20' % (S_WB + p, S_CH))
        b('s_add_u32 s%d, s%d, s%d' % (S_WB + p, S_WB + p, S_T2))
        b('s_lshl_b32 s%d, s%d, 13' % (S_HB + p, S_CH))
        b('s_add_u32 s%d, s%d, s%d' % (S_HB + p, S_HB + p, S_T1))
    b('s_lshl_b32 s%d, s%d, 18' % (S_OB, S_T0))
    b('s_lshl_b32 s%d, s%d, 12' % (S_T1, S_HEAD))
    b('s_add_u32 s%d, s%d, s%d' % (S_OB, S_OB, S_T1))
    b('s_add_u32 s%d, s%d, 0x%x' % (S_OB, S_OB, WS_O))
    b('s_mov_b32 s%d, 0' % S_MODE)


def qproj(b, stamps):
    H_AHEAD = 6
    sc = Sched()
    for t, g in dma_w(0): b(t, g)
    for s in range(0, 3):
        for t, g in h_load(s): b(t, g)
    w1 = dma_w(1)
    for t, g in w1[:5]: b(t, g)
    for s in range(3, H_AHEAD):
        for t, g in h_load(s): b(t, g)
    b.waitvm('W0')
    b('s_barrier')
    stamp(b, 1, stamps)

    def a_reads(s):
        buf = V_Q + 16 * (s & 1)
        p = s // 8
        out = []
        for db in range(4):
            for jj in range(2):
                off = (p & 1) * SLOT + (s & 7) * 4096 + jj * 2048
                out.append('ds_read_b64_tr_b16 %s, v%d offset:%d' % (vr(buf + 4 * db + 2 * jj, 2), V_WA + db, off))
        return out
    for t in a_reads(0): b(t)
    stream = []
    for k, x in enumerate(w1[5:]):
        stream.append((k // 2, x))
    for p, first in ((2, 4), (3, 12)):
        for k, x in enumerate(dma_w(p)):
            stream.append((first + min(7, (k * 8) // len(dma_w(p))), x))
    for k, x in enumerate(dma_kv(0)):
        stream.append((20 + (k * 8) // len(dma_kv(0)), x))
    for s in range(32):
        base = 8 * s
        for db in range(4):
            for qq in range(2):
                d = vr(V_ACC + (db * 2 + qq) * 16, 16)
                sc.mfma(base + 2 * db + qq, 'v_mfma_f32_32x32x16_bf16 %s, %s, %s, %s' %
                        (d, vr(V_Q + 16 * (s & 1) + 4 * db, 4), ar(8 * s + 4 * qq, 4), '0' if s == 0 else d))
        if s + 1 < 32:
            if (s + 1) % 8 == 0:
                p = (s + 1) // 8
                sc.add(base, lambda bb, p=p: (bb.waitvm('W%d' % p), bb('s_barrier')))
                if p == 2:
                    for db in range(4):
                        sc.add(base, 'v_add_u32 v%d, 0x10000, v%d' % (V_WA + db, V_WA + db))
            for k, t in enumerate(a_reads(s + 1)):
                sc.add(base + k, t)
        if s + H_AHEAD < 32:
            for k, (t, g) in enumerate(h_load(s + H_AHEAD)):
                sc.add(base + 1 + 4 * k, t, g)
        k = 0
        for (st, (t, g)) in stream:
            if st == s:
                sc.add(base + 2 + (k % 6), t, g)
                k += 1
    sc.emit(b, 0, 256)
    for db in range(4):
        for qq in range(2):
            acc = V_ACC + (db * 2 + qq) * 16
            for tp in range(2):
                for k in range(4):
                    b('v_cvt_pk_bf16_f32 v%d, v%d, v%d' % (V_Q + qq * 32 + (2 * db + tp) * 4 + k, acc + 8 * tp + 2 * k, acc + 8 * tp + 2 * k + 1))


def k_read(tt, blk):
    return 'ds_read_b128 %s, v%d offset:%d' % (ar(A_KF + 4 * tt, 4), V_KA + tt, (blk & 1) * 8192)


def v_reads(f, blk):
    ks, db = f // 4, f % 4
    return ['ds_read_b64_tr_b16 %s, v%d offset:%d' % (ar(A_VF + 4 * f + 2 * jj, 2), V_VA + db, 16384 + (blk & 1) * 8192 + ks * 4096 + jj * 2048)
            for jj in range(2)]


def qk(qq, tt, first_c):
    s = vr(V_S + 16 * qq, 16)
    c = s if tt else first_c
    return 'v_mfma_f32_32x32x16_bf16 %s, %s, %s, %s' % (s, ar(A_KF + 4 * tt, 4), vr(V_Q + 32 * qq + 4 * tt, 4), c)


def pv(qq, f, first):
    ks, db = f // 4, f % 4
    o = ar(A_O + (db * 2 + qq) * 16, 16)
    return 'v_mfma_f32_32x32x16_bf16 %s, %s, %s, %s' % (o, ar(A_VF + 4 * f, 4), vr(V_P + 8 * qq + 4 * ks, 4), '0' if (first and ks == 0) else o)


def softmax_pair(qq, p, first=False):
    s0, s1 = V_S + 16 * qq + 2 * p, V_S + 16 * qq + 2 * p + 1
    la, lb = V_L + 2 * qq, V_L + 2 * qq + 1
    e = ['v_exp_f32 v%d, v%d' % (s0, s0), 'v_exp_f32 v%d, v%d' % (s1, s1)]
    if first and p == 0:
        a = ['v_mov_b32 v%d, v%d' % (la, s0), 'v_mov_b32 v%d, v%d' % (lb, s1)]
    else:
        a = ['v_add_f32 v%d, v%d, v%d' % (la, la, s0), 'v_add_f32 v%d, v%d, v%d' % (lb, lb, s1)]
    a.append('v_cvt_pk_bf16_f32 v%d, v%d, v%d' % (V_P + 8 * qq + p, s0, s1))
    return e, a


def half_swap(b, x, tmp, op):
    b('v_mov_b32 v%d, v%d' % (tmp, x))
    b('v_permlane32_swap_b32 v%d, v%d' % (x, tmp))
    b('%s v%d, v%d, v%d' % (op, x, x, tmp))


def attention(b, name, stamps):
    b.label(name + '_attn')
    for tt in range(8):
        b('v_add_u32 v%d, %d, v%d' % (V_KA + tt, kv_slot(0) * SLOT, V_KA + tt))
    for db in range(4):
        b('v_add_u32 v%d, %d, v%d' % (V_VA + db, kv_slot(0) * SLOT, V_VA + db))
    b.waitvm('C0')
    b('s_barrier')
    for tt in range(8):
        b(k_read(tt, 0))
    for i in (1, 2, 3):
        for t, g in dma_kv(i): b(t, g)
    for tt in range(8):
        for qq in range(2):
            b(qk(qq, tt, '0'))
        b(k_read(tt, 1))
    for f in range(8):
        for t in v_reads(f, 0): b(t)
    b('s_cmp_lg_u32 s%d, 0' % S_MODE)
    b('s_cbranch_scc1 %s_havemax' % name)
    for qq in range(2):
        S = V_S + 16 * qq
        M = V_M + qq
        b('v_max3_f32 v%d, v%d, v%d, v%d' % (M, S, S + 1, S + 2))
        for i in range(3, 15, 2):
            b('v_max3_f32 v%d, v%d, v%d, v%d' % (M, M, S + i, S + i + 1))
        b('v_max_f32 v%d, v%d, v%d' % (M, M, S + 15))
        half_swap(b, M, V_T + qq, 'v_max_f32')
        b('v_add_f32 v%d, %s, v%d' % (M, f32(MAX_OFF), M))
    b.label(name + '_havemax')
    b('s_nop 7')
    b('s_nop 3')
    for qq in range(2):
        for i in range(16):
            b('v_sub_f32 v%d, 0, v%d' % (V_NEG + 16 * qq + i, V_M + qq))
        for i in range(16):
            b('v_sub_f32 v%d, v%d, v%d' % (V_S + 16 * qq + i, V_S + 16 * qq + i, V_M + qq))
    for p in range(8):
        e, a = softmax_pair(0, p, first=True)
        for t in e + a: b(t)
    stamp(b, 3, stamps)

    sc = Sched()
    NB = 16
    for j in range(NB):
        base = 32 * j
        last = j == NB - 1
        for f in range(8):
            sc.mfma(base + f, pv(0, f, j == 0))
            sc.mfma(base + 16 + f, pv(1, f, j == 0))
        if not last:
            for tt in range(8):
                sc.mfma(base + 8 + tt, qk(0, tt, vr(V_NEG, 16)))
                sc.mfma(base + 24 + tt, qk(1, tt, vr(V_NEG + 16, 16)))
        for p in range(8):
            e, a = softmax_pair(1, p, first=(j == 0))
            for t in e: sc.add(base + 2 + 2 * p, t)
            for t in a: sc.add(base + 3 + 2 * p, t)
            if not last:
                e, a = softmax_pair(0, p)
                for t in e: sc.add(base + 18 + 2 * p, t)
                for t in a: sc.add(base + 19 + 2 * p, t)
        if j + 1 < NB:
            for f in range(8):
                for jj, t in enumerate(v_reads(f, j + 1)):
                    sc.add(base + 17 + 2 * f + jj, t)
        if j + 2 < NB:
            for tt in range(8):
                sc.add(base + 33 + tt, k_read(tt, j + 2))
        if j % 2 == 0 and j + 2 < NB:
            c = j // 2
            delta = (kv_slot(c + 1) - kv_slot(c)) * SLOT
            lit = '0x%x' % (delta & 0xffffffff)
            for tt in range(8):
                sc.add(base + 9 + tt, 'v_add_u32 v%d, %s, v%d' % (V_KA + tt, lit, V_KA + tt))
            for db in range(4):
                sc.add(base + 32 + 9 + db, 'v_add_u32 v%d, %s, v%d' % (V_VA + db, lit, V_VA + db))
            sc.add(base + 32, lambda bb, c=c: (bb.waitvm('C%d' % (c + 1)), bb('s_barrier')))
            if c + 4 < 8:
                ops = dma_kv(c + 4)
                for k, (t, g) in enumerate(ops):
                    sc.add(base + 32 + 9 + (k * 8) // len(ops), t, g)
    sc.emit(b, 0, 32 * NB + 2)
    stamp(b, 4, stamps)


def epilogue(b, name, stamps):
    T = V_T
    for qq in range(2):
        b('v_add_f32 v%d, v%d, v%d' % (V_L + 2 * qq, V_L + 2 * qq, V_L + 2 * qq + 1))
        half_swap(b, V_L + 2 * qq, T + qq, 'v_add_f32')
    b('s_cmp_lg_u32 s%d, 0' % S_MODE)
    b('s_cbranch_scc1 %s_noguard' % name)
    b('v_add_f32 v%d, v%d, v%d' % (T + 1, V_L, V_L + 2))
    b('v_mov_b32 v%d, %s' % (T + 2, f32(L_LIMIT)))
    b('v_cmp_nle_f32 vcc, v%d, v%d' % (T + 1, T + 2))
    b('v_mov_b32 v%d, 0' % (T + 3))
    b('s_cmp_lg_u64 vcc, 0')
    b('s_cselect_b32 s%d, 1, 0' % S_T0)
    b('v_mov_b32 v%d, s%d' % (T + 3, S_T0))
    b('s_lshl_b32 s%d, s%d, 2' % (S_T1, S_W))
    b('s_add_u32 s%d, s%d, %d' % (S_T1, S_T1, 2 * SLOT))
    b('v_mov_b32 v%d, s%d' % (T + 4, S_T1))
    b('ds_write_b32 v%d, v%d' % (T + 4, T + 3))
    b('s_waitcnt lgkmcnt(0)')
    b('s_barrier')
    b('v_mov_b32 v%d, %d' % (T + 4, 2 * SLOT))
    b('ds_read_b128 %s, v%d' % (vr(T + 8, 4), T + 4))
    b('v_or_b32 v%d, v%d, v%d' % (T + 8, T + 8, T + 9))
    b('v_or_b32 v%d, v%d, v%d' % (T + 10, T + 10, T + 11))
    b('v_or_b32 v%d, v%d, v%d' % (T + 8, T + 8, T + 10))
    b('v_readfirstlane_b32 s%d, v%d' % (S_T0, T + 8))
    b('s_cmp_lg_u32 s%d, 0' % S_T0)
    b('s_cbranch_scc1 %s_fallback' % name)
    b.label(name + '_noguard')
    for qq in range(2):
        b('v_rcp_f32 v%d, v%d' % (V_L + 2 * qq, V_L + 2 * qq))
    n = 0
    for qq in range(2):
        for db in range(4):
            o = A_O + (db * 2 + qq) * 16
            for tp in range(2):
                t0 = V_S + (n % 4) * 12
                n += 1
                for k in range(8):
                    b('v_accvgpr_read_b32 v%d, a%d' % (t0 + k, o + 8 * tp + k))
                for k in range(8):
                    b('v_mul_f32 v%d, v%d, v%d' % (t0 + k, t0 + k, V_L + 2 * qq))
                for k in range(4):
                    b('v_cvt_pk_bf16_f32 v%d, v%d, v%d' % (t0 + 8 + k, t0 + 2 * k, t0 + 2 * k + 1))
                if qq and db == 0 and tp == 0:
                    b('s_add_u32 s%d, s%d, %d' % (S_OB, S_OB, 262144))
                b('buffer_store_dwordx4 %s, v%d, s[%d:%d], s%d offen offset:%d' % (vr(t0 + 8, 4), V_OOFF, S_WS, S_WS + 3, S_OB, db * 1024 + tp * 256))


def fallback(b, name):
    b.label(name + '_fallback')
    b('s_waitcnt vmcnt(0) lgkmcnt(0)')
    b('s_barrier')
    cur = kv_slot(7) * SLOT
    for tt in range(8):
        b('v_add_u32 v%d, 0x%x, v%d' % (V_KA + tt, (-cur) & 0xffffffff, V_KA + tt))
    for db in range(4):
        b('v_add_u32 v%d, 0x%x, v%d' % (V_VA + db, (-cur) & 0xffffffff, V_VA + db))
    for qq in range(2):
        b('v_mov_b32 v%d, 0xff800000' % (V_M + qq))
    b('s_mov_b32 s%d, 0' % S_T2)
    b.label(name + '_fb_loop')
    b('s_lshl_b32 s%d, s%d, 14' % (S_CH, S_T2))
    b('s_add_u32 s%d, s%d, s%d' % (S_CH, S_CH, S_W4K))
    b('s_mov_b32 m0, s%d' % S_W4K)
    for ii in range(4):
        b('buffer_load_dwordx4 v%d, s[%d:%d], s%d offen offset:%d lds' % (V_KOFF + ii, S_K, S_K + 3, S_CH, ii * 1024))
    b('s_waitcnt vmcnt(0)')
    b('s_barrier')
    for blk in range(2):
        for tt in range(8):
            b(k_read(tt, blk))
        for tt in range(8):
            for qq in range(2):
                b(qk(qq, tt, '0'))
        for qq in range(2):
            for i in range(0, 16, 2):
                b('v_max3_f32 v%d, v%d, v%d, v%d' % (V_M + qq, V_M + qq, V_S + 16 * qq + i, V_S + 16 * qq + i + 1))
    b('s_waitcnt lgkmcnt(0)')
    b('s_barrier')
    b('s_add_u32 s%d, s%d, 1' % (S_T2, S_T2))
    b('s_cmp_lt_u32 s%d, 8' % S_T2)
    b('s_cbranch_scc1 %s_fb_loop' % name)
    for qq in range(2):
        half_swap(b, V_M + qq, V_T + qq, 'v_max_f32')
    b('s_mov_b32 s%d, 1' % S_MODE)
    for t, g in dma_kv(0): b(t)
    b('s_waitcnt vmcnt(0)')
    b('s_branch %s_attn' % name)


def k2(name, stamps=False):
    b = Block()
    exit_if_ge(b, 256, name + '_end')
    stamp(b, 0, stamps)
    if stamps:
        b('s_memrealtime s[%d:%d]' % (S_STAMP + 14, S_STAMP + 15))
        b('s_waitcnt lgkmcnt(0)')
    setup(b)
    qproj(b, stamps)
    stamp(b, 2, stamps)
    attention(b, name, stamps)
    epilogue(b, name, stamps)
    if stamps:
        stamp(b, 5, True)
        b('s_memrealtime s[%d:%d]' % (S_STAMP + 12, S_STAMP + 13))
        b('s_waitcnt lgkmcnt(0)')
        for i in range(1, 6):
            b('s_sub_u32 s%d, s%d, s%d' % (S_STAMP + 2 * i, S_STAMP + 2 * i, S_STAMP))
        for i in range(6):
            b('v_mov_b32 v%d, s%d' % (V_T + i, S_STAMP + 2 * (i + 1) if i < 5 else S_STAMP + 12))
        b('v_mov_b32 v%d, s%d' % (V_T + 6, S_STAMP + 14))
        b('v_mov_b32 v%d, s%d' % (V_T + 7, S_W))
        b('s_lshl_b32 s%d, s2, 2' % S_T0)
        b('s_add_u32 s%d, s%d, s%d' % (S_T0, S_T0, S_W))
        b('s_lshl_b32 s%d, s%d, 5' % (S_T0, S_T0))
        b('s_add_u32 s%d, s%d, 0x%x' % (S_T0, S_T0, 0x8000000))
        b('v_mov_b32 v%d, 0' % (V_T + 8))
        b('v_cmp_eq_u32 vcc, 0, v0')
        b('s_and_saveexec_b64 s[50:51], vcc')
        b('buffer_store_dwordx4 %s, v%d, s[%d:%d], s%d offen' % (vr(V_T, 4), V_T + 8, S_WS, S_WS + 3, S_T0))
        b('buffer_store_dwordx4 %s, v%d, s[%d:%d], s%d offen offset:16' % (vr(V_T + 4, 4), V_T + 8, S_WS, S_WS + 3, S_T0))
    b('s_endpgm')
    fallback(b, name)
    b.label(name + '_end')
    b('s_endpgm')
    return b, dict(vgpr=256, agpr=256, lds=163840, grid=256, block=256)
```

```python
from common import *
from k2 import Sched, vr, ar
from k01 import ln_thread_ids, layernorm16

MF = 'v_mfma_f32_16x16x32_bf16'


def k3(name):
    b = Block()
    S_WO, S_WS = 8, 12
    S_W, S_KS, S_QT, S_NT, S_ROT, S_W8K = 16, 17, 18, 19, 20, 21
    S_AB, S_BB, S_T0, S_T1, S_T2, S_PB = 22, 23, 24, 25, 26, 27
    S_AC, S_BC = 32, 40
    V_WOFF, V_B, V_A, V_T = 2, 10, 12, 20
    V_AF = 32
    V_ACC = 128
    SLOT, NSLOT = 32768, 4
    B_AHEAD = 5
    exit_if_ge(b, 256, name + '_end')
    srd(b, S_WO, A_WO, 0); srd(b, S_WS, D_WS, 0)
    b('s_and_b32 s%d, s2, 7' % S_T0)
    b('s_lshr_b32 s%d, s2, 3' % S_T1)
    b('s_lshr_b32 s%d, s%d, 1' % (S_KS, S_T0))
    b('s_and_b32 s%d, s%d, 1' % (S_T0, S_T0))
    b('s_lshl_b32 s%d, s%d, 3' % (S_T0, S_T0))
    b('s_lshr_b32 s%d, s%d, 2' % (S_QT, S_T1))
    b('s_and_b32 s%d, s%d, 3' % (S_NT, S_T1))
    b('s_lshl_b32 s%d, s%d, 1' % (S_ROT, S_NT))
    b('s_add_u32 s%d, s%d, s%d' % (S_ROT, S_ROT, S_QT))
    b('s_add_u32 s%d, s%d, s%d' % (S_QT, S_QT, S_T0))
    b('v_lshrrev_b32 v1, 6, v0')
    b('v_and_b32 v0, 63, v0')
    b('v_readfirstlane_b32 s%d, v1' % S_W)
    T = V_T
    b('v_lshrrev_b32 v%d, 4, v0' % T)
    b('v_and_b32 v%d, 15, v0' % (T + 1))
    b('v_lshlrev_b32 v%d, 1, v%d' % (T + 2, T))
    b('v_xor_b32 v%d, v%d, v%d' % (T + 2, T + 2, T + 1))
    b('v_lshlrev_b32 v%d, 4, v%d' % (T + 2, T + 2))
    b('v_lshlrev_b32 v%d, 10, v%d' % (T + 3, T))
    b('v_add_u32 v%d, v%d, v%d' % (V_WOFF, T + 2, T + 3))
    b('v_xor_b32 v%d, 128, v%d' % (V_WOFF + 4, V_WOFF))
    for ii in range(1, 4):
        b('v_add_u32 v%d, %d, v%d' % (V_WOFF + ii, ii * 3072, V_WOFF))
        b('v_add_u32 v%d, %d, v%d' % (V_WOFF + 4 + ii, ii * 3072, V_WOFF + 4))
    b('v_lshlrev_b32 v%d, 4, v0' % V_B)
    b('v_add_u32 v%d, %d, v%d' % (V_B + 1, 131072, V_B))
    b('v_bfe_u32 v%d, v0, 2, 2' % T)
    b('v_bfe_u32 v%d, v0, 4, 1' % (T + 1))
    b('v_lshrrev_b32 v%d, 5, v0' % (T + 2))
    b('v_lshlrev_b32 v%d, 4, v%d' % (T + 3, T + 1))
    b('v_lshlrev_b32 v%d, 2, v%d' % (T + 4, T + 2))
    b('v_add3_u32 v%d, v%d, v%d, v%d' % (T + 3, T + 3, T + 4, T))
    b('v_lshlrev_b32 v%d, 8, v%d' % (T + 3, T + 3))
    b('v_and_b32 v%d, 3, v0' % (T + 4))
    b('v_lshlrev_b32 v%d, 3, v%d' % (T + 4, T + 4))
    b('v_add_u32 v%d, v%d, v%d' % (T + 3, T + 3, T + 4))
    b('v_lshlrev_b32 v%d, 2, v%d' % (T + 1, T + 1))
    b('v_or_b32 v%d, v%d, v%d' % (T + 1, T + 1, T))
    for nb in range(8):
        b('v_xor_b32 v%d, %d, v%d' % (T + 4, nb, T + 1))
        b('v_lshlrev_b32 v%d, 5, v%d' % (T + 4, T + 4))
        b('v_add_u32 v%d, v%d, v%d' % (V_A + nb, T + 4, T + 3))
    b('s_lshl_b32 s%d, s%d, 13' % (S_W8K, S_W))
    b('s_waitcnt lgkmcnt(0)')
    finish_srd(b, S_WO, 4096 * 1024); finish_srd(b, S_WS, WS_BYTES)
    b('s_lshl_b32 s%d, s%d, 20' % (S_AB, S_KS))
    b('s_lshl_b32 s%d, s%d, 15' % (S_T0, S_W))
    b('s_add_u32 s%d, s%d, s%d' % (S_AB, S_AB, S_T0))
    b('s_lshl_b32 s%d, s%d, 8' % (S_T0, S_NT))
    b('s_add_u32 s%d, s%d, s%d' % (S_AB, S_AB, S_T0))
    b('s_lshl_b32 s%d, s%d, 3' % (S_T0, S_QT))
    b('s_lshl_b32 s%d, s%d, 1' % (S_T1, S_W))
    b('s_add_u32 s%d, s%d, s%d' % (S_T0, S_T0, S_T1))
    b('s_lshl_b32 s%d, s%d, 17' % (S_BB, S_T0))
    b('s_lshl_b32 s%d, s%d, 15' % (S_T1, S_KS))
    b('s_add_u32 s%d, s%d, s%d' % (S_BB, S_BB, S_T1))
    b('s_add_u32 s%d, s%d, 0x%x' % (S_BB, S_BB, WS_O))
    b('s_lshl_b32 s%d, s%d, 7' % (S_PB, S_KS))
    b('s_add_u32 s%d, s%d, s%d' % (S_PB, S_PB, S_T0))
    b('s_lshl_b32 s%d, s%d, 15' % (S_PB, S_PB))
    b('s_lshl_b32 s%d, s%d, 13' % (S_T1, S_NT))
    b('s_add_u32 s%d, s%d, s%d' % (S_PB, S_PB, S_T1))
    b('s_add_u32 s%d, s%d, 0x%x' % (S_PB, S_PB, WS_PART))
    for p in range(8):
        b('s_add_u32 s%d, s%d, %d' % (S_T0, S_ROT, p))
        b('s_and_b32 s%d, s%d, 7' % (S_T0, S_T0))
        b('s_lshl_b32 s%d, s%d, 17' % (S_T1, S_T0))
        b('s_add_u32 s%d, s%d, s%d' % (S_AC + p, S_AB, S_T1))
        b('s_lshl_b32 s%d, s%d, 12' % (S_T1, S_T0))
        b('s_add_u32 s%d, s%d, s%d' % (S_BC + p, S_BB, S_T1))

    def dma_w(p):
        out = []
        for half in range(2):
            out.append(('s_add_u32 m0, s%d, %d' % (S_W8K, (p % NSLOT) * SLOT + half * 4096), None))
            if half:
                out.append(('s_add_u32 s%d, s%d, %d' % (S_T2, S_AC + p, 16 * 1024), None))
            else:
                out.append(('s_nop 0', None))
            for ii in range(4):
                out.append(('buffer_load_dwordx4 v%d, s[%d:%d], s%d offen offset:%d lds' %
                            (V_WOFF + 4 * half + ii, S_WO, S_WO + 3, S_T2 if half else S_AC + p, ii * 1024), 'W%d' % p))
        return out

    def b_load(s):
        return [('buffer_load_dwordx4 %s, v%d, s[%d:%d], s%d offen offset:%d' %
                 (ar(8 * s + 4 * qq, 4), V_B + qq, S_WS, S_WS + 3, S_BC + s // 4, (s & 3) * 1024), None) for qq in range(2)]

    def a_reads(s):
        p = s // 4
        buf = V_AF + 32 * (s & 1)
        out = []
        for nb in range(8):
            for jj in range(2):
                off = ((p % NSLOT) & 1) * SLOT + (s & 3) * 8192 + jj * 2048
                out.append('ds_read_b64_tr_b16 %s, v%d offset:%d' % (vr(buf + 4 * nb + 2 * jj, 2), V_A + nb, off))
        return out

    NS = 32
    for t, g in dma_w(0): b(t, g)
    for s in range(0, 2):
        for t, g in b_load(s): b(t, g)
    for t, g in dma_w(1): b(t, g)
    for s in range(2, B_AHEAD):
        for t, g in b_load(s): b(t, g)
    b.waitvm('W0')
    b('s_barrier')
    for t in a_reads(0): b(t)
    sc = Sched()
    win = 0
    for s in range(NS):
        base = 16 * s
        for nb in range(8):
            for qq in range(2):
                d = vr(V_ACC + (nb * 2 + qq) * 4, 4)
                sc.mfma(base + 2 * nb + qq, '%s %s, %s, %s, %s' % (MF, d, vr(V_AF + 32 * (s & 1) + 4 * nb, 4), ar(8 * s + 4 * qq, 4), '0' if s == 0 else d))
        if s + 1 < NS:
            if (s + 1) % 4 == 0:
                p = (s + 1) // 4
                sc.add(base, lambda bb, p=p: (bb.waitvm('W%d' % p), bb('s_barrier')))
                nw = (p % NSLOT) >> 1
                if nw != win:
                    for nb in range(8):
                        sc.add(base, 'v_add_u32 v%d, 0x%x, v%d' % (V_A + nb, ((nw - win) * 65536) & 0xffffffff, V_A + nb))
                    win = nw
            for k, t in enumerate(a_reads(s + 1)):
                sc.add(base + k, t)
        if s + B_AHEAD < NS:
            for k, (t, g) in enumerate(b_load(s + B_AHEAD)):
                sc.add(base + 3 + 8 * k, t, g)
        p = s // 4 + 2
        if p < 8:
            ops = dma_w(p)
            lo = (s & 3) * len(ops) // 4
            hi = ((s & 3) + 1) * len(ops) // 4
            for k, (t, g) in enumerate(ops[lo:hi]):
                sc.add(base + 5 + 3 * k, t, g)
    sc.emit(b, 0, 16 * NS)
    b('v_lshlrev_b32 v%d, 4, v0' % V_T)
    for qq in range(2):
        for nb in range(8):
            if nb % 4 == 0:
                b('s_add_u32 s%d, s%d, %d' % (S_T0, S_PB, qq * 32768 + (nb // 4) * 4096))
            b('buffer_store_dwordx4 %s, v%d, s[%d:%d], s%d offen offset:%d' % (vr(V_ACC + (nb * 2 + qq) * 4, 4), V_T, S_WS, S_WS + 3, S_T0, (nb % 4) * 1024))
    b.label(name + '_end')
    b('s_endpgm')
    return b, dict(vgpr=256, agpr=256, lds=NSLOT * SLOT, grid=256, block=256)


def k3b(name):
    b = Block()
    exit_if_ge(b, 256, name + '_end')
    srd(b, 8, A_X, 0); srd(b, 16, D_WS, 0)
    b('v_and_b32 v1, 7, v0')
    b('v_lshrrev_b32 v2, 3, v0')
    b('v_and_b32 v3, 3, v2')
    b('v_lshrrev_b32 v4, 2, v2')
    b('s_lshr_b32 s20, s2, 1')
    b('s_and_b32 s21, s2, 1')
    b('s_lshl_b32 s21, s21, 3')
    b('v_lshlrev_b32 v5, 12, v4')
    b('v_lshlrev_b32 v6, 8, v3')
    b('v_add_u32 v5, v5, v6')
    b('v_add_u32 v6, s21, v1')
    b('v_lshlrev_b32 v6, 4, v6')
    b('v_add_u32 v5, v5, v6')
    b('v_lshlrev_b32 v7, 11, v4')
    b('v_lshlrev_b32 v9, 8, v3')
    b('v_add3_u32 v7, v7, v9, v6')
    b('v_lshlrev_b32 v8, 10, v1')
    b('v_lshlrev_b32 v9, 7, v4')
    b('v_lshlrev_b32 v10, 3, v3')
    b('v_add3_u32 v8, v8, v9, v10')
    b('v_lshlrev_b32 v9, 8, v4')
    b('v_lshlrev_b32 v10, 4, v3')
    b('v_add_u32 v9, v9, v10')
    b('s_lshl_b32 s22, s2, 13')
    b('s_lshl_b32 s23, s20, 15')
    b('s_add_u32 s23, s23, 0x%x' % WS_PART)
    b('s_waitcnt lgkmcnt(0)')
    finish_srd(b, 8, 2048 * 1024); finish_srd(b, 16, WS_BYTES)
    P = 64
    for ks in range(4):
        if ks:
            b('s_add_u32 s23, s23, 0x400000')
        for bb in range(4):
            b('buffer_load_dwordx4 %s, v5, s[16:19], s23 offen offset:%d' % (vr(P + 16 * ks + 4 * bb, 4), bb * 1024))
    for bb in range(4):
        b('buffer_load_dwordx2 %s, v8, s[8:11], s22 offen offset:%d' % (vr(12 + 2 * bb, 2), 32 * bb))
    GA, SB, CB = 128, 144, 160
    for (reg, row) in ((GA, 2), (SB, 3), (CB, 4)):
        for bb in range(4):
            b('s_mov_b32 s24, %d' % (WS_MOD + row * 2048))
            b('buffer_load_dwordx4 %s, v9, s[16:19], s24 offen offset:%d' % (vr(reg + 4 * bb, 4), 64 * bb))
    for i in range(16):
        b('v_add_f32 v%d, v%d, v%d' % (P + i, P + i, P + 16 + i))
        b('v_add_f32 v%d, v%d, v%d' % (P + 32 + i, P + 32 + i, P + 48 + i))
    for i in range(16):
        b('v_add_f32 v%d, v%d, v%d' % (P + i, P + i, P + 32 + i))
    X = 20
    for p in range(8):
        b('v_lshlrev_b32 v%d, 16, v%d' % (X + 2 * p, 12 + p))
        b('v_and_b32 v%d, 0xffff0000, v%d' % (X + 2 * p + 1, 12 + p))
    for i in range(16):
        b('v_fmac_f32 v%d, v%d, v%d' % (X + i, GA + i, P + i))
    for p in range(8):
        b('v_cvt_pk_bf16_f32 v%d, v%d, v%d' % (12 + p, X + 2 * p, X + 2 * p + 1))
    b('s_lshl_b32 s22, s20, 14')
    b('s_add_u32 s25, s22, 0x%x' % WS_X1)
    b('buffer_store_dwordx4 v[12:15], v7, s[16:19], s25 offen')
    b('buffer_store_dwordx4 v[16:19], v7, s[16:19], s25 offen offset:1024')
    for p in range(8):
        b('v_lshlrev_b32 v%d, 16, v%d' % (X + 2 * p, 12 + p))
        b('v_and_b32 v%d, 0xffff0000, v%d' % (X + 2 * p + 1, 12 + p))
    layernorm16(b, X, 40)
    for i in range(16):
        b('v_add_f32 v%d, 1.0, v%d' % (CB + i, CB + i))
    for p in range(8):
        b('v_cvt_pk_bf16_f32 v48, v%d, v%d' % (CB + 2 * p, CB + 2 * p + 1))
        b('v_lshlrev_b32 v%d, 16, v48' % (CB + 2 * p))
        b('v_and_b32 v%d, 0xffff0000, v48' % (CB + 2 * p + 1))
    for i in range(16):
        b('v_fma_f32 v%d, v%d, v%d, v%d' % (X + i, X + i, CB + i, SB + i))
    for p in range(8):
        b('v_cvt_pk_bf16_f32 v%d, v%d, v%d' % (52 + p, X + 2 * p, X + 2 * p + 1))
    b('s_add_u32 s25, s22, 0x%x' % WS_H2)
    b('buffer_store_dwordx4 v[52:55], v7, s[16:19], s25 offen')
    b('buffer_store_dwordx4 v[56:59], v7, s[16:19], s25 offen offset:1024')
    b.label(name + '_end')
    b('s_endpgm')
    return b, dict(vgpr=176, agpr=0, lds=256, grid=256, block=256)
```

```python
from common import *
from k2 import Sched, vr, ar

MF = 'v_mfma_f32_16x16x32_bf16'
WG_ROW = 2752


def k4(name):
    b = Block()
    S_G, S_U, S_WS, S_M = 8, 12, 16, 20
    S_W, S_QT, S_FG, S_T0, S_T1, S_T2 = 24, 25, 26, 27, 28, 29
    S_AB, S_BB, S_LB, S_HB, S_ROT = 30, 31, 32, 33, 34
    S_AC, S_BC = 40, 48
    V_WOFF, V_B, V_A, V_T = 2, 6, 8, 20
    V_AF = 32
    V_ACC = 128
    SLOT, NSLOT = 24576, 6
    B_AHEAD = 4
    exit_if_ge(b, 240, name + '_end')
    srd(b, S_G, B_WG, 0); srd(b, S_U, B_WU, 0); srd(b, S_WS, D_WS, 0)
    b('s_and_b32 s%d, s2, 7' % S_T0)
    b('s_lshr_b32 s%d, s2, 3' % S_T1)
    b('s_cmp_ge_u32 s%d, 15' % S_T1)
    b('s_cselect_b32 s%d, 1, 0' % S_T2)
    b('s_lshl_b32 s%d, s%d, 1' % (S_QT, S_T0))
    b('s_add_u32 s%d, s%d, s%d' % (S_QT, S_QT, S_T2))
    b('s_mul_i32 s%d, s%d, 15' % (S_T2, S_T2))
    b('s_sub_u32 s%d, s%d, s%d' % (S_FG, S_T1, S_T2))
    b('s_lshl_b32 s%d, s%d, 2' % (S_ROT, S_QT))
    b('s_add_u32 s%d, s%d, s%d' % (S_ROT, S_ROT, S_FG))
    b('v_lshrrev_b32 v1, 6, v0')
    b('v_and_b32 v0, 63, v0')
    b('v_readfirstlane_b32 s%d, v1' % S_W)
    T = V_T
    b('s_mov_b32 s%d, 0x15555556' % S_T0)
    b('s_mov_b32 s%d, %d' % (S_T1, WG_ROW))
    for i in range(3):
        b('v_add_u32 v%d, %d, v0' % (T, 64 * i))
        b('v_mul_hi_u32 v%d, v%d, s%d' % (T + 1, T, S_T0))
        b('v_mul_u32_u24 v%d, 12, v%d' % (T + 2, T + 1))
        b('v_sub_u32 v%d, v%d, v%d' % (T + 2, T, T + 2))
        b('v_bfe_u32 v%d, v%d, 2, 1' % (T + 3, T + 1))
        b('v_lshlrev_b32 v%d, 1, v%d' % (T + 3, T + 3))
        b('v_xor_b32 v%d, v%d, v%d' % (T + 2, T + 2, T + 3))
        b('v_lshlrev_b32 v%d, 4, v%d' % (T + 2, T + 2))
        b('v_mul_lo_u32 v%d, v%d, s%d' % (T + 1, T + 1, S_T1))
        b('v_add_u32 v%d, v%d, v%d' % (V_WOFF + i, T + 1, T + 2))
        if i:
            b('v_subrev_u32 v%d, %d, v%d' % (V_WOFF + i, 1024 * i, V_WOFF + i))
    b('v_lshlrev_b32 v%d, 4, v0' % V_B)
    b('v_add_u32 v%d, %d, v%d' % (V_B + 1, 16384, V_B))
    b('v_bfe_u32 v%d, v0, 2, 2' % T)
    b('v_lshrrev_b32 v%d, 4, v0' % (T + 1))
    b('v_lshlrev_b32 v%d, 2, v%d' % (T + 2, T + 1))
    b('v_add_u32 v%d, v%d, v%d' % (T + 2, T + 2, T))
    b('v_mul_u32_u24 v%d, 192, v%d' % (T + 2, T + 2))
    b('v_and_b32 v%d, 3, v0' % (T + 3))
    b('v_lshlrev_b32 v%d, 3, v%d' % (T + 3, T + 3))
    b('v_add_u32 v%d, v%d, v%d' % (T + 2, T + 2, T + 3))
    b('v_and_b32 v%d, 1, v%d' % (T + 1, T + 1))
    for nb in range(6):
        b('v_xor_b32 v%d, %d, v%d' % (T + 3, nb, T + 1))
        b('v_lshlrev_b32 v%d, 5, v%d' % (T + 3, T + 3))
        b('v_add_u32 v%d, v%d, v%d' % (V_A + nb, T + 3, T + 2))
    b('s_waitcnt lgkmcnt(0)')
    finish_srd(b, S_G, 512 * WG_ROW); finish_srd(b, S_U, 512 * WG_ROW); finish_srd(b, S_WS, WS_BYTES)
    b('s_cmp_ge_u32 s%d, 2' % S_W)
    b('s_cselect_b32 s%d, s%d, s%d' % (S_M, S_U, S_G))
    b('s_cselect_b32 s%d, s%d, s%d' % (S_M + 1, S_U + 1, S_G + 1))
    finish_srd(b, S_M, 512 * WG_ROW)
    b('s_and_b32 s%d, s%d, 1' % (S_T0, S_W))
    b('s_mul_i32 s%d, s%d, %d' % (S_AB, S_T0, 32 * WG_ROW))
    b('s_mul_i32 s%d, s%d, 192' % (S_T1, S_FG))
    b('s_add_u32 s%d, s%d, s%d' % (S_AB, S_AB, S_T1))
    b('s_mul_i32 s%d, s%d, 6144' % (S_LB, S_W))
    b('s_lshl_b32 s%d, s%d, 3' % (S_T0, S_QT))
    b('s_lshl_b32 s%d, s%d, 1' % (S_T1, S_W))
    b('s_add_u32 s%d, s%d, s%d' % (S_T0, S_T0, S_T1))
    b('s_lshl_b32 s%d, s%d, 14' % (S_BB, S_T0))
    b('s_add_u32 s%d, s%d, 0x%x' % (S_BB, S_BB, WS_H2))
    b('s_mul_i32 s%d, s%d, %d' % (S_HB, S_T0, 43 * 1024))
    b('s_mul_i32 s%d, s%d, 3072' % (S_T1, S_FG))
    b('s_add_u32 s%d, s%d, s%d' % (S_HB, S_HB, S_T1))
    b('s_add_u32 s%d, s%d, 0x%x' % (S_HB, S_HB, WS_HH))
    for p in range(8):
        b('s_add_u32 s%d, s%d, %d' % (S_T0, S_ROT, p))
        b('s_and_b32 s%d, s%d, 7' % (S_T0, S_T0))
        b('s_mul_i32 s%d, s%d, %d' % (S_T1, S_T0, 64 * WG_ROW))
        b('s_add_u32 s%d, s%d, s%d' % (S_AC + p, S_AB, S_T1))
        b('s_lshl_b32 s%d, s%d, 11' % (S_T1, S_T0))
        b('s_add_u32 s%d, s%d, s%d' % (S_BC + p, S_BB, S_T1))

    def dma_w(p):
        out = []
        for half in range(2):
            out.append(('s_add_u32 m0, s%d, %d' % (S_LB, (p % NSLOT) * SLOT + half * 3072), None))
            if half:
                out.append(('s_add_u32 s%d, s%d, %d' % (S_T2, S_AC + p, 16 * WG_ROW), None))
            else:
                out.append(('s_nop 0', None))
            for i in range(3):
                out.append(('buffer_load_dwordx4 v%d, s[%d:%d], s%d offen offset:%d lds' %
                            (V_WOFF + i, S_M, S_M + 3, S_T2 if half else S_AC + p, i * 1024), 'W%d' % p))
        return out

    def b_load(s):
        return [('buffer_load_dwordx4 %s, v%d, s[%d:%d], s%d offen offset:%d' %
                 (ar(8 * s + 4 * qq, 4), V_B + qq, S_WS, S_WS + 3, S_BC + s // 2, (s & 1) * 1024), None) for qq in range(2)]

    base_of = lambda p: (p % NSLOT) * SLOT
    WIN = 49152
    def a_reads(s):
        p = s // 2
        buf = V_AF + 48 * (s & 1)
        out = []
        for nb in range(6):
            for mat in range(2):
                for jj in range(2):
                    off = base_of(p) % WIN + mat * 12288 + (s & 1) * 6144 + jj * 3072
                    out.append('ds_read_b64_tr_b16 %s, v%d offset:%d' % (vr(buf + 4 * (mat * 6 + nb) + 2 * jj, 2), V_A + nb, off))
        return out

    NS = 16
    for t, g in dma_w(0): b(t, g)
    for t, g in b_load(0): b(t, g)
    for t, g in dma_w(1): b(t, g)
    for t, g in b_load(1): b(t, g)
    for t, g in dma_w(2): b(t, g)
    for s in range(2, B_AHEAD):
        for t, g in b_load(s): b(t, g)
    b.waitvm('W0')
    b('s_barrier')
    for t in a_reads(0): b(t)
    sc = Sched()
    win = 0
    for s in range(NS):
        base = 24 * s
        k = 0
        for nb in range(6):
            for mat in range(2):
                for qq in range(2):
                    d = vr(V_ACC + ((mat * 6 + nb) * 2 + qq) * 4, 4)
                    sc.mfma(base + k, '%s %s, %s, %s, %s' % (MF, d, vr(V_AF + 48 * (s & 1) + 4 * (mat * 6 + nb), 4), ar(8 * s + 4 * qq, 4), '0' if s == 0 else d))
                    k += 1
        if s + 1 < NS:
            if (s + 1) % 2 == 0:
                p = (s + 1) // 2
                sc.add(base, lambda bb, p=p: (bb.waitvm('W%d' % p), bb('s_barrier')))
                nw = base_of(p) // WIN
                if nw != win:
                    for nb in range(6):
                        sc.add(base, 'v_add_u32 v%d, 0x%x, v%d' % (V_A + nb, ((nw - win) * WIN) & 0xffffffff, V_A + nb))
                    win = nw
            for k, t in enumerate(a_reads(s + 1)):
                sc.add(base + k, t)
        if s + B_AHEAD < NS:
            for k, (t, g) in enumerate(b_load(s + B_AHEAD)):
                sc.add(base + 3 + 12 * k, t, g)
        p = s // 2 + 3
        if p < 8:
            ops = dma_w(p)
            lo = (s & 1) * len(ops) // 2
            hi = ((s & 1) + 1) * len(ops) // 2
            for k, (t, g) in enumerate(ops[lo:hi]):
                sc.add(base + 5 + 3 * k, t, g)
    sc.emit(b, 0, 24 * NS)
    b('v_lshlrev_b32 v%d, 4, v0' % V_T)
    for v in range(3):
        if v == 1:
            b('s_cmp_ge_u32 s%d, 14' % S_FG)
            b('s_cbranch_scc1 %s_end' % name)
        for qq in range(2):
            t0 = 32 + 8 * (v * 2 + qq)
            for jj in range(2):
                nb = 2 * v + jj
                g = V_ACC + (nb * 2 + qq) * 4
                u = V_ACC + ((6 + nb) * 2 + qq) * 4
                for i in range(4):
                    b('v_mul_f32 v%d, v%d, v%d' % (g + i, g + i, u + i))
                for i in range(2):
                    b('v_cvt_pk_bf16_f32 v%d, v%d, v%d' % (t0 + 2 * jj + i, g + 2 * i, g + 2 * i + 1))
            b('s_add_u32 s%d, s%d, %d' % (S_T0, S_HB, qq * 43 * 1024))
            b('buffer_store_dwordx4 %s, v%d, s[%d:%d], s%d offen offset:%d' % (vr(t0, 4), V_T, S_WS, S_WS + 3, S_T0, v * 1024))
    b.label(name + '_end')
    b('s_endpgm')
    return b, dict(vgpr=256, agpr=128, lds=NSLOT * SLOT, grid=240, block=256)


def k5(name):
    b = Block()
    S_WD, S_WS, S_OUT = 8, 12, 16
    S_W, S_QT, S_NT, S_T0, S_T1, S_T2 = 20, 21, 22, 23, 24, 25
    S_AB, S_BB, S_LB, S_NS = 26, 27, 28, 29
    V_WOFF, V_B, V_A, V_T = 2, 4, 8, 12
    V_AF = 32
    V_ACC = 64
    RING = 8
    AHEAD = 5
    NS = 11
    exit_if_ge(b, 256, name + '_end')
    srd(b, S_WD, B_WD, 0); srd(b, S_WS, D_WS, 0); srd(b, S_OUT, D_OUT, 0)
    b('s_and_b32 s%d, s2, 7' % S_T0)
    b('s_lshr_b32 s%d, s2, 3' % S_T1)
    b('s_lshl_b32 s%d, s%d, 2' % (S_QT, S_T0))
    b('s_lshr_b32 s%d, s%d, 3' % (S_T2, S_T1))
    b('s_add_u32 s%d, s%d, s%d' % (S_QT, S_QT, S_T2))
    b('s_and_b32 s%d, s%d, 7' % (S_NT, S_T1))
    b('v_lshrrev_b32 v1, 6, v0')
    b('v_and_b32 v0, 63, v0')
    b('v_readfirstlane_b32 s%d, v1' % S_W)
    T = V_T
    b('v_lshrrev_b32 v%d, 3, v0' % T)
    b('v_and_b32 v%d, 7, v0' % (T + 1))
    b('v_bfe_u32 v%d, v%d, 1, 2' % (T + 2, T))
    b('v_lshlrev_b32 v%d, 1, v%d' % (T + 2, T + 2))
    b('v_xor_b32 v%d, v%d, v%d' % (T + 1, T + 1, T + 2))
    b('v_lshlrev_b32 v%d, 4, v%d' % (T + 1, T + 1))
    b('v_lshlrev_b32 v%d, 10, v%d' % (T, T))
    b('v_add_u32 v%d, v%d, v%d' % (V_WOFF, T, T + 1))
    b('v_lshlrev_b32 v%d, 4, v0' % V_B)
    for qb in range(1, 4):
        b('v_add_u32 v%d, %d, v%d' % (V_B + qb, qb * 43 * 1024, V_B))
    b('v_bfe_u32 v%d, v0, 2, 2' % T)
    b('v_lshrrev_b32 v%d, 4, v0' % (T + 1))
    b('v_lshlrev_b32 v%d, 2, v%d' % (T + 1, T + 1))
    b('v_add_u32 v%d, v%d, v%d' % (T + 1, T + 1, T))
    b('v_bfe_u32 v%d, v%d, 1, 2' % (T + 2, T + 1))
    b('v_lshlrev_b32 v%d, 7, v%d' % (T + 1, T + 1))
    b('v_and_b32 v%d, 3, v0' % (T + 3))
    b('v_lshlrev_b32 v%d, 3, v%d' % (T + 3, T + 3))
    b('v_add_u32 v%d, v%d, v%d' % (T + 1, T + 1, T + 3))
    b('s_mul_i32 s%d, s%d, %d' % (S_LB, S_W, RING * 4096))
    for nb in range(4):
        b('v_xor_b32 v%d, %d, v%d' % (T + 3, nb, T + 2))
        b('v_lshlrev_b32 v%d, 5, v%d' % (T + 3, T + 3))
        b('v_add3_u32 v%d, v%d, v%d, s%d' % (V_A + nb, T + 3, T + 1, S_LB))
    b('s_waitcnt lgkmcnt(0)')
    finish_srd(b, S_WD, 1376 * 1024); finish_srd(b, S_WS, WS_BYTES); finish_srd(b, S_OUT, 2048 * 1024)
    b('s_mul_i32 s%d, s%d, 11' % (S_T0, S_W))
    b('s_lshl_b32 s%d, s%d, 15' % (S_AB, S_T0))
    b('s_lshl_b32 s%d, s%d, 7' % (S_T1, S_NT))
    b('s_add_u32 s%d, s%d, s%d' % (S_AB, S_AB, S_T1))
    b('s_mul_i32 s%d, s%d, %d' % (S_BB, S_QT, 4 * 43 * 1024))
    b('s_lshl_b32 s%d, s%d, 10' % (S_T1, S_T0))
    b('s_add_u32 s%d, s%d, s%d' % (S_BB, S_BB, S_T1))
    b('s_add_u32 s%d, s%d, 0x%x' % (S_BB, S_BB, WS_HH))
    b('s_add_u32 s%d, s%d, %d' % (S_NS, S_BB, ((NS - 1) & ~3) * 1024))
    b('s_cmp_eq_u32 s%d, 3' % S_W)
    b('s_cselect_b32 s%d, 0x%x, s%d' % (S_NS, WS_BYTES, S_NS))

    def dma_w(s):
        out = []
        for i in range(4):
            out.append(('s_add_u32 m0, s%d, %d' % (S_LB, (s % RING) * 4096 + i * 1024), None))
            out.append(('s_add_u32 s%d, s%d, %d' % (S_T2, S_AB, s * 32768 + i * 8192), None))
            out.append(('buffer_load_dwordx4 v%d, s[%d:%d], s%d offen lds' % (V_WOFF, S_WD, S_WD + 3, S_T2), 'W%d' % s))
        return out

    def b_load(s):
        out = []
        if s % 4 == 0:
            out.append(('s_add_u32 s%d, s%d, %d' % (S_T1, S_BB, s * 1024), None))
        for qb in range(4):
            out.append(('buffer_load_dwordx4 %s, v%d, s[%d:%d], s%d offen offset:%d' %
                        (ar(16 * s + 4 * qb, 4), V_B + qb, S_WS, S_WS + 3, S_NS if s == NS - 1 else S_T1, (s & 3) * 1024), None))
        return out

    def a_reads(s):
        buf = V_AF + 16 * (s & 1)
        return ['ds_read_b64_tr_b16 %s, v%d offset:%d' % (vr(buf + 4 * nb + 2 * jj, 2), V_A + nb, (s % RING) * 4096 + jj * 2048)
                for nb in range(4) for jj in range(2)]

    for s in range(AHEAD):
        for t, g in dma_w(s): b(t, g)
        for t, g in b_load(s): b(t, g)
    b.waitvm('W0')
    for t in a_reads(0): b(t)
    sc = Sched()
    for s in range(NS):
        base = 16 * s
        for nb in range(4):
            for qb in range(4):
                d = vr(V_ACC + (nb * 4 + qb) * 4, 4)
                sc.mfma(base + 4 * nb + qb, '%s %s, %s, %s, %s' % (MF, d, vr(V_AF + 16 * (s & 1) + 4 * nb, 4), ar(16 * s + 4 * qb, 4), '0' if s == 0 else d))
        if s + 1 < NS:
            sc.add(base, lambda bb, s=s: bb.waitvm('W%d' % (s + 1)))
            for k, t in enumerate(a_reads(s + 1)):
                sc.add(base + 2 * k, t)
        if s + AHEAD < NS:
            ops = dma_w(s + AHEAD) + b_load(s + AHEAD)
            for k, (t, g) in enumerate(ops):
                sc.add(base + 1 + (k * 14) // len(ops), t, g)
    sc.emit(b, 0, 16 * NS)
    X, G = 32, 40
    b('s_lshl_b32 s%d, s%d, 2' % (S_T0, S_QT))
    b('s_add_u32 s%d, s%d, s%d' % (S_T0, S_T0, S_W))
    b('s_lshl_b32 s%d, s%d, 14' % (S_T1, S_T0))
    b('s_lshl_b32 s%d, s%d, 11' % (S_T2, S_NT))
    b('s_add_u32 s%d, s%d, s%d' % (S_T1, S_T1, S_T2))
    b('s_add_u32 s%d, s%d, 0x%x' % (S_T1, S_T1, WS_X1))
    for v in range(2):
        b('buffer_load_dwordx4 %s, v%d, s[%d:%d], s%d offen offset:%d' % (vr(X + 4 * v, 4), V_B, S_WS, S_WS + 3, S_T1, v * 1024))
    b('v_lshrrev_b32 v%d, 4, v0' % T)
    b('v_lshlrev_b32 v%d, 4, v%d' % (T, T))
    b('s_lshl_b32 s%d, s%d, 8' % (S_T2, S_NT))
    b('s_add_u32 s%d, s%d, %d' % (S_T2, S_T2, WS_MOD + 5 * 2048))
    for nb in range(4):
        b('buffer_load_dwordx4 %s, v%d, s[%d:%d], s%d offen offset:%d' % (vr(G + 4 * nb, 4), T, S_WS, S_WS + 3, S_T2, nb * 64))
    b('s_barrier')
    b('s_lshl_b32 s%d, s%d, 12' % (S_T1, S_W))
    b('v_add_u32 v%d, s%d, v%d' % (T + 1, S_T1, V_B))
    for qb in range(4):
        for nb in range(4):
            b('ds_write_b128 v%d, %s offset:%d' % (T + 1, vr(V_ACC + (nb * 4 + qb) * 4, 4), qb * 16384 + nb * 1024))
    b('s_waitcnt lgkmcnt(0)')
    b('s_barrier')
    b('s_lshl_b32 s%d, s%d, 14' % (S_T1, S_W))
    b('v_add_u32 v%d, s%d, v%d' % (T + 1, S_T1, V_B))
    R = 128
    for w in range(4):
        for nb in range(4):
            b('ds_read_b128 %s, v%d offset:%d' % (vr(R + 16 * w + 4 * nb, 4), T + 1, w * 4096 + nb * 1024))
    for i in range(16):
        b('v_add_f32 v%d, v%d, v%d' % (R + i, R + i, R + 16 + i))
        b('v_add_f32 v%d, v%d, v%d' % (R + 32 + i, R + 32 + i, R + 48 + i))
    for i in range(16):
        b('v_add_f32 v%d, v%d, v%d' % (R + i, R + i, R + 32 + i))
    Y = 96
    for p in range(8):
        b('v_lshlrev_b32 v%d, 16, v%d' % (Y + 2 * p, X + p))
        b('v_and_b32 v%d, 0xffff0000, v%d' % (Y + 2 * p + 1, X + p))
    for i in range(16):
        b('v_fmac_f32 v%d, v%d, v%d' % (Y + i, G + i, R + i))
    O = 112
    for p in range(8):
        b('v_cvt_pk_bf16_f32 v%d, v%d, v%d' % (O + p, Y + 2 * p, Y + 2 * p + 1))
    for v in range(2):
        b('v_permlane16_swap_b32 v%d, v%d' % (O + 4 * v, O + 4 * v + 2))
        b('v_permlane16_swap_b32 v%d, v%d' % (O + 4 * v + 1, O + 4 * v + 3))
    b('v_and_b32 v%d, 15, v0' % T)
    b('v_lshlrev_b32 v%d, 10, v%d' % (T, T))
    b('v_bfe_u32 v%d, v0, 4, 1' % (T + 1))
    b('v_lshlrev_b32 v%d, 5, v%d' % (T + 1, T + 1))
    b('v_lshrrev_b32 v%d, 5, v0' % (T + 2))
    b('v_lshlrev_b32 v%d, 4, v%d' % (T + 2, T + 2))
    b('v_add3_u32 v%d, v%d, v%d, v%d' % (T, T, T + 1, T + 2))
    b('s_lshl_b32 s%d, s%d, 14' % (S_T1, S_T0))
    b('s_lshl_b32 s%d, s%d, 7' % (S_T2, S_NT))
    b('s_add_u32 s%d, s%d, s%d' % (S_T1, S_T1, S_T2))
    for v in range(2):
        b('buffer_store_dwordx4 %s, v%d, s[%d:%d], s%d offen offset:%d' % (vr(O + 4 * v, 4), T, S_OUT, S_OUT + 3, S_T1, v * 64))
    b.label(name + '_end')
    b('s_endpgm')
    return b, dict(vgpr=256, agpr=256, lds=4 * RING * 4096, grid=256, block=256)
```

```python
import sys, importlib
from common import *
import k01


def build(kernels, path, verbose=False):
    head = open('cdna_kernels/' + KNAME + '.s.ref').read().split('; Override launch geometry')[0]
    out = [head.rstrip()]
    for name, b, m in kernels:
        out.append('; @launch kernel=%s grid=(%d,1,1) block=(%d,1,1) lds=%d' % (name, m['grid'], m['block'], m['lds']))
    out.append('.amdgcn_target "amdgcn-amd-amdhsa--gfx950"')
    out.append('.text')
    seen = []
    for name, b, m in kernels:
        if name in seen:
            continue
        seen.append(name)
        log = []
        text = finalize(b, log)
        if verbose:
            print('%s: %d lines, %d nop insertions' % (name, text.count('\n'), len(log)))
            for l in log[:40]:
                print('   ', l)
        out.append(kernel_header(name) + text)
    out.append('.section .rodata,"a"')
    seen = []
    for name, b, m in kernels:
        if name in seen:
            continue
        seen.append(name)
        out.append(kernel_descriptor(name, m['vgpr'], m['agpr']))
    open(path, 'w').write('\n'.join(out))


if __name__ == '__main__':
    import allk
    build(allk.kernels(), sys.argv[1] if len(sys.argv) > 1 else 'cur.s', verbose=True)
```

```python
import re

TRANS = ('v_exp_f32', 'v_log_f32', 'v_rcp_f32', 'v_rsq_f32', 'v_sqrt_f32', 'v_sin_f32', 'v_cos_f32', 'v_rcp_iflag_f32')
_reg_re = re.compile(r'^(-|abs\()?([vas])(\d+|\[(\d+):(\d+)\])\)?$')


def regs_of(tok):
    tok = tok.strip()
    if tok in ('vcc',):
        return [('s', 'vcc')]
    if tok in ('vcc_lo', 'vcc_hi'):
        return [('s', 'vcc')]
    if tok == 'exec':
        return [('s', 'exec')]
    if tok == 'm0':
        return [('s', 'm0')]
    m = _reg_re.match(tok)
    if not m:
        return []
    k = m.group(2)
    if m.group(4) is not None:
        return [(k, i) for i in range(int(m.group(4)), int(m.group(5)) + 1)]
    return [(k, int(m.group(3)))]


class Ins:
    __slots__ = ('text', 'op', 'ops', 'mods', 'r', 'w', 'cls', 'tag', 'waittag', 'vm_wait', 'lgkm_wait', 'nops',
                 'passes', 'srcc', 'srcab', 'note', 'pre', 'epoch')

    def __init__(self, text, tag=None):
        self.text = text
        self.tag = tag
        self.epoch = None
        self.waittag = None
        self.vm_wait = None
        self.lgkm_wait = None
        self.nops = 0
        self.passes = 0
        self.srcc = []
        self.srcab = []
        self.note = None
        body = text.split(';')[0].strip()
        parts = body.split(None, 1)
        self.op = parts[0]
        rest = parts[1] if len(parts) > 1 else ''
        toks = [t.strip() for t in rest.split(',')] if rest else []
        self.mods = ''
        if toks:
            last = toks[-1].split(None, 1)
            if len(last) > 1 and not last[0].startswith('hwreg') and not self.op.startswith('s_waitcnt'):
                toks[-1] = last[0]
                self.mods = last[1]
        self.ops = toks
        self.classify()

    def classify(self):
        op, ops, mods = self.op, self.ops, self.mods
        R = lambda idx: [x for i in idx for x in regs_of(ops[i])]
        n = len(ops)
        allr = R(range(n))
        self.r, self.w = [], []
        if op.startswith('v_mfma'):
            self.cls = 'mfma'
            self.w = R([0])
            self.srcab = R([1, 2])
            self.srcc = R([3])
            self.r = self.srcab + self.srcc
            self.passes = 8 if ('32x32x16' in op or '32x32x8' in op) else 4
        elif op.startswith('ds_read') or op.startswith('ds_bpermute') or op.startswith('ds_swizzle') or op.startswith('ds_permute'):
            self.cls = 'ds'
            self.w = R([0])
            self.r = R(range(1, n))
        elif op.startswith('ds_write') or op.startswith('ds_'):
            self.cls = 'ds'
            self.r = allr
        elif op.startswith('buffer_load') or op.startswith('global_load'):
            self.cls = 'vmem'
            if 'lds' in mods.split() or op.startswith('global_load_lds'):
                self.r = allr + [('s', 'm0')]
            else:
                self.w = R([0])
                self.r = R(range(1, n))
        elif op.startswith('buffer_store') or op.startswith('global_store'):
            self.cls = 'vmem'
            self.r = allr
        elif op.startswith('buffer_atomic') or op.startswith('global_atomic'):
            self.cls = 'vmem'
            self.r = allr
            if 'sc0' in mods.split():
                self.w = R([0])
        elif op.startswith('buffer_wbl2') or op.startswith('buffer_inv'):
            self.cls = 'vmem'
        elif op.startswith('s_load') or op.startswith('s_buffer_load'):
            self.cls = 'smem'
            self.w = R([0])
            self.r = R(range(1, n))
        elif op in ('s_memtime', 's_memrealtime'):
            self.cls = 'smem'
            self.w = R([0])
        elif op in ('s_waitcnt', 's_barrier', 's_nop', 's_endpgm', 's_setprio', 's_sleep', 's_branch') or op.startswith('s_cbranch'):
            self.cls = 'ctl'
        elif op.startswith('s_cmp') or op.startswith('s_bitcmp'):
            self.cls = 'salu'
            self.r = allr
        elif op.startswith('s_'):
            self.cls = 'salu'
            self.w = R([0])
            self.r = R(range(1, n))
            if 'saveexec' in op:
                self.w += [('s', 'exec')]
                self.r += [('s', 'exec')]
            if op in ('s_addk_i32', 's_mulk_i32'):
                self.r += self.w
        elif op.startswith('v_'):
            self.cls = 'valu'
            if op.startswith('v_cmp'):
                self.w = R([0])
                self.r = R(range(1, n))
            elif op.startswith('v_permlane') and 'swap' in op:
                self.w = R([0, 1])
                self.r = R([0, 1])
            elif op.startswith(('v_add_co', 'v_sub_co', 'v_addc_co', 'v_subb_co', 'v_subrev_co', 'v_div_scale')):
                self.w = R([0, 1])
                self.r = R(range(2, n))
            else:
                self.w = R([0])
                self.r = R(range(1, n))
                if op.startswith(('v_fmac', 'v_mac', 'v_pk_fmac', 'v_dot2c', 'v_writelane')):
                    self.r += self.w
                if op.startswith('v_cndmask') and n == 3:
                    self.r += [('s', 'vcc')]
            if 'dpp' in op or 'row_' in mods or 'quad_perm' in mods:
                self.r += self.w if 'bound_ctrl' not in mods else []
        else:
            raise ValueError('unknown instruction: ' + self.text)

    def is_trans(self):
        return self.op.replace('_e32', '').replace('_e64', '') in TRANS

    def is_dpp(self):
        return 'dpp' in self.op or 'row_' in self.mods or 'quad_perm' in self.mods

    def is_dma(self):
        return self.cls == 'vmem' and ('lds' in self.mods.split() or self.op.startswith('global_load_lds'))


class Label:
    def __init__(self, name):
        self.name = name


class Raw:
    def __init__(self, text):
        self.text = text


class Loop:
    def __init__(self, body, count):
        self.body = body
        self.count = count


class WaitVm:
    def __init__(self, tag, age=None):
        self.tag = tag
        self.age = age
        self.n = None


class Fence:
    pass


class Block:
    def __init__(self):
        self.items = []
        self._stack = [self.items]
        self._lab = 0

    def __call__(self, text, tag=None, epoch=None):
        out = None
        for line in text.strip().split('\n'):
            line = line.strip()
            if not line or line.startswith(';'):
                continue
            if line.endswith(':'):
                self._stack[-1].append(Label(line[:-1]))
            else:
                out = Ins(line, tag)
                out.epoch = epoch
                self._stack[-1].append(out)
        return out

    def add(self, item):
        self._stack[-1].append(item)

    def label(self, name):
        self._stack[-1].append(Label(name))

    def waitvm(self, tag, age=None):
        self._stack[-1].append(WaitVm(tag, age))

    def fence(self):
        self('s_waitcnt vmcnt(0) lgkmcnt(0)')

    def loop_begin(self):
        self._stack.append([])

    def loop_end(self, count):
        body = self._stack.pop()
        self._stack[-1].append(Loop(body, count))


def _trace_e(items, reps=4):
    out = []
    for it in items:
        if isinstance(it, Loop):
            for k in range(min(it.count, reps)):
                out.extend((x, k) for x, _ in _trace_e(it.body, reps))
        else:
            out.append((it, getattr(it, 'epoch', None)))
    return out


def _trace(items, reps=4):
    return [x for x, _ in _trace_e(items, reps)]


def _parse_wait(ins):
    vm = re.search(r'vmcnt\((\d+)\)', ins.text)
    lg = re.search(r'lgkmcnt\((\d+)\)', ins.text)
    return (int(vm.group(1)) if vm else None, int(lg.group(1)) if lg else None)


def insert_waits(items):
    changed = True
    rounds = 0
    while changed:
        changed = False
        rounds += 1
        assert rounds < 50
        vmq, lgq = [], []
        for it, ep in _trace_e(items):
            if isinstance(it, WaitVm):
                idx = None
                for i, (q, _, qe) in enumerate(vmq):
                    if q.tag == it.tag and (it.age is None or qe == ep - it.age):
                        idx = i
                need = None if idx is None else len(vmq) - 1 - idx
                if need is not None and (it.n is None or need < it.n):
                    it.n = need
                    changed = True
                if it.n is not None:
                    del vmq[:max(0, len(vmq) - it.n)]
                continue
            if not isinstance(it, Ins):
                continue
            touched = set(it.r) | (set() if it.tag == 'pf' else set(it.w))
            if it.op == 's_waitcnt':
                vm, lg = _parse_wait(it)
                if vm is not None:
                    del vmq[:max(0, len(vmq) - vm)]
                if lg is not None:
                    if lg == 0:
                        lgq.clear()
                    elif not any(q.cls == 'smem' for q, _ in lgq):
                        del lgq[:max(0, len(lgq) - lg)]
                continue
            need = None
            for i, (q, d, _) in enumerate(vmq):
                if d & touched:
                    need = len(vmq) - 1 - i
            if need is not None and (it.vm_wait is None or need < it.vm_wait):
                it.vm_wait = need
                changed = True
            if it.vm_wait is not None:
                del vmq[:max(0, len(vmq) - it.vm_wait)]
            need = None
            for i, (q, d) in enumerate(lgq):
                if d & touched:
                    need = len(lgq) - 1 - i
                    if any(x.cls == 'smem' for x, _ in lgq):
                        need = 0
            if need is not None and (it.lgkm_wait is None or need < it.lgkm_wait):
                it.lgkm_wait = need
                changed = True
            if it.lgkm_wait is not None:
                if it.lgkm_wait == 0:
                    lgq.clear()
                else:
                    del lgq[:max(0, len(lgq) - it.lgkm_wait)]
            if it.cls == 'vmem':
                vmq.append((it, set() if it.tag == 'pf' else set(it.w), ep))
                if len(vmq) > 63:
                    del vmq[0]
            elif it.cls in ('ds', 'smem'):
                lgq.append((it, set(it.w)))
            if it.op == 's_endpgm':
                vmq.clear(); lgq.clear()


def _states(it):
    n = 0
    if isinstance(it, Ins):
        if it.op == 's_nop':
            n = int(it.ops[0]) + 1
        else:
            n = 1
        if it.vm_wait is not None or it.lgkm_wait is not None:
            n += 1
        n += it.nops
    elif isinstance(it, WaitVm):
        n = 1 if it.n is not None else 0
    return n


def required_gap(p, c):
    need = 0
    pw, pr = set(p.w), set(p.r)
    cr, cw = set(c.r), set(c.w)
    vreg = lambda s: {x for x in s if x[0] in 'va'}
    sreg = lambda s: {x for x in s if x[0] == 's'}
    if p.cls == 'mfma':
        big = p.passes == 8
        if c.cls == 'mfma':
            if pw & set(c.srcab):
                need = max(need, 12 if big else 8)
            if pw & set(c.srcc):
                if not (set(c.srcc) == pw and c.passes == p.passes):
                    need = max(need, 10 if big else 6)
            elif pw & cw:
                need = max(need, 10 if big else 6)
        elif c.cls in ('valu', 'vmem', 'ds'):
            if pw & (cr | cw):
                need = max(need, 12 if big else 8)
            if c.cls == 'valu' and set(p.srcc) & cw:
                need = max(need, 7 if big else 3)
    if p.cls == 'valu':
        if c.cls == 'mfma' and vreg(pw) & cr:
            need = max(need, 2)
        if c.cls == 'vmem' and sreg(pw) & cr:
            need = max(need, 5)
        if c.cls == 'valu' and sreg(pw) & cr:
            need = max(need, 4 if c.op.startswith(('v_readlane', 'v_writelane')) else 2)
        if c.cls in ('salu', 'smem') and sreg(pw) & cr:
            need = max(need, 3)
        if c.cls == 'valu' and vreg(pw) & cr:
            if c.op.startswith(('v_readfirstlane', 'v_readlane')):
                need = max(need, 1)
            if c.op.startswith('v_permlane') or c.is_dpp():
                need = max(need, 2)
            if p.is_trans() and not c.is_trans():
                need = max(need, 1)
        if p.is_trans() and c.cls in ('vmem', 'ds') and vreg(pw) & cr:
            need = max(need, 1)
    if p.cls == 'vmem' and ('store' in p.op or 'atomic' in p.op) and ('x4' in p.op or 'x3' in p.op):
        data = set(regs_of(p.ops[0])) if p.op.startswith('buffer') else set(regs_of(p.ops[1]))
        if data & cw:
            need = max(need, 2)
    if p.cls == 'salu' and ('s', 'm0') in pw and c.is_dma():
        need = max(need, 1)
    if p.cls == 'salu' and ('s', 'exec') in pw and c.cls == 'valu' and (c.is_dpp() or c.op.startswith('v_permlane')):
        need = max(need, 1)
    return need


def insert_nops(items, log=None):
    changed = True
    rounds = 0
    while changed:
        changed = False
        rounds += 1
        assert rounds < 50
        tr = [x for x in _trace(items) if isinstance(x, (Ins, WaitVm))]
        for i, c in enumerate(tr):
            if not isinstance(c, Ins):
                continue
            pre = c.nops + (1 if (c.vm_wait is not None or c.lgkm_wait is not None) else 0)
            dist = pre
            j = i - 1
            while j >= 0 and dist < 12:
                p = tr[j]
                if isinstance(p, Ins):
                    need = required_gap(p, c)
                    if need > dist:
                        c.nops += need - dist
                        if log is not None:
                            log.append('nop +%d before "%s" (after "%s")' % (need - dist, c.text, p.text))
                        dist = need
                        changed = True
                dist += _states(p)
                j -= 1


def _nop_text(n):
    out = []
    while n > 0:
        k = min(n, 16)
        out.append('  s_nop %d' % (k - 1))
        n -= k
    return out


def emit(items, out):
    for it in items:
        if isinstance(it, Loop):
            emit(it.body, out)
        elif isinstance(it, Label):
            out.append(it.name + ':')
        elif isinstance(it, Raw):
            out.append(it.text)
        elif isinstance(it, WaitVm):
            if it.n is not None:
                out.append('  s_waitcnt vmcnt(%d)' % it.n)
        else:
            w = []
            if it.vm_wait is not None:
                w.append('vmcnt(%d)' % it.vm_wait)
            if it.lgkm_wait is not None:
                w.append('lgkmcnt(%d)' % min(it.lgkm_wait, 15))
            out.extend(_nop_text(it.nops))
            if w:
                out.append('  s_waitcnt ' + ' '.join(w))
            out.append('  ' + it.text)


def finalize(block, log=None):
    insert_waits(block.items)
    insert_nops(block.items, log)
    out = []
    emit(block.items, out)
    return '\n'.join(out) + '\n'


def kernel_header(name):
    return '.globl %s\n.p2align 8\n.type %s,@function\n%s:\n' % (name, name, name)


def kernel_descriptor(name, vgpr, agpr=0, sgpr=102):
    acc = (vgpr + 3) // 4 * 4
    tot = acc + agpr if agpr else vgpr
    return """.p2align 6
.amdhsa_kernel %s
  .amdhsa_next_free_vgpr %d
  .amdhsa_next_free_sgpr %d
  .amdhsa_accum_offset %d
  .amdhsa_group_segment_fixed_size 0
  .amdhsa_kernarg_size 112
  .amdhsa_user_sgpr_count 2
  .amdhsa_user_sgpr_kernarg_segment_ptr 1
  .amdhsa_system_sgpr_workgroup_id_x 1
  .amdhsa_float_denorm_mode_32 3
.end_amdhsa_kernel
""" % (name, tot, sgpr, acc)
```

```python
from asm import *

KNAME = 'adaLN_cond__sliding_block_cached__glu_gated_bilinear__prompt'

A_X, A_K, A_V, A_WQ, A_WO, B_X, B_WG, B_WU, B_WD, A_C, W_MOD, D_OUT, D_DBG, D_WS = [8 * i for i in range(14)]

WS_MOD = 0x0
WS_H = 0x100000
WS_O = 0x400000
WS_PART = 0x1400000
WS_X1 = 0x2400000
WS_H2 = 0x2600000
WS_HH = 0x2800000
WS_BYTES = 0x10000000

LOG2E = 1.4426950408889634
QSCALE = LOG2E / (128.0 ** 0.5)


def f32(x):
    import struct
    return '0x%08x' % struct.unpack('<I', struct.pack('<f', x))[0]


def srd(b, base, karg, nbytes):
    b('s_load_dwordx2 s[%d:%d], s[0:1], %d' % (base, base + 1, karg))


def finish_srd(b, base, nbytes):
    b('s_mov_b32 s%d, 0x%x' % (base + 2, nbytes))
    b('s_mov_b32 s%d, 0x20000' % (base + 3))


def exit_if_ge(b, n, label):
    b('s_cmp_ge_u32 s2, %d' % n)
    b('s_cbranch_scc1 %s' % label)


def row_ror8_add(b, dst, src):
    b('v_add_f32_dpp v%d, v%d, v%d row_ror:8 row_mask:0xf bank_mask:0xf' % (dst, src, src))


def xor16_32_add(b, x, tmp):
    b('v_mov_b32 v%d, v%d' % (tmp, x))
    b('v_permlane16_swap_b32 v%d, v%d' % (x, tmp))
    b('v_add_f32 v%d, v%d, v%d' % (x, x, tmp))
    b('v_mov_b32 v%d, v%d' % (tmp, x))
    b('v_permlane32_swap_b32 v%d, v%d' % (x, tmp))
    b('v_add_f32 v%d, v%d, v%d' % (x, x, tmp))


import os
STAMPS = bool(os.environ.get('STAMPS'))
WS_KSTAMP = 0x9000000


def kstart(b):
    if STAMPS:
        b('v_lshrrev_b32 v1, 6, v0')
        b('s_memrealtime s[96:97]')
        b('s_memtime s[98:99]')
        b('v_readfirstlane_b32 s95, v1')
        b('s_waitcnt lgkmcnt(0)')


def kend(b, kidx):
    if STAMPS:
        b('s_waitcnt vmcnt(0)')
        b('s_load_dwordx2 s[88:89], s[0:1], 104')
        b('s_memrealtime s[92:93]')
        b('s_memtime s[100:101]')
        b('s_waitcnt lgkmcnt(0)')
        b('s_mov_b32 s90, 0x10000000')
        b('s_mov_b32 s91, 0x20000')
        b('s_sub_u32 s100, s100, s98')
        b('s_lshl_b32 s94, s2, 4')
        b('s_add_u32 s94, s94, s95')
        b('s_lshl_b32 s94, s94, 5')
        b('s_add_u32 s94, s94, 0x%x' % (WS_KSTAMP + kidx * 0x40000))
        b('s_mov_b64 exec, 1')
        b('v_mov_b32 v0, s96')
        b('v_mov_b32 v1, s92')
        b('v_mov_b32 v2, s100')
        b('v_mov_b32 v3, s2')
        b('v_mov_b32 v4, 0')
        b('buffer_store_dwordx4 v[0:3], v4, s[88:91], s94 offen')
        for i in range(4):
            b('s_sub_u32 s%d, s%d, s98' % (80 + 2 * i, 80 + 2 * i))
            b('v_mov_b32 v%d, s%d' % (8 + i, 80 + 2 * i))
        b('buffer_store_dwordx4 v[8:11], v4, s[88:91], s94 offen offset:16')


def kmid(b, i):
    if STAMPS:
        b('s_memtime s[%d:%d]' % (80 + 2 * i, 81 + 2 * i))
        b('s_waitcnt lgkmcnt(0)')


def raw(b, text):
    for l in text.strip().split('\n'):
        l = l.strip()
        b.add(Raw(l if l.endswith(':') else '  ' + l))


OPT = set(os.environ.get('OPT', '').split(','))
```

```python
from common import *

PF = os.environ.get('NOPF', '') == ''


def k0(name):
    b = Block()
    exit_if_ge(b, 256, name + '_end')
    kstart(b)
    srd(b, 8, A_C, 0); srd(b, 12, W_MOD, 0); srd(b, 16, D_WS, 0); srd(b, 24, A_X, 0); srd(b, 28, A_WQ, 0)
    b('v_and_b32 v74, 63, v0')
    b('v_lshlrev_b32 v75, 7, v74')
    b('v_lshrrev_b32 v76, 4, v0')
    b('v_lshlrev_b32 v76, 13, v76')
    b('v_and_b32 v77, 15, v0')
    b('v_lshl_add_u32 v76, v77, 7, v76')
    b('s_lshl_b32 s32, s2, 13')
    b('s_lshr_b32 s33, s2, 3')
    b('s_lshl_b32 s33, s33, 17')
    b('s_bfe_u32 s34, s2, 0x20001')
    b('s_lshl_b32 s34, s34, 11')
    b('s_add_u32 s33, s33, s34')
    b('v_and_b32 v1, 3, v0')
    b('v_lshrrev_b32 v2, 2, v0')
    b('v_lshlrev_b32 v3, 4, v2')
    b('s_mov_b32 s20, %d' % (8 * 6144))
    b('v_mul_lo_u32 v4, v2, s20')
    b('v_lshlrev_b32 v5, 4, v1')
    b('v_add_u32 v4, v4, v5')
    b('s_lshl_b32 s21, s2, 6')
    b('s_waitcnt lgkmcnt(0)')
    finish_srd(b, 8, 1024); finish_srd(b, 12, 512 * 6144); finish_srd(b, 16, WS_BYTES)
    finish_srd(b, 24, 2048 * 1024); finish_srd(b, 28, 512 * 8192)
    b('s_cmp_ge_u32 s2, 96')
    b('s_cbranch_scc1 %s_pf' % name)
    b('buffer_load_dwordx4 v[8:11], v3, s[8:11], 0 offen')
    for i in range(8):
        if i:
            b('s_add_u32 s21, s21, 6144')
        b('buffer_load_dwordx4 v[%d:%d], v4, s[12:15], s21 offen' % (32 + 4 * i, 35 + 4 * i))
    if PF:
        if 'k0wq' in OPT: b('buffer_load_dword v78, v76, s[28:31], s33 offen', 'pf')
        b('buffer_load_dword v79, v75, s[24:27], s32 offen', 'pf')
    for p in range(4):
        b('v_lshlrev_b32 v%d, 16, v%d' % (16 + 2 * p, 8 + p))
        b('v_and_b32 v%d, 0xffff0000, v%d' % (17 + 2 * p, 8 + p))
    for i in range(8):
        b('v_mul_f32 v%d, %s, v%d' % (24 + i, f32(-LOG2E), 16 + i))
    for i in range(8):
        b('v_exp_f32 v%d, v%d' % (24 + i, 24 + i))
    for i in range(8):
        b('v_add_f32 v%d, 1.0, v%d' % (24 + i, 24 + i))
    for i in range(8):
        b('v_rcp_f32 v%d, v%d' % (24 + i, 24 + i))
    for i in range(8):
        b('v_mul_f32 v%d, v%d, v%d' % (16 + i, 16 + i, 24 + i))
    for p in range(4):
        b('v_cvt_pk_bf16_f32 v%d, v%d, v%d' % (24 + p, 16 + 2 * p, 17 + 2 * p))
    for p in range(4):
        b('v_lshlrev_b32 v%d, 16, v%d' % (16 + 2 * p, 24 + p))
        b('v_and_b32 v%d, 0xffff0000, v%d' % (17 + 2 * p, 24 + p))
    for i in range(8):
        for p in range(4):
            w = 32 + 4 * i + p
            b('v_lshlrev_b32 v72, 16, v%d' % w)
            b('v_and_b32 v73, 0xffff0000, v%d' % w)
            if i == 0:
                b('v_mul_f32 v%d, v%d, v72' % (64 + 2 * p, 16 + i))
                b('v_mul_f32 v%d, v%d, v73' % (65 + 2 * p, 16 + i))
            else:
                b('v_fmac_f32 v%d, v%d, v72' % (64 + 2 * p, 16 + i))
                b('v_fmac_f32 v%d, v%d, v73' % (65 + 2 * p, 16 + i))
    b('v_lshlrev_b32 v6, 7, v2')
    b('v_lshlrev_b32 v7, 5, v1')
    b('v_add_u32 v6, v6, v7')
    b('ds_write_b128 v6, v[64:67]')
    b('ds_write_b128 v6, v[68:71] offset:16')
    b('s_waitcnt lgkmcnt(0)')
    b('s_barrier')
    b('v_and_b32 v1, 31, v0')
    b('v_lshrrev_b32 v2, 5, v0')
    b('v_lshlrev_b32 v6, 10, v2')
    b('v_lshlrev_b32 v7, 2, v1')
    b('v_add_u32 v6, v6, v7')
    for i in range(8):
        b('ds_read_b32 v%d, v6 offset:%d' % (32 + i, 128 * i))
    b('v_add_f32 v32, v32, v33')
    for i in range(2, 8):
        b('v_add_f32 v32, v32, v%d' % (32 + i))
    b('v_lshlrev_b32 v6, 7, v2')
    b('v_add_u32 v6, v6, v7')
    b('ds_write_b32 v6, v32 offset:8192')
    b('s_waitcnt lgkmcnt(0)')
    b('s_barrier')
    b('v_cmp_gt_u32 vcc, 32, v0')
    b('s_and_saveexec_b64 s[22:23], vcc')
    b('s_cbranch_execz %s_fin' % name)
    for i in range(8):
        b('ds_read_b32 v%d, v7 offset:%d' % (32 + i, 8192 + 128 * i))
    b('v_add_f32 v32, v32, v33')
    for i in range(2, 8):
        b('v_add_f32 v32, v32, v%d' % (32 + i))
    b('v_cvt_pk_bf16_f32 v32, v32, v32')
    b('v_and_b32 v32, 0xffff0000, v32')
    b('s_lshl_b32 s21, s2, 7')
    b('buffer_store_dword v32, v7, s[16:19], s21 offen offset:%d' % WS_MOD)
    b('s_branch %s_fin' % name)
    b.label(name + '_pf')
    if PF:
        if 'k0wq' in OPT: b('buffer_load_dword v78, v76, s[28:31], s33 offen', 'pf')
        b('buffer_load_dword v79, v75, s[24:27], s32 offen', 'pf')
    b.label(name + '_fin')
    kend(b, 0)
    b.label(name + '_end')
    b('s_endpgm')
    return b, dict(vgpr=80, agpr=0, lds=9216 + 1024, grid=256, block=256)


def ln_thread_ids(b):
    b('v_and_b32 v1, 7, v0')
    b('v_lshrrev_b32 v2, 3, v0')
    b('s_lshr_b32 s20, s2, 2')
    b('s_and_b32 s21, s2, 3')
    b('s_lshl_b32 s21, s21, 3')


def ln_x_offsets(b, dst):
    b('v_lshlrev_b32 v%d, 10, v1' % dst)
    b('v_lshrrev_b32 v5, 1, v2')
    b('v_lshlrev_b32 v5, 6, v5')
    b('v_add_u32 v%d, v%d, v5' % (dst, dst))
    b('v_and_b32 v5, 1, v2')
    b('v_lshlrev_b32 v5, 3, v5')
    b('v_add_u32 v%d, v%d, v5' % (dst, dst))


def ln_mod_offsets(b, dst):
    b('v_lshrrev_b32 v5, 1, v2')
    b('v_lshlrev_b32 v%d, 7, v5' % dst)
    b('v_and_b32 v5, 1, v2')
    b('v_lshlrev_b32 v5, 4, v5')
    b('v_add_u32 v%d, v%d, v5' % (dst, dst))


def ln_bf_offsets(b, dst):
    b('v_lshrrev_b32 v5, 1, v2')
    b('v_lshlrev_b32 v%d, 11, v5' % dst)
    b('v_and_b32 v5, 1, v2')
    b('v_lshlrev_b32 v5, 9, v5')
    b('v_add_u32 v%d, v%d, v5' % (dst, dst))
    b('v_add_u32 v5, s21, v1')
    b('v_lshlrev_b32 v5, 4, v5')
    b('v_add_u32 v%d, v%d, v5' % (dst, dst))


def row_reduce(b, x, tmp, lds_off, wave_v, r_v):
    b('v_add_f32_dpp v%d, v%d, v%d row_ror:8 row_mask:0xf bank_mask:0xf' % (tmp, x, x))
    b('v_mov_b32 v%d, v%d' % (x, tmp))
    xor16_32_add(b, x, tmp)
    b('ds_write_b32 v%d, v%d offset:%d' % (wave_v, x, lds_off))
    b('s_waitcnt lgkmcnt(0)')
    b('s_barrier')
    b('ds_read_b128 v[%d:%d], v%d offset:%d' % (tmp, tmp + 3, r_v, lds_off))
    b('v_add_f32 v%d, v%d, v%d' % (tmp, tmp, tmp + 1))
    b('v_add_f32 v%d, v%d, v%d' % (tmp + 2, tmp + 2, tmp + 3))
    b('v_add_f32 v%d, v%d, v%d' % (x, tmp, tmp + 2))


def layernorm16(b, X, T):
    b('v_lshrrev_b32 v%d, 6, v0' % (T + 6))
    b('v_lshlrev_b32 v%d, 2, v%d' % (T + 6, T + 6))
    b('v_lshlrev_b32 v%d, 4, v1' % (T + 7))
    b('v_add_u32 v%d, v%d, v%d' % (T + 6, T + 6, T + 7))
    S = T + 4
    b('v_add_f32 v%d, v%d, v%d' % (S, X, X + 1))
    for i in range(2, 16):
        b('v_add_f32 v%d, v%d, v%d' % (S, S, X + i))
    row_reduce(b, S, T, 0, T + 6, T + 7)
    b('v_mul_f32 v%d, %s, v%d' % (S, f32(1.0 / 512), S))
    for i in range(16):
        b('v_sub_f32 v%d, v%d, v%d' % (X + i, X + i, S))
    b('v_mul_f32 v%d, v%d, v%d' % (S, X, X))
    for i in range(1, 16):
        b('v_fmac_f32 v%d, v%d, v%d' % (S, X + i, X + i))
    row_reduce(b, S, T, 128, T + 6, T + 7)
    b('v_mov_b32 v%d, %s' % (T, f32(1e-5)))
    b('v_fmac_f32 v%d, %s, v%d' % (T, f32(1.0 / 512), S))
    b('v_rsq_f32 v%d, v%d' % (T, T))
    for i in range(16):
        b('v_mul_f32 v%d, v%d, v%d' % (X + i, X + i, T))


def k1(name):
    b = Block()
    exit_if_ge(b, 256, name + '_end')
    kstart(b)
    srd(b, 8, A_X, 0); srd(b, 16, D_WS, 0); srd(b, 24, A_K, 0); srd(b, 28, A_V, 0); srd(b, 40, A_WQ, 0)
    b('v_lshrrev_b32 v80, 6, v0')
    b('v_and_b32 v81, 63, v0')
    b('v_readfirstlane_b32 s36, v80')
    b('v_lshlrev_b32 v81, 7, v81')
    b('v_lshrrev_b32 v82, 4, v0')
    b('v_lshlrev_b32 v82, 13, v82')
    b('v_and_b32 v83, 15, v0')
    b('v_lshl_add_u32 v82, v83, 7, v82')
    b('s_lshr_b32 s34, s2, 3')
    b('s_lshl_b32 s34, s34, 17')
    b('s_bfe_u32 s35, s2, 0x20001')
    b('s_lshl_b32 s35, s35, 11')
    b('s_add_u32 s34, s34, s35')
    b('s_bfe_u32 s32, s2, 0x20001')
    b('s_lshl_b32 s32, s32, 3')
    b('s_lshr_b32 s33, s2, 5')
    b('s_add_u32 s32, s32, s33')
    b('s_lshl_b32 s32, s32, 19')
    b('s_bfe_u32 s33, s2, 0x10003')
    b('s_lshl_b32 s33, s33, 14')
    b('s_add_u32 s32, s32, s33')
    b('s_and_b32 s33, s36, 1')
    b('s_lshl_b32 s33, s33, 13')
    b('s_add_u32 s32, s32, s33')
    b('s_add_u32 s32, s32, %d' % (1536 * 256))
    ln_thread_ids(b)
    ln_x_offsets(b, 3)
    ln_mod_offsets(b, 4)
    ln_bf_offsets(b, 6)
    b('s_lshl_b32 s22, s2, 13')
    b('s_waitcnt lgkmcnt(0)')
    finish_srd(b, 8, 2048 * 1024); finish_srd(b, 16, WS_BYTES)
    for j in range(4):
        b('buffer_load_dwordx2 v[%d:%d], v3, s[8:11], s22 offen offset:%d' % (8 + 2 * j, 9 + 2 * j, 16 * j))
    for j in range(4):
        b('buffer_load_dwordx4 v[%d:%d], v4, s[16:19], 0 offen offset:%d' % (48 + 4 * j, 51 + 4 * j, WS_MOD + 32 * j))
        b('buffer_load_dwordx4 v[%d:%d], v4, s[16:19], 0 offen offset:%d' % (64 + 4 * j, 67 + 4 * j, WS_MOD + 2048 + 32 * j))
    if PF:
        finish_srd(b, 40, 512 * 8192)
        if 'k0wq' not in OPT: b('buffer_load_dword v84, v82, s[40:43], s34 offen', 'pf')
        b('s_cmp_ge_u32 s36, 2')
        b('s_cselect_b32 s24, s28, s24')
        b('s_cselect_b32 s25, s29, s25')
        finish_srd(b, 24, 32 * 2048 * 256)
        if 'kvpf' in OPT: b('buffer_load_dword v85, v81, s[24:27], s32 offen', 'pf')
    X = 16
    for p in range(8):
        b('v_lshlrev_b32 v%d, 16, v%d' % (X + 2 * p, 8 + p))
        b('v_and_b32 v%d, 0xffff0000, v%d' % (X + 2 * p + 1, 8 + p))
    layernorm16(b, X, 32)
    for i in range(16):
        b('v_add_f32 v%d, 1.0, v%d' % (64 + i, 64 + i))
    for p in range(8):
        b('v_cvt_pk_bf16_f32 v%d, v%d, v%d' % (40, 64 + 2 * p, 65 + 2 * p))
        b('v_lshlrev_b32 v%d, 16, v40' % (64 + 2 * p))
        b('v_and_b32 v%d, 0xffff0000, v40' % (65 + 2 * p))
    for i in range(16):
        b('v_fma_f32 v%d, v%d, v%d, v%d' % (X + i, X + i, 64 + i, 48 + i))
        b('v_mul_f32 v%d, %s, v%d' % (X + i, f32(QSCALE), X + i))
    for p in range(8):
        b('v_cvt_pk_bf16_f32 v%d, v%d, v%d' % (8 + p, X + 2 * p, X + 2 * p + 1))
    b('s_lshl_b32 s22, s20, 15')
    b('s_add_u32 s22, s22, 0x%x' % WS_H)
    b('buffer_store_dwordx4 v[8:11], v6, s[16:19], s22 offen')
    b('buffer_store_dwordx4 v[12:15], v6, s[16:19], s22 offen offset:1024')
    b.label(name + '_fin')
    kend(b, 1)
    b.label(name + '_end')
    b('s_endpgm')
    return b, dict(vgpr=88, agpr=0, lds=256, grid=256, block=256)
```

```python
from common import *

PF = os.environ.get('NOPF', '') == ''

S_WQ, S_K, S_V, S_WS = 8, 12, 16, 20
S_HEAD, S_QT, S_W, S_ROT = 24, 25, 26, 27
S_W8K, S_W4K = 28, 29
S_WB = 32
S_HB = 36
S_T0, S_T1, S_T2 = 40, 41, 42
S_OB = 43
S_MODE = 44
S_KVB = 45
S_KROT = 47
S_CH = 46
S_WO, S_WG, S_WU, S_WD = 48, 52, 56, 76
S_PFO = 30
S_STAMP = 60

V_WOFF = 2
V_KOFF = 6
V_VOFF = 10
V_H = 11
V_WA = 16
V_VA = 20
V_KA = 24
V_L = 32
V_LANE16 = 36
V_OOFF = 37
V_PF = 38
V_T = 40
V_Q = 64
V_ACC = 128
V_S = 128
V_NEG = 160
V_P = 192
V_M = 208
A_O = 0
A_KF = 128
A_VF = 160

SLOT = 32768
MAX_OFF = 24.0
L_LIMIT = 2.0 ** 80


def vr(base, n=1):
    return 'v%d' % base if n == 1 else 'v[%d:%d]' % (base, base + n - 1)


def ar(base, n=1):
    return 'a%d' % base if n == 1 else 'a[%d:%d]' % (base, base + n - 1)


class Sched:
    def __init__(self):
        self.m = {}
        self.f = {}

    def mfma(self, slot, text):
        assert slot not in self.m
        self.m[slot] = text

    def add(self, slot, item, tag=None):
        self.f.setdefault(slot, []).append((item, tag))

    def emit(self, b, lo, hi, valu_last=False):
        for s in range(lo, hi):
            if s in self.m:
                b(self.m[s])
            items = self.f.get(s, [])
            if valu_last:
                isv = lambda it: isinstance(it[0], str) and it[0].startswith('v_')
                items = [x for x in items if not isv(x)] + [x for x in items if isv(x)]
            for item, tag in items:
                if callable(item):
                    item(b)
                else:
                    b(item, tag)


def kv_slot(i):
    return (i + 4) % 5


def dma_kv(i, w4k=S_W4K):
    out = []
    base = kv_slot(i) * SLOT
    out.append(('s_add_u32 s%d, s%d, %d' % (S_CH, S_KROT, i), None))
    out.append(('s_and_b32 s%d, s%d, 7' % (S_CH, S_CH), None))
    out.append(('s_add_u32 m0, s%d, %d' % (w4k, base), None))
    out.append(('s_lshl_b32 s%d, s%d, 14' % (S_CH, S_CH), None))
    out.append(('s_add_u32 s%d, s%d, s%d' % (S_CH, S_CH, w4k), None))
    for ii in range(4):
        out.append(('buffer_load_dwordx4 v%d, s[%d:%d], s%d offen offset:%d lds' % (V_KOFF + ii, S_K, S_K + 3, S_CH, ii * 1024), 'C%d' % i))
    out.append(('s_add_u32 m0, s%d, %d' % (w4k, base + 16384), None))
    for ii in range(4):
        out.append(('buffer_load_dwordx4 v%d, s[%d:%d], s%d offen offset:%d lds' % (V_VOFF, S_V, S_V + 3, S_CH, ii * 1024), 'C%d' % i))
    return out


def dma_w(p):
    out = []
    for half in range(2):
        out.append(('s_add_u32 m0, s%d, %d' % (S_W8K, p * SLOT + half * 4096), None))
        if half:
            out.append(('s_add_u32 s%d, s%d, %d' % (S_T0, S_WB + p, 4 * 32768), None))
        for ii in range(4):
            out.append(('buffer_load_dwordx4 v%d, s[%d:%d], s%d offen offset:%d lds' %
                        (V_WOFF + ii, S_WQ, S_WQ + 3, S_T0 if half else S_WB + p, ii * 1024), 'W%d' % p))
    return out


def h_load(s):
    p = s // 8
    out = []
    for qq in range(2):
        out.append(('buffer_load_dwordx4 %s, v%d, s[%d:%d], s%d offen offset:%d' %
                    (ar(8 * s + 4 * qq, 4), V_H + 2 * qq + ((s & 7) >> 2), S_WS, S_WS + 3, S_HB + p, (s & 3) * 1024), None))
    return out


def stamp(b, i, on):
    if on:
        b('s_memtime s[%d:%d]' % (S_STAMP + 2 * i, S_STAMP + 2 * i + 1))
        b('s_waitcnt lgkmcnt(0)')


def setup(b):
    srd(b, S_WQ, A_WQ, 0); srd(b, S_K, A_K, 0); srd(b, S_V, A_V, 0); srd(b, S_WS, D_WS, 0)
    if PF:
        srd(b, S_WO, A_WO, 0); srd(b, S_WG, B_WG, 0); srd(b, S_WU, B_WU, 0); srd(b, S_WD, B_WD, 0)
    b('s_and_b32 s%d, s2, 7' % S_T0)
    b('s_lshr_b32 s%d, s2, 3' % S_T1)
    b('s_lshr_b32 s%d, s%d, 1' % (S_HEAD, S_T0))
    b('s_lshl_b32 s%d, s%d, 3' % (S_HEAD, S_HEAD))
    b('s_lshr_b32 s%d, s%d, 2' % (S_ROT, S_T1))
    b('s_add_u32 s%d, s%d, s%d' % (S_HEAD, S_HEAD, S_ROT))
    b('s_and_b32 s%d, s%d, 1' % (S_QT, S_T0))
    b('s_lshl_b32 s%d, s%d, 2' % (S_QT, S_QT))
    b('s_and_b32 s%d, s%d, 3' % (S_T1, S_T1))
    b('s_add_u32 s%d, s%d, s%d' % (S_QT, S_QT, S_T1))
    b('s_add_u32 s%d, s%d, s%d' % (S_ROT, S_ROT, S_T1))
    b('s_and_b32 s%d, s%d, 3' % (S_ROT, S_ROT))
    b('s_lshl_b32 s%d, s%d, 1' % (S_KROT, S_T1))
    if 'rot' not in OPT:
        b('s_mov_b32 s%d, 0' % S_ROT)
        b('s_mov_b32 s%d, 0' % S_KROT)
    b('v_lshrrev_b32 v1, 6, v0')
    b('v_and_b32 v0, 63, v0')
    b('v_readfirstlane_b32 s%d, v1' % S_W)
    T = V_T
    b('v_lshrrev_b32 v%d, 4, v0' % T)
    b('v_and_b32 v%d, 15, v0' % (T + 1))
    b('v_lshlrev_b32 v%d, 2, v%d' % (T + 2, T))
    b('v_xor_b32 v%d, v%d, v%d' % (T + 2, T + 2, T + 1))
    b('v_lshlrev_b32 v%d, 4, v%d' % (T + 2, T + 2))
    b('v_lshlrev_b32 v%d, 8, v%d' % (T + 3, T))
    b('v_add_u32 v%d, v%d, v%d' % (V_VOFF, T + 2, T + 3))
    b('v_lshlrev_b32 v%d, 13, v%d' % (T + 3, T))
    b('v_add_u32 v%d, v%d, v%d' % (V_WOFF, T + 2, T + 3))
    for ii in range(1, 4):
        b('v_add_u32 v%d, %d, v%d' % (V_WOFF + ii, ii * (32768 - 1024), V_WOFF))
    for ii in range(4):
        b('v_add_u32 v%d, %d, v%d' % (T + 2, 4 * ii, T))
        b('v_xor_b32 v%d, v%d, v%d' % (T + 2, T + 2, T + 1))
        b('v_lshlrev_b32 v%d, 4, v%d' % (T + 2, T + 2))
        b('v_lshlrev_b32 v%d, 8, v%d' % (T + 3, T))
        b('v_add_u32 v%d, v%d, v%d' % (V_KOFF + ii, T + 2, T + 3))
    b('v_lshlrev_b32 v%d, 4, v0' % V_LANE16)
    b('v_bfe_u32 v%d, v0, 4, 1' % (T + 2))
    b('v_lshlrev_b32 v%d, 17, v%d' % (V_OOFF, T + 2))
    b('v_lshrrev_b32 v%d, 5, v0' % (T + 2))
    b('v_lshlrev_b32 v%d, 9, v%d' % (T + 2, T + 2))
    b('v_add_u32 v%d, v%d, v%d' % (V_OOFF, V_OOFF, T + 2))
    b('v_and_b32 v%d, 15, v0' % (T + 2))
    b('v_lshlrev_b32 v%d, 4, v%d' % (T + 2, T + 2))
    b('v_add_u32 v%d, v%d, v%d' % (V_OOFF, V_OOFF, T + 2))
    for qq in range(2):
        for half in range(2):
            b('v_add_u32 v%d, %d, v%d' % (V_H + 2 * qq + half, qq * 32768 + half * 4096, V_LANE16))
    b('v_lshrrev_b32 v%d, 5, v0' % T)
    b('v_lshlrev_b32 v%d, 2, v%d' % (T + 1, T))
    b('v_bfe_u32 v%d, v0, 2, 2' % (T + 2))
    b('v_add_u32 v%d, v%d, v%d' % (T + 1, T + 1, T + 2))
    b('v_lshlrev_b32 v%d, 8, v%d' % (T + 1, T + 1))
    b('v_bfe_u32 v%d, v0, 4, 1' % (T + 3))
    b('v_lshlrev_b32 v%d, 5, v%d' % (T + 3, T + 3))
    b('v_add_u32 v%d, v%d, v%d' % (T + 1, T + 1, T + 3))
    b('v_and_b32 v%d, 3, v0' % (T + 3))
    b('v_lshlrev_b32 v%d, 3, v%d' % (T + 4, T + 3))
    b('v_and_b32 v%d, 1, v0' % (T + 5))
    b('v_lshlrev_b32 v%d, 4, v%d' % (T + 5, T + 5))
    b('v_bfe_u32 v%d, v0, 1, 1' % (T + 6))
    b('v_lshlrev_b32 v%d, 3, v%d' % (T + 6, T + 6))
    b('v_add_u32 v%d, v%d, v%d' % (T + 5, T + 5, T + 6))
    for db in range(4):
        b('v_xor_b32 v%d, %d, v%d' % (T + 6, db, T + 2))
        b('v_lshlrev_b32 v%d, 6, v%d' % (T + 6, T + 6))
        b('v_add_u32 v%d, v%d, v%d' % (T + 6, T + 6, T + 1))
        b('v_add_u32 v%d, v%d, v%d' % (V_VA + db, T + 6, T + 4))
        b('v_add_u32 v%d, v%d, v%d' % (V_WA + db, T + 6, T + 5))
    b('v_and_b32 v%d, 31, v0' % (T + 1))
    b('v_and_b32 v%d, 15, v0' % (T + 2))
    b('v_xor_b32 v%d, v%d, v%d' % (T + 2, T + 2, T))
    b('v_lshlrev_b32 v%d, 8, v%d' % (T + 1, T + 1))
    for tt in range(8):
        b('v_xor_b32 v%d, %d, v%d' % (T + 3, 2 * tt, T + 2))
        b('v_lshlrev_b32 v%d, 4, v%d' % (T + 3, T + 3))
        b('v_add_u32 v%d, v%d, v%d' % (V_KA + tt, T + 3, T + 1))
    b('s_lshl_b32 s%d, s%d, 13' % (S_W8K, S_W))
    b('s_lshl_b32 s%d, s%d, 12' % (S_W4K, S_W))
    b('s_waitcnt lgkmcnt(0)')
    b('s_lshl_b32 s%d, s%d, 8' % (S_T0, S_HEAD))
    b('s_add_u32 s%d, s%d, s%d' % (S_WQ, S_WQ, S_T0))
    b('s_addc_u32 s%d, s%d, 0' % (S_WQ + 1, S_WQ + 1))
    b('s_sub_u32 s%d, %d, s%d' % (S_WQ + 2, 512 * 8192, S_T0))
    b('s_mov_b32 s%d, 0x20000' % (S_WQ + 3))
    b('s_lshl_b32 s%d, s%d, 19' % (S_T0, S_HEAD))
    b('s_add_u32 s%d, s%d, %d' % (S_T0, S_T0, 1536 * 256))
    for s in (S_K, S_V):
        b('s_add_u32 s%d, s%d, s%d' % (s, s, S_T0))
        b('s_addc_u32 s%d, s%d, 0' % (s + 1, s + 1))
        finish_srd(b, s, 512 * 256)
    finish_srd(b, S_WS, WS_BYTES)
    b('s_lshl_b32 s%d, s%d, 3' % (S_T0, S_QT))
    b('s_lshl_b32 s%d, s%d, 1' % (S_T1, S_W))
    b('s_add_u32 s%d, s%d, s%d' % (S_T0, S_T0, S_T1))
    b('s_lshl_b32 s%d, s%d, 15' % (S_T1, S_T0))
    b('s_add_u32 s%d, s%d, 0x%x' % (S_T1, S_T1, WS_H))
    b('s_lshl_b32 s%d, s%d, 18' % (S_T2, S_W))
    for p in range(4):
        b('s_add_u32 s%d, s%d, %d' % (S_CH, S_ROT, p))
        b('s_and_b32 s%d, s%d, 3' % (S_CH, S_CH))
        b('s_lshl_b32 s%d, s%d, 20' % (S_WB + p, S_CH))
        b('s_add_u32 s%d, s%d, s%d' % (S_WB + p, S_WB + p, S_T2))
        b('s_lshl_b32 s%d, s%d, 13' % (S_HB + p, S_CH))
        b('s_add_u32 s%d, s%d, s%d' % (S_HB + p, S_HB + p, S_T1))
    b('s_lshl_b32 s%d, s%d, 18' % (S_OB, S_T0))
    b('s_lshl_b32 s%d, s%d, 12' % (S_T1, S_HEAD))
    b('s_add_u32 s%d, s%d, s%d' % (S_OB, S_OB, S_T1))
    b('s_add_u32 s%d, s%d, 0x%x' % (S_OB, S_OB, WS_O))
    b('s_mov_b32 s%d, 0' % S_MODE)
    if PF:
        finish_srd(b, S_WO, 4096 * 1024); finish_srd(b, S_WG, 512 * 2752); finish_srd(b, S_WU, 512 * 2752); finish_srd(b, S_WD, 1376 * 1024)
        b('s_bfe_u32 s%d, s2, 0x20001' % S_PFO)
        b('s_lshl_b32 s%d, s%d, 20' % (S_PFO, S_PFO))
        b('s_lshr_b32 s%d, s2, 3' % S_T1)
        b('s_lshl_b32 s%d, s%d, 15' % (S_T1, S_T1))
        b('s_add_u32 s%d, s%d, s%d' % (S_PFO, S_PFO, S_T1))
        b('s_add_u32 s%d, s%d, s%d' % (S_PFO, S_PFO, S_W8K))


def qproj(b, stamps):
    H_AHEAD = 6
    sc = Sched()
    for t, g in dma_w(0): b(t, g)
    for s in range(0, 3):
        for t, g in h_load(s): b(t, g)
    w1 = dma_w(1)
    for t, g in w1[:5]: b(t, g)
    for s in range(3, H_AHEAD):
        for t, g in h_load(s): b(t, g)
    b.waitvm('W0')
    b('s_barrier')
    stamp(b, 1, stamps)

    def a_reads(s):
        buf = V_Q + 16 * (s & 1)
        p = s // 8
        out = []
        for db in range(4):
            for jj in range(2):
                off = (p & 1) * SLOT + (s & 7) * 4096 + jj * 2048
                out.append('ds_read_b64_tr_b16 %s, v%d offset:%d' % (vr(buf + 4 * db + 2 * jj, 2), V_WA + db, off))
        return out
    for t in a_reads(0): b(t)
    stream = []
    for k, x in enumerate(w1[5:]):
        stream.append((k // 2, x))
    for p, first in ((2, 4), (3, 12)):
        for k, x in enumerate(dma_w(p)):
            stream.append((first + min(7, (k * 8) // len(dma_w(p))), x))
    for k, x in enumerate(dma_kv(0)):
        stream.append((20 + (k * 8) // len(dma_kv(0)), x))
    for s in range(32):
        base = 8 * s
        for db in range(4):
            for qq in range(2):
                d = vr(V_ACC + (db * 2 + qq) * 16, 16)
                sc.mfma(base + 2 * db + qq, 'v_mfma_f32_32x32x16_bf16 %s, %s, %s, %s' %
                        (d, vr(V_Q + 16 * (s & 1) + 4 * db, 4), ar(8 * s + 4 * qq, 4), '0' if s == 0 else d))
        if s + 1 < 32:
            if (s + 1) % 8 == 0:
                p = (s + 1) // 8
                sc.add(base, lambda bb, p=p: (bb.waitvm('W%d' % p), bb('s_barrier')))
                if p == 2:
                    for db in range(4):
                        sc.add(base, 'v_add_u32 v%d, 0x10000, v%d' % (V_WA + db, V_WA + db))
            for k, t in enumerate(a_reads(s + 1)):
                sc.add(base + k, t)
        if s + H_AHEAD < 32:
            for k, (t, g) in enumerate(h_load(s + H_AHEAD)):
                sc.add(base + 1 + 4 * k, t, g)
        k = 0
        for (st, (t, g)) in stream:
            if st == s:
                sc.add(base + 2 + (k % 6), t, g)
                k += 1
    sc.emit(b, 0, 256)
    for db in range(4):
        for qq in range(2):
            acc = V_ACC + (db * 2 + qq) * 16
            for tp in range(2):
                for k in range(4):
                    b('v_cvt_pk_bf16_f32 v%d, v%d, v%d' % (V_Q + qq * 32 + (2 * db + tp) * 4 + k, acc + 8 * tp + 2 * k, acc + 8 * tp + 2 * k + 1))


def k_read(tt, blk):
    return 'ds_read_b128 %s, v%d offset:%d' % (ar(A_KF + 4 * tt, 4), V_KA + tt, (blk & 1) * 8192)


def v_reads(f, blk):
    ks, db = f // 4, f % 4
    return ['ds_read_b64_tr_b16 %s, v%d offset:%d' % (ar(A_VF + 4 * f + 2 * jj, 2), V_VA + db, 16384 + (blk & 1) * 8192 + ks * 4096 + jj * 2048)
            for jj in range(2)]


def qk(qq, tt, first_c):
    s = vr(V_S + 16 * qq, 16)
    c = s if tt else first_c
    return 'v_mfma_f32_32x32x16_bf16 %s, %s, %s, %s' % (s, ar(A_KF + 4 * tt, 4), vr(V_Q + 32 * qq + 4 * tt, 4), c)


def pv(qq, f, first):
    ks, db = f // 4, f % 4
    o = ar(A_O + (db * 2 + qq) * 16, 16)
    return 'v_mfma_f32_32x32x16_bf16 %s, %s, %s, %s' % (o, ar(A_VF + 4 * f, 4), vr(V_P + 8 * qq + 4 * ks, 4), '0' if (first and ks == 0) else o)


def softmax_pair(qq, p, first=False):
    s0, s1 = V_S + 16 * qq + 2 * p, V_S + 16 * qq + 2 * p + 1
    la, lb = V_L + 2 * qq, V_L + 2 * qq + 1
    e = ['v_exp_f32 v%d, v%d' % (s0, s0), 'v_exp_f32 v%d, v%d' % (s1, s1)]
    if first and p == 0:
        a = ['v_mov_b32 v%d, v%d' % (la, s0), 'v_mov_b32 v%d, v%d' % (lb, s1)]
    else:
        a = ['v_add_f32 v%d, v%d, v%d' % (la, la, s0), 'v_add_f32 v%d, v%d, v%d' % (lb, lb, s1)]
    a.append('v_cvt_pk_bf16_f32 v%d, v%d, v%d' % (V_P + 8 * qq + p, s0, s1))
    return e, a


def half_swap(b, x, tmp, op):
    b('v_mov_b32 v%d, v%d' % (tmp, x))
    b('v_permlane32_swap_b32 v%d, v%d' % (x, tmp))
    b('%s v%d, v%d, v%d' % (op, x, x, tmp))


def prefetches():
    T = V_T
    pre = ['v_lshlrev_b32 v%d, 7, v0' % V_PF,
           'v_min_u32 v%d, 10, v0' % (V_PF + 1),
           's_lshl_b32 s%d, s2, 2' % S_T1, 's_add_u32 s%d, s%d, s%d' % (S_T1, S_T1, S_W), 's_mul_i32 s%d, s%d, 11' % (S_T1, S_T1),
           'v_add_u32 v%d, s%d, v%d' % (V_PF + 1, S_T1, V_PF + 1), 'v_lshlrev_b32 v%d, 7, v%d' % (V_PF + 1, V_PF + 1),
           'v_lshrrev_b32 v%d, 5, v0' % T, 'v_lshlrev_b32 v%d, 17, v%d' % (T, T),
           'v_and_b32 v%d, 31, v0' % (T + 1), 'v_lshl_add_u32 v%d, v%d, 7, v%d' % (T, T + 1, T),
           's_add_u32 s%d, s%d, 262144' % (S_T2, S_OB)]
    loads = ['buffer_load_dword v%d, v%d, s[%d:%d], s%d offen' % (T + 2, V_PF, S_WO, S_WO + 3, S_PFO),
             'buffer_load_dword v%d, v%d, s[%d:%d], s%d offen' % (T + 2, T, S_WS, S_WS + 3, S_OB),
             'buffer_load_dword v%d, v%d, s[%d:%d], s%d offen' % (T + 2, T, S_WS, S_WS + 3, S_T2)]
    for srd_ in (S_WG, S_WU, S_WD):
        loads.append('buffer_load_dword v%d, v%d, s[%d:%d], 0 offen' % (T + 2, V_PF + 1, srd_, srd_ + 3))
    return pre, loads


def attention(b, name, stamps):
    b.label(name + '_attn')
    for tt in range(8):
        b('v_add_u32 v%d, %d, v%d' % (V_KA + tt, kv_slot(0) * SLOT, V_KA + tt))
    for db in range(4):
        b('v_add_u32 v%d, %d, v%d' % (V_VA + db, kv_slot(0) * SLOT, V_VA + db))
    b.waitvm('C0')
    b('s_barrier')
    for tt in range(8):
        b(k_read(tt, 0))
    for i in (1, 2, 3):
        for t, g in dma_kv(i): b(t, g)
    for tt in range(8):
        for qq in range(2):
            b(qk(qq, tt, '0'))
        b(k_read(tt, 1))
    for f in range(8):
        for t in v_reads(f, 0): b(t)
    b('s_cmp_lg_u32 s%d, 0' % S_MODE)
    b('s_cbranch_scc1 %s_havemax' % name)
    for qq in range(2):
        S = V_S + 16 * qq
        M = V_M + qq
        b('v_max3_f32 v%d, v%d, v%d, v%d' % (M, S, S + 1, S + 2))
        for i in range(3, 15, 2):
            b('v_max3_f32 v%d, v%d, v%d, v%d' % (M, M, S + i, S + i + 1))
        b('v_max_f32 v%d, v%d, v%d' % (M, M, S + 15))
        half_swap(b, M, V_T + qq, 'v_max_f32')
        b('v_add_f32 v%d, %s, v%d' % (M, f32(MAX_OFF), M))
    b.label(name + '_havemax')
    b('s_nop 7')
    b('s_nop 3')
    for qq in range(2):
        for i in range(16):
            b('v_sub_f32 v%d, 0, v%d' % (V_NEG + 16 * qq + i, V_M + qq))
        for i in range(16):
            b('v_sub_f32 v%d, v%d, v%d' % (V_S + 16 * qq + i, V_S + 16 * qq + i, V_M + qq))
    for p in range(8):
        e, a = softmax_pair(0, p, first=True)
        for t in e + a: b(t)
    stamp(b, 3, stamps)

    sc = Sched()
    NB = 16
    for j in range(NB):
        base = 32 * j
        last = j == NB - 1
        for f in range(8):
            sc.mfma(base + f, pv(0, f, j == 0))
            sc.mfma(base + 16 + f, pv(1, f, j == 0))
        if not last:
            for tt in range(8):
                sc.mfma(base + 8 + tt, qk(0, tt, vr(V_NEG, 16)))
                sc.mfma(base + 24 + tt, qk(1, tt, vr(V_NEG + 16, 16)))
        for qq, w0, on in ((1, 2, True), (0, 18, not last)):
            if not on:
                continue
            for p in range(8):
                e, a = softmax_pair(qq, p, first=(j == 0 and qq == 1))
                sc.add(base + w0 + 2 * p, e[0])
                sc.add(base + w0 + 2 * p + 1, e[1])
                sc.add(base + w0 + 2 * p + 1, a[0])
                sc.add(base + w0 + 2 * p + 2, a[1])
                sc.add(base + w0 + 2 * p + 2, a[2])
        if j + 1 < NB:
            for f in range(8):
                for jj, t in enumerate(v_reads(f, j + 1)):
                    sc.add(base + 17 + 2 * f + jj, t)
        if j + 2 < NB:
            for tt in range(8):
                sc.add(base + 33 + tt, k_read(tt, j + 2))
        if j % 2 == 0 and j + 2 < NB:
            c = j // 2
            delta = (kv_slot(c + 1) - kv_slot(c)) * SLOT
            lit = '0x%x' % (delta & 0xffffffff)
            for tt in range(8):
                sc.add(base + 9 + tt, 'v_add_u32 v%d, %s, v%d' % (V_KA + tt, lit, V_KA + tt))
            for db in range(4):
                sc.add(base + 32 + 9 + db, 'v_add_u32 v%d, %s, v%d' % (V_VA + db, lit, V_VA + db))
            sc.add(base + 32, lambda bb, c=c: (bb.waitvm('C%d' % (c + 1)), bb('s_barrier')))
            if c + 4 < 8:
                ops = dma_kv(c + 4)
                for k, (t, g) in enumerate(ops):
                    sc.add(base + 32 + 9 + (k * 8) // len(ops), t, g)
    if PF:
        pre, loads = prefetches()
        for k, t in enumerate(pre):
            sc.add(32 * 6 + 9 + k // 2, t)
        order = [0, 3, 4, 5] + ([1, 2] if 'otouch' in OPT else [])
        for k, i in enumerate(order):
            sc.add(32 * (8 + k // 2) + 10 + 4 * (k % 2), loads[i], 'pf')
    sc.emit(b, 0, 32 * NB + 3, valu_last=True)
    stamp(b, 4, stamps)


def epilogue(b, name, stamps):
    T = V_T
    for qq in range(2):
        b('v_add_f32 v%d, v%d, v%d' % (V_L + 2 * qq, V_L + 2 * qq, V_L + 2 * qq + 1))
        half_swap(b, V_L + 2 * qq, T + qq, 'v_add_f32')
    b('s_cmp_lg_u32 s%d, 0' % S_MODE)
    b('s_cbranch_scc1 %s_noguard' % name)
    b('v_add_f32 v%d, v%d, v%d' % (T + 1, V_L, V_L + 2))
    b('v_mov_b32 v%d, %s' % (T + 2, f32(L_LIMIT)))
    b('v_cmp_nle_f32 vcc, v%d, v%d' % (T + 1, T + 2))
    b('v_mov_b32 v%d, 0' % (T + 3))
    b('s_cmp_lg_u64 vcc, 0')
    b('s_cselect_b32 s%d, 1, 0' % S_T0)
    b('v_mov_b32 v%d, s%d' % (T + 3, S_T0))
    b('s_lshl_b32 s%d, s%d, 2' % (S_T1, S_W))
    b('s_add_u32 s%d, s%d, %d' % (S_T1, S_T1, 2 * SLOT))
    b('v_mov_b32 v%d, s%d' % (T + 4, S_T1))
    b('ds_write_b32 v%d, v%d' % (T + 4, T + 3))
    b('s_waitcnt lgkmcnt(0)')
    b('s_barrier')
    b('v_mov_b32 v%d, %d' % (T + 4, 2 * SLOT))
    b('ds_read_b128 %s, v%d' % (vr(T + 8, 4), T + 4))
    b('v_or_b32 v%d, v%d, v%d' % (T + 8, T + 8, T + 9))
    b('v_or_b32 v%d, v%d, v%d' % (T + 10, T + 10, T + 11))
    b('v_or_b32 v%d, v%d, v%d' % (T + 8, T + 8, T + 10))
    b('v_readfirstlane_b32 s%d, v%d' % (S_T0, T + 8))
    b('s_cmp_lg_u32 s%d, 0' % S_T0)
    b('s_cbranch_scc1 %s_fallback' % name)
    b.label(name + '_noguard')
    for qq in range(2):
        b('v_rcp_f32 v%d, v%d' % (V_L + 2 * qq, V_L + 2 * qq))
    n = 0
    for qq in range(2):
        for db in range(4):
            o = A_O + (db * 2 + qq) * 16
            for tp in range(2):
                t0 = V_S + (n % 4) * 12
                n += 1
                for k in range(8):
                    b('v_accvgpr_read_b32 v%d, a%d' % (t0 + k, o + 8 * tp + k))
                for k in range(8):
                    b('v_mul_f32 v%d, v%d, v%d' % (t0 + k, t0 + k, V_L + 2 * qq))
                for k in range(4):
                    b('v_cvt_pk_bf16_f32 v%d, v%d, v%d' % (t0 + 8 + k, t0 + 2 * k, t0 + 2 * k + 1))
                if qq and db == 0 and tp == 0:
                    b('s_add_u32 s%d, s%d, %d' % (S_OB, S_OB, 262144))
                b('buffer_store_dwordx4 %s, v%d, s[%d:%d], s%d offen offset:%d' % (vr(t0 + 8, 4), V_OOFF, S_WS, S_WS + 3, S_OB, db * 1024 + tp * 256))


def fallback(b, name):
    b.label(name + '_fallback')
    b('s_waitcnt vmcnt(0) lgkmcnt(0)')
    b('s_barrier')
    cur = kv_slot(7) * SLOT
    for tt in range(8):
        b('v_add_u32 v%d, 0x%x, v%d' % (V_KA + tt, (-cur) & 0xffffffff, V_KA + tt))
    for db in range(4):
        b('v_add_u32 v%d, 0x%x, v%d' % (V_VA + db, (-cur) & 0xffffffff, V_VA + db))
    for qq in range(2):
        b('v_mov_b32 v%d, 0xff800000' % (V_M + qq))
    b('s_mov_b32 s%d, 0' % S_T2)
    b.label(name + '_fb_loop')
    b('s_lshl_b32 s%d, s%d, 14' % (S_CH, S_T2))
    b('s_add_u32 s%d, s%d, s%d' % (S_CH, S_CH, S_W4K))
    b('s_mov_b32 m0, s%d' % S_W4K)
    for ii in range(4):
        b('buffer_load_dwordx4 v%d, s[%d:%d], s%d offen offset:%d lds' % (V_KOFF + ii, S_K, S_K + 3, S_CH, ii * 1024))
    b('s_waitcnt vmcnt(0)')
    b('s_barrier')
    for blk in range(2):
        for tt in range(8):
            b(k_read(tt, blk))
        for tt in range(8):
            for qq in range(2):
                b(qk(qq, tt, '0'))
        for qq in range(2):
            for i in range(0, 16, 2):
                b('v_max3_f32 v%d, v%d, v%d, v%d' % (V_M + qq, V_M + qq, V_S + 16 * qq + i, V_S + 16 * qq + i + 1))
    b('s_waitcnt lgkmcnt(0)')
    b('s_barrier')
    b('s_add_u32 s%d, s%d, 1' % (S_T2, S_T2))
    b('s_cmp_lt_u32 s%d, 8' % S_T2)
    b('s_cbranch_scc1 %s_fb_loop' % name)
    for qq in range(2):
        half_swap(b, V_M + qq, V_T + qq, 'v_max_f32')
    b('s_mov_b32 s%d, 1' % S_MODE)
    for t, g in dma_kv(0): b(t)
    b('s_waitcnt vmcnt(0)')
    b('s_branch %s_attn' % name)


def k2(name, stamps=False):
    b = Block()
    exit_if_ge(b, 256, name + '_end')
    kstart(b)
    stamp(b, 0, stamps)
    if stamps:
        b('s_memrealtime s[%d:%d]' % (S_STAMP + 14, S_STAMP + 15))
        b('s_waitcnt lgkmcnt(0)')
    setup(b)
    qproj(b, stamps)
    stamp(b, 2, stamps)
    attention(b, name, stamps)
    epilogue(b, name, stamps)
    if stamps:
        stamp(b, 5, True)
        b('s_memrealtime s[%d:%d]' % (S_STAMP + 12, S_STAMP + 13))
        b('s_waitcnt lgkmcnt(0)')
        for i in range(1, 6):
            b('s_sub_u32 s%d, s%d, s%d' % (S_STAMP + 2 * i, S_STAMP + 2 * i, S_STAMP))
        for i in range(6):
            b('v_mov_b32 v%d, s%d' % (V_T + i, S_STAMP + 2 * (i + 1) if i < 5 else S_STAMP + 12))
        b('v_mov_b32 v%d, s%d' % (V_T + 6, S_STAMP + 14))
        b('v_mov_b32 v%d, s%d' % (V_T + 7, S_W))
        b('s_lshl_b32 s%d, s2, 2' % S_T0)
        b('s_add_u32 s%d, s%d, s%d' % (S_T0, S_T0, S_W))
        b('s_lshl_b32 s%d, s%d, 5' % (S_T0, S_T0))
        b('s_add_u32 s%d, s%d, 0x%x' % (S_T0, S_T0, 0x8000000))
        b('v_mov_b32 v%d, 0' % (V_T + 8))
        b('v_cmp_eq_u32 vcc, 0, v0')
        b('s_and_saveexec_b64 s[50:51], vcc')
        b('buffer_store_dwordx4 %s, v%d, s[%d:%d], s%d offen' % (vr(V_T, 4), V_T + 8, S_WS, S_WS + 3, S_T0))
        b('buffer_store_dwordx4 %s, v%d, s[%d:%d], s%d offen offset:16' % (vr(V_T + 4, 4), V_T + 8, S_WS, S_WS + 3, S_T0))
    kend(b, 2)
    b('s_endpgm')
    fallback(b, name)
    b.label(name + '_end')
    b('s_endpgm')
    return b, dict(vgpr=256, agpr=256, lds=163840, grid=256, block=256)
```

```python
import os
from common import *

PF = 'k3pf' in OPT
from k2 import Sched, vr, ar
from k01 import ln_thread_ids, layernorm16

MF = 'v_mfma_f32_16x16x32_bf16'


def k3(name):
    b = Block()
    S_WO, S_WS = 8, 12
    S_W, S_KS, S_QT, S_NT, S_ROT, S_W8K = 16, 17, 18, 19, 20, 21
    S_AB, S_BB, S_T0, S_T1, S_T2, S_PB = 22, 23, 24, 25, 26, 27
    S_P, S_B1, S_B2, S_A2, S_L2, S_D, S_OFFB, S_OFFA, S_SLOT = 28, 29, 30, 31, 32, 33, 34, 35, 36
    V_WOFF, V_B, V_A, V_T = 2, 10, 12, 20
    V_AF = 32
    V_ACC = 128
    SLOT = 32768
    OOB = 0x10000000
    exit_if_ge(b, 256, name + '_end')
    kstart(b)
    srd(b, S_WO, A_WO, 0); srd(b, S_WS, D_WS, 0)
    if PF:
        srd(b, 40, B_WG, 0); srd(b, 44, B_WU, 0)
    b('s_and_b32 s%d, s2, 7' % S_T0)
    b('s_lshr_b32 s%d, s2, 3' % S_T1)
    b('v_lshrrev_b32 v1, 6, v0')
    b('v_and_b32 v0, 63, v0')
    b('s_lshr_b32 s%d, s%d, 1' % (S_KS, S_T0))
    b('v_readfirstlane_b32 s%d, v1' % S_W)
    b('s_and_b32 s%d, s%d, 1' % (S_T0, S_T0))
    b('s_lshl_b32 s%d, s%d, 3' % (S_T0, S_T0))
    b('s_lshr_b32 s%d, s%d, 2' % (S_QT, S_T1))
    b('s_and_b32 s%d, s%d, 3' % (S_NT, S_T1))
    b('s_lshl_b32 s%d, s%d, 1' % (S_ROT, S_NT))
    b('s_add_u32 s%d, s%d, s%d' % (S_ROT, S_ROT, S_QT))
    b('s_and_b32 s%d, s%d, 7' % (S_ROT, S_ROT))
    if 'rot' not in OPT: b('s_mov_b32 s%d, 0' % S_ROT)
    b('s_add_u32 s%d, s%d, s%d' % (S_QT, S_QT, S_T0))
    T = V_T
    b('v_lshrrev_b32 v%d, 4, v0' % T)
    b('v_and_b32 v%d, 15, v0' % (T + 1))
    b('v_lshlrev_b32 v%d, 1, v%d' % (T + 2, T))
    b('v_xor_b32 v%d, v%d, v%d' % (T + 2, T + 2, T + 1))
    b('v_lshlrev_b32 v%d, 4, v%d' % (T + 2, T + 2))
    b('v_lshl_add_u32 v%d, v%d, 10, v%d' % (V_WOFF, T, T + 2))
    b('v_xor_b32 v%d, 128, v%d' % (V_WOFF + 4, V_WOFF))
    for ii in range(1, 4):
        b('v_add_u32 v%d, %d, v%d' % (V_WOFF + ii, ii * 3072, V_WOFF))
        b('v_add_u32 v%d, %d, v%d' % (V_WOFF + 4 + ii, ii * 3072, V_WOFF + 4))
    b('v_lshlrev_b32 v%d, 4, v0' % V_B)
    b('v_add_u32 v%d, %d, v%d' % (V_B + 1, 131072, V_B))
    b('s_lshl_b32 s%d, s%d, 13' % (S_W8K, S_W))
    b('s_lshl_b32 s%d, s%d, 20' % (S_AB, S_KS))
    b('s_lshl_b32 s%d, s%d, 15' % (S_T0, S_W))
    b('s_add_u32 s%d, s%d, s%d' % (S_AB, S_AB, S_T0))
    b('s_lshl_b32 s%d, s%d, 8' % (S_T0, S_NT))
    b('s_add_u32 s%d, s%d, s%d' % (S_AB, S_AB, S_T0))
    b('s_lshl_b32 s%d, s%d, 3' % (S_T0, S_QT))
    b('s_lshl_b32 s%d, s%d, 1' % (S_T1, S_W))
    b('s_add_u32 s%d, s%d, s%d' % (S_T0, S_T0, S_T1))
    b('s_lshl_b32 s%d, s%d, 17' % (S_BB, S_T0))
    b('s_lshl_b32 s%d, s%d, 15' % (S_T1, S_KS))
    b('s_add_u32 s%d, s%d, s%d' % (S_BB, S_BB, S_T1))
    b('s_add_u32 s%d, s%d, 0x%x' % (S_BB, S_BB, WS_O))
    b('s_lshl_b32 s%d, s%d, 17' % (S_OFFA, S_ROT))
    b('s_lshl_b32 s%d, s%d, 12' % (S_OFFB, S_ROT))
    b('s_add_u32 s%d, s%d, s%d' % (S_A2, S_AB, S_OFFA))
    b('s_add_u32 s%d, s%d, s%d' % (S_B1, S_BB, S_OFFB))
    b('s_mov_b32 s%d, s%d' % (S_L2, S_W8K))
    b('s_waitcnt lgkmcnt(0)')
    finish_srd(b, S_WO, 4096 * 1024); finish_srd(b, S_WS, WS_BYTES)

    def dma_w(tag):
        out = []
        for half in range(2):
            grp = [('s_add_u32 m0, s%d, %d' % (S_L2, half * 4096), None),
                   ('s_add_u32 s%d, s%d, %d' % (S_T2, S_A2, half * 16 * 1024), None)]
            for ii in range(4):
                grp.append(('buffer_load_dwordx4 v%d, s[%d:%d], s%d offen offset:%d lds' %
                            (V_WOFF + 4 * half + ii, S_WO, S_WO + 3, S_T2, ii * 1024), tag))
            out.append(grp)
        return out

    def b_load(ring, sreg, step):
        return ['buffer_load_dwordx4 %s, v%d, s[%d:%d], s%d offen offset:%d' %
                (ar(8 * ring + 4 * qq, 4), V_B + qq, S_WS, S_WS + 3, sreg, step * 1024) for qq in range(2)]

    def a_reads(buf, step):
        return ['ds_read_b64_tr_b16 %s, v%d offset:%d' % (vr(V_AF + 32 * buf + 4 * nb + 2 * jj, 2), V_A + nb, step * 8192 + jj * 2048)
                for nb in range(8) for jj in range(2)]

    def advance_a():
        return ['s_add_u32 s%d, s%d, 0x20000' % (S_OFFA, S_OFFA), 's_and_b32 s%d, s%d, 0xfffff' % (S_OFFA, S_OFFA),
                's_add_u32 s%d, s%d, s%d' % (S_A2, S_AB, S_OFFA),
                's_add_u32 s%d, s%d, %d' % (S_L2, S_L2, SLOT), 's_and_b32 s%d, s%d, 0x1ffff' % (S_L2, S_L2)]

    def advance_b():
        return ['s_mov_b32 s%d, s%d' % (S_B1, S_B2),
                's_add_u32 s%d, s%d, 0x1000' % (S_OFFB, S_OFFB), 's_and_b32 s%d, s%d, 0x7fff' % (S_OFFB, S_OFFB),
                's_add_u32 s%d, s%d, s%d' % (S_B2, S_BB, S_OFFB)]

    for grp in dma_w('W0'):
        for t, g in grp: b(t, g)
    for st in range(2):
        for t in b_load(st, S_B1, st): b(t)
    for t in advance_a(): b(t)
    d = dma_w('WB')
    for i in range(4):
        grp = d[i // 2]
        if i % 2 == 0:
            b(grp[0][0]); b(grp[1][0])
        for k in range(2):
            b(grp[2 + 2 * (i % 2) + k][0], 'WB', epoch=-1)
        if i < 2:
            for t in b_load(2 + i, S_B1, 2 + i): b(t)
    for t in advance_a(): b(t)
    b('s_add_u32 s%d, s%d, 0x1000' % (S_OFFB, S_OFFB))
    b('s_and_b32 s%d, s%d, 0x7fff' % (S_OFFB, S_OFFB))
    b('s_add_u32 s%d, s%d, s%d' % (S_B1, S_BB, S_OFFB))
    for st in range(3):
        for t in b_load(4 + st, S_B1, st): b(t)
    b('s_add_u32 s%d, s%d, 0x1000' % (S_OFFB, S_OFFB))
    b('s_and_b32 s%d, s%d, 0x7fff' % (S_OFFB, S_OFFB))
    b('s_add_u32 s%d, s%d, s%d' % (S_B2, S_BB, S_OFFB))
    b('v_bfe_u32 v%d, v0, 2, 2' % T)
    b('v_bfe_u32 v%d, v0, 4, 1' % (T + 1))
    b('v_lshrrev_b32 v%d, 5, v0' % (T + 2))
    b('v_lshlrev_b32 v%d, 4, v%d' % (T + 3, T + 1))
    b('v_lshlrev_b32 v%d, 2, v%d' % (T + 4, T + 2))
    b('v_add3_u32 v%d, v%d, v%d, v%d' % (T + 3, T + 3, T + 4, T))
    b('v_lshlrev_b32 v%d, 8, v%d' % (T + 3, T + 3))
    b('v_and_b32 v%d, 3, v0' % (T + 4))
    b('v_lshl_add_u32 v%d, v%d, 3, v%d' % (T + 3, T + 4, T + 3))
    b('v_lshlrev_b32 v%d, 2, v%d' % (T + 1, T + 1))
    b('v_or_b32 v%d, v%d, v%d' % (T + 1, T + 1, T))
    for nb in range(8):
        b('v_xor_b32 v%d, %d, v%d' % (T + 4, nb, T + 1))
        b('v_lshl_add_u32 v%d, v%d, 5, v%d' % (V_A + nb, T + 4, T + 3))
    for i in range(64):
        b('v_mov_b32 v%d, 0' % (V_ACC + i))
    b('s_lshl_b32 s%d, s%d, 7' % (S_PB, S_KS))
    b('s_add_u32 s%d, s%d, s%d' % (S_PB, S_PB, S_T0))
    b('s_lshl_b32 s%d, s%d, 14' % (S_PB, S_PB))
    b('s_lshl_b32 s%d, s%d, 12' % (S_T1, S_NT))
    b('s_add_u32 s%d, s%d, s%d' % (S_PB, S_PB, S_T1))
    b('s_add_u32 s%d, s%d, 0x%x' % (S_PB, S_PB, WS_PART))
    if PF:
        b('s_cmp_ge_u32 s%d, 2' % S_W)
        b('s_cselect_b32 s40, s44, s40')
        b('s_cselect_b32 s41, s45, s41')
        finish_srd(b, 40, 512 * 2752)
        b('v_lshrrev_b32 v%d, 4, v0' % T)
        b('v_mul_u32_u24 v%d, 2752, v%d' % (T, T))
        b('v_and_b32 v%d, 15, v0' % (T + 1))
        b('v_lshl_add_u32 v28, v%d, 7, v%d' % (T + 1, T))
        b('s_lshr_b32 s48, s2, 3')
        b('s_lshl_b32 s48, s48, 1')
        b('s_and_b32 s49, s%d, 1' % S_W)
        b('s_add_u32 s48, s48, s49')
        b('s_mul_i32 s48, s48, %d' % (8 * 2752))
        b('s_and_b32 s49, s2, 1')
        b('s_mul_i32 s49, s49, 1536')
        b('s_add_u32 s48, s48, s49')
        b('s_add_u32 s49, s48, %d' % (4 * 2752))
    b('s_mov_b32 s%d, 0' % S_P)
    b('s_mov_b32 s%d, %d' % (S_D, SLOT))
    b('s_mov_b32 s%d, %d' % (S_SLOT, SLOT))
    kmid(b, 0)
    b.waitvm('W0')
    b('s_barrier')
    kmid(b, 1)
    for t in a_reads(0, 0): b(t)

    b.loop_begin()
    b.label(name + '_loop')
    sc = Sched()
    for half in range(2):
        tag = 'WA' if half == 0 else 'WB'
        d = dma_w(tag)
        for i in range(4):
            st = 4 * half + i
            base = 16 * st
            for nb in range(8):
                for qq in range(2):
                    dd = vr(V_ACC + (nb * 2 + qq) * 4, 4)
                    sc.mfma(base + 2 * nb + qq, '%s %s, %s, %s, %s' % (MF, dd, vr(V_AF + 32 * (i & 1) + 4 * nb, 4), ar(8 * st + 4 * qq, 4), dd))
            if i == 3:
                if half == 0:
                    sc.add(base, lambda bb: (bb.waitvm('WB', 1), bb('s_barrier')))
                else:
                    sc.add(base, lambda bb: (bb.waitvm('WA', 0), bb('s_barrier')))
                for nb in range(8):
                    sc.add(base + (nb + 1) // 2, 'v_add_u32 v%d, s%d, v%d' % (V_A + nb, S_D, V_A + nb))
            rd = a_reads((i + 1) & 1, (i + 1) & 3)
            for k, t in enumerate(rd):
                if i == 3:
                    sc.add(base + min(15, max(k, (k // 2 + 1) // 2 + 1) if k < 4 else k), t)
                else:
                    sc.add(base + k, t)
            ahead = i + 7
            sreg = S_B1 if ahead < 8 else S_B2
            bl = b_load((st + 7) & 7, sreg, ahead & 3)
            grp = d[i // 2]
            if i % 2 == 0:
                sc.add(base + 1, grp[0][0]); sc.add(base + 2, grp[1][0])
            sc.add(base + 3, bl[0])
            sc.add(base + 6, grp[2 + 2 * (i % 2)][0], tag)
            sc.add(base + 9, bl[1])
            sc.add(base + 12, grp[3 + 2 * (i % 2)][0], tag)
        c0 = 64 * half
        sc.add(c0 + 35, 's_add_u32 s%d, s%d, 1' % (S_P, S_P))
        for k, t in enumerate(advance_a()):
            sc.add(c0 + 36 + k, t)
        sc.add(c0 + 41, 's_cmp_ge_u32 s%d, 6' % S_P)
        sc.add(c0 + 41, 's_cselect_b32 s%d, 0x%x, s%d' % (S_A2, OOB, S_A2))
        sc.add(c0 + 53, 's_and_b32 s%d, s%d, 3' % (S_T1, S_P))
        sc.add(c0 + 54, 's_cmp_eq_u32 s%d, 3' % S_T1)
        sc.add(c0 + 54, 's_cselect_b32 s%d, 0x%x, s%d' % (S_D, (-3 * SLOT) & 0xffffffff, S_SLOT))
        for k, t in enumerate(advance_b()):
            sc.add(c0 + 58 + k // 2, t)
        sc.add(c0 + 60, 's_cmp_ge_u32 s%d, 6' % S_P)
        sc.add(c0 + 60, 's_cselect_b32 s%d, 0x%x, s%d' % (S_B2, OOB, S_B2))
        sc.add(c0 + 61, 's_cmp_ge_u32 s%d, 7' % S_P)
        sc.add(c0 + 61, 's_cselect_b32 s%d, 0x%x, s%d' % (S_B1, OOB, S_B1))
    sc.emit(b, 0, 128)
    if PF:
        raw(b, '''s_cmp_lg_u32 s%d, 4
        s_cbranch_scc1 %s_nopf
        buffer_load_dword v29, v28, s[40:43], s48 offen
        buffer_load_dword v29, v28, s[40:43], s49 offen
        %s_nopf:''' % (S_P, name, name))
    if STAMPS and 'k3it' in OPT:
        raw(b, '''s_memtime s[90:91]
        s_waitcnt lgkmcnt(0)
        s_cmp_eq_u32 s%d, 2
        s_cselect_b32 s80, s90, s80
        s_cmp_eq_u32 s%d, 4
        s_cselect_b32 s82, s90, s82
        s_cmp_eq_u32 s%d, 6
        s_cselect_b32 s84, s90, s84
        s_cmp_eq_u32 s%d, 8
        s_cselect_b32 s86, s90, s86''' % (S_P, S_P, S_P, S_P))
    b('s_cmp_lt_u32 s%d, 8' % S_P)
    b('s_cbranch_scc1 %s_loop' % name)
    b.loop_end(4)
    if 'k3it' not in OPT: kmid(b, 2)
    b('v_lshlrev_b32 v%d, 4, v0' % V_T)
    for qq in range(2):
        b('s_add_u32 s%d, s%d, %d' % (S_T0, S_PB, qq * 16384))
        for v in range(4):
            o = V_AF + 4 * (qq * 4 + v)
            for jj in range(2):
                acc = V_ACC + ((2 * v + jj) * 2 + qq) * 4
                for i in range(2):
                    b('v_cvt_pk_bf16_f32 v%d, v%d, v%d' % (o + 2 * jj + i, acc + 2 * i, acc + 2 * i + 1))
            b('buffer_store_dwordx4 %s, v%d, s[%d:%d], s%d offen offset:%d' % (vr(o, 4), V_T, S_WS, S_WS + 3, S_T0, v * 1024))
    b.label(name + '_fin')
    kend(b, 3)
    b.label(name + '_end')
    b('s_endpgm')
    return b, dict(vgpr=192, agpr=64, lds=4 * SLOT, grid=256, block=256)


def k3b(name):
    b = Block()
    exit_if_ge(b, 256, name + '_end')
    kstart(b)
    srd(b, 8, A_X, 0); srd(b, 16, D_WS, 0)
    b('v_and_b32 v1, 7, v0')
    b('v_lshrrev_b32 v2, 3, v0')
    b('v_and_b32 v3, 3, v2')
    b('v_lshrrev_b32 v4, 2, v2')
    b('s_and_b32 s26, s2, 7')
    b('s_lshl_b32 s26, s26, 5')
    b('s_lshr_b32 s27, s2, 3')
    b('s_add_u32 s26, s26, s27')
    b('s_lshr_b32 s20, s26, 1')
    b('s_and_b32 s21, s26, 1')
    b('s_lshl_b32 s21, s21, 3')
    b('v_add_u32 v6, s21, v1')
    b('v_lshlrev_b32 v6, 4, v6')
    b('v_lshlrev_b32 v7, 11, v4')
    b('v_lshlrev_b32 v9, 8, v3')
    b('v_add3_u32 v7, v7, v9, v6')
    b('v_lshlrev_b32 v8, 10, v1')
    b('v_lshlrev_b32 v9, 7, v4')
    b('v_lshlrev_b32 v10, 3, v3')
    b('v_add3_u32 v8, v8, v9, v10')
    b('v_lshlrev_b32 v9, 8, v4')
    b('v_lshlrev_b32 v10, 4, v3')
    b('v_add_u32 v9, v9, v10')
    b('s_lshl_b32 s22, s26, 13')
    b('s_lshl_b32 s23, s20, 14')
    b('s_add_u32 s23, s23, 0x%x' % WS_PART)
    b('s_waitcnt lgkmcnt(0)')
    finish_srd(b, 8, 2048 * 1024); finish_srd(b, 16, WS_BYTES)
    P = 64
    for ks in range(4):
        if ks:
            b('s_add_u32 s23, s23, 0x200000')
        for v in range(2):
            b('buffer_load_dwordx4 %s, v7, s[16:19], s23 offen offset:%d' % (vr(P + 8 * ks + 4 * v, 4), v * 1024))
    for bb in range(4):
        b('buffer_load_dwordx2 %s, v8, s[8:11], s22 offen offset:%d' % (vr(12 + 2 * bb, 2), 32 * bb))
    GA, SB, CB = 128, 144, 160
    for (reg, row) in ((GA, 2), (SB, 3), (CB, 4)):
        for bb in range(4):
            b('s_mov_b32 s24, %d' % (WS_MOD + row * 2048))
            b('buffer_load_dwordx4 %s, v9, s[16:19], s24 offen offset:%d' % (vr(reg + 4 * bb, 4), 64 * bb))
    A = 96
    for ks in range(4):
        for p in range(8):
            src = P + 8 * ks + p
            if ks == 0:
                b('v_lshlrev_b32 v%d, 16, v%d' % (A + 2 * p, src))
                b('v_and_b32 v%d, 0xffff0000, v%d' % (A + 2 * p + 1, src))
            else:
                b('v_lshlrev_b32 v%d, 16, v%d' % (A + 16 + 2 * p, src))
                b('v_and_b32 v%d, 0xffff0000, v%d' % (A + 17 + 2 * p, src))
        if ks:
            for i in range(16):
                b('v_add_f32 v%d, v%d, v%d' % (A + i, A + i, A + 16 + i))
    P = A
    X = 20
    for p in range(8):
        b('v_lshlrev_b32 v%d, 16, v%d' % (X + 2 * p, 12 + p))
        b('v_and_b32 v%d, 0xffff0000, v%d' % (X + 2 * p + 1, 12 + p))
    for i in range(16):
        b('v_fmac_f32 v%d, v%d, v%d' % (X + i, GA + i, P + i))
    for p in range(8):
        b('v_cvt_pk_bf16_f32 v%d, v%d, v%d' % (12 + p, X + 2 * p, X + 2 * p + 1))
    b('s_lshl_b32 s22, s20, 14')
    b('s_add_u32 s25, s22, 0x%x' % WS_X1)
    b('buffer_store_dwordx4 v[12:15], v7, s[16:19], s25 offen')
    b('buffer_store_dwordx4 v[16:19], v7, s[16:19], s25 offen offset:1024')
    for p in range(8):
        b('v_lshlrev_b32 v%d, 16, v%d' % (X + 2 * p, 12 + p))
        b('v_and_b32 v%d, 0xffff0000, v%d' % (X + 2 * p + 1, 12 + p))
    layernorm16(b, X, 40)
    for i in range(16):
        b('v_add_f32 v%d, 1.0, v%d' % (CB + i, CB + i))
    for p in range(8):
        b('v_cvt_pk_bf16_f32 v48, v%d, v%d' % (CB + 2 * p, CB + 2 * p + 1))
        b('v_lshlrev_b32 v%d, 16, v48' % (CB + 2 * p))
        b('v_and_b32 v%d, 0xffff0000, v48' % (CB + 2 * p + 1))
    for i in range(16):
        b('v_fma_f32 v%d, v%d, v%d, v%d' % (X + i, X + i, CB + i, SB + i))
    for p in range(8):
        b('v_cvt_pk_bf16_f32 v%d, v%d, v%d' % (52 + p, X + 2 * p, X + 2 * p + 1))
    b('s_add_u32 s25, s22, 0x%x' % WS_H2)
    b('buffer_store_dwordx4 v[52:55], v7, s[16:19], s25 offen')
    b('buffer_store_dwordx4 v[56:59], v7, s[16:19], s25 offen offset:1024')
    b.label(name + '_fin')
    kend(b, 4)
    b.label(name + '_end')
    b('s_endpgm')
    return b, dict(vgpr=176, agpr=0, lds=256, grid=256, block=256)
```

```python
from common import *

PF = 'k4pf' in OPT
from k2 import Sched, vr, ar

MF = 'v_mfma_f32_16x16x32_bf16'
WG_ROW = 2752


def k4(name):
    b = Block()
    S_G, S_U, S_WS, S_M = 8, 12, 16, 20
    S_W, S_QT, S_FG, S_T0, S_T1, S_T2 = 24, 25, 26, 27, 28, 29
    S_AB, S_BB, S_HB, S_ROT = 30, 31, 33, 34
    S_P, S_B1, S_B2, S_A3, S_L3, S_D, S_OFFB, S_OFFA, S_SLOT, S_WL = 35, 36, 37, 38, 39, 40, 41, 42, 43, 44
    V_WOFF, V_B, V_A, V_T = 2, 6, 8, 20
    V_AF = 32
    V_ACC = 128
    SLOT, NSLOT = 24576, 6
    CH = 64 * WG_ROW
    OOB = 0x10000000
    exit_if_ge(b, 256, name + '_end')
    b('s_and_b32 s%d, s2, 7' % S_T0)
    b('s_lshr_b32 s%d, s2, 3' % S_T1)
    b('s_and_b32 s%d, s%d, 1' % (S_FG, S_T0))
    b('s_lshl_b32 s%d, s%d, 3' % (S_FG, S_FG))
    b('s_and_b32 s%d, s%d, 7' % (S_T2, S_T1))
    b('s_add_u32 s%d, s%d, s%d' % (S_FG, S_FG, S_T2))
    b('s_cmp_ge_u32 s%d, 15' % S_FG)
    b('s_cbranch_scc1 %s_end' % name)
    kstart(b)
    srd(b, S_G, B_WG, 0); srd(b, S_U, B_WU, 0); srd(b, S_WS, D_WS, 0)
    if PF:
        srd(b, 48, B_WD, 0)
    b('v_lshrrev_b32 v1, 6, v0')
    b('v_and_b32 v0, 63, v0')
    b('s_lshr_b32 s%d, s%d, 1' % (S_QT, S_T0))
    b('v_readfirstlane_b32 s%d, v1' % S_W)
    b('s_lshl_b32 s%d, s%d, 2' % (S_QT, S_QT))
    b('s_lshr_b32 s%d, s%d, 3' % (S_T1, S_T1))
    b('s_add_u32 s%d, s%d, s%d' % (S_QT, S_QT, S_T1))
    b('s_lshl_b32 s%d, s%d, 1' % (S_ROT, S_T1))
    b('s_add_u32 s%d, s%d, s%d' % (S_ROT, S_ROT, S_FG))
    b('s_and_b32 s%d, s%d, 7' % (S_ROT, S_ROT))
    if 'rot' not in OPT: b('s_mov_b32 s%d, 0' % S_ROT)
    T = V_T
    b('s_mov_b32 s%d, 0x15555556' % S_T0)
    b('s_mov_b32 s%d, %d' % (S_T1, WG_ROW))
    for i in range(3):
        b('v_add_u32 v%d, %d, v0' % (T, 64 * i))
        b('v_mul_hi_u32 v%d, v%d, s%d' % (T + 1, T, S_T0))
        b('v_mul_u32_u24 v%d, 12, v%d' % (T + 2, T + 1))
        b('v_sub_u32 v%d, v%d, v%d' % (T + 2, T, T + 2))
        b('v_bfe_u32 v%d, v%d, 2, 1' % (T + 3, T + 1))
        b('v_lshlrev_b32 v%d, 1, v%d' % (T + 3, T + 3))
        b('v_xor_b32 v%d, v%d, v%d' % (T + 2, T + 2, T + 3))
        b('v_lshlrev_b32 v%d, 4, v%d' % (T + 2, T + 2))
        b('v_mul_lo_u32 v%d, v%d, s%d' % (T + 1, T + 1, S_T1))
        b('v_add_u32 v%d, v%d, v%d' % (V_WOFF + i, T + 1, T + 2))
        if i:
            b('v_subrev_u32 v%d, %d, v%d' % (V_WOFF + i, 1024 * i, V_WOFF + i))
    b('v_lshlrev_b32 v%d, 4, v0' % V_B)
    b('v_add_u32 v%d, %d, v%d' % (V_B + 1, 16384, V_B))
    b('s_and_b32 s%d, s%d, 1' % (S_T0, S_W))
    b('s_mul_i32 s%d, s%d, %d' % (S_AB, S_T0, 32 * WG_ROW))
    b('s_mul_i32 s%d, s%d, 192' % (S_T1, S_FG))
    b('s_add_u32 s%d, s%d, s%d' % (S_AB, S_AB, S_T1))
    b('s_mul_i32 s%d, s%d, 6144' % (S_WL, S_W))
    b('s_lshl_b32 s%d, s%d, 3' % (S_T0, S_QT))
    b('s_lshl_b32 s%d, s%d, 1' % (S_T1, S_W))
    b('s_add_u32 s%d, s%d, s%d' % (S_T0, S_T0, S_T1))
    b('s_lshl_b32 s%d, s%d, 14' % (S_BB, S_T0))
    b('s_add_u32 s%d, s%d, 0x%x' % (S_BB, S_BB, WS_H2))
    b('s_mul_i32 s%d, s%d, %d' % (S_A3, S_ROT, CH))
    b('s_lshl_b32 s%d, s%d, 11' % (S_OFFB, S_ROT))
    b('s_mov_b32 s%d, s%d' % (S_OFFA, S_A3))
    b('s_add_u32 s%d, s%d, s%d' % (S_A3, S_A3, S_AB))
    b('s_add_u32 s%d, s%d, s%d' % (S_B1, S_BB, S_OFFB))
    b('s_mov_b32 s%d, 0' % S_L3)
    b('s_waitcnt lgkmcnt(0)')
    finish_srd(b, S_WS, WS_BYTES)
    b('s_cmp_ge_u32 s%d, 2' % S_W)
    b('s_cselect_b32 s%d, s%d, s%d' % (S_M, S_U, S_G))
    b('s_cselect_b32 s%d, s%d, s%d' % (S_M + 1, S_U + 1, S_G + 1))
    finish_srd(b, S_M, 512 * WG_ROW)

    def dma_w(tag):
        out = []
        for half in range(2):
            grp = [('s_add_u32 s%d, s%d, s%d' % (S_T2, S_L3, S_WL), None),
                   ('s_add_u32 m0, s%d, %d' % (S_T2, half * 3072), None),
                   ('s_add_u32 s%d, s%d, %d' % (S_T2, S_A3, half * 16 * WG_ROW), None)]
            for i in range(3):
                grp.append(('buffer_load_dwordx4 v%d, s[%d:%d], s%d offen offset:%d lds' %
                            (V_WOFF + i, S_M, S_M + 3, S_T2, i * 1024), tag))
            out.append(grp)
        return out

    def b_load(ring, sreg, step):
        return ['buffer_load_dwordx4 %s, v%d, s[%d:%d], s%d offen offset:%d' %
                (ar(8 * ring + 4 * qq, 4), V_B + qq, S_WS, S_WS + 3, sreg, step * 1024) for qq in range(2)]

    def a_reads(buf, step):
        return ['ds_read_b64_tr_b16 %s, v%d offset:%d' % (vr(V_AF + 48 * buf + 4 * (mat * 6 + nb) + 2 * jj, 2), V_A + nb, mat * 12288 + step * 6144 + jj * 3072)
                for nb in range(6) for mat in range(2) for jj in range(2)]

    def advance_a():
        return ['s_add_u32 s%d, s%d, %d' % (S_OFFA, S_OFFA, CH), 's_cmp_ge_u32 s%d, %d' % (S_OFFA, 8 * CH),
                's_cselect_b32 s%d, 0, s%d' % (S_OFFA, S_OFFA), 's_add_u32 s%d, s%d, s%d' % (S_A3, S_AB, S_OFFA),
                's_add_u32 s%d, s%d, %d' % (S_L3, S_L3, SLOT), 's_cmp_ge_u32 s%d, %d' % (S_L3, NSLOT * SLOT),
                's_cselect_b32 s%d, 0, s%d' % (S_L3, S_L3)]

    def next_b(reg):
        return ['s_add_u32 s%d, s%d, 0x800' % (S_OFFB, S_OFFB), 's_and_b32 s%d, s%d, 0x3fff' % (S_OFFB, S_OFFB),
                's_add_u32 s%d, s%d, s%d' % (reg, S_BB, S_OFFB)]

    for grp in dma_w('W0'):
        for t, g in grp: b(t, g)
    for st in range(2):
        for t in b_load(st, S_B1, st): b(t)
    for t in advance_a(): b(t)
    for grp in dma_w('WO'):
        for t, g in grp: b(t, g, epoch=-1)
    for t in next_b(S_B1): b(t)
    for t in b_load(2, S_B1, 0): b(t)
    for t in advance_a(): b(t)
    for grp in dma_w('WE'):
        for t, g in grp: b(t, g, epoch=-1)
    for t in advance_a(): b(t)
    for t in next_b(S_B2): b(t)
    b('v_bfe_u32 v%d, v0, 2, 2' % T)
    b('v_lshrrev_b32 v%d, 4, v0' % (T + 1))
    b('v_lshl_add_u32 v%d, v%d, 2, v%d' % (T + 2, T + 1, T))
    b('v_mul_u32_u24 v%d, 192, v%d' % (T + 2, T + 2))
    b('v_and_b32 v%d, 3, v0' % (T + 3))
    b('v_lshl_add_u32 v%d, v%d, 3, v%d' % (T + 2, T + 3, T + 2))
    b('v_and_b32 v%d, 1, v%d' % (T + 1, T + 1))
    for nb in range(6):
        b('v_xor_b32 v%d, %d, v%d' % (T + 3, nb, T + 1))
        b('v_lshl_add_u32 v%d, v%d, 5, v%d' % (V_A + nb, T + 3, T + 2))
    for i in range(96):
        b('v_mov_b32 v%d, 0' % (V_ACC + i))
    b('s_mul_i32 s%d, s%d, %d' % (S_HB, S_T0, 43 * 1024))
    b('s_mul_i32 s%d, s%d, 3072' % (S_T1, S_FG))
    b('s_add_u32 s%d, s%d, s%d' % (S_HB, S_HB, S_T1))
    b('s_add_u32 s%d, s%d, 0x%x' % (S_HB, S_HB, WS_HH))
    if PF:
        finish_srd(b, 48, 1376 * 1024)
        b('v_lshrrev_b32 v%d, 5, v0' % T)
        b('v_mul_u32_u24 v%d, %d, v%d' % (T, 43 * 1024, T))
        b('v_and_b32 v%d, 31, v0' % (T + 1))
        b('v_min_u32 v%d, 23, v%d' % (T + 1, T + 1))
        b('v_lshl_add_u32 v28, v%d, 7, v%d' % (T + 1, T))
        b('v_lshrrev_b32 v%d, 2, v0' % T)
        b('v_min_u32 v%d, 10, v%d' % (T, T))
        b('v_lshlrev_b32 v%d, 10, v%d' % (T, T))
        b('v_and_b32 v%d, 3, v0' % (T + 1))
        b('v_lshl_add_u32 v29, v%d, 7, v%d' % (T + 1, T))
        b('s_lshr_b32 s52, s2, 3')
        b('s_lshl_b32 s52, s52, 2')
        b('s_add_u32 s52, s52, s%d' % S_W)
        b('s_mul_i32 s52, s52, %d' % (11 * 1024))
        b('s_and_b32 s53, s2, 1')
        b('s_lshl_b32 s53, s53, 9')
        b('s_add_u32 s52, s52, s53')
    b('s_mov_b32 s%d, 0' % S_P)
    b('s_mov_b32 s%d, %d' % (S_D, SLOT))
    b('s_mov_b32 s%d, %d' % (S_SLOT, SLOT))
    kmid(b, 0)
    b.waitvm('W0')
    b('s_barrier')
    kmid(b, 1)
    for t in a_reads(0, 0): b(t)

    b.loop_begin()
    b.label(name + '_loop')
    sc = Sched()
    for half in range(2):
        tag = 'WO' if half == 0 else 'WE'
        d = dma_w(tag)
        for i in range(2):
            st = 2 * half + i
            base = 24 * st
            k = 0
            for nb in range(6):
                for mat in range(2):
                    for qq in range(2):
                        dd = vr(V_ACC + ((mat * 6 + nb) * 2 + qq) * 4, 4)
                        sc.mfma(base + k, '%s %s, %s, %s, %s' % (MF, dd, vr(V_AF + 48 * i + 4 * (mat * 6 + nb), 4), ar(8 * st + 4 * qq, 4), dd))
                        k += 1
            rd = a_reads((i + 1) & 1, (i + 1) & 1)
            if i == 1:
                wt = 'WO' if half == 0 else 'WE'
                age = 1
                sc.add(base, lambda bb, wt=wt, half=half: (bb.waitvm(wt, 1), bb('s_barrier')))
                for nb in range(6):
                    sc.add(base + nb // 2, 'v_add_u32 v%d, s%d, v%d' % (V_A + nb, S_D, V_A + nb))
                for k, t in enumerate(rd):
                    sc.add(base + min(23, max(k, 3) if k < 4 else k), t)
            else:
                for k, t in enumerate(rd):
                    sc.add(base + k, t)
            ahead = i + 3
            sreg = S_B1 if ahead < 4 else S_B2
            bl = b_load((st + 3) & 3, sreg, ahead & 1)
            grp = d[i]
            sc.add(base + 1, grp[0][0]); sc.add(base + 2, grp[1][0]); sc.add(base + 3, grp[2][0])
            sc.add(base + 5, bl[0])
            sc.add(base + 8, grp[3][0], tag)
            sc.add(base + 11, bl[1])
            sc.add(base + 14, grp[4][0], tag)
            sc.add(base + 19, grp[5][0], tag)
        c0 = 48 * half
        upd = ['s_add_u32 s%d, s%d, 1' % (S_P, S_P), 's_mov_b32 s%d, s%d' % (S_B1, S_B2)] + next_b(S_B2) + \
              ['s_cmp_ge_u32 s%d, 6' % S_P, 's_cselect_b32 s%d, 0x%x, s%d' % (S_B2, OOB, S_B2),
               's_cmp_ge_u32 s%d, 7' % S_P, 's_cselect_b32 s%d, 0x%x, s%d' % (S_B1, OOB, S_B1)]
        groups = [upd[:2], upd[2:5], upd[5:7], upd[7:9]]
        adv = advance_a()
        groups += [adv[:1] + adv[1:3], adv[3:4], adv[4:7],
                   ['s_cmp_ge_u32 s%d, 5' % S_P, 's_cselect_b32 s%d, 0x%x, s%d' % (S_A3, OOB, S_A3)]]
        for k, grp in enumerate(groups):
            for t in grp: sc.add(c0 + 24 + 12 + k + (3 if k >= 4 else 0) + (1 if k >= 4 else 0), t)
        sc.add(c0 + 47, 's_mul_hi_u32 s%d, s%d, 0x2aaaaaab' % (S_T1, S_P))
        sc.add(c0 + 47, 's_mul_i32 s%d, s%d, 6' % (S_T1, S_T1))
        sc.add(c0 + 47, 's_sub_u32 s%d, s%d, s%d' % (S_T1, S_P, S_T1))
        sc.add(c0 + 47, 's_cmp_eq_u32 s%d, 5' % S_T1)
        sc.add(c0 + 47, 's_cselect_b32 s%d, 0x%x, s%d' % (S_D, (-5 * SLOT) & 0xffffffff, S_SLOT))
    sc.emit(b, 0, 96)
    if PF:
        raw(b, '''s_cmp_lg_u32 s%d, 2
        s_cbranch_scc1 %s_nopf
        buffer_load_dword v30, v29, s[48:51], s52 offen
        buffer_load_dword v30, v28, s[%d:%d], s%d offen
        %s_nopf:''' % (S_P, name, S_WS, S_WS + 3, S_HB, name))
    b('s_cmp_lt_u32 s%d, 8' % S_P)
    b('s_cbranch_scc1 %s_loop' % name)
    b.loop_end(4)
    kmid(b, 2)
    b('v_lshlrev_b32 v%d, 4, v0' % V_T)
    for v in range(3):
        if v == 1:
            b('s_cmp_ge_u32 s%d, 14' % S_FG)
            b('s_cbranch_scc1 %s_fin' % name)
        for qq in range(2):
            t0 = 32 + 8 * (v * 2 + qq)
            for jj in range(2):
                nb = 2 * v + jj
                g = V_ACC + (nb * 2 + qq) * 4
                u = V_ACC + ((6 + nb) * 2 + qq) * 4
                for i in range(4):
                    b('v_mul_f32 v%d, v%d, v%d' % (g + i, g + i, u + i))
                for i in range(2):
                    b('v_cvt_pk_bf16_f32 v%d, v%d, v%d' % (t0 + 2 * jj + i, g + 2 * i, g + 2 * i + 1))
            b('s_add_u32 s%d, s%d, %d' % (S_T0, S_HB, qq * 43 * 1024))
            b('buffer_store_dwordx4 %s, v%d, s[%d:%d], s%d offen offset:%d' % (vr(t0, 4), V_T, S_WS, S_WS + 3, S_T0, v * 1024))
    b.label(name + '_fin')
    kend(b, 5)
    b.label(name + '_end')
    b('s_endpgm')
    return b, dict(vgpr=224, agpr=32, lds=NSLOT * SLOT, grid=256, block=256)


def k5(name):
    b = Block()
    S_WD, S_WS, S_OUT = 8, 12, 16
    S_W, S_QT, S_NT, S_T0, S_T1, S_T2 = 20, 21, 22, 23, 24, 25
    S_A, S_B, S_LB, S_N, S_L, S_D, S_LIM, S_S, S_RING = 26, 27, 28, 29, 30, 31, 32, 33, 34
    V_WOFF, V_B, V_A, V_BR, V_T = 2, 4, 8, 12, 16
    V_AF, V_BF = 32, 48
    V_ACC = 64
    STEP, RING = 8192, 4
    OOB = 0x10000000
    NS = 11
    exit_if_ge(b, 256, name + '_end')
    kstart(b)
    srd(b, S_WD, B_WD, 0); srd(b, S_WS, D_WS, 0); srd(b, S_OUT, D_OUT, 0)
    b('s_and_b32 s%d, s2, 7' % S_T0)
    b('s_lshr_b32 s%d, s2, 3' % S_T1)
    b('v_lshrrev_b32 v1, 6, v0')
    b('v_and_b32 v0, 63, v0')
    b('s_lshr_b32 s%d, s%d, 1' % (S_QT, S_T0))
    b('v_readfirstlane_b32 s%d, v1' % S_W)
    b('s_lshl_b32 s%d, s%d, 3' % (S_QT, S_QT))
    b('s_lshr_b32 s%d, s%d, 2' % (S_T2, S_T1))
    b('s_add_u32 s%d, s%d, s%d' % (S_QT, S_QT, S_T2))
    b('s_and_b32 s%d, s%d, 1' % (S_NT, S_T0))
    b('s_lshl_b32 s%d, s%d, 2' % (S_NT, S_NT))
    b('s_and_b32 s%d, s%d, 3' % (S_T1, S_T1))
    b('s_add_u32 s%d, s%d, s%d' % (S_NT, S_NT, S_T1))
    T = V_T
    b('v_lshrrev_b32 v%d, 3, v0' % T)
    b('v_and_b32 v%d, 7, v0' % (T + 1))
    b('v_bfe_u32 v%d, v%d, 1, 2' % (T + 2, T))
    b('v_lshlrev_b32 v%d, 1, v%d' % (T + 2, T + 2))
    b('v_xor_b32 v%d, v%d, v%d' % (T + 1, T + 1, T + 2))
    b('v_lshlrev_b32 v%d, 4, v%d' % (T + 1, T + 1))
    b('v_lshl_add_u32 v%d, v%d, 10, v%d' % (V_WOFF, T, T + 1))
    b('v_lshlrev_b32 v%d, 4, v0' % V_B)
    for qb in range(1, 4):
        b('v_add_u32 v%d, %d, v%d' % (V_B + qb, qb * 43 * 1024, V_B))
    b('s_mul_i32 s%d, s%d, 11' % (S_T0, S_W))
    b('s_lshl_b32 s%d, s%d, 15' % (S_A, S_T0))
    b('s_lshl_b32 s%d, s%d, 7' % (S_T1, S_NT))
    b('s_add_u32 s%d, s%d, s%d' % (S_A, S_A, S_T1))
    b('s_mul_i32 s%d, s%d, %d' % (S_B, S_QT, 4 * 43 * 1024))
    b('s_lshl_b32 s%d, s%d, 10' % (S_T1, S_T0))
    b('s_add_u32 s%d, s%d, s%d' % (S_B, S_B, S_T1))
    b('s_add_u32 s%d, s%d, 0x%x' % (S_B, S_B, WS_HH))
    b('s_lshl_b32 s%d, s%d, 15' % (S_LB, S_W))
    b('s_mov_b32 s%d, s%d' % (S_L, S_LB))
    b('s_cmp_eq_u32 s%d, 3' % S_W)
    b('s_cselect_b32 s%d, 10, 11' % S_LIM)
    b('s_mov_b32 s%d, 0' % S_N)
    b('s_waitcnt lgkmcnt(0)')
    finish_srd(b, S_WD, 1376 * 1024); finish_srd(b, S_WS, WS_BYTES); finish_srd(b, S_OUT, 2048 * 1024)

    def request():
        ops = []
        for i in range(4):
            ops.append(['s_add_u32 m0, s%d, %d' % (S_L, i * 1024), 's_add_u32 s%d, s%d, %d' % (S_T2, S_A, i * 8192),
                        'buffer_load_dwordx4 v%d, s[%d:%d], s%d offen lds' % (V_WOFF, S_WD, S_WD + 3, S_T2)])
        for qb in range(4):
            ops.append(['s_add_u32 m0, s%d, %d' % (S_L, 4096 + qb * 1024), 's_nop 0',
                        'buffer_load_dwordx4 v%d, s[%d:%d], s%d offen lds' % (V_B + qb, S_WS, S_WS + 3, S_B)])
        nxt = ['s_add_u32 s%d, s%d, 1' % (S_N, S_N), 's_add_u32 s%d, s%d, 32768' % (S_A, S_A), 's_add_u32 s%d, s%d, 1024' % (S_B, S_B),
               's_cmp_ge_u32 s%d, s%d' % (S_N, S_LIM), 's_cselect_b32 s%d, 0x%x, s%d' % (S_A, OOB, S_A),
               's_cselect_b32 s%d, 0x%x, s%d' % (S_B, OOB, S_B),
               's_add_u32 s%d, s%d, %d' % (S_L, S_L, STEP), 's_and_b32 s%d, s%d, 0x7fff' % (S_L, S_L), 's_add_u32 s%d, s%d, s%d' % (S_L, S_L, S_LB)]
        return ops, nxt

    for st in range(RING - 1):
        ops, nxt = request()
        for grp in ops:
            for t in grp: b(t)
        if st == 0:
            pass
        b('s_sub_u32 s%d, s%d, s%d' % (S_L, S_L, S_LB))
        for t in nxt: b(t)
    b('v_bfe_u32 v%d, v0, 2, 2' % T)
    b('v_lshrrev_b32 v%d, 4, v0' % (T + 1))
    b('v_lshl_add_u32 v%d, v%d, 2, v%d' % (T + 1, T + 1, T))
    b('v_bfe_u32 v%d, v%d, 1, 2' % (T + 2, T + 1))
    b('v_lshlrev_b32 v%d, 7, v%d' % (T + 1, T + 1))
    b('v_and_b32 v%d, 3, v0' % (T + 3))
    b('v_lshl_add_u32 v%d, v%d, 3, v%d' % (T + 1, T + 3, T + 1))
    for nb in range(4):
        b('v_xor_b32 v%d, %d, v%d' % (T + 3, nb, T + 2))
        b('v_lshlrev_b32 v%d, 5, v%d' % (T + 3, T + 3))
        b('v_add3_u32 v%d, v%d, v%d, s%d' % (V_A + nb, T + 3, T + 1, S_LB))
    b('v_add_u32 v%d, s%d, v%d' % (V_BR, S_LB, V_B))
    for i in range(64):
        b('v_mov_b32 v%d, 0' % (V_ACC + i))
    b('s_mov_b32 s%d, 0' % S_S)
    b('s_mov_b32 s%d, %d' % (S_RING, STEP))
    b('s_mov_b32 s%d, %d' % (S_D, STEP))
    kmid(b, 0)

    b.loop_begin()
    b.label(name + '_loop')
    b('s_waitcnt vmcnt(16)')
    for nb in range(4):
        for jj in range(2):
            b('ds_read_b64_tr_b16 %s, v%d offset:%d' % (vr(V_AF + 4 * nb + 2 * jj, 2), V_A + nb, jj * 2048))
        if nb == 0:
            for qb in range(4):
                b('ds_read_b128 %s, v%d offset:%d' % (vr(V_BF + 4 * qb, 4), V_BR, 4096 + qb * 1024))
    ops, nxt = request()
    sc = Sched()
    for nb in range(4):
        for qb in range(4):
            d = vr(V_ACC + (nb * 4 + qb) * 4, 4)
            sc.mfma(4 * nb + qb, '%s %s, %s, %s, %s' % (MF, d, vr(V_AF + 4 * nb, 4), vr(V_BF + 4 * qb, 4), d))
    for grp in ops[:2]:
        for t in grp: b(t)
    for k, grp in enumerate(ops[2:]):
        for t in grp: sc.add(2 * k, t)
    sc.add(12, 's_sub_u32 s%d, s%d, s%d' % (S_L, S_L, S_LB))
    for k, t in enumerate(nxt):
        sc.add(12 + (k // 3 if k < 3 else (1 if k < 6 else 2)), t)
    for nb in range(4):
        sc.add(4 * nb + 3, 'v_add_u32 v%d, s%d, v%d' % (V_A + nb, S_D, V_A + nb))
    sc.add(5, 'v_add_u32 v%d, s%d, v%d' % (V_BR, S_D, V_BR))
    sc.emit(b, 0, 16)
    b('s_add_u32 s%d, s%d, 1' % (S_S, S_S))
    b('s_and_b32 s%d, s%d, 3' % (S_T1, S_S))
    b('s_cmp_eq_u32 s%d, 3' % S_T1)
    b('s_cselect_b32 s%d, 0x%x, s%d' % (S_D, (-3 * STEP) & 0xffffffff, S_RING))
    b('s_cmp_lt_u32 s%d, %d' % (S_S, NS))
    b('s_cbranch_scc1 %s_loop' % name)
    b.loop_end(NS)
    kmid(b, 2)
    X, G = 32, 40
    b('s_lshl_b32 s%d, s%d, 2' % (S_T0, S_QT))
    b('s_add_u32 s%d, s%d, s%d' % (S_T0, S_T0, S_W))
    b('s_lshl_b32 s%d, s%d, 14' % (S_T1, S_T0))
    b('s_lshl_b32 s%d, s%d, 11' % (S_T2, S_NT))
    b('s_add_u32 s%d, s%d, s%d' % (S_T1, S_T1, S_T2))
    b('s_add_u32 s%d, s%d, 0x%x' % (S_T1, S_T1, WS_X1))
    for v in range(2):
        b('buffer_load_dwordx4 %s, v%d, s[%d:%d], s%d offen offset:%d' % (vr(X + 4 * v, 4), V_B, S_WS, S_WS + 3, S_T1, v * 1024))
    b('v_lshrrev_b32 v%d, 4, v0' % T)
    b('v_lshlrev_b32 v%d, 4, v%d' % (T, T))
    b('s_lshl_b32 s%d, s%d, 8' % (S_T2, S_NT))
    b('s_add_u32 s%d, s%d, %d' % (S_T2, S_T2, WS_MOD + 5 * 2048))
    for nb in range(4):
        b('buffer_load_dwordx4 %s, v%d, s[%d:%d], s%d offen offset:%d' % (vr(G + 4 * nb, 4), T, S_WS, S_WS + 3, S_T2, nb * 64))
    b('s_waitcnt vmcnt(6)')
    b('s_barrier')
    b('s_lshl_b32 s%d, s%d, 12' % (S_T1, S_W))
    b('v_add_u32 v%d, s%d, v%d' % (T + 1, S_T1, V_B))
    for qb in range(4):
        for nb in range(4):
            b('ds_write_b128 v%d, %s offset:%d' % (T + 1, vr(V_ACC + (nb * 4 + qb) * 4, 4), qb * 16384 + nb * 1024))
    b('s_waitcnt lgkmcnt(0)')
    b('s_barrier')
    b('s_lshl_b32 s%d, s%d, 14' % (S_T1, S_W))
    b('v_add_u32 v%d, s%d, v%d' % (T + 1, S_T1, V_B))
    R = 128
    for w in range(4):
        for nb in range(4):
            b('ds_read_b128 %s, v%d offset:%d' % (vr(R + 16 * w + 4 * nb, 4), T + 1, w * 4096 + nb * 1024))
    for i in range(16):
        b('v_add_f32 v%d, v%d, v%d' % (R + i, R + i, R + 16 + i))
        b('v_add_f32 v%d, v%d, v%d' % (R + 32 + i, R + 32 + i, R + 48 + i))
    for i in range(16):
        b('v_add_f32 v%d, v%d, v%d' % (R + i, R + i, R + 32 + i))
    Y = 96
    for p in range(8):
        b('v_lshlrev_b32 v%d, 16, v%d' % (Y + 2 * p, X + p))
        b('v_and_b32 v%d, 0xffff0000, v%d' % (Y + 2 * p + 1, X + p))
    for i in range(16):
        b('v_fmac_f32 v%d, v%d, v%d' % (Y + i, G + i, R + i))
    O = 112
    for p in range(8):
        b('v_cvt_pk_bf16_f32 v%d, v%d, v%d' % (O + p, Y + 2 * p, Y + 2 * p + 1))
    for v in range(2):
        b('v_permlane16_swap_b32 v%d, v%d' % (O + 4 * v, O + 4 * v + 2))
        b('v_permlane16_swap_b32 v%d, v%d' % (O + 4 * v + 1, O + 4 * v + 3))
    b('v_and_b32 v%d, 15, v0' % T)
    b('v_lshlrev_b32 v%d, 10, v%d' % (T, T))
    b('v_bfe_u32 v%d, v0, 4, 1' % (T + 1))
    b('v_lshlrev_b32 v%d, 5, v%d' % (T + 1, T + 1))
    b('v_lshrrev_b32 v%d, 5, v0' % (T + 2))
    b('v_lshlrev_b32 v%d, 4, v%d' % (T + 2, T + 2))
    b('v_add3_u32 v%d, v%d, v%d, v%d' % (T, T, T + 1, T + 2))
    b('s_lshl_b32 s%d, s%d, 14' % (S_T1, S_T0))
    b('s_lshl_b32 s%d, s%d, 7' % (S_T2, S_NT))
    b('s_add_u32 s%d, s%d, s%d' % (S_T1, S_T1, S_T2))
    for v in range(2):
        b('buffer_store_dwordx4 %s, v%d, s[%d:%d], s%d offen offset:%d' % (vr(O + 4 * v, 4), T, S_OUT, S_OUT + 3, S_T1, v * 64))
    b.label(name + '_fin')
    kend(b, 6)
    b.label(name + '_end')
    b('s_endpgm')
    return b, dict(vgpr=192, agpr=0, lds=4 * RING * STEP, grid=256, block=256)
```

```python
import os
import k01, k2, k3, k45
from common import *

def empty(name):
    b = Block()
    b('s_endpgm')
    return b, dict(vgpr=8, agpr=0, lds=0, grid=256, block=256)

def kernels():
    st = bool(os.environ.get('STAMPS'))
    ks = []
    lst = [('k0_kernel', k01.k0), ('k1_kernel', k01.k1), ('k2_kernel', lambda n: k2.k2(n, st)), ('k3_kernel', k3.k3), ('k3b_kernel', k3.k3b), ('k4_kernel', k45.k4), ('k5_kernel', k45.k5)]
    for n, f in lst:
        b, m = f(n)
        ks.append((n, b, m))
    e = ('e_kernel',) + empty('e_kernel')
    if 'epre' in OPT: ks = [e, e, e] + ks
    if 'epost' in OPT: ks = ks + [e, e, e]
    if 'emid' in OPT: ks = ks[:3] + [e, e, e] + ks[3:]
    return ks
```

```python
from mc import *

LN_LDS = 163840 - 512


def front(b):
    S_C, S_WM, S_X, S_DBG = 8, 12, 16, 20
    S_T0, S_T1 = 24, 25
    mk_srd(b, S_X, P_X, 2048 * 1024)
    mk_srd(b, S_DBG, P_DBG, 256)
    b('s_lshl_b32 s%d, s%d, 6' % (S_T0, S_WAVE))
    b('v_add_u32 v3, s%d, v0' % S_T0)
    b('v_and_b32 v1, 7, v0')
    b('v_lshrrev_b32 v2, 3, v3')
    lp0 = uid('p0load')
    b('s_cmp_ge_u32 s2, 96')
    b('s_cbranch_scc1 %s' % lp0)
    mk_srd(b, S_C, P_C, 1024)
    mk_srd(b, S_WM, P_WMOD, 512 * 6144)
    b('v_and_b32 v80, 3, v3')
    b('v_lshrrev_b32 v81, 2, v3')
    b('v_lshlrev_b32 v82, 4, v81')
    b('s_mov_b32 s26, %d' % (8 * 6144))
    b('v_mul_lo_u32 v83, v81, s26')
    b('v_lshl_add_u32 v83, v80, 4, v83')
    b('s_lshl_b32 s27, s2, 6')
    b('buffer_load_dwordx4 v[84:87], v82, s[%d:%d], 0 offen' % (S_C, S_C + 3))
    for i in range(8):
        if i:
            b('s_add_u32 s27, s27, 6144')
        b('buffer_load_dwordx4 v[%d:%d], v83, s[%d:%d], s27 offen' % (96 + 4 * i, 99 + 4 * i, S_WM, S_WM + 3))
    b.label(lp0)
    b('v_lshlrev_b32 v4, 10, v1')
    b('v_lshrrev_b32 v5, 1, v2')
    b('v_lshl_add_u32 v4, v5, 6, v4')
    b('v_and_b32 v6, 1, v2')
    b('v_lshl_add_u32 v4, v6, 3, v4')
    b('s_lshl_b32 s36, s2, 13')
    for j in range(4):
        b('buffer_load_dwordx2 v[%d:%d], v4, s[%d:%d], s36 offen offset:%d' % (8 + 2 * j, 9 + 2 * j, S_X, S_X + 3, 16 * j))
    mk_srd(b, 28, P_WQ, 512 * 8192)
    b('v_lshrrev_b32 v72, 4, v3')
    b('v_lshlrev_b32 v72, 13, v72')
    b('v_and_b32 v73, 15, v3')
    b('v_lshl_add_u32 v72, v73, 7, v72')
    b('s_lshr_b32 s32, s2, 3')
    b('s_lshl_b32 s32, s32, 17')
    b('s_bfe_u32 s33, s2, 0x20001')
    b('s_lshl_b32 s33, s33, 11')
    b('s_add_u32 s32, s32, s33')
    b('buffer_load_dword v250, v72, s[28:31], s32 offen', 'pf')
    b('v_lshlrev_b32 v7, 7, v5')
    b('v_lshl_add_u32 v7, v6, 4, v7')
    b('v_lshlrev_b32 v74, 11, v5')
    b('v_lshl_add_u32 v74, v6, 9, v74')
    b('s_and_b32 s%d, s2, 3' % S_T0)
    b('s_lshl_b32 s%d, s%d, 3' % (S_T0, S_T0))
    b('v_add_u32 v6, s%d, v1' % S_T0)
    b('v_lshl_add_u32 v6, v6, 4, v74')
    lp1 = uid('p0done')
    b('s_cmp_ge_u32 s2, 96')
    b('s_cbranch_scc1 %s' % lp1)
    for p in range(4):
        b('v_lshlrev_b32 v%d, 16, v%d' % (64 + 2 * p, 84 + p))
        b('v_and_b32 v%d, 0xffff0000, v%d' % (65 + 2 * p, 84 + p))
    for i in range(8):
        b('v_mul_f32 v%d, %s, v%d' % (88 + i, f32(-LOG2E), 64 + i))
    for i in range(8):
        b('v_exp_f32 v%d, v%d' % (88 + i, 88 + i))
    for i in range(8):
        b('v_add_f32 v%d, 1.0, v%d' % (88 + i, 88 + i))
    for i in range(8):
        b('v_rcp_f32 v%d, v%d' % (88 + i, 88 + i))
    for i in range(8):
        b('v_mul_f32 v%d, v%d, v%d' % (64 + i, 64 + i, 88 + i))
    for p in range(4):
        b('v_cvt_pk_bf16_f32 v%d, v%d, v%d' % (88 + p, 64 + 2 * p, 65 + 2 * p))
    for p in range(4):
        b('v_lshlrev_b32 v%d, 16, v%d' % (64 + 2 * p, 88 + p))
        b('v_and_b32 v%d, 0xffff0000, v%d' % (65 + 2 * p, 88 + p))
    ACC = 128
    for i in range(8):
        for p in range(4):
            w = 96 + 4 * i + p
            b('v_lshlrev_b32 v136, 16, v%d' % w)
            b('v_and_b32 v137, 0xffff0000, v%d' % w)
            op = 'v_mul_f32' if i == 0 else 'v_fmac_f32'
            b('%s v%d, v%d, v136' % (op, ACC + 2 * p, 64 + i))
            b('%s v%d, v%d, v137' % (op, ACC + 2 * p + 1, 64 + i))
    b('v_lshlrev_b32 v82, 7, v81')
    b('v_lshl_add_u32 v82, v80, 5, v82')
    b('ds_write_b128 v82, v[128:131]')
    b('ds_write_b128 v82, v[132:135] offset:16')
    b('s_waitcnt lgkmcnt(0)')
    b('s_barrier')
    b('v_and_b32 v80, 31, v3')
    b('v_lshrrev_b32 v81, 5, v3')
    b('v_lshlrev_b32 v83, 2, v80')
    b('v_lshl_add_u32 v82, v81, 10, v83')
    for i in range(8):
        b('ds_read_b32 v%d, v82 offset:%d' % (96 + i, 128 * i))
    for i in range(1, 8):
        b('v_add_f32 v96, v96, v%d' % (96 + i))
    b('v_lshl_add_u32 v82, v81, 7, v83')
    b('ds_write_b32 v82, v96 offset:8192')
    b('s_waitcnt lgkmcnt(0)')
    b('s_barrier')
    for i in range(8):
        b('ds_read_b32 v%d, v83 offset:%d' % (96 + i, 8192 + 128 * i))
    for i in range(1, 8):
        b('v_add_f32 v96, v96, v%d' % (96 + i))
    b('v_cvt_pk_bf16_f32 v96, v96, v96')
    b('v_and_b32 v96, 0xffff0000, v96')
    b('s_lshl_b32 s27, s2, 7')
    b('v_cmp_gt_u32 vcc, 32, v3')
    b('s_and_saveexec_b64 s[34:35], vcc')
    b('buffer_store_dword v96, v83, s[%d:%d], s27 offen offset:%d sc1' % (S_WS, S_WS + 3, WS_MOD))
    b('s_mov_b64 exec, s[34:35]')
    b('v_subrev_u32 v97, 32, v3')
    b('s_mul_i32 s27, s2, 3')
    b('v_add_u32 v98, s27, v97')
    b('v_lshlrev_b32 v98, 7, v98')
    b('v_add_u32 v98, 0x%x, v98' % WS_FLAG)
    b('v_mov_b32 v99, 0')
    b('s_cmp_lt_u32 s2, 32')
    b('s_cselect_b32 s27, 3, 0')
    b('v_cmp_gt_u32 vcc, s27, v97')
    b('s_and_saveexec_b64 s[34:35], vcc')
    b('buffer_store_dword v99, v98, s[%d:%d], 0 offen sc1' % (S_WS, S_WS + 3))
    b('s_mov_b64 exec, s[34:35]')
    b('s_cmp_lt_u32 s2, 32')
    b('s_cselect_b32 s27, 0, 128')
    signal(b, S_DBG, 27)
    b.label(lp1)
    b('s_waitcnt vmcnt(1)')
    stamp(b, 1)
    X = 16
    for p in range(8):
        b('v_lshlrev_b32 v%d, 16, v%d' % (X + 2 * p, 8 + p))
        b('v_and_b32 v%d, 0xffff0000, v%d' % (X + 2 * p + 1, 8 + p))
    layernorm16(b, X, 32, 1, LN_LDS)
    b('s_mov_b32 s27, 0')
    await_flag(b, S_DBG, 27, 32)
    stamp(b, 2)
    for j in range(4):
        b('buffer_load_dwordx4 v[%d:%d], v7, s[%d:%d], 0 offen offset:%d sc1' % (48 + 4 * j, 51 + 4 * j, S_WS, S_WS + 3, WS_MOD + 32 * j))
        b('buffer_load_dwordx4 v[%d:%d], v7, s[%d:%d], 0 offen offset:%d sc1' % (64 + 4 * j, 67 + 4 * j, S_WS, S_WS + 3, WS_MOD + 2048 + 32 * j))
    for i in range(16):
        b('v_add_f32 v%d, 1.0, v%d' % (64 + i, 64 + i))
    for p in range(8):
        b('v_cvt_pk_bf16_f32 v40, v%d, v%d' % (64 + 2 * p, 65 + 2 * p))
        b('v_lshlrev_b32 v%d, 16, v40' % (64 + 2 * p))
        b('v_and_b32 v%d, 0xffff0000, v40' % (65 + 2 * p))
    for i in range(16):
        b('v_fma_f32 v%d, v%d, v%d, v%d' % (X + i, X + i, 64 + i, 48 + i))
        b('v_mul_f32 v%d, %s, v%d' % (X + i, f32(QSCALE), X + i))
    for p in range(8):
        b('v_cvt_pk_bf16_f32 v%d, v%d, v%d' % (8 + p, X + 2 * p, X + 2 * p + 1))
    b('s_lshr_b32 s%d, s2, 2' % S_T0)
    b('s_lshl_b32 s%d, s%d, 15' % (S_T0, S_T0))
    b('s_add_u32 s%d, s%d, 0x%x' % (S_T0, S_T0, WS_H))
    b('buffer_store_dwordx4 v[8:11], v6, s[%d:%d], s%d offen sc1' % (S_WS, S_WS + 3, S_T0))
    b('buffer_store_dwordx4 v[12:15], v6, s[%d:%d], s%d offen offset:1024 sc1' % (S_WS, S_WS + 3, S_T0))
```

```python
import os, struct
from asm import *

KNAME = 'adaLN_cond__sliding_block_cached__glu_gated_bilinear__prompt'
STAMPS = bool(os.environ.get('STAMPS'))
OPT = set(os.environ.get('OPT', '').split(','))

WS_MOD = 0x0
WS_FLAG = 0x10000
WS_H = 0x100000
WS_O = 0x400000
WS_PART = 0x1400000
WS_X1 = 0x2400000
WS_H2 = 0x2600000
WS_HH = 0x2800000
WS_STAMP = 0x9000000
WS_BYTES = 0x10000000
OOB = 0x10000000

F_H, F_O, F_PART, F_H2, F_HH, F_COUNT = 0, 8, 40, 56, 72, 88

LOG2E = 1.4426950408889634
QSCALE = LOG2E / (128.0 ** 0.5)

S_WAVE = 3
S_WS = 4
S_SY = 60
P_X, P_K, P_V, P_WQ, P_WO, P_BX, P_WG, P_WU = 64, 66, 68, 70, 72, 74, 76, 78
P_WD, P_C, P_WMOD, P_OUT, P_DBG, P_WSP = 80, 82, 84, 86, 88, 90
V_SY = 255
SPIN_LIMIT = 100000


def f32(x):
    return '0x%08x' % struct.unpack('<I', struct.pack('<f', x))[0]


def vr(base, n=1):
    return 'v%d' % base if n == 1 else 'v[%d:%d]' % (base, base + n - 1)


def ar(base, n=1):
    return 'a%d' % base if n == 1 else 'a[%d:%d]' % (base, base + n - 1)


def mk_srd(b, dst, ptr, nbytes, off=None):
    if off is None:
        b('s_mov_b32 s%d, s%d' % (dst, ptr))
        b('s_mov_b32 s%d, s%d' % (dst + 1, ptr + 1))
    else:
        b('s_add_u32 s%d, s%d, s%d' % (dst, ptr, off))
        b('s_addc_u32 s%d, s%d, 0' % (dst + 1, ptr + 1))
    if nbytes is not None:
        b('s_mov_b32 s%d, 0x%x' % (dst + 2, nbytes))
    b('s_mov_b32 s%d, 0x20000' % (dst + 3))


def raw(b, text):
    for l in text.strip().split('\n'):
        l = l.strip()
        if l:
            b.add(Raw(l if l.endswith(':') else '  ' + l))


_uid = [0]


def uid(p):
    _uid[0] += 1
    return 'L%s%d' % (p, _uid[0])


def signal(b, srd, soff):
    b('s_waitcnt vmcnt(0)')
    b('s_barrier')
    l = uid('sig')
    raw(b, '''s_cmp_lg_u32 s%d, 0
    s_cbranch_scc1 %s
    s_mov_b64 exec, 1
    v_mov_b32 v%d, 1
    buffer_atomic_add v%d, off, s[%d:%d], s%d
    s_mov_b64 exec, -1
    %s:''' % (S_WAVE, l, V_SY, V_SY, srd, srd + 3, soff, l))


def await_flag(b, srd, soff, target):
    l, d = uid('poll'), uid('got')
    raw(b, '''s_cmp_lg_u32 s%d, 0
    s_cbranch_scc1 %s
    s_mov_b32 s%d, %d
    %s:
    buffer_load_dword v%d, off, s[%d:%d], s%d sc1
    s_waitcnt vmcnt(0)
    v_readfirstlane_b32 s%d, v%d
    s_nop 3
    s_cmp_ge_u32 s%d, %d
    s_cbranch_scc1 %s
    s_sub_u32 s%d, s%d, 1
    s_cmp_lg_u32 s%d, 0
    s_cbranch_scc1 %s
    %s:''' % (S_WAVE, d, S_SY + 1, SPIN_LIMIT, l, V_SY, srd, srd + 3, soff, S_SY + 2, V_SY, S_SY + 2, target, d,
              S_SY + 1, S_SY + 1, S_SY + 1, l, d))
    b('s_barrier')


def flag_off(b, dst, first, idx_sgpr):
    b('s_lshl_b32 s%d, s%d, 7' % (dst, idx_sgpr))
    b('s_add_u32 s%d, s%d, 0x%x' % (dst, dst, WS_FLAG + first * 128))


def stamp(b, i):
    if STAMPS:
        b('s_memrealtime s[92:93]')
        b('s_memtime s[94:95]')
        b('s_waitcnt lgkmcnt(0)')
        b('v_mov_b32 v252, s92')
        b('v_mov_b32 v253, s94')
        b('buffer_store_dwordx2 v[252:253], off, s[%d:%d], s96 offset:%d' % (S_WS, S_WS + 3, 8 * i))


class Sched:
    def __init__(self):
        self.m = {}
        self.f = {}

    def mfma(self, slot, text):
        assert slot not in self.m
        self.m[slot] = text

    def add(self, slot, item, tag=None):
        self.f.setdefault(slot, []).append((item, tag))

    def emit(self, b, lo, hi, valu_last=False):
        for s in range(lo, hi):
            if s in self.m:
                b(self.m[s])
            items = self.f.get(s, [])
            if valu_last:
                isv = lambda it: isinstance(it[0], str) and it[0].startswith('v_')
                items = [x for x in items if not isv(x)] + [x for x in items if isv(x)]
            for item, tag in items:
                if callable(item):
                    item(b)
                else:
                    b(item, tag)


def xor16_32_add(b, x, tmp):
    b('v_mov_b32 v%d, v%d' % (tmp, x))
    b('v_permlane16_swap_b32 v%d, v%d' % (x, tmp))
    b('v_add_f32 v%d, v%d, v%d' % (x, x, tmp))
    b('v_mov_b32 v%d, v%d' % (tmp, x))
    b('v_permlane32_swap_b32 v%d, v%d' % (x, tmp))
    b('v_add_f32 v%d, v%d, v%d' % (x, x, tmp))


def row_reduce(b, x, tmp, lds_off, wave_v, r_v):
    b('v_add_f32_dpp v%d, v%d, v%d row_ror:8 row_mask:0xf bank_mask:0xf' % (tmp, x, x))
    b('v_mov_b32 v%d, v%d' % (x, tmp))
    xor16_32_add(b, x, tmp)
    b('ds_write_b32 v%d, v%d offset:%d' % (wave_v, x, lds_off))
    b('s_waitcnt lgkmcnt(0)')
    b('s_barrier')
    b('ds_read_b128 v[%d:%d], v%d offset:%d' % (tmp, tmp + 3, r_v, lds_off))
    b('v_add_f32 v%d, v%d, v%d' % (tmp, tmp, tmp + 1))
    b('v_add_f32 v%d, v%d, v%d' % (tmp + 2, tmp + 2, tmp + 3))
    b('v_add_f32 v%d, v%d, v%d' % (x, tmp, tmp + 2))


def layernorm16(b, X, T, r8, lds_base):
    b('v_lshlrev_b32 v%d, 4, v%d' % (T + 7, r8))
    b('v_add_u32 v%d, %d, v%d' % (T + 7, lds_base, T + 7))
    b('s_lshl_b32 s%d, s%d, 2' % (S_SY + 3, S_WAVE))
    b('v_add_u32 v%d, s%d, v%d' % (T + 6, S_SY + 3, T + 7))
    S = T + 4
    b('v_add_f32 v%d, v%d, v%d' % (S, X, X + 1))
    for i in range(2, 16):
        b('v_add_f32 v%d, v%d, v%d' % (S, S, X + i))
    row_reduce(b, S, T, 0, T + 6, T + 7)
    b('v_mul_f32 v%d, %s, v%d' % (S, f32(1.0 / 512), S))
    for i in range(16):
        b('v_sub_f32 v%d, v%d, v%d' % (X + i, X + i, S))
    b('v_mul_f32 v%d, v%d, v%d' % (S, X, X))
    for i in range(1, 16):
        b('v_fmac_f32 v%d, v%d, v%d' % (S, X + i, X + i))
    row_reduce(b, S, T, 128, T + 6, T + 7)
    b('v_mov_b32 v%d, %s' % (T, f32(1e-5)))
    b('v_fmac_f32 v%d, %s, v%d' % (T, f32(1.0 / 512), S))
    b('v_rsq_f32 v%d, v%d' % (T, T))
    for i in range(16):
        b('v_mul_f32 v%d, v%d, v%d' % (X + i, X + i, T))
```

```python
from mc import *

PF = True

S_WQ, S_K, S_V = 8, 12, 16
S_HEAD, S_QT, S_W, S_ROT = 24, 25, 26, 27
S_W8K, S_W4K = 28, 29
S_WB = 32
S_HB = 36
S_T0, S_T1, S_T2 = 40, 41, 42
S_OB = 43
S_MODE = 44
S_KVB = 45
S_KROT = 47
S_CH = 46
S_WO, S_WG, S_WU, S_WD = 20, 48, 52, 56
S_PFO = 30

V_WOFF = 2
V_KOFF = 6
V_VOFF = 10
V_H = 11
V_WA = 16
V_VA = 20
V_KA = 24
V_L = 32
V_LANE16 = 36
V_OOFF = 37
V_PF = 38
V_T = 40
V_Q = 64
V_ACC = 128
V_S = 128
V_NEG = 160
V_P = 192
V_M = 208
A_O = 0
A_KF = 128
A_VF = 160

SLOT = 32768
MAX_OFF = 24.0
L_LIMIT = 2.0 ** 80


def kv_slot(i):
    return (i + 4) % 5


def dma_kv(i, w4k=S_W4K):
    out = []
    base = kv_slot(i) * SLOT
    out.append(('s_add_u32 s%d, s%d, %d' % (S_CH, S_KROT, i), None))
    out.append(('s_and_b32 s%d, s%d, 7' % (S_CH, S_CH), None))
    out.append(('s_add_u32 m0, s%d, %d' % (w4k, base), None))
    out.append(('s_lshl_b32 s%d, s%d, 14' % (S_CH, S_CH), None))
    out.append(('s_add_u32 s%d, s%d, s%d' % (S_CH, S_CH, w4k), None))
    for ii in range(4):
        out.append(('buffer_load_dwordx4 v%d, s[%d:%d], s%d offen offset:%d lds' % (V_KOFF + ii, S_K, S_K + 3, S_CH, ii * 1024), 'C%d' % i))
    out.append(('s_add_u32 m0, s%d, %d' % (w4k, base + 16384), None))
    for ii in range(4):
        out.append(('buffer_load_dwordx4 v%d, s[%d:%d], s%d offen offset:%d lds' % (V_VOFF, S_V, S_V + 3, S_CH, ii * 1024), 'C%d' % i))
    return out


def dma_w(p):
    out = []
    for half in range(2):
        out.append(('s_add_u32 m0, s%d, %d' % (S_W8K, p * SLOT + half * 4096), None))
        if half:
            out.append(('s_add_u32 s%d, s%d, %d' % (S_T0, S_WB + p, 4 * 32768), None))
        for ii in range(4):
            out.append(('buffer_load_dwordx4 v%d, s[%d:%d], s%d offen offset:%d lds' %
                        (V_WOFF + ii, S_WQ, S_WQ + 3, S_T0 if half else S_WB + p, ii * 1024), 'W%d' % p))
    return out


def h_load(s):
    p = s // 8
    out = []
    for qq in range(2):
        out.append(('buffer_load_dwordx4 %s, v%d, s[%d:%d], s%d offen offset:%d sc1' %
                    (ar(8 * s + 4 * qq, 4), V_H + 2 * qq + ((s & 7) >> 2), S_WS, S_WS + 3, S_HB + p, (s & 3) * 1024), None))
    return out


def setup(b):
    b('s_and_b32 s%d, s2, 7' % S_T0)
    b('s_lshr_b32 s%d, s2, 3' % S_T1)
    b('s_lshr_b32 s%d, s%d, 1' % (S_HEAD, S_T0))
    b('s_lshl_b32 s%d, s%d, 3' % (S_HEAD, S_HEAD))
    b('s_lshr_b32 s%d, s%d, 2' % (S_ROT, S_T1))
    b('s_add_u32 s%d, s%d, s%d' % (S_HEAD, S_HEAD, S_ROT))
    b('s_and_b32 s%d, s%d, 1' % (S_QT, S_T0))
    b('s_lshl_b32 s%d, s%d, 2' % (S_QT, S_QT))
    b('s_and_b32 s%d, s%d, 3' % (S_T1, S_T1))
    b('s_add_u32 s%d, s%d, s%d' % (S_QT, S_QT, S_T1))
    b('s_add_u32 s%d, s%d, s%d' % (S_ROT, S_ROT, S_T1))
    b('s_and_b32 s%d, s%d, 3' % (S_ROT, S_ROT))
    b('s_lshl_b32 s%d, s%d, 1' % (S_KROT, S_T1))
    if 'rot' not in OPT:
        b('s_mov_b32 s%d, 0' % S_ROT)
        b('s_mov_b32 s%d, 0' % S_KROT)
    b('s_mov_b32 s%d, s%d' % (S_W, S_WAVE))
    T = V_T
    b('v_lshrrev_b32 v%d, 4, v0' % T)
    b('v_and_b32 v%d, 15, v0' % (T + 1))
    b('v_lshlrev_b32 v%d, 2, v%d' % (T + 2, T))
    b('v_xor_b32 v%d, v%d, v%d' % (T + 2, T + 2, T + 1))
    b('v_lshlrev_b32 v%d, 4, v%d' % (T + 2, T + 2))
    b('v_lshlrev_b32 v%d, 8, v%d' % (T + 3, T))
    b('v_add_u32 v%d, v%d, v%d' % (V_VOFF, T + 2, T + 3))
    b('v_lshlrev_b32 v%d, 13, v%d' % (T + 3, T))
    b('v_add_u32 v%d, v%d, v%d' % (V_WOFF, T + 2, T + 3))
    for ii in range(1, 4):
        b('v_add_u32 v%d, %d, v%d' % (V_WOFF + ii, ii * (32768 - 1024), V_WOFF))
    for ii in range(4):
        b('v_add_u32 v%d, %d, v%d' % (T + 2, 4 * ii, T))
        b('v_xor_b32 v%d, v%d, v%d' % (T + 2, T + 2, T + 1))
        b('v_lshlrev_b32 v%d, 4, v%d' % (T + 2, T + 2))
        b('v_lshlrev_b32 v%d, 8, v%d' % (T + 3, T))
        b('v_add_u32 v%d, v%d, v%d' % (V_KOFF + ii, T + 2, T + 3))
    b('v_lshlrev_b32 v%d, 4, v0' % V_LANE16)
    b('v_bfe_u32 v%d, v0, 4, 1' % (T + 2))
    b('v_lshlrev_b32 v%d, 17, v%d' % (V_OOFF, T + 2))
    b('v_lshrrev_b32 v%d, 5, v0' % (T + 2))
    b('v_lshlrev_b32 v%d, 9, v%d' % (T + 2, T + 2))
    b('v_add_u32 v%d, v%d, v%d' % (V_OOFF, V_OOFF, T + 2))
    b('v_and_b32 v%d, 15, v0' % (T + 2))
    b('v_lshlrev_b32 v%d, 4, v%d' % (T + 2, T + 2))
    b('v_add_u32 v%d, v%d, v%d' % (V_OOFF, V_OOFF, T + 2))
    for qq in range(2):
        for half in range(2):
            b('v_add_u32 v%d, %d, v%d' % (V_H + 2 * qq + half, qq * 32768 + half * 4096, V_LANE16))
    b('v_lshrrev_b32 v%d, 5, v0' % T)
    b('v_lshlrev_b32 v%d, 2, v%d' % (T + 1, T))
    b('v_bfe_u32 v%d, v0, 2, 2' % (T + 2))
    b('v_add_u32 v%d, v%d, v%d' % (T + 1, T + 1, T + 2))
    b('v_lshlrev_b32 v%d, 8, v%d' % (T + 1, T + 1))
    b('v_bfe_u32 v%d, v0, 4, 1' % (T + 3))
    b('v_lshlrev_b32 v%d, 5, v%d' % (T + 3, T + 3))
    b('v_add_u32 v%d, v%d, v%d' % (T + 1, T + 1, T + 3))
    b('v_and_b32 v%d, 3, v0' % (T + 3))
    b('v_lshlrev_b32 v%d, 3, v%d' % (T + 4, T + 3))
    b('v_and_b32 v%d, 1, v0' % (T + 5))
    b('v_lshlrev_b32 v%d, 4, v%d' % (T + 5, T + 5))
    b('v_bfe_u32 v%d, v0, 1, 1' % (T + 6))
    b('v_lshlrev_b32 v%d, 3, v%d' % (T + 6, T + 6))
    b('v_add_u32 v%d, v%d, v%d' % (T + 5, T + 5, T + 6))
    for db in range(4):
        b('v_xor_b32 v%d, %d, v%d' % (T + 6, db, T + 2))
        b('v_lshlrev_b32 v%d, 6, v%d' % (T + 6, T + 6))
        b('v_add_u32 v%d, v%d, v%d' % (T + 6, T + 6, T + 1))
        b('v_add_u32 v%d, v%d, v%d' % (V_VA + db, T + 6, T + 4))
        b('v_add_u32 v%d, v%d, v%d' % (V_WA + db, T + 6, T + 5))
    b('v_and_b32 v%d, 31, v0' % (T + 1))
    b('v_and_b32 v%d, 15, v0' % (T + 2))
    b('v_xor_b32 v%d, v%d, v%d' % (T + 2, T + 2, T))
    b('v_lshlrev_b32 v%d, 8, v%d' % (T + 1, T + 1))
    for tt in range(8):
        b('v_xor_b32 v%d, %d, v%d' % (T + 3, 2 * tt, T + 2))
        b('v_lshlrev_b32 v%d, 4, v%d' % (T + 3, T + 3))
        b('v_add_u32 v%d, v%d, v%d' % (V_KA + tt, T + 3, T + 1))
    b('s_lshl_b32 s%d, s%d, 13' % (S_W8K, S_W))
    b('s_lshl_b32 s%d, s%d, 12' % (S_W4K, S_W))
    b('s_lshl_b32 s%d, s%d, 8' % (S_T0, S_HEAD))
    mk_srd(b, S_WQ, P_WQ, None, S_T0)
    b('s_sub_u32 s%d, %d, s%d' % (S_WQ + 2, 512 * 8192, S_T0))
    b('s_lshl_b32 s%d, s%d, 19' % (S_T0, S_HEAD))
    b('s_add_u32 s%d, s%d, %d' % (S_T0, S_T0, 1536 * 256))
    mk_srd(b, S_K, P_K, 512 * 256, S_T0)
    mk_srd(b, S_V, P_V, 512 * 256, S_T0)
    b('s_lshl_b32 s%d, s%d, 3' % (S_T0, S_QT))
    b('s_lshl_b32 s%d, s%d, 1' % (S_T1, S_W))
    b('s_add_u32 s%d, s%d, s%d' % (S_T0, S_T0, S_T1))
    b('s_lshl_b32 s%d, s%d, 15' % (S_T1, S_T0))
    b('s_add_u32 s%d, s%d, 0x%x' % (S_T1, S_T1, WS_H))
    b('s_lshl_b32 s%d, s%d, 18' % (S_T2, S_W))
    for p in range(4):
        b('s_add_u32 s%d, s%d, %d' % (S_CH, S_ROT, p))
        b('s_and_b32 s%d, s%d, 3' % (S_CH, S_CH))
        b('s_lshl_b32 s%d, s%d, 20' % (S_WB + p, S_CH))
        b('s_add_u32 s%d, s%d, s%d' % (S_WB + p, S_WB + p, S_T2))
        b('s_lshl_b32 s%d, s%d, 13' % (S_HB + p, S_CH))
        b('s_add_u32 s%d, s%d, s%d' % (S_HB + p, S_HB + p, S_T1))
    b('s_lshl_b32 s%d, s%d, 18' % (S_OB, S_T0))
    b('s_lshl_b32 s%d, s%d, 12' % (S_T1, S_HEAD))
    b('s_add_u32 s%d, s%d, s%d' % (S_OB, S_OB, S_T1))
    b('s_add_u32 s%d, s%d, 0x%x' % (S_OB, S_OB, WS_O))
    b('s_mov_b32 s%d, 0' % S_MODE)
    if PF:
        mk_srd(b, S_WO, P_WO, 4096 * 1024); mk_srd(b, S_WG, P_WG, 512 * 2752); mk_srd(b, S_WU, P_WU, 512 * 2752); mk_srd(b, S_WD, P_WD, 1376 * 1024)
        b('s_bfe_u32 s%d, s2, 0x20001' % S_PFO)
        b('s_lshl_b32 s%d, s%d, 20' % (S_PFO, S_PFO))
        b('s_lshr_b32 s%d, s2, 3' % S_T1)
        b('s_lshl_b32 s%d, s%d, 15' % (S_T1, S_T1))
        b('s_add_u32 s%d, s%d, s%d' % (S_PFO, S_PFO, S_T1))
        b('s_add_u32 s%d, s%d, s%d' % (S_PFO, S_PFO, S_W8K))


def qproj(b, stamps):
    H_AHEAD = 6
    sc = Sched()
    for s in range(0, H_AHEAD):
        for t, g in h_load(s): b(t, g)
    b.waitvm('W0')
    b('s_barrier')
    stamp(b, 5)

    def a_reads(s):
        buf = V_Q + 16 * (s & 1)
        p = s // 8
        out = []
        for db in range(4):
            for jj in range(2):
                off = (p & 1) * SLOT + (s & 7) * 4096 + jj * 2048
                out.append('ds_read_b64_tr_b16 %s, v%d offset:%d' % (vr(buf + 4 * db + 2 * jj, 2), V_WA + db, off))
        return out
    for t in a_reads(0): b(t)
    stream = []
    for p, first in ((2, 0), (3, 8)):
        for k, x in enumerate(dma_w(p)):
            stream.append((first + min(7, (k * 8) // len(dma_w(p))), x))
    for k, x in enumerate(dma_kv(0)):
        stream.append((18 + (k * 8) // len(dma_kv(0)), x))
    for s in range(32):
        base = 8 * s
        for db in range(4):
            for qq in range(2):
                d = vr(V_ACC + (db * 2 + qq) * 16, 16)
                sc.mfma(base + 2 * db + qq, 'v_mfma_f32_32x32x16_bf16 %s, %s, %s, %s' %
                        (d, vr(V_Q + 16 * (s & 1) + 4 * db, 4), ar(8 * s + 4 * qq, 4), '0' if s == 0 else d))
        if s + 1 < 32:
            if (s + 1) % 8 == 0:
                p = (s + 1) // 8
                sc.add(base, lambda bb, p=p: (bb.waitvm('W%d' % p), bb('s_barrier')))
                if p == 2:
                    for db in range(4):
                        sc.add(base, 'v_add_u32 v%d, 0x10000, v%d' % (V_WA + db, V_WA + db))
            for k, t in enumerate(a_reads(s + 1)):
                sc.add(base + k, t)
        if s + H_AHEAD < 32:
            for k, (t, g) in enumerate(h_load(s + H_AHEAD)):
                sc.add(base + 1 + 4 * k, t, g)
        k = 0
        for (st, (t, g)) in stream:
            if st == s:
                sc.add(base + 2 + (k % 6), t, g)
                k += 1
    sc.emit(b, 0, 256)
    for db in range(4):
        for qq in range(2):
            acc = V_ACC + (db * 2 + qq) * 16
            for tp in range(2):
                for k in range(4):
                    b('v_cvt_pk_bf16_f32 v%d, v%d, v%d' % (V_Q + qq * 32 + (2 * db + tp) * 4 + k, acc + 8 * tp + 2 * k, acc + 8 * tp + 2 * k + 1))


def k_read(tt, blk):
    return 'ds_read_b128 %s, v%d offset:%d' % (ar(A_KF + 4 * tt, 4), V_KA + tt, (blk & 1) * 8192)


def v_reads(f, blk):
    ks, db = f // 4, f % 4
    return ['ds_read_b64_tr_b16 %s, v%d offset:%d' % (ar(A_VF + 4 * f + 2 * jj, 2), V_VA + db, 16384 + (blk & 1) * 8192 + ks * 4096 + jj * 2048)
            for jj in range(2)]


def qk(qq, tt, first_c):
    s = vr(V_S + 16 * qq, 16)
    c = s if tt else first_c
    return 'v_mfma_f32_32x32x16_bf16 %s, %s, %s, %s' % (s, ar(A_KF + 4 * tt, 4), vr(V_Q + 32 * qq + 4 * tt, 4), c)


def pv(qq, f, first):
    ks, db = f // 4, f % 4
    o = ar(A_O + (db * 2 + qq) * 16, 16)
    return 'v_mfma_f32_32x32x16_bf16 %s, %s, %s, %s' % (o, ar(A_VF + 4 * f, 4), vr(V_P + 8 * qq + 4 * ks, 4), '0' if (first and ks == 0) else o)


def softmax_pair(qq, p, first=False):
    s0, s1 = V_S + 16 * qq + 2 * p, V_S + 16 * qq + 2 * p + 1
    la, lb = V_L + 2 * qq, V_L + 2 * qq + 1
    e = ['v_exp_f32 v%d, v%d' % (s0, s0), 'v_exp_f32 v%d, v%d' % (s1, s1)]
    if first and p == 0:
        a = ['v_mov_b32 v%d, v%d' % (la, s0), 'v_mov_b32 v%d, v%d' % (lb, s1)]
    else:
        a = ['v_add_f32 v%d, v%d, v%d' % (la, la, s0), 'v_add_f32 v%d, v%d, v%d' % (lb, lb, s1)]
    a.append('v_cvt_pk_bf16_f32 v%d, v%d, v%d' % (V_P + 8 * qq + p, s0, s1))
    return e, a


def half_swap(b, x, tmp, op):
    b('v_mov_b32 v%d, v%d' % (tmp, x))
    b('v_permlane32_swap_b32 v%d, v%d' % (x, tmp))
    b('%s v%d, v%d, v%d' % (op, x, x, tmp))


def prefetches():
    T = V_T
    pre = ['v_lshlrev_b32 v%d, 7, v0' % V_PF,
           'v_min_u32 v%d, 10, v0' % (V_PF + 1),
           's_lshl_b32 s%d, s2, 2' % S_T1, 's_add_u32 s%d, s%d, s%d' % (S_T1, S_T1, S_W), 's_mul_i32 s%d, s%d, 11' % (S_T1, S_T1),
           'v_add_u32 v%d, s%d, v%d' % (V_PF + 1, S_T1, V_PF + 1), 'v_lshlrev_b32 v%d, 7, v%d' % (V_PF + 1, V_PF + 1),
           'v_lshrrev_b32 v%d, 5, v0' % T, 'v_lshlrev_b32 v%d, 17, v%d' % (T, T),
           'v_and_b32 v%d, 31, v0' % (T + 1), 'v_lshl_add_u32 v%d, v%d, 7, v%d' % (T, T + 1, T),
           's_add_u32 s%d, s%d, 262144' % (S_T2, S_OB)]
    loads = ['buffer_load_dword v%d, v%d, s[%d:%d], s%d offen' % (T + 2, V_PF, S_WO, S_WO + 3, S_PFO),
             'buffer_load_dword v%d, v%d, s[%d:%d], s%d offen' % (T + 2, T, S_WS, S_WS + 3, S_OB),
             'buffer_load_dword v%d, v%d, s[%d:%d], s%d offen' % (T + 2, T, S_WS, S_WS + 3, S_T2)]
    for srd_ in (S_WG, S_WU, S_WD):
        loads.append('buffer_load_dword v%d, v%d, s[%d:%d], 0 offen' % (T + 2, V_PF + 1, srd_, srd_ + 3))
    return pre, loads


def attention(b, name, stamps):
    b.label(name + '_attn')
    for tt in range(8):
        b('v_add_u32 v%d, %d, v%d' % (V_KA + tt, kv_slot(0) * SLOT, V_KA + tt))
    for db in range(4):
        b('v_add_u32 v%d, %d, v%d' % (V_VA + db, kv_slot(0) * SLOT, V_VA + db))
    b.waitvm('C0')
    b('s_barrier')
    for tt in range(8):
        b(k_read(tt, 0))
    for i in (1, 2, 3):
        for t, g in dma_kv(i): b(t, g)
    for tt in range(8):
        for qq in range(2):
            b(qk(qq, tt, '0'))
        b(k_read(tt, 1))
    for f in range(8):
        for t in v_reads(f, 0): b(t)
    b('s_cmp_lg_u32 s%d, 0' % S_MODE)
    b('s_cbranch_scc1 %s_havemax' % name)
    for qq in range(2):
        S = V_S + 16 * qq
        M = V_M + qq
        b('v_max3_f32 v%d, v%d, v%d, v%d' % (M, S, S + 1, S + 2))
        for i in range(3, 15, 2):
            b('v_max3_f32 v%d, v%d, v%d, v%d' % (M, M, S + i, S + i + 1))
        b('v_max_f32 v%d, v%d, v%d' % (M, M, S + 15))
        half_swap(b, M, V_T + qq, 'v_max_f32')
        b('v_add_f32 v%d, %s, v%d' % (M, f32(MAX_OFF), M))
    b.label(name + '_havemax')
    b('s_nop 7')
    b('s_nop 3')
    for qq in range(2):
        for i in range(16):
            b('v_sub_f32 v%d, 0, v%d' % (V_NEG + 16 * qq + i, V_M + qq))
        for i in range(16):
            b('v_sub_f32 v%d, v%d, v%d' % (V_S + 16 * qq + i, V_S + 16 * qq + i, V_M + qq))
    for p in range(8):
        e, a = softmax_pair(0, p, first=True)
        for t in e + a: b(t)
    stamp(b, 7)

    sc = Sched()
    NB = 16
    for j in range(NB):
        base = 32 * j
        last = j == NB - 1
        for f in range(8):
            sc.mfma(base + f, pv(0, f, j == 0))
            sc.mfma(base + 16 + f, pv(1, f, j == 0))
        if not last:
            for tt in range(8):
                sc.mfma(base + 8 + tt, qk(0, tt, vr(V_NEG, 16)))
                sc.mfma(base + 24 + tt, qk(1, tt, vr(V_NEG + 16, 16)))
        for qq, w0, on in ((1, 2, True), (0, 18, not last)):
            if not on:
                continue
            for p in range(8):
                e, a = softmax_pair(qq, p, first=(j == 0 and qq == 1))
                sc.add(base + w0 + 2 * p, e[0])
                sc.add(base + w0 + 2 * p + 1, e[1])
                sc.add(base + w0 + 2 * p + 1, a[0])
                sc.add(base + w0 + 2 * p + 2, a[1])
                sc.add(base + w0 + 2 * p + 2, a[2])
        if j + 1 < NB:
            for f in range(8):
                for jj, t in enumerate(v_reads(f, j + 1)):
                    sc.add(base + 17 + 2 * f + jj, t)
        if j + 2 < NB:
            for tt in range(8):
                sc.add(base + 33 + tt, k_read(tt, j + 2))
        if j % 2 == 0 and j + 2 < NB:
            c = j // 2
            delta = (kv_slot(c + 1) - kv_slot(c)) * SLOT
            lit = '0x%x' % (delta & 0xffffffff)
            for tt in range(8):
                sc.add(base + 9 + tt, 'v_add_u32 v%d, %s, v%d' % (V_KA + tt, lit, V_KA + tt))
            for db in range(4):
                sc.add(base + 32 + 9 + db, 'v_add_u32 v%d, %s, v%d' % (V_VA + db, lit, V_VA + db))
            sc.add(base + 32, lambda bb, c=c: (bb.waitvm('C%d' % (c + 1)), bb('s_barrier')))
            if c + 4 < 8:
                ops = dma_kv(c + 4)
                for k, (t, g) in enumerate(ops):
                    sc.add(base + 32 + 9 + (k * 8) // len(ops), t, g)
    if PF:
        pre, loads = prefetches()
        for k, t in enumerate(pre):
            sc.add(32 * 6 + 9 + k // 2, t)
        order = [0, 3, 4, 5] + ([1, 2] if 'otouch' in OPT else [])
        for k, i in enumerate(order):
            sc.add(32 * (8 + k // 2) + 10 + 4 * (k % 2), loads[i], 'pf')
    sc.emit(b, 0, 32 * NB + 3, valu_last=True)
    stamp(b, 8)


def epilogue(b, name, stamps):
    T = V_T
    for qq in range(2):
        b('v_add_f32 v%d, v%d, v%d' % (V_L + 2 * qq, V_L + 2 * qq, V_L + 2 * qq + 1))
        half_swap(b, V_L + 2 * qq, T + qq, 'v_add_f32')
    b('s_cmp_lg_u32 s%d, 0' % S_MODE)
    b('s_cbranch_scc1 %s_noguard' % name)
    b('v_add_f32 v%d, v%d, v%d' % (T + 1, V_L, V_L + 2))
    b('v_mov_b32 v%d, %s' % (T + 2, f32(L_LIMIT)))
    b('v_cmp_nle_f32 vcc, v%d, v%d' % (T + 1, T + 2))
    b('v_mov_b32 v%d, 0' % (T + 3))
    b('s_cmp_lg_u64 vcc, 0')
    b('s_cselect_b32 s%d, 1, 0' % S_T0)
    b('v_mov_b32 v%d, s%d' % (T + 3, S_T0))
    b('s_lshl_b32 s%d, s%d, 2' % (S_T1, S_W))
    b('s_add_u32 s%d, s%d, %d' % (S_T1, S_T1, 2 * SLOT))
    b('v_mov_b32 v%d, s%d' % (T + 4, S_T1))
    b('ds_write_b32 v%d, v%d' % (T + 4, T + 3))
    b('s_waitcnt lgkmcnt(0)')
    b('s_barrier')
    b('v_mov_b32 v%d, %d' % (T + 4, 2 * SLOT))
    b('ds_read_b128 %s, v%d' % (vr(T + 8, 4), T + 4))
    b('v_or_b32 v%d, v%d, v%d' % (T + 8, T + 8, T + 9))
    b('v_or_b32 v%d, v%d, v%d' % (T + 10, T + 10, T + 11))
    b('v_or_b32 v%d, v%d, v%d' % (T + 8, T + 8, T + 10))
    b('v_readfirstlane_b32 s%d, v%d' % (S_T0, T + 8))
    b('s_cmp_lg_u32 s%d, 0' % S_T0)
    b('s_cbranch_scc1 %s_fallback' % name)
    b.label(name + '_noguard')
    b('s_barrier')
    for qq in range(2):
        b('v_rcp_f32 v%d, v%d' % (V_L + 2 * qq, V_L + 2 * qq))
    n = 0
    for qq in range(2):
        for db in range(4):
            o = A_O + (db * 2 + qq) * 16
            for tp in range(2):
                t0 = V_S + (n % 4) * 12
                n += 1
                for k in range(8):
                    b('v_accvgpr_read_b32 v%d, a%d' % (t0 + k, o + 8 * tp + k))
                for k in range(8):
                    b('v_mul_f32 v%d, v%d, v%d' % (t0 + k, t0 + k, V_L + 2 * qq))
                for k in range(4):
                    b('v_cvt_pk_bf16_f32 v%d, v%d, v%d' % (t0 + 8 + k, t0 + 2 * k, t0 + 2 * k + 1))
                if qq and db == 0 and tp == 0:
                    b('s_add_u32 s%d, s%d, %d' % (S_OB, S_OB, 262144))
                b('buffer_store_dwordx4 %s, v%d, s[%d:%d], s%d offen offset:%d sc1' % (vr(t0 + 8, 4), V_OOFF, S_WS, S_WS + 3, S_OB, db * 1024 + tp * 256))


def fallback(b, name):
    b.label(name + '_fallback')
    b('s_waitcnt vmcnt(0) lgkmcnt(0)')
    b('s_barrier')
    cur = kv_slot(7) * SLOT
    for tt in range(8):
        b('v_add_u32 v%d, 0x%x, v%d' % (V_KA + tt, (-cur) & 0xffffffff, V_KA + tt))
    for db in range(4):
        b('v_add_u32 v%d, 0x%x, v%d' % (V_VA + db, (-cur) & 0xffffffff, V_VA + db))
    for qq in range(2):
        b('v_mov_b32 v%d, 0xff800000' % (V_M + qq))
    b('s_mov_b32 s%d, 0' % S_T2)
    b.label(name + '_fb_loop')
    b('s_lshl_b32 s%d, s%d, 14' % (S_CH, S_T2))
    b('s_add_u32 s%d, s%d, s%d' % (S_CH, S_CH, S_W4K))
    b('s_mov_b32 m0, s%d' % S_W4K)
    for ii in range(4):
        b('buffer_load_dwordx4 v%d, s[%d:%d], s%d offen offset:%d lds' % (V_KOFF + ii, S_K, S_K + 3, S_CH, ii * 1024))
    b('s_waitcnt vmcnt(0)')
    b('s_barrier')
    for blk in range(2):
        for tt in range(8):
            b(k_read(tt, blk))
        for tt in range(8):
            for qq in range(2):
                b(qk(qq, tt, '0'))
        for qq in range(2):
            for i in range(0, 16, 2):
                b('v_max3_f32 v%d, v%d, v%d, v%d' % (V_M + qq, V_M + qq, V_S + 16 * qq + i, V_S + 16 * qq + i + 1))
    b('s_waitcnt lgkmcnt(0)')
    b('s_barrier')
    b('s_add_u32 s%d, s%d, 1' % (S_T2, S_T2))
    b('s_cmp_lt_u32 s%d, 8' % S_T2)
    b('s_cbranch_scc1 %s_fb_loop' % name)
    for qq in range(2):
        half_swap(b, V_M + qq, V_T + qq, 'v_max_f32')
    b('s_mov_b32 s%d, 1' % S_MODE)
    for t, g in dma_kv(0): b(t)
    b('s_waitcnt vmcnt(0)')
    b('s_branch %s_attn' % name)


def pre(b):
    setup(b)
    for p in range(2):
        for t, g in dma_w(p): b(t, g)


def flag_index(b, dst):
    flag_off(b, dst, F_H, S_QT)


def main(b, name):
    qproj(b, None)
    stamp(b, 6)
    attention(b, name, None)
    epilogue(b, name, None)


def out_flag(b, dst):
    b('s_lshl_b32 s%d, s%d, 2' % (dst, S_QT))
    b('s_lshr_b32 s%d, s%d, 3' % (S_T0, S_HEAD))
    b('s_add_u32 s%d, s%d, s%d' % (dst, dst, S_T0))
    flag_off(b, dst, F_O, dst)
```

```python
from mc import *
from front import LN_LDS

MF = 'v_mfma_f32_16x16x32_bf16'


def p3(b, name):
    S_WO = 8
    S_W, S_KS, S_QT, S_NT, S_ROT, S_W8K = 16, 17, 18, 19, 20, 21
    S_AB, S_BB, S_T0, S_T1, S_T2, S_PB = 22, 23, 24, 25, 26, 27
    S_P, S_B1, S_B2, S_A2, S_L2, S_D, S_OFFB, S_OFFA, S_SLOT = 28, 29, 30, 31, 32, 33, 34, 35, 36
    V_WOFF, V_B, V_A, V_T = 2, 10, 12, 20
    V_AF = 32
    V_ACC = 128
    SLOT = 32768
    OOB = 0x10000000
    b('s_and_b32 s%d, s2, 7' % S_T0)
    b('s_lshr_b32 s%d, s2, 3' % S_T1)
    b('s_lshr_b32 s%d, s%d, 1' % (S_KS, S_T0))
    b('s_mov_b32 s%d, s%d' % (S_W, S_WAVE))
    b('s_and_b32 s%d, s%d, 1' % (S_T0, S_T0))
    b('s_lshl_b32 s%d, s%d, 3' % (S_T0, S_T0))
    b('s_lshr_b32 s%d, s%d, 2' % (S_QT, S_T1))
    b('s_and_b32 s%d, s%d, 3' % (S_NT, S_T1))
    b('s_lshl_b32 s%d, s%d, 1' % (S_ROT, S_NT))
    b('s_add_u32 s%d, s%d, s%d' % (S_ROT, S_ROT, S_QT))
    b('s_and_b32 s%d, s%d, 7' % (S_ROT, S_ROT))
    b('s_mov_b32 s%d, 0' % S_ROT)
    b('s_add_u32 s%d, s%d, s%d' % (S_QT, S_QT, S_T0))
    T = V_T
    b('v_lshrrev_b32 v%d, 4, v0' % T)
    b('v_and_b32 v%d, 15, v0' % (T + 1))
    b('v_lshlrev_b32 v%d, 1, v%d' % (T + 2, T))
    b('v_xor_b32 v%d, v%d, v%d' % (T + 2, T + 2, T + 1))
    b('v_lshlrev_b32 v%d, 4, v%d' % (T + 2, T + 2))
    b('v_lshl_add_u32 v%d, v%d, 10, v%d' % (V_WOFF, T, T + 2))
    b('v_xor_b32 v%d, 128, v%d' % (V_WOFF + 4, V_WOFF))
    for ii in range(1, 4):
        b('v_add_u32 v%d, %d, v%d' % (V_WOFF + ii, ii * 3072, V_WOFF))
        b('v_add_u32 v%d, %d, v%d' % (V_WOFF + 4 + ii, ii * 3072, V_WOFF + 4))
    b('v_lshlrev_b32 v%d, 4, v0' % V_B)
    b('v_add_u32 v%d, %d, v%d' % (V_B + 1, 131072, V_B))
    b('s_lshl_b32 s%d, s%d, 13' % (S_W8K, S_W))
    b('s_lshl_b32 s%d, s%d, 20' % (S_AB, S_KS))
    b('s_lshl_b32 s%d, s%d, 15' % (S_T0, S_W))
    b('s_add_u32 s%d, s%d, s%d' % (S_AB, S_AB, S_T0))
    b('s_lshl_b32 s%d, s%d, 8' % (S_T0, S_NT))
    b('s_add_u32 s%d, s%d, s%d' % (S_AB, S_AB, S_T0))
    b('s_lshl_b32 s%d, s%d, 3' % (S_T0, S_QT))
    b('s_lshl_b32 s%d, s%d, 1' % (S_T1, S_W))
    b('s_add_u32 s%d, s%d, s%d' % (S_T0, S_T0, S_T1))
    b('s_lshl_b32 s%d, s%d, 17' % (S_BB, S_T0))
    b('s_lshl_b32 s%d, s%d, 15' % (S_T1, S_KS))
    b('s_add_u32 s%d, s%d, s%d' % (S_BB, S_BB, S_T1))
    b('s_add_u32 s%d, s%d, 0x%x' % (S_BB, S_BB, WS_O))
    b('s_lshl_b32 s%d, s%d, 17' % (S_OFFA, S_ROT))
    b('s_lshl_b32 s%d, s%d, 12' % (S_OFFB, S_ROT))
    b('s_add_u32 s%d, s%d, s%d' % (S_A2, S_AB, S_OFFA))
    b('s_add_u32 s%d, s%d, s%d' % (S_B1, S_BB, S_OFFB))
    b('s_mov_b32 s%d, s%d' % (S_L2, S_W8K))
    mk_srd(b, S_WO, P_WO, 4096 * 1024)

    def dma_w(tag):
        out = []
        for half in range(2):
            grp = [('s_add_u32 m0, s%d, %d' % (S_L2, half * 4096), None),
                   ('s_add_u32 s%d, s%d, %d' % (S_T2, S_A2, half * 16 * 1024), None)]
            for ii in range(4):
                grp.append(('buffer_load_dwordx4 v%d, s[%d:%d], s%d offen offset:%d lds' %
                            (V_WOFF + 4 * half + ii, S_WO, S_WO + 3, S_T2, ii * 1024), tag))
            out.append(grp)
        return out

    def b_load(ring, sreg, step):
        return ['buffer_load_dwordx4 %s, v%d, s[%d:%d], s%d offen offset:%d sc1' %
                (ar(8 * ring + 4 * qq, 4), V_B + qq, S_WS, S_WS + 3, sreg, step * 1024) for qq in range(2)]

    def a_reads(buf, step):
        return ['ds_read_b64_tr_b16 %s, v%d offset:%d' % (vr(V_AF + 32 * buf + 4 * nb + 2 * jj, 2), V_A + nb, step * 8192 + jj * 2048)
                for nb in range(8) for jj in range(2)]

    def advance_a():
        return ['s_add_u32 s%d, s%d, 0x20000' % (S_OFFA, S_OFFA), 's_and_b32 s%d, s%d, 0xfffff' % (S_OFFA, S_OFFA),
                's_add_u32 s%d, s%d, s%d' % (S_A2, S_AB, S_OFFA),
                's_add_u32 s%d, s%d, %d' % (S_L2, S_L2, SLOT), 's_and_b32 s%d, s%d, 0x1ffff' % (S_L2, S_L2)]

    def advance_b():
        return ['s_mov_b32 s%d, s%d' % (S_B1, S_B2),
                's_add_u32 s%d, s%d, 0x1000' % (S_OFFB, S_OFFB), 's_and_b32 s%d, s%d, 0x7fff' % (S_OFFB, S_OFFB),
                's_add_u32 s%d, s%d, s%d' % (S_B2, S_BB, S_OFFB)]

    for grp in dma_w('W0'):
        for t, g in grp: b(t, g)
    for t in advance_a(): b(t)
    for grp in dma_w('WB'):
        for t, g in grp: b(t, g, epoch=-1)
    for t in advance_a(): b(t)
    b('v_bfe_u32 v%d, v0, 2, 2' % T)
    b('v_bfe_u32 v%d, v0, 4, 1' % (T + 1))
    b('v_lshrrev_b32 v%d, 5, v0' % (T + 2))
    b('v_lshlrev_b32 v%d, 4, v%d' % (T + 3, T + 1))
    b('v_lshlrev_b32 v%d, 2, v%d' % (T + 4, T + 2))
    b('v_add3_u32 v%d, v%d, v%d, v%d' % (T + 3, T + 3, T + 4, T))
    b('v_lshlrev_b32 v%d, 8, v%d' % (T + 3, T + 3))
    b('v_and_b32 v%d, 3, v0' % (T + 4))
    b('v_lshl_add_u32 v%d, v%d, 3, v%d' % (T + 3, T + 4, T + 3))
    b('v_lshlrev_b32 v%d, 2, v%d' % (T + 1, T + 1))
    b('v_or_b32 v%d, v%d, v%d' % (T + 1, T + 1, T))
    for nb in range(8):
        b('v_xor_b32 v%d, %d, v%d' % (T + 4, nb, T + 1))
        b('v_lshl_add_u32 v%d, v%d, 5, v%d' % (V_A + nb, T + 4, T + 3))
    for i in range(64):
        b('v_mov_b32 v%d, 0' % (V_ACC + i))
    b('s_lshl_b32 s%d, s%d, 7' % (S_PB, S_KS))
    b('s_add_u32 s%d, s%d, s%d' % (S_PB, S_PB, S_T0))
    b('s_lshl_b32 s%d, s%d, 14' % (S_PB, S_PB))
    b('s_lshl_b32 s%d, s%d, 12' % (S_T1, S_NT))
    b('s_add_u32 s%d, s%d, s%d' % (S_PB, S_PB, S_T1))
    b('s_add_u32 s%d, s%d, 0x%x' % (S_PB, S_PB, WS_PART))
    b('s_mov_b32 s%d, 0' % S_P)
    b('s_mov_b32 s%d, %d' % (S_D, SLOT))
    b('s_mov_b32 s%d, %d' % (S_SLOT, SLOT))
    b('s_lshr_b32 s%d, s%d, 1' % (S_T1, S_QT))
    b('s_lshl_b32 s%d, s%d, 2' % (S_T1, S_T1))
    b('s_add_u32 s%d, s%d, s%d' % (S_T1, S_T1, S_KS))
    flag_off(b, S_SY + 3, F_O, S_T1)
    yield
    for st in range(4):
        for t in b_load(st, S_B1, st): b(t)
    b('s_add_u32 s%d, s%d, 0x1000' % (S_OFFB, S_OFFB))
    b('s_and_b32 s%d, s%d, 0x7fff' % (S_OFFB, S_OFFB))
    b('s_add_u32 s%d, s%d, s%d' % (S_B1, S_BB, S_OFFB))
    for st in range(3):
        for t in b_load(4 + st, S_B1, st): b(t)
    b('s_add_u32 s%d, s%d, 0x1000' % (S_OFFB, S_OFFB))
    b('s_and_b32 s%d, s%d, 0x7fff' % (S_OFFB, S_OFFB))
    b('s_add_u32 s%d, s%d, s%d' % (S_B2, S_BB, S_OFFB))
    b.waitvm('W0')
    b('s_barrier')
    stamp(b, 11)
    for t in a_reads(0, 0): b(t)

    b.loop_begin()
    b.label(name + '_loop')
    sc = Sched()
    for half in range(2):
        tag = 'WA' if half == 0 else 'WB'
        d = dma_w(tag)
        for i in range(4):
            st = 4 * half + i
            base = 16 * st
            for nb in range(8):
                for qq in range(2):
                    dd = vr(V_ACC + (nb * 2 + qq) * 4, 4)
                    sc.mfma(base + 2 * nb + qq, '%s %s, %s, %s, %s' % (MF, dd, vr(V_AF + 32 * (i & 1) + 4 * nb, 4), ar(8 * st + 4 * qq, 4), dd))
            if i == 3:
                if half == 0:
                    sc.add(base, lambda bb: (bb.waitvm('WB', 1), bb('s_barrier')))
                else:
                    sc.add(base, lambda bb: (bb.waitvm('WA', 0), bb('s_barrier')))
                for nb in range(8):
                    sc.add(base + (nb + 1) // 2, 'v_add_u32 v%d, s%d, v%d' % (V_A + nb, S_D, V_A + nb))
            rd = a_reads((i + 1) & 1, (i + 1) & 3)
            for k, t in enumerate(rd):
                if i == 3:
                    sc.add(base + min(15, max(k, (k // 2 + 1) // 2 + 1) if k < 4 else k), t)
                else:
                    sc.add(base + k, t)
            ahead = i + 7
            sreg = S_B1 if ahead < 8 else S_B2
            bl = b_load((st + 7) & 7, sreg, ahead & 3)
            grp = d[i // 2]
            if i % 2 == 0:
                sc.add(base + 1, grp[0][0]); sc.add(base + 2, grp[1][0])
            sc.add(base + 3, bl[0])
            sc.add(base + 6, grp[2 + 2 * (i % 2)][0], tag)
            sc.add(base + 9, bl[1])
            sc.add(base + 12, grp[3 + 2 * (i % 2)][0], tag)
        c0 = 64 * half
        sc.add(c0 + 35, 's_add_u32 s%d, s%d, 1' % (S_P, S_P))
        for k, t in enumerate(advance_a()):
            sc.add(c0 + 36 + k, t)
        sc.add(c0 + 41, 's_cmp_ge_u32 s%d, 6' % S_P)
        sc.add(c0 + 41, 's_cselect_b32 s%d, 0x%x, s%d' % (S_A2, OOB, S_A2))
        sc.add(c0 + 53, 's_and_b32 s%d, s%d, 3' % (S_T1, S_P))
        sc.add(c0 + 54, 's_cmp_eq_u32 s%d, 3' % S_T1)
        sc.add(c0 + 54, 's_cselect_b32 s%d, 0x%x, s%d' % (S_D, (-3 * SLOT) & 0xffffffff, S_SLOT))
        for k, t in enumerate(advance_b()):
            sc.add(c0 + 58 + k // 2, t)
        sc.add(c0 + 60, 's_cmp_ge_u32 s%d, 6' % S_P)
        sc.add(c0 + 60, 's_cselect_b32 s%d, 0x%x, s%d' % (S_B2, OOB, S_B2))
        sc.add(c0 + 61, 's_cmp_ge_u32 s%d, 7' % S_P)
        sc.add(c0 + 61, 's_cselect_b32 s%d, 0x%x, s%d' % (S_B1, OOB, S_B1))
    sc.emit(b, 0, 128)
    b('s_cmp_lt_u32 s%d, 8' % S_P)
    b('s_cbranch_scc1 %s_loop' % name)
    b.loop_end(4)
    stamp(b, 12)
    b('v_lshlrev_b32 v%d, 4, v0' % V_T)
    for qq in range(2):
        b('s_add_u32 s%d, s%d, %d' % (S_T0, S_PB, qq * 16384))
        for v in range(4):
            o = V_AF + 4 * (qq * 4 + v)
            for jj in range(2):
                acc = V_ACC + ((2 * v + jj) * 2 + qq) * 4
                for i in range(2):
                    b('v_cvt_pk_bf16_f32 v%d, v%d, v%d' % (o + 2 * jj + i, acc + 2 * i, acc + 2 * i + 1))
            b('buffer_store_dwordx4 %s, v%d, s[%d:%d], s%d offen offset:%d sc1' % (vr(o, 4), V_T, S_WS, S_WS + 3, S_T0, v * 1024))
    flag_off(b, S_SY, F_PART, S_QT)


def p3b(b, name):
    mk_srd(b, 8, P_X, 2048 * 1024)
    mk_srd(b, 12, P_DBG, 256)
    b('s_lshl_b32 s45, s%d, 6' % S_WAVE)
    b('v_add_u32 v11, s45, v0')
    b('v_and_b32 v1, 7, v0')
    b('v_lshrrev_b32 v2, 3, v11')
    b('v_and_b32 v3, 3, v2')
    b('v_lshrrev_b32 v4, 2, v2')
    b('s_and_b32 s47, s2, 7')
    b('s_lshl_b32 s47, s47, 5')
    b('s_lshr_b32 s48, s2, 3')
    b('s_add_u32 s47, s47, s48')
    b('s_lshr_b32 s16, s47, 1')
    b('s_and_b32 s17, s47, 1')
    b('s_lshl_b32 s17, s17, 3')
    b('v_add_u32 v6, s17, v1')
    b('v_lshlrev_b32 v6, 4, v6')
    b('v_lshlrev_b32 v7, 11, v4')
    b('v_lshlrev_b32 v9, 8, v3')
    b('v_add3_u32 v7, v7, v9, v6')
    b('v_lshlrev_b32 v8, 10, v1')
    b('v_lshlrev_b32 v9, 7, v4')
    b('v_lshlrev_b32 v10, 3, v3')
    b('v_add3_u32 v8, v8, v9, v10')
    b('v_lshlrev_b32 v9, 8, v4')
    b('v_lshlrev_b32 v10, 4, v3')
    b('v_add_u32 v9, v9, v10')
    b('s_lshl_b32 s18, s47, 13')
    b('s_lshl_b32 s19, s16, 14')
    b('s_add_u32 s19, s19, 0x%x' % WS_PART)
    for bb in range(4):
        b('buffer_load_dwordx2 %s, v8, s[8:11], s18 offen offset:%d' % (vr(12 + 2 * bb, 2), 32 * bb))
    b('s_mov_b32 s49, 128')
    await_flag(b, 12, 49, 64)
    GA, SB, CB = 128, 144, 160
    for (reg, row) in ((GA, 2), (SB, 3), (CB, 4)):
        b('s_mov_b32 s45, %d' % (WS_MOD + row * 2048))
        for bb in range(4):
            b('buffer_load_dwordx4 %s, v9, s[%d:%d], s45 offen offset:%d sc1' % (vr(reg + 4 * bb, 4), S_WS, S_WS + 3, 64 * bb))
    b('s_lshr_b32 s50, s47, 4')
    flag_off(b, S_SY + 3, F_PART, 50)
    yield
    P = 64
    for ks in range(4):
        if ks:
            b('s_add_u32 s19, s19, 0x200000')
        for v in range(2):
            b('buffer_load_dwordx4 %s, v7, s[%d:%d], s19 offen offset:%d sc1' % (vr(P + 8 * ks + 4 * v, 4), S_WS, S_WS + 3, v * 1024))
    A = 96
    for ks in range(4):
        for p in range(8):
            src = P + 8 * ks + p
            if ks == 0:
                b('v_lshlrev_b32 v%d, 16, v%d' % (A + 2 * p, src))
                b('v_and_b32 v%d, 0xffff0000, v%d' % (A + 2 * p + 1, src))
            else:
                b('v_lshlrev_b32 v%d, 16, v%d' % (A + 16 + 2 * p, src))
                b('v_and_b32 v%d, 0xffff0000, v%d' % (A + 17 + 2 * p, src))
        if ks:
            for i in range(16):
                b('v_add_f32 v%d, v%d, v%d' % (A + i, A + i, A + 16 + i))
    P = A
    X = 20
    for p in range(8):
        b('v_lshlrev_b32 v%d, 16, v%d' % (X + 2 * p, 12 + p))
        b('v_and_b32 v%d, 0xffff0000, v%d' % (X + 2 * p + 1, 12 + p))
    for i in range(16):
        b('v_fmac_f32 v%d, v%d, v%d' % (X + i, GA + i, P + i))
    for p in range(8):
        b('v_cvt_pk_bf16_f32 v%d, v%d, v%d' % (12 + p, X + 2 * p, X + 2 * p + 1))
    b('s_lshl_b32 s18, s16, 14')
    b('s_add_u32 s46, s18, 0x%x' % WS_X1)
    b('buffer_store_dwordx4 v[12:15], v7, s[%d:%d], s46 offen sc1' % (S_WS, S_WS + 3))
    b('buffer_store_dwordx4 v[16:19], v7, s[%d:%d], s46 offen offset:1024 sc1' % (S_WS, S_WS + 3))
    for p in range(8):
        b('v_lshlrev_b32 v%d, 16, v%d' % (X + 2 * p, 12 + p))
        b('v_and_b32 v%d, 0xffff0000, v%d' % (X + 2 * p + 1, 12 + p))
    layernorm16(b, X, 40, 1, LN_LDS)
    for i in range(16):
        b('v_add_f32 v%d, 1.0, v%d' % (CB + i, CB + i))
    for p in range(8):
        b('v_cvt_pk_bf16_f32 v48, v%d, v%d' % (CB + 2 * p, CB + 2 * p + 1))
        b('v_lshlrev_b32 v%d, 16, v48' % (CB + 2 * p))
        b('v_and_b32 v%d, 0xffff0000, v48' % (CB + 2 * p + 1))
    for i in range(16):
        b('v_fma_f32 v%d, v%d, v%d, v%d' % (X + i, X + i, CB + i, SB + i))
    for p in range(8):
        b('v_cvt_pk_bf16_f32 v%d, v%d, v%d' % (52 + p, X + 2 * p, X + 2 * p + 1))
    b('s_add_u32 s46, s18, 0x%x' % WS_H2)
    b('buffer_store_dwordx4 v[52:55], v7, s[%d:%d], s46 offen sc1' % (S_WS, S_WS + 3))
    b('buffer_store_dwordx4 v[56:59], v7, s[%d:%d], s46 offen offset:1024 sc1' % (S_WS, S_WS + 3))
    flag_off(b, S_SY, F_H2, 50)
```

```python
from mc import *

MF = 'v_mfma_f32_16x16x32_bf16'
WG_ROW = 2752


def p4(b, name):
    S_M = 20
    S_W, S_QT, S_FG, S_T0, S_T1, S_T2 = 24, 25, 26, 27, 28, 29
    S_AB, S_BB, S_HB, S_ROT = 30, 31, 33, 34
    S_P, S_B1, S_B2, S_A3, S_L3, S_D, S_OFFB, S_OFFA, S_SLOT, S_WL = 35, 36, 37, 38, 39, 40, 41, 42, 43, 44
    V_WOFF, V_B, V_A, V_T = 240, 6, 8, 20
    V_AF = 32
    V_ACC = 128
    SLOT, NSLOT = 24576, 6
    CH = 64 * WG_ROW
    OOB = 0x10000000
    b('s_and_b32 s%d, s2, 7' % S_T0)
    b('s_lshr_b32 s%d, s2, 3' % S_T1)
    b('s_and_b32 s%d, s%d, 1' % (S_FG, S_T0))
    b('s_lshl_b32 s%d, s%d, 3' % (S_FG, S_FG))
    b('s_and_b32 s%d, s%d, 7' % (S_T2, S_T1))
    b('s_add_u32 s%d, s%d, s%d' % (S_FG, S_FG, S_T2))
    b('s_lshr_b32 s%d, s%d, 1' % (S_QT, S_T0))
    b('s_mov_b32 s%d, s%d' % (S_W, S_WAVE))
    b('s_lshl_b32 s%d, s%d, 2' % (S_QT, S_QT))
    b('s_lshr_b32 s%d, s%d, 3' % (S_T1, S_T1))
    b('s_add_u32 s%d, s%d, s%d' % (S_QT, S_QT, S_T1))
    b('s_lshl_b32 s%d, s%d, 1' % (S_ROT, S_T1))
    b('s_add_u32 s%d, s%d, s%d' % (S_ROT, S_ROT, S_FG))
    b('s_and_b32 s%d, s%d, 7' % (S_ROT, S_ROT))
    b('s_mov_b32 s%d, 0' % S_ROT)
    T = V_T
    b('s_mov_b32 s%d, 0x15555556' % S_T0)
    b('s_mov_b32 s%d, %d' % (S_T1, WG_ROW))
    for i in range(3):
        b('v_add_u32 v%d, %d, v0' % (T, 64 * i))
        b('v_mul_hi_u32 v%d, v%d, s%d' % (T + 1, T, S_T0))
        b('v_mul_u32_u24 v%d, 12, v%d' % (T + 2, T + 1))
        b('v_sub_u32 v%d, v%d, v%d' % (T + 2, T, T + 2))
        b('v_bfe_u32 v%d, v%d, 2, 1' % (T + 3, T + 1))
        b('v_lshlrev_b32 v%d, 1, v%d' % (T + 3, T + 3))
        b('v_xor_b32 v%d, v%d, v%d' % (T + 2, T + 2, T + 3))
        b('v_lshlrev_b32 v%d, 4, v%d' % (T + 2, T + 2))
        b('v_mul_lo_u32 v%d, v%d, s%d' % (T + 1, T + 1, S_T1))
        b('v_add_u32 v%d, v%d, v%d' % (V_WOFF + i, T + 1, T + 2))
        if i:
            b('v_subrev_u32 v%d, %d, v%d' % (V_WOFF + i, 1024 * i, V_WOFF + i))
    b('s_and_b32 s%d, s%d, 1' % (S_T0, S_W))
    b('s_mul_i32 s%d, s%d, %d' % (S_AB, S_T0, 32 * WG_ROW))
    b('s_mul_i32 s%d, s%d, 192' % (S_T1, S_FG))
    b('s_add_u32 s%d, s%d, s%d' % (S_AB, S_AB, S_T1))
    b('s_mul_i32 s%d, s%d, 6144' % (S_WL, S_W))
    b('s_mul_i32 s%d, s%d, %d' % (S_A3, S_ROT, CH))
    b('s_mov_b32 s%d, s%d' % (S_OFFA, S_A3))
    b('s_add_u32 s%d, s%d, s%d' % (S_A3, S_A3, S_AB))
    b('s_mov_b32 s%d, 0' % S_L3)
    b('s_cmp_ge_u32 s%d, 2' % S_W)
    b('s_cselect_b32 s%d, s%d, s%d' % (S_M, P_WU, P_WG))
    b('s_cselect_b32 s%d, s%d, s%d' % (S_M + 1, P_WU + 1, P_WG + 1))
    b('s_mov_b32 s%d, 0x%x' % (S_M + 2, 512 * WG_ROW))
    b('s_mov_b32 s%d, 0x20000' % (S_M + 3))

    def dma_w(tag):
        out = []
        for half in range(2):
            grp = [('s_add_u32 s%d, s%d, s%d' % (S_T2, S_L3, S_WL), None),
                   ('s_add_u32 m0, s%d, %d' % (S_T2, half * 3072), None),
                   ('s_add_u32 s%d, s%d, %d' % (S_T2, S_A3, half * 16 * WG_ROW), None)]
            for i in range(3):
                grp.append(('buffer_load_dwordx4 v%d, s[%d:%d], s%d offen offset:%d lds' %
                            (V_WOFF + i, S_M, S_M + 3, S_T2, i * 1024), tag))
            out.append(grp)
        return out

    def b_load(ring, sreg, step):
        return ['buffer_load_dwordx4 %s, v%d, s[%d:%d], s%d offen offset:%d sc1' %
                (ar(8 * ring + 4 * qq, 4), V_B + qq, S_WS, S_WS + 3, sreg, step * 1024) for qq in range(2)]

    def a_reads(buf, step):
        return ['ds_read_b64_tr_b16 %s, v%d offset:%d' % (vr(V_AF + 48 * buf + 4 * (mat * 6 + nb) + 2 * jj, 2), V_A + nb, mat * 12288 + step * 6144 + jj * 3072)
                for nb in range(6) for mat in range(2) for jj in range(2)]

    def advance_a():
        return ['s_add_u32 s%d, s%d, %d' % (S_OFFA, S_OFFA, CH), 's_cmp_ge_u32 s%d, %d' % (S_OFFA, 8 * CH),
                's_cselect_b32 s%d, 0, s%d' % (S_OFFA, S_OFFA), 's_add_u32 s%d, s%d, s%d' % (S_A3, S_AB, S_OFFA),
                's_add_u32 s%d, s%d, %d' % (S_L3, S_L3, SLOT), 's_cmp_ge_u32 s%d, %d' % (S_L3, NSLOT * SLOT),
                's_cselect_b32 s%d, 0, s%d' % (S_L3, S_L3)]

    def next_b(reg):
        return ['s_add_u32 s%d, s%d, 0x800' % (S_OFFB, S_OFFB), 's_and_b32 s%d, s%d, 0x3fff' % (S_OFFB, S_OFFB),
                's_add_u32 s%d, s%d, s%d' % (reg, S_BB, S_OFFB)]

    for grp in dma_w('W0'):
        for t, g in grp: b(t, g)
    for t in advance_a(): b(t)
    for grp in dma_w('WO'):
        for t, g in grp: b(t, g, epoch=-1)
    for t in advance_a(): b(t)
    for grp in dma_w('WE'):
        for t, g in grp: b(t, g, epoch=-1)
    for t in advance_a(): b(t)
    yield
    b('v_lshlrev_b32 v%d, 4, v0' % V_B)
    b('v_add_u32 v%d, %d, v%d' % (V_B + 1, 16384, V_B))
    b('s_lshl_b32 s%d, s%d, 3' % (S_T0, S_QT))
    b('s_lshl_b32 s%d, s%d, 1' % (S_T1, S_W))
    b('s_add_u32 s%d, s%d, s%d' % (S_T0, S_T0, S_T1))
    b('s_lshl_b32 s%d, s%d, 14' % (S_BB, S_T0))
    b('s_add_u32 s%d, s%d, 0x%x' % (S_BB, S_BB, WS_H2))
    b('s_mov_b32 s%d, 0' % S_OFFB)
    b('s_mov_b32 s%d, s%d' % (S_B1, S_BB))
    b('v_bfe_u32 v%d, v0, 2, 2' % T)
    b('v_lshrrev_b32 v%d, 4, v0' % (T + 1))
    b('v_lshl_add_u32 v%d, v%d, 2, v%d' % (T + 2, T + 1, T))
    b('v_mul_u32_u24 v%d, 192, v%d' % (T + 2, T + 2))
    b('v_and_b32 v%d, 3, v0' % (T + 3))
    b('v_lshl_add_u32 v%d, v%d, 3, v%d' % (T + 2, T + 3, T + 2))
    b('v_and_b32 v%d, 1, v%d' % (T + 1, T + 1))
    for nb in range(6):
        b('v_xor_b32 v%d, %d, v%d' % (T + 3, nb, T + 1))
        b('v_lshl_add_u32 v%d, v%d, 5, v%d' % (V_A + nb, T + 3, T + 2))
    for i in range(96):
        b('v_mov_b32 v%d, 0' % (V_ACC + i))
    b('s_mul_i32 s%d, s%d, %d' % (S_HB, S_T0, 43 * 1024))
    b('s_mul_i32 s%d, s%d, 3072' % (S_T1, S_FG))
    b('s_add_u32 s%d, s%d, s%d' % (S_HB, S_HB, S_T1))
    b('s_add_u32 s%d, s%d, 0x%x' % (S_HB, S_HB, WS_HH))
    b('s_mov_b32 s%d, 0' % S_P)
    b('s_mov_b32 s%d, %d' % (S_D, SLOT))
    b('s_mov_b32 s%d, %d' % (S_SLOT, SLOT))
    flag_off(b, S_SY + 3, F_H2, S_QT)
    yield
    for st in range(2):
        for t in b_load(st, S_B1, st): b(t)
    for t in next_b(S_B1): b(t)
    for t in b_load(2, S_B1, 0): b(t)
    for t in next_b(S_B2): b(t)
    stamp(b, 16)
    for t in a_reads(0, 0): b(t)

    b.loop_begin()
    b.label(name + '_loop')
    sc = Sched()
    for half in range(2):
        tag = 'WO' if half == 0 else 'WE'
        d = dma_w(tag)
        for i in range(2):
            st = 2 * half + i
            base = 24 * st
            k = 0
            for nb in range(6):
                for mat in range(2):
                    for qq in range(2):
                        dd = vr(V_ACC + ((mat * 6 + nb) * 2 + qq) * 4, 4)
                        sc.mfma(base + k, '%s %s, %s, %s, %s' % (MF, dd, vr(V_AF + 48 * i + 4 * (mat * 6 + nb), 4), ar(8 * st + 4 * qq, 4), dd))
                        k += 1
            rd = a_reads((i + 1) & 1, (i + 1) & 1)
            if i == 1:
                wt = 'WO' if half == 0 else 'WE'
                age = 1
                sc.add(base, lambda bb, wt=wt, half=half: (bb.waitvm(wt, 1), bb('s_barrier')))
                for nb in range(6):
                    sc.add(base + nb // 2, 'v_add_u32 v%d, s%d, v%d' % (V_A + nb, S_D, V_A + nb))
                for k, t in enumerate(rd):
                    sc.add(base + min(23, max(k, 3) if k < 4 else k), t)
            else:
                for k, t in enumerate(rd):
                    sc.add(base + k, t)
            ahead = i + 3
            sreg = S_B1 if ahead < 4 else S_B2
            bl = b_load((st + 3) & 3, sreg, ahead & 1)
            grp = d[i]
            sc.add(base + 1, grp[0][0]); sc.add(base + 2, grp[1][0]); sc.add(base + 3, grp[2][0])
            sc.add(base + 5, bl[0])
            sc.add(base + 8, grp[3][0], tag)
            sc.add(base + 11, bl[1])
            sc.add(base + 14, grp[4][0], tag)
            sc.add(base + 19, grp[5][0], tag)
        c0 = 48 * half
        upd = ['s_add_u32 s%d, s%d, 1' % (S_P, S_P), 's_mov_b32 s%d, s%d' % (S_B1, S_B2)] + next_b(S_B2) + \
              ['s_cmp_ge_u32 s%d, 6' % S_P, 's_cselect_b32 s%d, 0x%x, s%d' % (S_B2, OOB, S_B2),
               's_cmp_ge_u32 s%d, 7' % S_P, 's_cselect_b32 s%d, 0x%x, s%d' % (S_B1, OOB, S_B1)]
        groups = [upd[:2], upd[2:5], upd[5:7], upd[7:9]]
        adv = advance_a()
        groups += [adv[:1] + adv[1:3], adv[3:4], adv[4:7],
                   ['s_cmp_ge_u32 s%d, 5' % S_P, 's_cselect_b32 s%d, 0x%x, s%d' % (S_A3, OOB, S_A3)]]
        for k, grp in enumerate(groups):
            for t in grp: sc.add(c0 + 24 + 12 + k + (3 if k >= 4 else 0) + (1 if k >= 4 else 0), t)
        sc.add(c0 + 47, 's_mul_hi_u32 s%d, s%d, 0x2aaaaaab' % (S_T1, S_P))
        sc.add(c0 + 47, 's_mul_i32 s%d, s%d, 6' % (S_T1, S_T1))
        sc.add(c0 + 47, 's_sub_u32 s%d, s%d, s%d' % (S_T1, S_P, S_T1))
        sc.add(c0 + 47, 's_cmp_eq_u32 s%d, 5' % S_T1)
        sc.add(c0 + 47, 's_cselect_b32 s%d, 0x%x, s%d' % (S_D, (-5 * SLOT) & 0xffffffff, S_SLOT))
    sc.emit(b, 0, 96)
    b('s_cmp_lt_u32 s%d, 8' % S_P)
    b('s_cbranch_scc1 %s_loop' % name)
    b.loop_end(4)
    stamp(b, 17)
    b('v_lshlrev_b32 v%d, 4, v0' % V_T)
    for v in range(3):
        if v == 1:
            b('s_cmp_ge_u32 s%d, 14' % S_FG)
            b('s_cbranch_scc1 %s_stored' % name)
        for qq in range(2):
            t0 = 32 + 8 * (v * 2 + qq)
            for jj in range(2):
                nb = 2 * v + jj
                g = V_ACC + (nb * 2 + qq) * 4
                u = V_ACC + ((6 + nb) * 2 + qq) * 4
                for i in range(4):
                    b('v_mul_f32 v%d, v%d, v%d' % (g + i, g + i, u + i))
                for i in range(2):
                    b('v_cvt_pk_bf16_f32 v%d, v%d, v%d' % (t0 + 2 * jj + i, g + 2 * i, g + 2 * i + 1))
            b('s_add_u32 s%d, s%d, %d' % (S_T0, S_HB, qq * 43 * 1024))
            b('buffer_store_dwordx4 %s, v%d, s[%d:%d], s%d offen offset:%d sc1' % (vr(t0, 4), V_T, S_WS, S_WS + 3, S_T0, v * 1024))
    b.label(name + '_stored')
    flag_off(b, S_SY, F_HH, S_QT)


def p5(b, name):
    S_WD, S_OUT = 8, 16
    S_W, S_QT, S_NT, S_T0, S_T1, S_T2 = 20, 21, 22, 23, 24, 25
    S_A, S_B, S_LB, S_N, S_L, S_D, S_LIM, S_S, S_RING, S_SA = 26, 27, 28, 29, 30, 31, 32, 33, 34, 35
    V_WOFF, V_B, V_A, V_BR, V_T = 2, 4, 8, 12, 16
    V_AF, V_BF = 32, 48
    V_ACC = 64
    STEP, RING = 8192, 4
    NS = 11
    b('s_and_b32 s%d, s2, 7' % S_T0)
    b('s_lshr_b32 s%d, s2, 3' % S_T1)
    b('s_lshr_b32 s%d, s%d, 1' % (S_QT, S_T0))
    b('s_mov_b32 s%d, s%d' % (S_W, S_WAVE))
    b('s_lshl_b32 s%d, s%d, 3' % (S_QT, S_QT))
    b('s_lshr_b32 s%d, s%d, 2' % (S_T2, S_T1))
    b('s_add_u32 s%d, s%d, s%d' % (S_QT, S_QT, S_T2))
    b('s_and_b32 s%d, s%d, 1' % (S_NT, S_T0))
    b('s_lshl_b32 s%d, s%d, 2' % (S_NT, S_NT))
    b('s_and_b32 s%d, s%d, 3' % (S_T1, S_T1))
    b('s_add_u32 s%d, s%d, s%d' % (S_NT, S_NT, S_T1))
    T = V_T
    b('v_lshrrev_b32 v%d, 3, v0' % T)
    b('v_and_b32 v%d, 7, v0' % (T + 1))
    b('v_bfe_u32 v%d, v%d, 1, 2' % (T + 2, T))
    b('v_lshlrev_b32 v%d, 1, v%d' % (T + 2, T + 2))
    b('v_xor_b32 v%d, v%d, v%d' % (T + 1, T + 1, T + 2))
    b('v_lshlrev_b32 v%d, 4, v%d' % (T + 1, T + 1))
    b('v_lshl_add_u32 v%d, v%d, 10, v%d' % (V_WOFF, T, T + 1))
    b('v_lshlrev_b32 v%d, 4, v0' % V_B)
    for qb in range(1, 4):
        b('v_add_u32 v%d, %d, v%d' % (V_B + qb, qb * 43 * 1024, V_B))
    b('s_mul_i32 s%d, s%d, 11' % (S_T0, S_W))
    b('s_lshl_b32 s%d, s%d, 15' % (S_A, S_T0))
    b('s_lshl_b32 s%d, s%d, 7' % (S_T1, S_NT))
    b('s_add_u32 s%d, s%d, s%d' % (S_A, S_A, S_T1))
    b('s_mul_i32 s%d, s%d, %d' % (S_B, S_QT, 4 * 43 * 1024))
    b('s_lshl_b32 s%d, s%d, 10' % (S_T1, S_T0))
    b('s_add_u32 s%d, s%d, s%d' % (S_B, S_B, S_T1))
    b('s_add_u32 s%d, s%d, 0x%x' % (S_B, S_B, WS_HH))
    b('s_lshl_b32 s%d, s%d, 15' % (S_LB, S_W))
    b('s_mov_b32 s%d, s%d' % (S_L, S_LB))
    b('s_cmp_eq_u32 s%d, 3' % S_W)
    b('s_cselect_b32 s%d, 10, 11' % S_LIM)
    b('s_mov_b32 s%d, 0' % S_N)
    mk_srd(b, S_WD, P_WD, 1376 * 1024); mk_srd(b, S_OUT, P_OUT, 2048 * 1024)

    def request():
        ops = []
        for i in range(4):
            ops.append(['s_add_u32 m0, s%d, %d' % (S_L, i * 1024), 's_add_u32 s%d, s%d, %d' % (S_T2, S_A, i * 8192),
                        'buffer_load_dwordx4 v%d, s[%d:%d], s%d offen lds' % (V_WOFF, S_WD, S_WD + 3, S_T2)])
        for qb in range(4):
            ops.append(['s_add_u32 m0, s%d, %d' % (S_L, 4096 + qb * 1024), 's_nop 0',
                        'buffer_load_dwordx4 v%d, s[%d:%d], s%d offen sc1 lds' % (V_B + qb, S_WS, S_WS + 3, S_B)])
        nxt = ['s_add_u32 s%d, s%d, 1' % (S_N, S_N), 's_add_u32 s%d, s%d, 32768' % (S_A, S_A), 's_add_u32 s%d, s%d, 1024' % (S_B, S_B),
               's_cmp_ge_u32 s%d, s%d' % (S_N, S_LIM), 's_cselect_b32 s%d, 0x%x, s%d' % (S_A, OOB, S_A),
               's_cselect_b32 s%d, 0x%x, s%d' % (S_B, OOB, S_B),
               's_add_u32 s%d, s%d, %d' % (S_L, S_L, STEP), 's_and_b32 s%d, s%d, 0x7fff' % (S_L, S_L), 's_add_u32 s%d, s%d, s%d' % (S_L, S_L, S_LB)]
        return ops, nxt

    b('s_mov_b32 s%d, s%d' % (S_SA, S_A))
    for st in range(RING - 1):
        for i in range(4):
            b('s_add_u32 m0, s%d, %d' % (S_LB, st * STEP + i * 1024))
            b('s_add_u32 s%d, s%d, %d' % (S_T2, S_SA, st * 32768 + i * 8192))
            b('buffer_load_dwordx4 v%d, s[%d:%d], s%d offen lds' % (V_WOFF, S_WD, S_WD + 3, S_T2))
    b('v_bfe_u32 v%d, v0, 2, 2' % T)
    b('v_lshrrev_b32 v%d, 4, v0' % (T + 1))
    b('v_lshl_add_u32 v%d, v%d, 2, v%d' % (T + 1, T + 1, T))
    b('v_bfe_u32 v%d, v%d, 1, 2' % (T + 2, T + 1))
    b('v_lshlrev_b32 v%d, 7, v%d' % (T + 1, T + 1))
    b('v_and_b32 v%d, 3, v0' % (T + 3))
    b('v_lshl_add_u32 v%d, v%d, 3, v%d' % (T + 1, T + 3, T + 1))
    for nb in range(4):
        b('v_xor_b32 v%d, %d, v%d' % (T + 3, nb, T + 2))
        b('v_lshlrev_b32 v%d, 5, v%d' % (T + 3, T + 3))
        b('v_add3_u32 v%d, v%d, v%d, s%d' % (V_A + nb, T + 3, T + 1, S_LB))
    b('v_add_u32 v%d, s%d, v%d' % (V_BR, S_LB, V_B))
    for i in range(64):
        b('v_mov_b32 v%d, 0' % (V_ACC + i))
    b('s_mov_b32 s%d, 0' % S_S)
    b('s_mov_b32 s%d, %d' % (S_RING, STEP))
    b('s_mov_b32 s%d, %d' % (S_D, STEP))
    b('s_lshr_b32 s%d, s%d, 1' % (S_T1, S_QT))
    flag_off(b, S_SY + 3, F_HH, S_T1)
    yield
    for st in range(RING - 1):
        for qb in range(4):
            b('s_add_u32 m0, s%d, %d' % (S_LB, st * STEP + 4096 + qb * 1024))
            b('s_add_u32 s%d, s%d, %d' % (S_T2, S_B, st * 1024))
            b('buffer_load_dwordx4 v%d, s[%d:%d], s%d offen sc1 lds' % (V_B + qb, S_WS, S_WS + 3, S_T2))
    b('s_mov_b32 s%d, 3' % S_N)
    b('s_add_u32 s%d, s%d, %d' % (S_A, S_A, 3 * 32768))
    b('s_add_u32 s%d, s%d, %d' % (S_B, S_B, 3 * 1024))
    b('s_add_u32 s%d, s%d, %d' % (S_L, S_LB, 3 * STEP))
    b('s_waitcnt vmcnt(4)')
    stamp(b, 20)

    b.loop_begin()
    b.label(name + '_loop')
    b('s_waitcnt vmcnt(16)')
    for nb in range(4):
        for jj in range(2):
            b('ds_read_b64_tr_b16 %s, v%d offset:%d' % (vr(V_AF + 4 * nb + 2 * jj, 2), V_A + nb, jj * 2048))
        if nb == 0:
            for qb in range(4):
                b('ds_read_b128 %s, v%d offset:%d' % (vr(V_BF + 4 * qb, 4), V_BR, 4096 + qb * 1024))
    ops, nxt = request()
    sc = Sched()
    for nb in range(4):
        for qb in range(4):
            d = vr(V_ACC + (nb * 4 + qb) * 4, 4)
            sc.mfma(4 * nb + qb, '%s %s, %s, %s, %s' % (MF, d, vr(V_AF + 4 * nb, 4), vr(V_BF + 4 * qb, 4), d))
    for grp in ops[:2]:
        for t in grp: b(t)
    for k, grp in enumerate(ops[2:]):
        for t in grp: sc.add(2 * k, t)
    sc.add(12, 's_sub_u32 s%d, s%d, s%d' % (S_L, S_L, S_LB))
    for k, t in enumerate(nxt):
        sc.add(12 + (k // 3 if k < 3 else (1 if k < 6 else 2)), t)
    for nb in range(4):
        sc.add(4 * nb + 3, 'v_add_u32 v%d, s%d, v%d' % (V_A + nb, S_D, V_A + nb))
    sc.add(5, 'v_add_u32 v%d, s%d, v%d' % (V_BR, S_D, V_BR))
    sc.emit(b, 0, 16)
    b('s_add_u32 s%d, s%d, 1' % (S_S, S_S))
    b('s_and_b32 s%d, s%d, 3' % (S_T1, S_S))
    b('s_cmp_eq_u32 s%d, 3' % S_T1)
    b('s_cselect_b32 s%d, 0x%x, s%d' % (S_D, (-3 * STEP) & 0xffffffff, S_RING))
    b('s_cmp_lt_u32 s%d, %d' % (S_S, NS))
    b('s_cbranch_scc1 %s_loop' % name)
    b.loop_end(NS)
    stamp(b, 21)
    X, G = 32, 40
    b('s_lshl_b32 s%d, s%d, 2' % (S_T0, S_QT))
    b('s_add_u32 s%d, s%d, s%d' % (S_T0, S_T0, S_W))
    b('s_lshl_b32 s%d, s%d, 14' % (S_T1, S_T0))
    b('s_lshl_b32 s%d, s%d, 11' % (S_T2, S_NT))
    b('s_add_u32 s%d, s%d, s%d' % (S_T1, S_T1, S_T2))
    b('s_add_u32 s%d, s%d, 0x%x' % (S_T1, S_T1, WS_X1))
    for v in range(2):
        b('buffer_load_dwordx4 %s, v%d, s[%d:%d], s%d offen offset:%d sc1' % (vr(X + 4 * v, 4), V_B, S_WS, S_WS + 3, S_T1, v * 1024))
    b('v_lshrrev_b32 v%d, 4, v0' % T)
    b('v_lshlrev_b32 v%d, 4, v%d' % (T, T))
    b('s_lshl_b32 s%d, s%d, 8' % (S_T2, S_NT))
    b('s_add_u32 s%d, s%d, %d' % (S_T2, S_T2, WS_MOD + 5 * 2048))
    for nb in range(4):
        b('buffer_load_dwordx4 %s, v%d, s[%d:%d], s%d offen offset:%d sc1' % (vr(G + 4 * nb, 4), T, S_WS, S_WS + 3, S_T2, nb * 64))
    b('s_waitcnt vmcnt(6)')
    b('s_barrier')
    b('s_lshl_b32 s%d, s%d, 12' % (S_T1, S_W))
    b('v_add_u32 v%d, s%d, v%d' % (T + 1, S_T1, V_B))
    for qb in range(4):
        for nb in range(4):
            b('ds_write_b128 v%d, %s offset:%d' % (T + 1, vr(V_ACC + (nb * 4 + qb) * 4, 4), qb * 16384 + nb * 1024))
    b('s_waitcnt lgkmcnt(0)')
    b('s_barrier')
    b('s_lshl_b32 s%d, s%d, 14' % (S_T1, S_W))
    b('v_add_u32 v%d, s%d, v%d' % (T + 1, S_T1, V_B))
    R = 128
    for w in range(4):
        for nb in range(4):
            b('ds_read_b128 %s, v%d offset:%d' % (vr(R + 16 * w + 4 * nb, 4), T + 1, w * 4096 + nb * 1024))
    for i in range(16):
        b('v_add_f32 v%d, v%d, v%d' % (R + i, R + i, R + 16 + i))
        b('v_add_f32 v%d, v%d, v%d' % (R + 32 + i, R + 32 + i, R + 48 + i))
    for i in range(16):
        b('v_add_f32 v%d, v%d, v%d' % (R + i, R + i, R + 32 + i))
    Y = 96
    for p in range(8):
        b('v_lshlrev_b32 v%d, 16, v%d' % (Y + 2 * p, X + p))
        b('v_and_b32 v%d, 0xffff0000, v%d' % (Y + 2 * p + 1, X + p))
    for i in range(16):
        b('v_fmac_f32 v%d, v%d, v%d' % (Y + i, G + i, R + i))
    O = 112
    for p in range(8):
        b('v_cvt_pk_bf16_f32 v%d, v%d, v%d' % (O + p, Y + 2 * p, Y + 2 * p + 1))
    for v in range(2):
        b('v_permlane16_swap_b32 v%d, v%d' % (O + 4 * v, O + 4 * v + 2))
        b('v_permlane16_swap_b32 v%d, v%d' % (O + 4 * v + 1, O + 4 * v + 3))
    b('v_and_b32 v%d, 15, v0' % T)
    b('v_lshlrev_b32 v%d, 10, v%d' % (T, T))
    b('v_bfe_u32 v%d, v0, 4, 1' % (T + 1))
    b('v_lshlrev_b32 v%d, 5, v%d' % (T + 1, T + 1))
    b('v_lshrrev_b32 v%d, 5, v0' % (T + 2))
    b('v_lshlrev_b32 v%d, 4, v%d' % (T + 2, T + 2))
    b('v_add3_u32 v%d, v%d, v%d, v%d' % (T, T, T + 1, T + 2))
    b('s_lshl_b32 s%d, s%d, 14' % (S_T1, S_T0))
    b('s_lshl_b32 s%d, s%d, 7' % (S_T2, S_NT))
    b('s_add_u32 s%d, s%d, s%d' % (S_T1, S_T1, S_T2))
    for v in range(2):
        b('buffer_store_dwordx4 %s, v%d, s[%d:%d], s%d offen offset:%d' % (vr(O + 4 * v, 4), T, S_OUT, S_OUT + 3, S_T1, v * 64))
```

```python
import sys
from mc import *
import front, p2, p3, p45


def build_kernel(name):
    b = Block()
    b('s_cmp_ge_u32 s2, 256')
    b('s_cbranch_scc1 %s_end' % name)
    b('s_load_dwordx16 s[64:79], s[0:1], 0')
    b('s_load_dwordx8 s[80:87], s[0:1], 64')
    b('s_load_dwordx4 s[88:91], s[0:1], 96')
    b('v_lshrrev_b32 v1, 6, v0')
    b('v_and_b32 v0, 63, v0')
    b('s_nop 0')
    b('v_readfirstlane_b32 s%d, v1' % S_WAVE)
    b('s_waitcnt lgkmcnt(0)')
    mk_srd(b, S_WS, P_WSP, WS_BYTES)
    if STAMPS:
        b('s_lshl_b32 s96, s2, 2')
        b('s_add_u32 s96, s96, s%d' % S_WAVE)
        b('s_lshl_b32 s96, s96, 8')
        b('s_add_u32 s96, s96, 0x%x' % WS_STAMP)
    stamp(b, 0)
    front.front(b)
    b('s_lshr_b32 s%d, s2, 5' % S_SY)
    flag_off(b, S_SY, F_H, S_SY)
    signal(b, S_WS, S_SY)
    stamp(b, 3)
    p2.pre(b)
    p2.flag_index(b, S_SY + 3)
    await_flag(b, S_WS, S_SY + 3, 32)
    stamp(b, 4)
    p2.main(b, name)
    p2.out_flag(b, S_SY)
    stamp(b, 9)
    g3 = p3.p3(b, name + '_p3')
    next(g3)
    signal(b, S_WS, S_SY)
    await_flag(b, S_WS, S_SY + 3, 8)
    stamp(b, 10)
    for _ in g3: pass
    g4 = p45.p4(b, name + '_p4')
    b('s_barrier')
    next(g4)
    signal(b, S_WS, S_SY)
    stamp(b, 13)
    g3b = p3.p3b(b, name + '_p3b')
    next(g3b)
    await_flag(b, S_WS, S_SY + 3, 16)
    stamp(b, 14)
    for _ in g3b: pass
    next(g4)
    signal(b, S_WS, S_SY)
    stamp(b, 15)
    b('s_cmp_ge_u32 s26, 15')
    b('s_cbranch_scc1 %s_p4_idle' % name)
    await_flag(b, S_WS, S_SY + 3, 16)
    for _ in g4: pass
    b('s_barrier')
    g5 = p45.p5(b, name + '_p5')
    items_before = len(b.items)
    next(g5)
    signal(b, S_WS, S_SY)
    b('s_branch %s_p5_wait' % name)
    b.label(name + '_p4_idle')
    g5b = p45.p5(b, name + '_p5x')
    next(g5b)
    b('s_waitcnt vmcnt(0)')
    b.label(name + '_p5_wait')
    stamp(b, 18)
    await_flag(b, S_WS, S_SY + 3, 15)
    stamp(b, 19)
    for _ in g5: pass
    stamp(b, 22)
    b('s_endpgm')
    p2.fallback(b, name)
    b.label(name + '_end')
    b('s_endpgm')
    return b


def build(path, verbose=False):
    name = KNAME + '_kernel'
    head = open('cdna_kernels/' + KNAME + '.s.ref').read().split('; Override launch geometry')[0]
    b = build_kernel(name)
    log = []
    text = finalize(b, log)
    if verbose:
        print('%d lines, %d nop insertions' % (text.count('\n'), len(log)))
        for l in log:
            if 'permlane' not in l and 'lds"' not in l: print('   ', l)
    form = os.environ.get('FORM', 'single')
    if form == 'single':
        launch = '; @launch grid=(256,1,1) block=(256,1,1) lds=163840'
    else:
        launch = '; @launch kernel=%s grid=(256,1,1) block=(256,1,1) lds=163840' % name
    out = [head.rstrip(), launch, '.amdgcn_target "amdgcn-amd-amdhsa--gfx950"', '.text', kernel_header(name) + text,
           '.section .rodata,"a"', kernel_descriptor(name, 256, 256)]
    open(path, 'w').write('\n'.join(out))


if __name__ == '__main__':
    build(sys.argv[1] if len(sys.argv) > 1 else 'mega.s', verbose=True)
```

```python
from mc import *

LN_LDS = 163840 - 512
MF = 'v_mfma_f32_16x16x32_bf16'


def front(b, name):
    S_C, S_WM, S_X = 8, 12, 16
    S_T0, S_T1 = 24, 25
    mk_srd(b, S_DBGS, P_DBG, 256)
    b('s_lshl_b32 s%d, s%d, 6' % (S_T0, S_WAVE))
    b('v_add_u32 v3, s%d, v0' % S_T0)
    l0 = uid('notp0')
    b('s_cmp_ge_u32 s2, 96')
    b('s_cbranch_scc1 %s' % l0)
    mk_srd(b, S_C, P_C, 1024)
    mk_srd(b, S_WM, P_WMOD, 512 * 6144)
    b('v_lshlrev_b32 v80, 2, v0')
    b('s_lshl_b32 s26, s%d, 8' % S_WAVE)
    b('buffer_load_dword v84, v80, s[%d:%d], s26 offen' % (S_C, S_C + 3))
    b('v_lshrrev_b32 v81, 2, v0')
    b('v_mul_u32_u24 v81, 6144, v81')
    b('v_and_b32 v82, 3, v0')
    b('v_lshl_add_u32 v81, v82, 4, v81')
    b('s_mul_i32 s27, s%d, %d' % (S_WAVE, 128 * 6144))
    b('s_lshl_b32 s28, s2, 6')
    b('s_add_u32 s27, s27, s28')
    b('s_lshl_b32 s28, s%d, 13' % S_WAVE)
    for i in range(8):
        b('s_add_u32 m0, s28, %d' % (i * 1024))
        b('s_add_u32 s29, s27, %d' % (i * 16 * 6144))
        b('buffer_load_dwordx4 v81, s[%d:%d], s29 offen lds' % (S_WM, S_WM + 3), 'P0W')
    lx = uid('p0req')
    b('s_branch %s' % lx)
    b.label(l0)
    mk_srd(b, 28, P_WQ, 512 * 8192)
    b('v_lshrrev_b32 v72, 4, v0')
    b('v_lshlrev_b32 v72, 13, v72')
    b('v_and_b32 v73, 15, v0')
    b('v_lshl_add_u32 v72, v73, 7, v72')
    b('s_lshr_b32 s32, s2, 3')
    b('s_sub_u32 s32, s32, 12')
    b('s_lshl_b32 s32, s32, 2')
    b('s_add_u32 s32, s32, s%d' % S_WAVE)
    b('s_lshl_b32 s32, s32, 16')
    b('s_bfe_u32 s33, s2, 0x20001')
    b('s_lshl_b32 s33, s33, 11')
    b('s_add_u32 s32, s32, s33')
    b('s_add_u32 s33, s32, 32768')
    if 'nowqpf' not in OPT:
        b('buffer_load_dword v250, v72, s[28:31], s32 offen', 'pf')
        b('buffer_load_dword v250, v72, s[28:31], s33 offen', 'pf')
    b.label(lx)
    l1 = uid('notclr')
    b('s_cmp_lg_u32 s2, 255')
    b('s_cbranch_scc1 %s' % l1)
    b('v_lshlrev_b32 v80, 4, v3')
    for i in range(4):
        b('v_mov_b32 v%d, -1' % (84 + i))
    for i in range(3):
        b('s_mov_b32 s26, %d' % (WS_MOD + i * 4096))
        b('buffer_store_dwordx4 v[84:87], v80, s[%d:%d], s26 offen sc1' % (S_WS, S_WS + 3))
    b('v_lshlrev_b32 v80, 7, v3')
    b('v_mov_b32 v88, 0')
    b('v_cmp_gt_u32 vcc, %d, v3' % F_COUNT)
    b('s_and_saveexec_b64 s[34:35], vcc')
    b('s_mov_b32 s26, 0x%x' % WS_FLAG)
    b('buffer_store_dword v88, v80, s[%d:%d], s26 offen sc1' % (S_WS, S_WS + 3))
    b('s_mov_b64 exec, s[34:35]')
    b('s_waitcnt vmcnt(0)')
    b('s_barrier')
    raw(b, '''s_cmp_lg_u32 s%d, 0
    s_cbranch_scc1 %s
    v_mov_b32 v88, 1
    buffer_store_dword v88, off, s[%d:%d], 0 sc1''' % (S_WAVE, l1, S_DBGS, S_DBGS + 3))
    b.label(l1)
    mk_srd(b, S_X, P_X, 2048 * 1024)
    b('v_and_b32 v1, 7, v0')
    b('v_lshrrev_b32 v2, 3, v3')
    b('v_lshlrev_b32 v4, 10, v1')
    b('v_lshrrev_b32 v5, 1, v2')
    b('v_lshl_add_u32 v4, v5, 6, v4')
    b('v_and_b32 v6, 1, v2')
    b('v_lshl_add_u32 v4, v6, 3, v4')
    b('s_lshl_b32 s36, s2, 13')
    for j in range(4):
        b('buffer_load_dwordx2 v[%d:%d], v4, s[%d:%d], s36 offen offset:%d' % (8 + 2 * j, 9 + 2 * j, S_X, S_X + 3, 16 * j))
    b('v_lshlrev_b32 v7, 7, v5')
    b('v_lshl_add_u32 v7, v6, 4, v7')
    b('v_lshlrev_b32 v74, 11, v5')
    b('v_lshl_add_u32 v74, v6, 9, v74')
    b('s_and_b32 s%d, s2, 3' % S_T0)
    b('s_lshl_b32 s%d, s%d, 3' % (S_T0, S_T0))
    b('v_add_u32 v6, s%d, v1' % S_T0)
    b('v_lshl_add_u32 v6, v6, 4, v74')
    l2, l2a = uid('p0done'), uid('nop0')
    b('s_cmp_ge_u32 s2, 96')
    b('s_cbranch_scc1 %s' % l2a)
    b('s_waitcnt vmcnt(12)')
    if 'fst' in OPT: raw_stamp(b, 24)
    b('v_lshlrev_b32 v64, 16, v84')
    b('v_and_b32 v65, 0xffff0000, v84')
    for i in range(2):
        b('v_mul_f32 v%d, %s, v%d' % (66 + i, f32(-LOG2E), 64 + i))
    for i in range(2):
        b('v_exp_f32 v%d, v%d' % (66 + i, 66 + i))
    for i in range(2):
        b('v_add_f32 v%d, 1.0, v%d' % (66 + i, 66 + i))
    for i in range(2):
        b('v_rcp_f32 v%d, v%d' % (66 + i, 66 + i))
    for i in range(2):
        b('v_mul_f32 v%d, v%d, v%d' % (64 + i, 64 + i, 66 + i))
    b('v_cvt_pk_bf16_f32 v64, v64, v65')
    b('s_lshl_b32 s26, s%d, 8' % S_WAVE)
    b('s_add_u32 s26, s26, 32768')
    b('v_lshl_add_u32 v65, v0, 2, s26')
    b('ds_write_b32 v65, v64')
    b('v_lshrrev_b32 v66, 4, v0')
    b('v_lshl_add_u32 v67, v66, 4, s26')
    b('v_bfe_u32 v68, v0, 2, 2')
    b('v_lshl_add_u32 v68, v66, 3, v68')
    b('v_lshlrev_b32 v68, 6, v68')
    b('v_and_b32 v69, 3, v0')
    b('v_lshl_add_u32 v68, v69, 3, v68')
    b('s_lshl_b32 s27, s%d, 13' % S_WAVE)
    b('v_add_u32 v68, s27, v68')
    b('s_waitcnt lgkmcnt(0)')
    for u in range(4):
        b('ds_read_b128 v[%d:%d], v67 offset:%d' % (96 + 4 * u, 99 + 4 * u, 64 * u))
    b('s_waitcnt vmcnt(4)' if 'fst' not in OPT else 's_waitcnt vmcnt(5)')
    if 'fst' in OPT: raw_stamp(b, 25)
    for u in range(4):
        for nb in range(2):
            for jj in range(2):
                r = 112 + 8 * u + 4 * nb + 2 * jj
                b('ds_read_b64_tr_b16 v[%d:%d], v68 offset:%d' % (r, r + 1, u * 2048 + jj * 256 + nb * 32))
    for u in range(4):
        for nb in range(2):
            r = 112 + 8 * u + 4 * nb
            d = 'v[%d:%d]' % (144 + 4 * nb, 147 + 4 * nb)
            b('%s %s, v[%d:%d], v[%d:%d], %s' % (MF, d, r, r + 3, 96 + 4 * u, 99 + 4 * u, '0' if u == 0 else d))
    b('s_lshl_b32 s26, s%d, 7' % S_WAVE)
    b('s_add_u32 s26, s26, 34816')
    b('v_lshl_add_u32 v69, v66, 4, s26')
    b('ds_write_b128 v69, v[144:147]')
    b('ds_write_b128 v69, v[148:151] offset:64')
    b('s_waitcnt lgkmcnt(0)')
    b('s_barrier')
    b('v_and_b32 v70, 31, v0')
    b('v_lshlrev_b32 v70, 2, v70')
    for w in range(4):
        b('ds_read_b32 v%d, v70 offset:%d' % (96 + w, 34816 + 128 * w))
    b('v_add_f32 v96, v96, v97')
    b('v_add_f32 v98, v98, v99')
    b('v_add_f32 v96, v96, v98')
    b('v_cvt_pk_bf16_f32 v96, v96, v96')
    b('v_and_b32 v96, 0xffff0000, v96')
    if 'fst' in OPT: raw_stamp(b, 26)
    await_ready(b)
    if 'fst' in OPT: raw_stamp(b, 27)
    b('s_lshl_b32 s27, s2, 7')
    raw(b, '''s_cmp_lg_u32 s%d, 0
    s_cbranch_scc1 %s
    s_mov_b32 exec_hi, 0
    buffer_store_dword v96, v70, s[%d:%d], s27 offen offset:%d sc1
    s_mov_b32 exec_hi, -1''' % (S_WAVE, l2, S_WS, S_WS + 3, WS_MOD))
    b('s_branch %s' % l2)
    b.label(l2a)
    b('s_waitcnt vmcnt(0)')
    b.label(l2)
    stamp(b, 1)
    if 'nokvpf' not in OPT:
        lk = uid('kvpf')
        b('s_cmp_lt_u32 s2, 96')
        b('s_cbranch_scc1 %s' % lk)
        b('s_cmp_ge_u32 s%d, 2' % S_WAVE)
        b('s_cselect_b32 s28, s%d, s%d' % (P_V, P_K))
        b('s_cselect_b32 s29, s%d, s%d' % (P_V + 1, P_K + 1))
        b('s_mov_b32 s30, 0x%x' % (32 * 2048 * 256))
        b('s_mov_b32 s31, 0x20000')
        b('s_lshr_b32 s32, s2, 3')
        b('s_sub_u32 s32, s32, 12')
        b('s_lshr_b32 s33, s32, 1')
        b('s_bfe_u32 s34, s2, 0x20001')
        b('s_lshl_b32 s34, s34, 3')
        b('s_add_u32 s34, s34, s33')
        b('s_lshl_b32 s34, s34, 19')
        b('s_add_u32 s34, s34, %d' % (1536 * 256))
        b('s_and_b32 s35, s32, 1')
        b('s_lshl_b32 s35, s35, 14')
        b('s_add_u32 s34, s34, s35')
        b('s_and_b32 s35, s%d, 1' % S_WAVE)
        b('s_lshl_b32 s35, s35, 13')
        b('s_add_u32 s34, s34, s35')
        b('s_cmp_ge_u32 s33, 8')
        b('s_cselect_b32 s34, 0x%x, s34' % OOB)
        b('v_lshlrev_b32 v72, 7, v0')
        raw(b, 'buffer_load_dword v250, v72, s[28:31], s34 offen')
        b.label(lk)
    X = 16
    for p in range(8):
        b('v_lshlrev_b32 v%d, 16, v%d' % (X + 2 * p, 8 + p))
        b('v_and_b32 v%d, 0xffff0000, v%d' % (X + 2 * p + 1, 8 + p))
    layernorm16(b, X, 32, 1, LN_LDS)
    if 'fst' in OPT: raw_stamp(b, 28)
    await_ready(b)
    if 'fst' in OPT: raw_stamp(b, 29)
    loads = []
    for j in range(4):
        loads.append('buffer_load_dwordx4 v[%d:%d], v7, s[%d:%d], 0 offen offset:%d sc1' % (48 + 4 * j, 51 + 4 * j, S_WS, S_WS + 3, WS_MOD + 32 * j))
        loads.append('buffer_load_dwordx4 v[%d:%d], v7, s[%d:%d], 0 offen offset:%d sc1' % (64 + 4 * j, 67 + 4 * j, S_WS, S_WS + 3, WS_MOD + 2048 + 32 * j))
    load_mod(b, loads, list(range(48, 80)), 40)
    stamp(b, 2)
    for i in range(16):
        b('v_add_f32 v%d, 1.0, v%d' % (64 + i, 64 + i))
    for p in range(8):
        b('v_cvt_pk_bf16_f32 v40, v%d, v%d' % (64 + 2 * p, 65 + 2 * p))
        b('v_lshlrev_b32 v%d, 16, v40' % (64 + 2 * p))
        b('v_and_b32 v%d, 0xffff0000, v40' % (65 + 2 * p))
    for i in range(16):
        b('v_fma_f32 v%d, v%d, v%d, v%d' % (X + i, X + i, 64 + i, 48 + i))
        b('v_mul_f32 v%d, %s, v%d' % (X + i, f32(QSCALE), X + i))
    for p in range(8):
        b('v_cvt_pk_bf16_f32 v%d, v%d, v%d' % (8 + p, X + 2 * p, X + 2 * p + 1))
    b('s_lshr_b32 s%d, s2, 2' % S_T0)
    b('s_lshl_b32 s%d, s%d, 15' % (S_T0, S_T0))
    b('s_add_u32 s%d, s%d, 0x%x' % (S_T0, S_T0, WS_H))
    b('buffer_store_dwordx4 v[8:11], v6, s[%d:%d], s%d offen sc1' % (S_WS, S_WS + 3, S_T0))
    b('buffer_store_dwordx4 v[12:15], v6, s[%d:%d], s%d offen offset:1024 sc1' % (S_WS, S_WS + 3, S_T0))
```

```python
import os, struct
from asm import *

KNAME = 'adaLN_cond__sliding_block_cached__glu_gated_bilinear__prompt'
STAMPS = bool(os.environ.get('STAMPS'))
OPT = set(os.environ.get('OPT', '').split(','))

WS_MOD = 0x0
WS_FLAG = 0x10000
WS_H = 0x100000
WS_O = 0x400000
WS_PART = 0x1400000
WS_X1 = 0x2400000
WS_H2 = 0x2600000
WS_HH = 0x2800000
WS_STAMP = 0x9000000
WS_BYTES = 0x10000000
OOB = 0x10000000

F_H, F_O, F_PART, F_H2, F_HH, F_COUNT = 0, 8, 40, 56, 72, 88

LOG2E = 1.4426950408889634
QSCALE = LOG2E / (128.0 ** 0.5)

S_WAVE = 3
S_WS = 4
S_DBGS = 56
S_SY = 60
P_X, P_K, P_V, P_WQ, P_WO, P_BX, P_WG, P_WU = 64, 66, 68, 70, 72, 74, 76, 78
P_WD, P_C, P_WMOD, P_OUT, P_DBG, P_WSP = 80, 82, 84, 86, 88, 90
V_SY = 255
SPIN_LIMIT = 100000


def f32(x):
    return '0x%08x' % struct.unpack('<I', struct.pack('<f', x))[0]


def vr(base, n=1):
    return 'v%d' % base if n == 1 else 'v[%d:%d]' % (base, base + n - 1)


def ar(base, n=1):
    return 'a%d' % base if n == 1 else 'a[%d:%d]' % (base, base + n - 1)


def mk_srd(b, dst, ptr, nbytes, off=None):
    if off is None:
        b('s_mov_b32 s%d, s%d' % (dst, ptr))
        b('s_mov_b32 s%d, s%d' % (dst + 1, ptr + 1))
    else:
        b('s_add_u32 s%d, s%d, s%d' % (dst, ptr, off))
        b('s_addc_u32 s%d, s%d, 0' % (dst + 1, ptr + 1))
    if nbytes is not None:
        b('s_mov_b32 s%d, 0x%x' % (dst + 2, nbytes))
    b('s_mov_b32 s%d, 0x20000' % (dst + 3))


def raw(b, text):
    for l in text.strip().split('\n'):
        l = l.strip()
        if l:
            b.add(Raw(l if l.endswith(':') else '  ' + l))


_uid = [0]


def uid(p):
    _uid[0] += 1
    return 'L%s%d' % (p, _uid[0])


def signal(b, srd, soff):
    b('s_waitcnt vmcnt(0)')
    b('s_barrier')
    l = uid('sig')
    raw(b, '''s_cmp_lg_u32 s%d, 0
    s_cbranch_scc1 %s
    s_mov_b64 exec, 1
    v_mov_b32 v%d, 1
    buffer_atomic_add v%d, off, s[%d:%d], s%d
    s_mov_b64 exec, -1
    %s:''' % (S_WAVE, l, V_SY, V_SY, srd, srd + 3, soff, l))


def await_flag(b, srd, soff, target):
    l, d = uid('poll'), uid('got')
    raw(b, '''s_cmp_lg_u32 s%d, 0
    s_cbranch_scc1 %s
    s_mov_b32 s%d, %d
    %s:
    buffer_load_dword v%d, off, s[%d:%d], s%d sc1
    s_waitcnt vmcnt(0)
    v_readfirstlane_b32 s%d, v%d
    s_nop 3
    s_cmp_ge_u32 s%d, %d
    s_cbranch_scc1 %s
    s_sub_u32 s%d, s%d, 1
    s_cmp_lg_u32 s%d, 0
    s_cbranch_scc1 %s
    %s:''' % (S_WAVE, d, S_SY + 1, SPIN_LIMIT, l, V_SY, srd, srd + 3, soff, S_SY + 2, V_SY, S_SY + 2, target, d,
              S_SY + 1, S_SY + 1, S_SY + 1, l, d))
    b('s_barrier')


def flag_off(b, dst, first, idx_sgpr):
    b('s_lshl_b32 s%d, s%d, 7' % (dst, idx_sgpr))
    b('s_add_u32 s%d, s%d, 0x%x' % (dst, dst, WS_FLAG + first * 128))


def stamp(b, i):
    if STAMPS:
        b('s_memrealtime s[92:93]')
        b('s_memtime s[94:95]')
        b('s_waitcnt lgkmcnt(0)')
        b('v_mov_b32 v252, s92')
        b('v_mov_b32 v253, s94')
        b('buffer_store_dwordx2 v[252:253], off, s[%d:%d], s96 offset:%d' % (S_WS, S_WS + 3, 8 * i))


class Sched:
    def __init__(self):
        self.m = {}
        self.f = {}

    def mfma(self, slot, text):
        assert slot not in self.m
        self.m[slot] = text

    def add(self, slot, item, tag=None):
        self.f.setdefault(slot, []).append((item, tag))

    def emit(self, b, lo, hi, valu_last=False):
        for s in range(lo, hi):
            if s in self.m:
                b(self.m[s])
            items = self.f.get(s, [])
            if valu_last:
                isv = lambda it: isinstance(it[0], str) and it[0].startswith('v_')
                items = [x for x in items if not isv(x)] + [x for x in items if isv(x)]
            for item, tag in items:
                if callable(item):
                    item(b)
                else:
                    b(item, tag)


def xor16_32_add(b, x, tmp):
    b('v_mov_b32 v%d, v%d' % (tmp, x))
    b('v_permlane16_swap_b32 v%d, v%d' % (x, tmp))
    b('v_add_f32 v%d, v%d, v%d' % (x, x, tmp))
    b('v_mov_b32 v%d, v%d' % (tmp, x))
    b('v_permlane32_swap_b32 v%d, v%d' % (x, tmp))
    b('v_add_f32 v%d, v%d, v%d' % (x, x, tmp))


def row_reduce(b, x, tmp, lds_off, wave_v, r_v):
    b('v_add_f32_dpp v%d, v%d, v%d row_ror:8 row_mask:0xf bank_mask:0xf' % (tmp, x, x))
    b('v_mov_b32 v%d, v%d' % (x, tmp))
    xor16_32_add(b, x, tmp)
    b('ds_write_b32 v%d, v%d offset:%d' % (wave_v, x, lds_off))
    b('s_waitcnt lgkmcnt(0)')
    b('s_barrier')
    b('ds_read_b128 v[%d:%d], v%d offset:%d' % (tmp, tmp + 3, r_v, lds_off))
    b('v_add_f32 v%d, v%d, v%d' % (tmp, tmp, tmp + 1))
    b('v_add_f32 v%d, v%d, v%d' % (tmp + 2, tmp + 2, tmp + 3))
    b('v_add_f32 v%d, v%d, v%d' % (x, tmp, tmp + 2))


def layernorm16(b, X, T, r8, lds_base, scale=None):
    b('v_lshlrev_b32 v%d, 4, v%d' % (T + 7, r8))
    b('v_add_u32 v%d, %d, v%d' % (T + 7, lds_base, T + 7))
    b('s_lshl_b32 s%d, s%d, 2' % (S_SY + 3, S_WAVE))
    b('v_add_u32 v%d, s%d, v%d' % (T + 6, S_SY + 3, T + 7))
    S = T + 4
    b('v_add_f32 v%d, v%d, v%d' % (S, X, X + 1))
    for i in range(2, 16):
        b('v_add_f32 v%d, v%d, v%d' % (S, S, X + i))
    row_reduce(b, S, T, 0, T + 6, T + 7)
    b('v_mul_f32 v%d, %s, v%d' % (S, f32(1.0 / 512), S))
    for i in range(16):
        b('v_sub_f32 v%d, v%d, v%d' % (X + i, X + i, S))
    b('v_mul_f32 v%d, v%d, v%d' % (S, X, X))
    for i in range(1, 16):
        b('v_fmac_f32 v%d, v%d, v%d' % (S, X + i, X + i))
    row_reduce(b, S, T, 128, T + 6, T + 7)
    b('v_mov_b32 v%d, %s' % (T, f32(1e-5)))
    b('v_fmac_f32 v%d, %s, v%d' % (T, f32(1.0 / 512), S))
    b('v_rsq_f32 v%d, v%d' % (T, T))
    if scale is not None:
        b('v_mul_f32 v%d, %s, v%d' % (T, f32(scale), T))
    for i in range(16):
        b('v_mul_f32 v%d, v%d, v%d' % (X + i, X + i, T))


def await_ready(b):
    l, d = uid('rdy'), uid('rdyok')
    raw(b, '''s_mov_b32 s%d, %d
    %s:
    buffer_load_dword v%d, off, s[%d:%d], 0 sc1
    s_waitcnt vmcnt(0)
    v_readfirstlane_b32 s%d, v%d
    s_nop 3
    s_cmp_lg_u32 s%d, 0
    s_cbranch_scc1 %s
    s_sub_u32 s%d, s%d, 1
    s_cmp_lg_u32 s%d, 0
    s_cbranch_scc1 %s
    %s:''' % (S_SY + 1, SPIN_LIMIT, l, V_SY, S_DBGS, S_DBGS + 3, S_SY + 2, V_SY, S_SY + 2, d, S_SY + 1, S_SY + 1, S_SY + 1, l, d))


def load_mod(b, loads, regs, tmp):
    l, d = uid('mod'), uid('modok')
    lines = ['s_mov_b32 s%d, %d' % (S_SY + 1, SPIN_LIMIT), l + ':'] + loads + ['s_waitcnt vmcnt(0)']
    lines.append('v_max3_u32 v%d, v%d, v%d, v%d' % (tmp, regs[0], regs[1], regs[2]))
    rest = regs[3:]
    while len(rest) >= 2:
        lines.append('v_max3_u32 v%d, v%d, v%d, v%d' % (tmp, tmp, rest[0], rest[1]))
        rest = rest[2:]
    if rest:
        lines.append('v_max_u32 v%d, v%d, v%d' % (tmp, tmp, rest[0]))
    lines += ['v_cmp_eq_u32 vcc, -1, v%d' % tmp, 's_nop 4', 's_cmp_eq_u64 vcc, 0', 's_cbranch_scc1 ' + d,
              's_sub_u32 s%d, s%d, 1' % (S_SY + 1, S_SY + 1), 's_cmp_lg_u32 s%d, 0' % (S_SY + 1), 's_cbranch_scc1 ' + l, d + ':']
    raw(b, '\n'.join(lines))


def raw_stamp(b, i):
    raw(b, '''s_memrealtime s[92:93]
    s_memtime s[94:95]
    s_waitcnt lgkmcnt(0)
    v_mov_b32 v252, s92
    v_mov_b32 v253, s94
    buffer_store_dwordx2 v[252:253], off, s[%d:%d], s96 offset:%d''' % (S_WS, S_WS + 3, 8 * i))
```

```python
from mc import *

PF = True

S_WQ, S_K, S_V = 8, 12, 16
S_HEAD, S_QT, S_W, S_ROT = 24, 25, 26, 27
S_W8K, S_W4K = 28, 29
S_WB = 32
S_HB = 36
S_T0, S_T1, S_T2 = 40, 41, 42
S_OB = 43
S_MODE = 44
S_KVB = 45
S_KROT = 47
S_CH = 46
S_WO, S_WG, S_WU, S_WD = 20, 48, 52, 56
S_PFO = 30

V_WOFF = 2
V_KOFF = 6
V_VOFF = 10
V_H = 11
V_WA = 16
V_VA = 20
V_KA = 24
V_L = 32
V_LANE16 = 36
V_OOFF = 37
V_PF = 38
V_T = 40
V_Q = 64
V_ACC = 128
V_S = 128
V_NEG = 160
V_P = 192
V_M = 208
A_O = 0
A_KF = 128
A_VF = 160

SLOT = 32768
MAX_OFF = 24.0
L_LIMIT = 2.0 ** 80


def kv_slot(i):
    return (i + 4) % 5


def dma_kv(i, w4k=S_W4K):
    out = []
    base = kv_slot(i) * SLOT
    out.append(('s_add_u32 s%d, s%d, %d' % (S_CH, S_KROT, i), None))
    out.append(('s_and_b32 s%d, s%d, 7' % (S_CH, S_CH), None))
    out.append(('s_add_u32 m0, s%d, %d' % (w4k, base), None))
    out.append(('s_lshl_b32 s%d, s%d, 14' % (S_CH, S_CH), None))
    out.append(('s_add_u32 s%d, s%d, s%d' % (S_CH, S_CH, w4k), None))
    for ii in range(4):
        out.append(('buffer_load_dwordx4 v%d, s[%d:%d], s%d offen offset:%d lds' % (V_KOFF + ii, S_K, S_K + 3, S_CH, ii * 1024), 'C%d' % i))
    out.append(('s_add_u32 m0, s%d, %d' % (w4k, base + 16384), None))
    for ii in range(4):
        out.append(('buffer_load_dwordx4 v%d, s[%d:%d], s%d offen offset:%d lds' % (V_VOFF, S_V, S_V + 3, S_CH, ii * 1024), 'C%d' % i))
    return out


def dma_w(p):
    out = []
    for half in range(2):
        out.append(('s_add_u32 m0, s%d, %d' % (S_W8K, p * SLOT + half * 4096), None))
        if half:
            out.append(('s_add_u32 s%d, s%d, %d' % (S_T0, S_WB + p, 4 * 32768), None))
        for ii in range(4):
            out.append(('buffer_load_dwordx4 v%d, s[%d:%d], s%d offen offset:%d lds' %
                        (V_WOFF + ii, S_WQ, S_WQ + 3, S_T0 if half else S_WB + p, ii * 1024), 'W%d' % p))
    return out


def h_load(s):
    p = s // 8
    out = []
    for qq in range(2):
        out.append(('buffer_load_dwordx4 %s, v%d, s[%d:%d], s%d offen offset:%d sc1' %
                    (ar(8 * s + 4 * qq, 4), V_H + 2 * qq + ((s & 7) >> 2), S_WS, S_WS + 3, S_HB + p, (s & 3) * 1024), None))
    return out


def setup(b):
    b('s_and_b32 s%d, s2, 7' % S_T0)
    b('s_lshr_b32 s%d, s2, 3' % S_T1)
    b('s_lshr_b32 s%d, s%d, 1' % (S_HEAD, S_T0))
    b('s_lshl_b32 s%d, s%d, 3' % (S_HEAD, S_HEAD))
    b('s_lshr_b32 s%d, s%d, 2' % (S_ROT, S_T1))
    b('s_add_u32 s%d, s%d, s%d' % (S_HEAD, S_HEAD, S_ROT))
    b('s_and_b32 s%d, s%d, 1' % (S_QT, S_T0))
    b('s_lshl_b32 s%d, s%d, 2' % (S_QT, S_QT))
    b('s_and_b32 s%d, s%d, 3' % (S_T1, S_T1))
    b('s_add_u32 s%d, s%d, s%d' % (S_QT, S_QT, S_T1))
    b('s_add_u32 s%d, s%d, s%d' % (S_ROT, S_ROT, S_T1))
    b('s_and_b32 s%d, s%d, 3' % (S_ROT, S_ROT))
    b('s_lshl_b32 s%d, s%d, 1' % (S_KROT, S_T1))
    if 'rot' not in OPT:
        b('s_mov_b32 s%d, 0' % S_ROT)
        b('s_mov_b32 s%d, 0' % S_KROT)
    b('s_mov_b32 s%d, s%d' % (S_W, S_WAVE))
    T = V_T
    b('v_lshrrev_b32 v%d, 4, v0' % T)
    b('v_and_b32 v%d, 15, v0' % (T + 1))
    b('v_lshlrev_b32 v%d, 2, v%d' % (T + 2, T))
    b('v_xor_b32 v%d, v%d, v%d' % (T + 2, T + 2, T + 1))
    b('v_lshlrev_b32 v%d, 4, v%d' % (T + 2, T + 2))
    b('v_lshlrev_b32 v%d, 8, v%d' % (T + 3, T))
    b('v_add_u32 v%d, v%d, v%d' % (V_VOFF, T + 2, T + 3))
    b('v_lshlrev_b32 v%d, 13, v%d' % (T + 3, T))
    b('v_add_u32 v%d, v%d, v%d' % (V_WOFF, T + 2, T + 3))
    for ii in range(1, 4):
        b('v_add_u32 v%d, %d, v%d' % (V_WOFF + ii, ii * (32768 - 1024), V_WOFF))
    for ii in range(4):
        b('v_add_u32 v%d, %d, v%d' % (T + 2, 4 * ii, T))
        b('v_xor_b32 v%d, v%d, v%d' % (T + 2, T + 2, T + 1))
        b('v_lshlrev_b32 v%d, 4, v%d' % (T + 2, T + 2))
        b('v_lshlrev_b32 v%d, 8, v%d' % (T + 3, T))
        b('v_add_u32 v%d, v%d, v%d' % (V_KOFF + ii, T + 2, T + 3))
    b('v_lshlrev_b32 v%d, 4, v0' % V_LANE16)
    b('v_bfe_u32 v%d, v0, 4, 1' % (T + 2))
    b('v_lshlrev_b32 v%d, 17, v%d' % (V_OOFF, T + 2))
    b('v_lshrrev_b32 v%d, 5, v0' % (T + 2))
    b('v_lshlrev_b32 v%d, 9, v%d' % (T + 2, T + 2))
    b('v_add_u32 v%d, v%d, v%d' % (V_OOFF, V_OOFF, T + 2))
    b('v_and_b32 v%d, 15, v0' % (T + 2))
    b('v_lshlrev_b32 v%d, 4, v%d' % (T + 2, T + 2))
    b('v_add_u32 v%d, v%d, v%d' % (V_OOFF, V_OOFF, T + 2))
    for qq in range(2):
        for half in range(2):
            b('v_add_u32 v%d, %d, v%d' % (V_H + 2 * qq + half, qq * 32768 + half * 4096, V_LANE16))
    b('v_lshrrev_b32 v%d, 5, v0' % T)
    b('v_lshlrev_b32 v%d, 2, v%d' % (T + 1, T))
    b('v_bfe_u32 v%d, v0, 2, 2' % (T + 2))
    b('v_add_u32 v%d, v%d, v%d' % (T + 1, T + 1, T + 2))
    b('v_lshlrev_b32 v%d, 8, v%d' % (T + 1, T + 1))
    b('v_bfe_u32 v%d, v0, 4, 1' % (T + 3))
    b('v_lshlrev_b32 v%d, 5, v%d' % (T + 3, T + 3))
    b('v_add_u32 v%d, v%d, v%d' % (T + 1, T + 1, T + 3))
    b('v_and_b32 v%d, 3, v0' % (T + 3))
    b('v_lshlrev_b32 v%d, 3, v%d' % (T + 4, T + 3))
    b('v_and_b32 v%d, 1, v0' % (T + 5))
    b('v_lshlrev_b32 v%d, 4, v%d' % (T + 5, T + 5))
    b('v_bfe_u32 v%d, v0, 1, 1' % (T + 6))
    b('v_lshlrev_b32 v%d, 3, v%d' % (T + 6, T + 6))
    b('v_add_u32 v%d, v%d, v%d' % (T + 5, T + 5, T + 6))
    for db in range(4):
        b('v_xor_b32 v%d, %d, v%d' % (T + 6, db, T + 2))
        b('v_lshlrev_b32 v%d, 6, v%d' % (T + 6, T + 6))
        b('v_add_u32 v%d, v%d, v%d' % (T + 6, T + 6, T + 1))
        b('v_add_u32 v%d, v%d, v%d' % (V_VA + db, T + 6, T + 4))
        b('v_add_u32 v%d, v%d, v%d' % (V_WA + db, T + 6, T + 5))
    b('v_and_b32 v%d, 31, v0' % (T + 1))
    b('v_and_b32 v%d, 15, v0' % (T + 2))
    b('v_xor_b32 v%d, v%d, v%d' % (T + 2, T + 2, T))
    b('v_lshlrev_b32 v%d, 8, v%d' % (T + 1, T + 1))
    for tt in range(8):
        b('v_xor_b32 v%d, %d, v%d' % (T + 3, 2 * tt, T + 2))
        b('v_lshlrev_b32 v%d, 4, v%d' % (T + 3, T + 3))
        b('v_add_u32 v%d, v%d, v%d' % (V_KA + tt, T + 3, T + 1))
    b('s_lshl_b32 s%d, s%d, 13' % (S_W8K, S_W))
    b('s_lshl_b32 s%d, s%d, 12' % (S_W4K, S_W))
    b('s_lshl_b32 s%d, s%d, 8' % (S_T0, S_HEAD))
    mk_srd(b, S_WQ, P_WQ, None, S_T0)
    b('s_sub_u32 s%d, %d, s%d' % (S_WQ + 2, 512 * 8192, S_T0))
    b('s_lshl_b32 s%d, s%d, 19' % (S_T0, S_HEAD))
    b('s_add_u32 s%d, s%d, %d' % (S_T0, S_T0, 1536 * 256))
    mk_srd(b, S_K, P_K, 512 * 256, S_T0)
    mk_srd(b, S_V, P_V, 512 * 256, S_T0)
    b('s_lshl_b32 s%d, s%d, 3' % (S_T0, S_QT))
    b('s_lshl_b32 s%d, s%d, 1' % (S_T1, S_W))
    b('s_add_u32 s%d, s%d, s%d' % (S_T0, S_T0, S_T1))
    b('s_lshl_b32 s%d, s%d, 15' % (S_T1, S_T0))
    b('s_add_u32 s%d, s%d, 0x%x' % (S_T1, S_T1, WS_H))
    b('s_lshl_b32 s%d, s%d, 18' % (S_T2, S_W))
    for p in range(4):
        b('s_add_u32 s%d, s%d, %d' % (S_CH, S_ROT, p))
        b('s_and_b32 s%d, s%d, 3' % (S_CH, S_CH))
        b('s_lshl_b32 s%d, s%d, 20' % (S_WB + p, S_CH))
        b('s_add_u32 s%d, s%d, s%d' % (S_WB + p, S_WB + p, S_T2))
        b('s_lshl_b32 s%d, s%d, 13' % (S_HB + p, S_CH))
        b('s_add_u32 s%d, s%d, s%d' % (S_HB + p, S_HB + p, S_T1))
    b('s_lshl_b32 s%d, s%d, 18' % (S_OB, S_T0))
    b('s_lshl_b32 s%d, s%d, 12' % (S_T1, S_HEAD))
    b('s_add_u32 s%d, s%d, s%d' % (S_OB, S_OB, S_T1))
    b('s_add_u32 s%d, s%d, 0x%x' % (S_OB, S_OB, WS_O))
    b('s_mov_b32 s%d, 0' % S_MODE)
    if PF:
        mk_srd(b, S_WO, P_WO, 4096 * 1024); mk_srd(b, S_WG, P_WG, 512 * 2752); mk_srd(b, S_WU, P_WU, 512 * 2752); mk_srd(b, S_WD, P_WD, 1376 * 1024)
        b('s_bfe_u32 s%d, s2, 0x20001' % S_PFO)
        b('s_lshl_b32 s%d, s%d, 20' % (S_PFO, S_PFO))
        b('s_lshr_b32 s%d, s2, 3' % S_T1)
        b('s_lshl_b32 s%d, s%d, 15' % (S_T1, S_T1))
        b('s_add_u32 s%d, s%d, s%d' % (S_PFO, S_PFO, S_T1))
        b('s_add_u32 s%d, s%d, s%d' % (S_PFO, S_PFO, S_W8K))


def qproj(b, stamps):
    H_AHEAD = 6
    sc = Sched()
    for s in range(0, H_AHEAD):
        for t, g in h_load(s): b(t, g)
    b.waitvm('W0')
    b('s_barrier')
    stamp(b, 5)

    def a_reads(s):
        buf = V_Q + 16 * (s & 1)
        p = s // 8
        out = []
        for db in range(4):
            for jj in range(2):
                off = (p & 1) * SLOT + (s & 7) * 4096 + jj * 2048
                out.append('ds_read_b64_tr_b16 %s, v%d offset:%d' % (vr(buf + 4 * db + 2 * jj, 2), V_WA + db, off))
        return out
    for t in a_reads(0): b(t)
    stream = []
    for first, span, ops in ((0, 4, dma_w(2)), (4, 4, dma_kv(0)), (8, 8, dma_w(3)), (16, 8, dma_kv(1)), (24, 8, dma_kv(2))):
        for k, x in enumerate(ops):
            stream.append((first + (k * span) // len(ops), x))
    for s in range(32):
        base = 8 * s
        for db in range(4):
            for qq in range(2):
                d = vr(V_ACC + (db * 2 + qq) * 16, 16)
                sc.mfma(base + 2 * db + qq, 'v_mfma_f32_32x32x16_bf16 %s, %s, %s, %s' %
                        (d, vr(V_Q + 16 * (s & 1) + 4 * db, 4), ar(8 * s + 4 * qq, 4), '0' if s == 0 else d))
        if s + 1 < 32:
            if (s + 1) % 8 == 0:
                p = (s + 1) // 8
                sc.add(base, lambda bb, p=p: (bb.waitvm('W%d' % p), bb('s_barrier')))
                if p == 2:
                    for db in range(4):
                        sc.add(base, 'v_add_u32 v%d, 0x10000, v%d' % (V_WA + db, V_WA + db))
            for k, t in enumerate(a_reads(s + 1)):
                sc.add(base + k, t)
        if s + H_AHEAD < 32:
            for k, (t, g) in enumerate(h_load(s + H_AHEAD)):
                sc.add(base + 1 + 4 * k, t, g)
        k = 0
        for (st, (t, g)) in stream:
            if st == s:
                sc.add(base + 2 + (k % 6), t, g)
                k += 1
    sc.emit(b, 0, 256)
    for db in range(4):
        for qq in range(2):
            acc = V_ACC + (db * 2 + qq) * 16
            for tp in range(2):
                for k in range(4):
                    b('v_cvt_pk_bf16_f32 v%d, v%d, v%d' % (V_Q + qq * 32 + (2 * db + tp) * 4 + k, acc + 8 * tp + 2 * k, acc + 8 * tp + 2 * k + 1))


def k_read(tt, blk):
    return 'ds_read_b128 %s, v%d offset:%d' % (ar(A_KF + 4 * tt, 4), V_KA + tt, (blk & 1) * 8192)


def v_reads(f, blk):
    ks, db = f // 4, f % 4
    return ['ds_read_b64_tr_b16 %s, v%d offset:%d' % (ar(A_VF + 4 * f + 2 * jj, 2), V_VA + db, 16384 + (blk & 1) * 8192 + ks * 4096 + jj * 2048)
            for jj in range(2)]


def qk(qq, tt, first_c):
    s = vr(V_S + 16 * qq, 16)
    c = s if tt else first_c
    return 'v_mfma_f32_32x32x16_bf16 %s, %s, %s, %s' % (s, ar(A_KF + 4 * tt, 4), vr(V_Q + 32 * qq + 4 * tt, 4), c)


def pv(qq, f, first):
    ks, db = f // 4, f % 4
    o = ar(A_O + (db * 2 + qq) * 16, 16)
    return 'v_mfma_f32_32x32x16_bf16 %s, %s, %s, %s' % (o, ar(A_VF + 4 * f, 4), vr(V_P + 8 * qq + 4 * ks, 4), '0' if (first and ks == 0) else o)


def softmax_pair(qq, p, first=False):
    s0, s1 = V_S + 16 * qq + 2 * p, V_S + 16 * qq + 2 * p + 1
    la, lb = V_L + 2 * qq, V_L + 2 * qq + 1
    e = ['v_exp_f32 v%d, v%d' % (s0, s0), 'v_exp_f32 v%d, v%d' % (s1, s1)]
    if first and p == 0:
        a = ['v_mov_b32 v%d, v%d' % (la, s0), 'v_mov_b32 v%d, v%d' % (lb, s1)]
    else:
        a = ['v_add_f32 v%d, v%d, v%d' % (la, la, s0), 'v_add_f32 v%d, v%d, v%d' % (lb, lb, s1)]
    a.append('v_cvt_pk_bf16_f32 v%d, v%d, v%d' % (V_P + 8 * qq + p, s0, s1))
    return e, a


def half_swap(b, x, tmp, op):
    b('v_mov_b32 v%d, v%d' % (tmp, x))
    b('v_permlane32_swap_b32 v%d, v%d' % (x, tmp))
    b('%s v%d, v%d, v%d' % (op, x, x, tmp))


def prefetches():
    T = V_T
    pre = ['v_lshlrev_b32 v%d, 7, v0' % V_PF,
           'v_min_u32 v%d, 10, v0' % (V_PF + 1),
           's_lshl_b32 s%d, s2, 2' % S_T1, 's_add_u32 s%d, s%d, s%d' % (S_T1, S_T1, S_W), 's_mul_i32 s%d, s%d, 11' % (S_T1, S_T1),
           'v_add_u32 v%d, s%d, v%d' % (V_PF + 1, S_T1, V_PF + 1), 'v_lshlrev_b32 v%d, 7, v%d' % (V_PF + 1, V_PF + 1),
           'v_lshrrev_b32 v%d, 5, v0' % T, 'v_lshlrev_b32 v%d, 17, v%d' % (T, T),
           'v_and_b32 v%d, 31, v0' % (T + 1), 'v_lshl_add_u32 v%d, v%d, 7, v%d' % (T, T + 1, T),
           's_add_u32 s%d, s%d, 262144' % (S_T2, S_OB)]
    loads = ['buffer_load_dword v%d, v%d, s[%d:%d], s%d offen' % (T + 2, V_PF, S_WO, S_WO + 3, S_PFO),
             'buffer_load_dword v%d, v%d, s[%d:%d], s%d offen' % (T + 2, T, S_WS, S_WS + 3, S_OB),
             'buffer_load_dword v%d, v%d, s[%d:%d], s%d offen' % (T + 2, T, S_WS, S_WS + 3, S_T2)]
    for srd_ in (S_WG, S_WU, S_WD):
        loads.append('buffer_load_dword v%d, v%d, s[%d:%d], 0 offen' % (T + 2, V_PF + 1, srd_, srd_ + 3))
    return pre, loads


def if_fallback_dma(b, name):
    l = uid('kv12')
    b('s_cmp_eq_u32 s%d, 0' % S_MODE)
    b('s_cbranch_scc1 %s' % l)
    for i in (1, 2):
        for t, g in dma_kv(i):
            raw(b, t)
            if ' m0,' in t: raw(b, 's_nop 0')
    raw(b, 's_waitcnt vmcnt(0)')
    b.label(l)


def attention(b, name, stamps):
    b.label(name + '_attn')
    for tt in range(8):
        b('v_add_u32 v%d, %d, v%d' % (V_KA + tt, kv_slot(0) * SLOT, V_KA + tt))
    for db in range(4):
        b('v_add_u32 v%d, %d, v%d' % (V_VA + db, kv_slot(0) * SLOT, V_VA + db))
    b.waitvm('C0')
    b('s_barrier')
    for tt in range(8):
        b(k_read(tt, 0))
    if_fallback_dma(b, name)
    for tt in range(8):
        for qq in range(2):
            b(qk(qq, tt, '0'))
        b(k_read(tt, 1))
    for f in range(8):
        for t in v_reads(f, 0): b(t)
    b('s_cmp_lg_u32 s%d, 0' % S_MODE)
    b('s_cbranch_scc1 %s_havemax' % name)
    for qq in range(2):
        S = V_S + 16 * qq
        M = V_M + qq
        b('v_max3_f32 v%d, v%d, v%d, v%d' % (M, S, S + 1, S + 2))
        for i in range(3, 15, 2):
            b('v_max3_f32 v%d, v%d, v%d, v%d' % (M, M, S + i, S + i + 1))
        b('v_max_f32 v%d, v%d, v%d' % (M, M, S + 15))
        half_swap(b, M, V_T + qq, 'v_max_f32')
        b('v_add_f32 v%d, %s, v%d' % (M, f32(MAX_OFF), M))
    b.label(name + '_havemax')
    b('s_nop 7')
    b('s_nop 3')
    for qq in range(2):
        for i in range(16):
            b('v_sub_f32 v%d, 0, v%d' % (V_NEG + 16 * qq + i, V_M + qq))
        for i in range(16):
            b('v_sub_f32 v%d, v%d, v%d' % (V_S + 16 * qq + i, V_S + 16 * qq + i, V_M + qq))
    for p in range(8):
        e, a = softmax_pair(0, p, first=True)
        for t in e + a: b(t)
    stamp(b, 7)

    sc = Sched()
    NB = 16
    for j in range(NB):
        base = 32 * j
        last = j == NB - 1
        for f in range(8):
            sc.mfma(base + f, pv(0, f, j == 0))
            sc.mfma(base + 16 + f, pv(1, f, j == 0))
        if not last:
            for tt in range(8):
                sc.mfma(base + 8 + tt, qk(0, tt, vr(V_NEG, 16)))
                sc.mfma(base + 24 + tt, qk(1, tt, vr(V_NEG + 16, 16)))
        for qq, w0, on in ((1, 2, True), (0, 18, not last)):
            if not on:
                continue
            for p in range(8):
                e, a = softmax_pair(qq, p, first=(j == 0 and qq == 1))
                sc.add(base + w0 + 2 * p, e[0])
                sc.add(base + w0 + 2 * p + 1, e[1])
                sc.add(base + w0 + 2 * p + 1, a[0])
                sc.add(base + w0 + 2 * p + 2, a[1])
                sc.add(base + w0 + 2 * p + 2, a[2])
        if j + 1 < NB:
            for f in range(8):
                for jj, t in enumerate(v_reads(f, j + 1)):
                    sc.add(base + 17 + 2 * f + jj, t)
        if j + 2 < NB:
            for tt in range(8):
                sc.add(base + 33 + tt, k_read(tt, j + 2))
        if j == 0:
            ops = dma_kv(3)
            for k, (t, g) in enumerate(ops):
                sc.add(base + 9 + (k * 8) // len(ops), t, g)
        if j % 2 == 0 and j + 2 < NB:
            c = j // 2
            delta = (kv_slot(c + 1) - kv_slot(c)) * SLOT
            lit = '0x%x' % (delta & 0xffffffff)
            for tt in range(8):
                sc.add(base + 9 + tt, 'v_add_u32 v%d, %s, v%d' % (V_KA + tt, lit, V_KA + tt))
            for db in range(4):
                sc.add(base + 32 + 9 + db, 'v_add_u32 v%d, %s, v%d' % (V_VA + db, lit, V_VA + db))
            sc.add(base + 32, lambda bb, c=c: (bb.waitvm('C%d' % (c + 1)), bb('s_barrier')))
            if c + 4 < 8:
                ops = dma_kv(c + 4)
                for k, (t, g) in enumerate(ops):
                    sc.add(base + 32 + 9 + (k * 8) // len(ops), t, g)
    if PF:
        pre, loads = prefetches()
        for k, t in enumerate(pre):
            sc.add(32 * 6 + 9 + k // 2, t)
        order = [0, 3, 4, 5] + ([1, 2] if 'otouch' in OPT else [])
        for k, i in enumerate(order):
            sc.add(32 * (8 + k // 2) + 10 + 4 * (k % 2), loads[i], 'pf')
    sc.emit(b, 0, 32 * NB + 3, valu_last=True)
    stamp(b, 8)


def epilogue(b, name, stamps):
    T = V_T
    for qq in range(2):
        b('v_add_f32 v%d, v%d, v%d' % (V_L + 2 * qq, V_L + 2 * qq, V_L + 2 * qq + 1))
        half_swap(b, V_L + 2 * qq, T + qq, 'v_add_f32')
    b('s_cmp_lg_u32 s%d, 0' % S_MODE)
    b('s_cbranch_scc1 %s_noguard' % name)
    b('v_add_f32 v%d, v%d, v%d' % (T + 1, V_L, V_L + 2))
    b('v_mov_b32 v%d, %s' % (T + 2, f32(L_LIMIT)))
    b('v_cmp_nle_f32 vcc, v%d, v%d' % (T + 1, T + 2))
    b('v_mov_b32 v%d, 0' % (T + 3))
    b('s_cmp_lg_u64 vcc, 0')
    b('s_cselect_b32 s%d, 1, 0' % S_T0)
    b('v_mov_b32 v%d, s%d' % (T + 3, S_T0))
    b('s_lshl_b32 s%d, s%d, 2' % (S_T1, S_W))
    b('s_add_u32 s%d, s%d, %d' % (S_T1, S_T1, 2 * SLOT))
    b('v_mov_b32 v%d, s%d' % (T + 4, S_T1))
    b('ds_write_b32 v%d, v%d' % (T + 4, T + 3))
    b('s_waitcnt lgkmcnt(0)')
    b('s_barrier')
    b('v_mov_b32 v%d, %d' % (T + 4, 2 * SLOT))
    b('ds_read_b128 %s, v%d' % (vr(T + 8, 4), T + 4))
    b('v_or_b32 v%d, v%d, v%d' % (T + 8, T + 8, T + 9))
    b('v_or_b32 v%d, v%d, v%d' % (T + 10, T + 10, T + 11))
    b('v_or_b32 v%d, v%d, v%d' % (T + 8, T + 8, T + 10))
    b('v_readfirstlane_b32 s%d, v%d' % (S_T0, T + 8))
    b('s_cmp_lg_u32 s%d, 0' % S_T0)
    b('s_cbranch_scc1 %s_fallback' % name)
    b.label(name + '_noguard')
    b('s_barrier')
    for qq in range(2):
        b('v_rcp_f32 v%d, v%d' % (V_L + 2 * qq, V_L + 2 * qq))
    n = 0
    for qq in range(2):
        for db in range(4):
            o = A_O + (db * 2 + qq) * 16
            for tp in range(2):
                t0 = V_S + (n % 4) * 12
                n += 1
                for k in range(8):
                    b('v_accvgpr_read_b32 v%d, a%d' % (t0 + k, o + 8 * tp + k))
                for k in range(8):
                    b('v_mul_f32 v%d, v%d, v%d' % (t0 + k, t0 + k, V_L + 2 * qq))
                for k in range(4):
                    b('v_cvt_pk_bf16_f32 v%d, v%d, v%d' % (t0 + 8 + k, t0 + 2 * k, t0 + 2 * k + 1))
                if qq and db == 0 and tp == 0:
                    b('s_add_u32 s%d, s%d, %d' % (S_OB, S_OB, 262144))
                b('buffer_store_dwordx4 %s, v%d, s[%d:%d], s%d offen offset:%d sc1' % (vr(t0 + 8, 4), V_OOFF, S_WS, S_WS + 3, S_OB, db * 1024 + tp * 256))


def fallback(b, name):
    b.label(name + '_fallback')
    b('s_waitcnt vmcnt(0) lgkmcnt(0)')
    b('s_barrier')
    cur = kv_slot(7) * SLOT
    for tt in range(8):
        b('v_add_u32 v%d, 0x%x, v%d' % (V_KA + tt, (-cur) & 0xffffffff, V_KA + tt))
    for db in range(4):
        b('v_add_u32 v%d, 0x%x, v%d' % (V_VA + db, (-cur) & 0xffffffff, V_VA + db))
    for qq in range(2):
        b('v_mov_b32 v%d, 0xff800000' % (V_M + qq))
    b('s_mov_b32 s%d, 0' % S_T2)
    b.label(name + '_fb_loop')
    b('s_lshl_b32 s%d, s%d, 14' % (S_CH, S_T2))
    b('s_add_u32 s%d, s%d, s%d' % (S_CH, S_CH, S_W4K))
    b('s_mov_b32 m0, s%d' % S_W4K)
    for ii in range(4):
        b('buffer_load_dwordx4 v%d, s[%d:%d], s%d offen offset:%d lds' % (V_KOFF + ii, S_K, S_K + 3, S_CH, ii * 1024))
    b('s_waitcnt vmcnt(0)')
    b('s_barrier')
    for blk in range(2):
        for tt in range(8):
            b(k_read(tt, blk))
        for tt in range(8):
            for qq in range(2):
                b(qk(qq, tt, '0'))
        for qq in range(2):
            for i in range(0, 16, 2):
                b('v_max3_f32 v%d, v%d, v%d, v%d' % (V_M + qq, V_M + qq, V_S + 16 * qq + i, V_S + 16 * qq + i + 1))
    b('s_waitcnt lgkmcnt(0)')
    b('s_barrier')
    b('s_add_u32 s%d, s%d, 1' % (S_T2, S_T2))
    b('s_cmp_lt_u32 s%d, 8' % S_T2)
    b('s_cbranch_scc1 %s_fb_loop' % name)
    for qq in range(2):
        half_swap(b, V_M + qq, V_T + qq, 'v_max_f32')
    b('s_mov_b32 s%d, 1' % S_MODE)
    for t, g in dma_kv(0): b(t)
    b('s_waitcnt vmcnt(0)')
    b('s_branch %s_attn' % name)


def pre(b):
    for p in range(2):
        for t, g in dma_w(p): b(t, g)


def flag_index(b, dst):
    flag_off(b, dst, F_H, S_QT)


def main(b, name):
    qproj(b, None)
    stamp(b, 6)
    attention(b, name, None)
    epilogue(b, name, None)


def out_flag(b, dst):
    b('s_lshl_b32 s%d, s%d, 2' % (dst, S_QT))
    b('s_lshr_b32 s%d, s%d, 3' % (S_T0, S_HEAD))
    b('s_add_u32 s%d, s%d, s%d' % (dst, dst, S_T0))
    flag_off(b, dst, F_O, dst)
```

```python
from mc import *
from front import LN_LDS

MF = 'v_mfma_f32_16x16x32_bf16'


def p3(b, name):
    S_WO = 8
    S_W, S_KS, S_QT, S_NT, S_ROT, S_W8K = 16, 17, 18, 19, 20, 21
    S_AB, S_BB, S_T0, S_T1, S_T2, S_PB = 22, 23, 24, 25, 26, 27
    S_P, S_B1, S_B2, S_A2, S_L2, S_D, S_OFFB, S_OFFA, S_SLOT = 28, 29, 30, 31, 32, 33, 34, 35, 36
    V_WOFF, V_B, V_A, V_T = 2, 10, 12, 20
    V_AF = 32
    V_ACC = 128
    SLOT = 32768
    OOB = 0x10000000
    b('s_and_b32 s%d, s2, 7' % S_T0)
    b('s_lshr_b32 s%d, s2, 3' % S_T1)
    b('s_lshr_b32 s%d, s%d, 1' % (S_KS, S_T0))
    b('s_mov_b32 s%d, s%d' % (S_W, S_WAVE))
    b('s_and_b32 s%d, s%d, 1' % (S_T0, S_T0))
    b('s_lshl_b32 s%d, s%d, 3' % (S_T0, S_T0))
    b('s_lshr_b32 s%d, s%d, 2' % (S_QT, S_T1))
    b('s_and_b32 s%d, s%d, 3' % (S_NT, S_T1))
    b('s_lshl_b32 s%d, s%d, 1' % (S_ROT, S_NT))
    b('s_add_u32 s%d, s%d, s%d' % (S_ROT, S_ROT, S_QT))
    b('s_and_b32 s%d, s%d, 7' % (S_ROT, S_ROT))
    b('s_mov_b32 s%d, 0' % S_ROT)
    b('s_add_u32 s%d, s%d, s%d' % (S_QT, S_QT, S_T0))
    T = V_T
    b('v_lshrrev_b32 v%d, 4, v0' % T)
    b('v_and_b32 v%d, 15, v0' % (T + 1))
    b('v_lshlrev_b32 v%d, 1, v%d' % (T + 2, T))
    b('v_xor_b32 v%d, v%d, v%d' % (T + 2, T + 2, T + 1))
    b('v_lshlrev_b32 v%d, 4, v%d' % (T + 2, T + 2))
    b('v_lshl_add_u32 v%d, v%d, 10, v%d' % (V_WOFF, T, T + 2))
    b('v_xor_b32 v%d, 128, v%d' % (V_WOFF + 4, V_WOFF))
    for ii in range(1, 4):
        b('v_add_u32 v%d, %d, v%d' % (V_WOFF + ii, ii * 3072, V_WOFF))
        b('v_add_u32 v%d, %d, v%d' % (V_WOFF + 4 + ii, ii * 3072, V_WOFF + 4))
    b('v_lshlrev_b32 v%d, 4, v0' % V_B)
    b('v_add_u32 v%d, %d, v%d' % (V_B + 1, 131072, V_B))
    b('s_lshl_b32 s%d, s%d, 13' % (S_W8K, S_W))
    b('s_lshl_b32 s%d, s%d, 20' % (S_AB, S_KS))
    b('s_lshl_b32 s%d, s%d, 15' % (S_T0, S_W))
    b('s_add_u32 s%d, s%d, s%d' % (S_AB, S_AB, S_T0))
    b('s_lshl_b32 s%d, s%d, 8' % (S_T0, S_NT))
    b('s_add_u32 s%d, s%d, s%d' % (S_AB, S_AB, S_T0))
    b('s_lshl_b32 s%d, s%d, 3' % (S_T0, S_QT))
    b('s_lshl_b32 s%d, s%d, 1' % (S_T1, S_W))
    b('s_add_u32 s%d, s%d, s%d' % (S_T0, S_T0, S_T1))
    b('s_lshl_b32 s%d, s%d, 17' % (S_BB, S_T0))
    b('s_lshl_b32 s%d, s%d, 15' % (S_T1, S_KS))
    b('s_add_u32 s%d, s%d, s%d' % (S_BB, S_BB, S_T1))
    b('s_add_u32 s%d, s%d, 0x%x' % (S_BB, S_BB, WS_O))
    b('s_lshl_b32 s%d, s%d, 17' % (S_OFFA, S_ROT))
    b('s_lshl_b32 s%d, s%d, 12' % (S_OFFB, S_ROT))
    b('s_add_u32 s%d, s%d, s%d' % (S_A2, S_AB, S_OFFA))
    b('s_add_u32 s%d, s%d, s%d' % (S_B1, S_BB, S_OFFB))
    b('s_mov_b32 s%d, s%d' % (S_L2, S_W8K))
    mk_srd(b, S_WO, P_WO, 4096 * 1024)

    def dma_w(tag):
        out = []
        for half in range(2):
            grp = [('s_add_u32 m0, s%d, %d' % (S_L2, half * 4096), None),
                   ('s_add_u32 s%d, s%d, %d' % (S_T2, S_A2, half * 16 * 1024), None)]
            for ii in range(4):
                grp.append(('buffer_load_dwordx4 v%d, s[%d:%d], s%d offen offset:%d lds' %
                            (V_WOFF + 4 * half + ii, S_WO, S_WO + 3, S_T2, ii * 1024), tag))
            out.append(grp)
        return out

    def b_load(ring, sreg, step):
        return ['buffer_load_dwordx4 %s, v%d, s[%d:%d], s%d offen offset:%d sc1' %
                (ar(8 * ring + 4 * qq, 4), V_B + qq, S_WS, S_WS + 3, sreg, step * 1024) for qq in range(2)]

    def a_reads(buf, step):
        return ['ds_read_b64_tr_b16 %s, v%d offset:%d' % (vr(V_AF + 32 * buf + 4 * nb + 2 * jj, 2), V_A + nb, step * 8192 + jj * 2048)
                for nb in range(8) for jj in range(2)]

    def advance_a():
        return ['s_add_u32 s%d, s%d, 0x20000' % (S_OFFA, S_OFFA), 's_and_b32 s%d, s%d, 0xfffff' % (S_OFFA, S_OFFA),
                's_add_u32 s%d, s%d, s%d' % (S_A2, S_AB, S_OFFA),
                's_add_u32 s%d, s%d, %d' % (S_L2, S_L2, SLOT), 's_and_b32 s%d, s%d, 0x1ffff' % (S_L2, S_L2)]

    def advance_b():
        return ['s_mov_b32 s%d, s%d' % (S_B1, S_B2),
                's_add_u32 s%d, s%d, 0x1000' % (S_OFFB, S_OFFB), 's_and_b32 s%d, s%d, 0x7fff' % (S_OFFB, S_OFFB),
                's_add_u32 s%d, s%d, s%d' % (S_B2, S_BB, S_OFFB)]

    b('v_bfe_u32 v%d, v0, 2, 2' % T)
    b('v_bfe_u32 v%d, v0, 4, 1' % (T + 1))
    b('v_lshrrev_b32 v%d, 5, v0' % (T + 2))
    b('v_lshlrev_b32 v%d, 4, v%d' % (T + 3, T + 1))
    b('v_lshlrev_b32 v%d, 2, v%d' % (T + 4, T + 2))
    b('v_add3_u32 v%d, v%d, v%d, v%d' % (T + 3, T + 3, T + 4, T))
    b('v_lshlrev_b32 v%d, 8, v%d' % (T + 3, T + 3))
    b('v_and_b32 v%d, 3, v0' % (T + 4))
    b('v_lshl_add_u32 v%d, v%d, 3, v%d' % (T + 3, T + 4, T + 3))
    b('v_lshlrev_b32 v%d, 2, v%d' % (T + 1, T + 1))
    b('v_or_b32 v%d, v%d, v%d' % (T + 1, T + 1, T))
    for nb in range(8):
        b('v_xor_b32 v%d, %d, v%d' % (T + 4, nb, T + 1))
        b('v_lshl_add_u32 v%d, v%d, 5, v%d' % (V_A + nb, T + 4, T + 3))
    for i in range(64):
        b('v_mov_b32 v%d, 0' % (V_ACC + i))
    b('s_lshl_b32 s%d, s%d, 7' % (S_PB, S_KS))
    b('s_add_u32 s%d, s%d, s%d' % (S_PB, S_PB, S_T0))
    b('s_lshl_b32 s%d, s%d, 14' % (S_PB, S_PB))
    b('s_lshl_b32 s%d, s%d, 12' % (S_T1, S_NT))
    b('s_add_u32 s%d, s%d, s%d' % (S_PB, S_PB, S_T1))
    b('s_add_u32 s%d, s%d, 0x%x' % (S_PB, S_PB, WS_PART))
    b('s_mov_b32 s%d, 0' % S_P)
    b('s_mov_b32 s%d, %d' % (S_D, SLOT))
    b('s_mov_b32 s%d, %d' % (S_SLOT, SLOT))
    b('s_lshr_b32 s%d, s%d, 1' % (S_T1, S_QT))
    b('s_lshl_b32 s%d, s%d, 2' % (S_T1, S_T1))
    b('s_add_u32 s%d, s%d, s%d' % (S_T1, S_T1, S_KS))
    flag_off(b, S_SY + 3, F_O, S_T1)
    yield
    for grp in dma_w('W0'):
        for t, g in grp: b(t, g)
    for t in advance_a(): b(t)
    for grp in dma_w('WB'):
        for t, g in grp: b(t, g, epoch=-1)
    for t in advance_a(): b(t)
    yield
    for st in range(4):
        for t in b_load(st, S_B1, st): b(t)
    b('s_add_u32 s%d, s%d, 0x1000' % (S_OFFB, S_OFFB))
    b('s_and_b32 s%d, s%d, 0x7fff' % (S_OFFB, S_OFFB))
    b('s_add_u32 s%d, s%d, s%d' % (S_B1, S_BB, S_OFFB))
    for st in range(3):
        for t in b_load(4 + st, S_B1, st): b(t)
    b('s_add_u32 s%d, s%d, 0x1000' % (S_OFFB, S_OFFB))
    b('s_and_b32 s%d, s%d, 0x7fff' % (S_OFFB, S_OFFB))
    b('s_add_u32 s%d, s%d, s%d' % (S_B2, S_BB, S_OFFB))
    b.waitvm('W0')
    b('s_barrier')
    stamp(b, 11)
    for t in a_reads(0, 0): b(t)

    b.loop_begin()
    b.label(name + '_loop')
    sc = Sched()
    for half in range(2):
        tag = 'WA' if half == 0 else 'WB'
        d = dma_w(tag)
        for i in range(4):
            st = 4 * half + i
            base = 16 * st
            for nb in range(8):
                for qq in range(2):
                    dd = vr(V_ACC + (nb * 2 + qq) * 4, 4)
                    sc.mfma(base + 2 * nb + qq, '%s %s, %s, %s, %s' % (MF, dd, vr(V_AF + 32 * (i & 1) + 4 * nb, 4), ar(8 * st + 4 * qq, 4), dd))
            if i == 3:
                if half == 0:
                    sc.add(base, lambda bb: (bb.waitvm('WB', 1), bb('s_barrier')))
                else:
                    sc.add(base, lambda bb: (bb.waitvm('WA', 0), bb('s_barrier')))
                for nb in range(8):
                    sc.add(base + (nb + 1) // 2, 'v_add_u32 v%d, s%d, v%d' % (V_A + nb, S_D, V_A + nb))
            rd = a_reads((i + 1) & 1, (i + 1) & 3)
            for k, t in enumerate(rd):
                if i == 3:
                    sc.add(base + min(15, max(k, (k // 2 + 1) // 2 + 1) if k < 4 else k), t)
                else:
                    sc.add(base + k, t)
            ahead = i + 7
            sreg = S_B1 if ahead < 8 else S_B2
            bl = b_load((st + 7) & 7, sreg, ahead & 3)
            grp = d[i // 2]
            if i % 2 == 0:
                sc.add(base + 1, grp[0][0]); sc.add(base + 2, grp[1][0])
            sc.add(base + 3, bl[0])
            sc.add(base + 6, grp[2 + 2 * (i % 2)][0], tag)
            sc.add(base + 9, bl[1])
            sc.add(base + 12, grp[3 + 2 * (i % 2)][0], tag)
        c0 = 64 * half
        sc.add(c0 + 35, 's_add_u32 s%d, s%d, 1' % (S_P, S_P))
        for k, t in enumerate(advance_a()):
            sc.add(c0 + 36 + k, t)
        sc.add(c0 + 41, 's_cmp_ge_u32 s%d, 6' % S_P)
        sc.add(c0 + 41, 's_cselect_b32 s%d, 0x%x, s%d' % (S_A2, OOB, S_A2))
        sc.add(c0 + 53, 's_and_b32 s%d, s%d, 3' % (S_T1, S_P))
        sc.add(c0 + 54, 's_cmp_eq_u32 s%d, 3' % S_T1)
        sc.add(c0 + 54, 's_cselect_b32 s%d, 0x%x, s%d' % (S_D, (-3 * SLOT) & 0xffffffff, S_SLOT))
        for k, t in enumerate(advance_b()):
            sc.add(c0 + 58 + k // 2, t)
        sc.add(c0 + 60, 's_cmp_ge_u32 s%d, 6' % S_P)
        sc.add(c0 + 60, 's_cselect_b32 s%d, 0x%x, s%d' % (S_B2, OOB, S_B2))
        sc.add(c0 + 61, 's_cmp_ge_u32 s%d, 7' % S_P)
        sc.add(c0 + 61, 's_cselect_b32 s%d, 0x%x, s%d' % (S_B1, OOB, S_B1))
    sc.emit(b, 0, 128)
    b('s_cmp_lt_u32 s%d, 8' % S_P)
    b('s_cbranch_scc1 %s_loop' % name)
    b.loop_end(4)
    stamp(b, 12)
    b('v_lshlrev_b32 v%d, 4, v0' % V_T)
    for qq in range(2):
        b('s_add_u32 s%d, s%d, %d' % (S_T0, S_PB, qq * 16384))
        for v in range(4):
            o = V_AF + 4 * (qq * 4 + v)
            for jj in range(2):
                acc = V_ACC + ((2 * v + jj) * 2 + qq) * 4
                for i in range(2):
                    b('v_cvt_pk_bf16_f32 v%d, v%d, v%d' % (o + 2 * jj + i, acc + 2 * i, acc + 2 * i + 1))
            b('buffer_store_dwordx4 %s, v%d, s[%d:%d], s%d offen offset:%d sc1' % (vr(o, 4), V_T, S_WS, S_WS + 3, S_T0, v * 1024))
    flag_off(b, S_SY, F_PART, S_QT)


def p3b(b, name):
    mk_srd(b, 8, P_X, 2048 * 1024)
    b('s_lshl_b32 s45, s%d, 6' % S_WAVE)
    b('v_add_u32 v11, s45, v0')
    b('v_and_b32 v1, 7, v0')
    b('v_lshrrev_b32 v2, 3, v11')
    b('v_and_b32 v3, 3, v2')
    b('v_lshrrev_b32 v4, 2, v2')
    b('s_and_b32 s47, s2, 7')
    b('s_lshl_b32 s47, s47, 5')
    b('s_lshr_b32 s48, s2, 3')
    b('s_add_u32 s47, s47, s48')
    b('s_lshr_b32 s16, s47, 1')
    b('s_and_b32 s17, s47, 1')
    b('s_lshl_b32 s17, s17, 3')
    b('v_add_u32 v6, s17, v1')
    b('v_lshlrev_b32 v6, 4, v6')
    b('v_lshlrev_b32 v7, 11, v4')
    b('v_lshlrev_b32 v9, 8, v3')
    b('v_add3_u32 v7, v7, v9, v6')
    b('v_lshlrev_b32 v8, 10, v1')
    b('v_lshlrev_b32 v9, 7, v4')
    b('v_lshlrev_b32 v10, 3, v3')
    b('v_add3_u32 v8, v8, v9, v10')
    b('v_lshlrev_b32 v9, 8, v4')
    b('v_lshlrev_b32 v10, 4, v3')
    b('v_add_u32 v9, v9, v10')
    b('s_lshl_b32 s18, s47, 13')
    b('s_lshl_b32 s19, s16, 14')
    b('s_add_u32 s19, s19, 0x%x' % WS_PART)
    for bb in range(4):
        b('buffer_load_dwordx2 %s, v8, s[8:11], s18 offen offset:%d' % (vr(12 + 2 * bb, 2), 32 * bb))
    GA, SB, CB = 128, 144, 160
    loads = []
    for (reg, row) in ((GA, 2), (SB, 3), (CB, 4)):
        loads.append('s_mov_b32 s45, %d' % (WS_MOD + row * 2048))
        for bb in range(4):
            loads.append('buffer_load_dwordx4 %s, v9, s[%d:%d], s45 offen offset:%d sc1' % (vr(reg + 4 * bb, 4), S_WS, S_WS + 3, 64 * bb))
    load_mod(b, loads, list(range(128, 176)), 40)
    b('s_lshr_b32 s50, s47, 4')
    flag_off(b, S_SY + 3, F_PART, 50)
    yield
    P = 64
    for ks in range(4):
        if ks:
            b('s_add_u32 s19, s19, 0x200000')
        for v in range(2):
            b('buffer_load_dwordx4 %s, v7, s[%d:%d], s19 offen offset:%d sc1' % (vr(P + 8 * ks + 4 * v, 4), S_WS, S_WS + 3, v * 1024))
    yield
    A = 96
    for ks in range(4):
        for p in range(8):
            src = P + 8 * ks + p
            if ks == 0:
                b('v_lshlrev_b32 v%d, 16, v%d' % (A + 2 * p, src))
                b('v_and_b32 v%d, 0xffff0000, v%d' % (A + 2 * p + 1, src))
            else:
                b('v_lshlrev_b32 v%d, 16, v%d' % (A + 16 + 2 * p, src))
                b('v_and_b32 v%d, 0xffff0000, v%d' % (A + 17 + 2 * p, src))
        if ks:
            for i in range(16):
                b('v_add_f32 v%d, v%d, v%d' % (A + i, A + i, A + 16 + i))
    P = A
    X = 20
    for p in range(8):
        b('v_lshlrev_b32 v%d, 16, v%d' % (X + 2 * p, 12 + p))
        b('v_and_b32 v%d, 0xffff0000, v%d' % (X + 2 * p + 1, 12 + p))
    for i in range(16):
        b('v_fmac_f32 v%d, v%d, v%d' % (X + i, GA + i, P + i))
    for p in range(8):
        b('v_cvt_pk_bf16_f32 v%d, v%d, v%d' % (12 + p, X + 2 * p, X + 2 * p + 1))
    b('s_lshl_b32 s18, s16, 14')
    b('s_add_u32 s46, s18, 0x%x' % WS_X1)
    b('buffer_store_dwordx4 v[12:15], v7, s[%d:%d], s46 offen sc1' % (S_WS, S_WS + 3))
    b('buffer_store_dwordx4 v[16:19], v7, s[%d:%d], s46 offen offset:1024 sc1' % (S_WS, S_WS + 3))
    for p in range(8):
        b('v_lshlrev_b32 v%d, 16, v%d' % (X + 2 * p, 12 + p))
        b('v_and_b32 v%d, 0xffff0000, v%d' % (X + 2 * p + 1, 12 + p))
    layernorm16(b, X, 40, 1, LN_LDS)
    for i in range(16):
        b('v_add_f32 v%d, 1.0, v%d' % (CB + i, CB + i))
    for p in range(8):
        b('v_cvt_pk_bf16_f32 v48, v%d, v%d' % (CB + 2 * p, CB + 2 * p + 1))
        b('v_lshlrev_b32 v%d, 16, v48' % (CB + 2 * p))
        b('v_and_b32 v%d, 0xffff0000, v48' % (CB + 2 * p + 1))
    for i in range(16):
        b('v_fma_f32 v%d, v%d, v%d, v%d' % (X + i, X + i, CB + i, SB + i))
    for p in range(8):
        b('v_cvt_pk_bf16_f32 v%d, v%d, v%d' % (52 + p, X + 2 * p, X + 2 * p + 1))
    b('s_add_u32 s46, s18, 0x%x' % WS_H2)
    b('buffer_store_dwordx4 v[52:55], v7, s[%d:%d], s46 offen sc1' % (S_WS, S_WS + 3))
    b('buffer_store_dwordx4 v[56:59], v7, s[%d:%d], s46 offen offset:1024 sc1' % (S_WS, S_WS + 3))
    flag_off(b, S_SY, F_H2, 50)
```

```python
from mc import *

MF = 'v_mfma_f32_16x16x32_bf16'
WG_ROW = 2752


def p4(b, name):
    S_M = 20
    S_W, S_QT, S_FG, S_T0, S_T1, S_T2 = 24, 25, 26, 27, 28, 29
    S_AB, S_BB, S_HB, S_ROT = 30, 31, 33, 34
    S_P, S_B1, S_B2, S_A3, S_L3, S_D, S_OFFB, S_OFFA, S_SLOT, S_WL = 35, 36, 37, 38, 39, 40, 41, 42, 43, 44
    V_WOFF, V_B, V_A, V_T = 240, 6, 8, 20
    V_AF = 32
    V_ACC = 128
    SLOT, NSLOT = 24576, 6
    CH = 64 * WG_ROW
    OOB = 0x10000000
    b('s_and_b32 s%d, s2, 7' % S_T0)
    b('s_lshr_b32 s%d, s2, 3' % S_T1)
    b('s_and_b32 s%d, s%d, 1' % (S_FG, S_T0))
    b('s_lshl_b32 s%d, s%d, 3' % (S_FG, S_FG))
    b('s_and_b32 s%d, s%d, 7' % (S_T2, S_T1))
    b('s_add_u32 s%d, s%d, s%d' % (S_FG, S_FG, S_T2))
    b('s_lshr_b32 s%d, s%d, 1' % (S_QT, S_T0))
    b('s_mov_b32 s%d, s%d' % (S_W, S_WAVE))
    b('s_lshl_b32 s%d, s%d, 2' % (S_QT, S_QT))
    b('s_lshr_b32 s%d, s%d, 3' % (S_T1, S_T1))
    b('s_add_u32 s%d, s%d, s%d' % (S_QT, S_QT, S_T1))
    b('s_lshl_b32 s%d, s%d, 1' % (S_ROT, S_T1))
    b('s_add_u32 s%d, s%d, s%d' % (S_ROT, S_ROT, S_FG))
    b('s_and_b32 s%d, s%d, 7' % (S_ROT, S_ROT))
    b('s_mov_b32 s%d, 0' % S_ROT)
    T = V_T
    b('s_mov_b32 s%d, 0x15555556' % S_T0)
    b('s_mov_b32 s%d, %d' % (S_T1, WG_ROW))
    for i in range(3):
        b('v_add_u32 v%d, %d, v0' % (T, 64 * i))
        b('v_mul_hi_u32 v%d, v%d, s%d' % (T + 1, T, S_T0))
        b('v_mul_u32_u24 v%d, 12, v%d' % (T + 2, T + 1))
        b('v_sub_u32 v%d, v%d, v%d' % (T + 2, T, T + 2))
        b('v_bfe_u32 v%d, v%d, 2, 1' % (T + 3, T + 1))
        b('v_lshlrev_b32 v%d, 1, v%d' % (T + 3, T + 3))
        b('v_xor_b32 v%d, v%d, v%d' % (T + 2, T + 2, T + 3))
        b('v_lshlrev_b32 v%d, 4, v%d' % (T + 2, T + 2))
        b('v_mul_lo_u32 v%d, v%d, s%d' % (T + 1, T + 1, S_T1))
        b('v_add_u32 v%d, v%d, v%d' % (V_WOFF + i, T + 1, T + 2))
        if i:
            b('v_subrev_u32 v%d, %d, v%d' % (V_WOFF + i, 1024 * i, V_WOFF + i))
    b('s_and_b32 s%d, s%d, 1' % (S_T0, S_W))
    b('s_mul_i32 s%d, s%d, %d' % (S_AB, S_T0, 32 * WG_ROW))
    b('s_mul_i32 s%d, s%d, 192' % (S_T1, S_FG))
    b('s_add_u32 s%d, s%d, s%d' % (S_AB, S_AB, S_T1))
    b('s_mul_i32 s%d, s%d, 6144' % (S_WL, S_W))
    b('s_mul_i32 s%d, s%d, %d' % (S_A3, S_ROT, CH))
    b('s_mov_b32 s%d, s%d' % (S_OFFA, S_A3))
    b('s_add_u32 s%d, s%d, s%d' % (S_A3, S_A3, S_AB))
    b('s_mov_b32 s%d, 0' % S_L3)
    b('s_cmp_ge_u32 s%d, 2' % S_W)
    b('s_cselect_b32 s%d, s%d, s%d' % (S_M, P_WU, P_WG))
    b('s_cselect_b32 s%d, s%d, s%d' % (S_M + 1, P_WU + 1, P_WG + 1))
    b('s_mov_b32 s%d, 0x%x' % (S_M + 2, 512 * WG_ROW))
    b('s_mov_b32 s%d, 0x20000' % (S_M + 3))

    def dma_w(tag):
        out = []
        for half in range(2):
            grp = [('s_add_u32 s%d, s%d, s%d' % (S_T2, S_L3, S_WL), None),
                   ('s_add_u32 m0, s%d, %d' % (S_T2, half * 3072), None),
                   ('s_add_u32 s%d, s%d, %d' % (S_T2, S_A3, half * 16 * WG_ROW), None)]
            for i in range(3):
                grp.append(('buffer_load_dwordx4 v%d, s[%d:%d], s%d offen offset:%d lds' %
                            (V_WOFF + i, S_M, S_M + 3, S_T2, i * 1024), tag))
            out.append(grp)
        return out

    def b_load(ring, sreg, step):
        return ['buffer_load_dwordx4 %s, v%d, s[%d:%d], s%d offen offset:%d sc1' %
                (ar(8 * ring + 4 * qq, 4), V_B + qq, S_WS, S_WS + 3, sreg, step * 1024) for qq in range(2)]

    def a_reads(buf, step):
        return ['ds_read_b64_tr_b16 %s, v%d offset:%d' % (vr(V_AF + 48 * buf + 4 * (mat * 6 + nb) + 2 * jj, 2), V_A + nb, mat * 12288 + step * 6144 + jj * 3072)
                for nb in range(6) for mat in range(2) for jj in range(2)]

    def advance_a():
        return ['s_add_u32 s%d, s%d, %d' % (S_OFFA, S_OFFA, CH), 's_cmp_ge_u32 s%d, %d' % (S_OFFA, 8 * CH),
                's_cselect_b32 s%d, 0, s%d' % (S_OFFA, S_OFFA), 's_add_u32 s%d, s%d, s%d' % (S_A3, S_AB, S_OFFA),
                's_add_u32 s%d, s%d, %d' % (S_L3, S_L3, SLOT), 's_cmp_ge_u32 s%d, %d' % (S_L3, NSLOT * SLOT),
                's_cselect_b32 s%d, 0, s%d' % (S_L3, S_L3)]

    def next_b(reg):
        return ['s_add_u32 s%d, s%d, 0x800' % (S_OFFB, S_OFFB), 's_and_b32 s%d, s%d, 0x3fff' % (S_OFFB, S_OFFB),
                's_add_u32 s%d, s%d, s%d' % (reg, S_BB, S_OFFB)]

    yield
    for grp in dma_w('W0'):
        for t, g in grp: b(t, g)
    for t in advance_a(): b(t)
    for grp in dma_w('WO'):
        for t, g in grp: b(t, g, epoch=-1)
    for t in advance_a(): b(t)
    for grp in dma_w('WE'):
        for t, g in grp: b(t, g, epoch=-1)
    for t in advance_a(): b(t)
    yield
    b('v_lshlrev_b32 v%d, 4, v0' % V_B)
    b('v_add_u32 v%d, %d, v%d' % (V_B + 1, 16384, V_B))
    b('s_lshl_b32 s%d, s%d, 3' % (S_T0, S_QT))
    b('s_lshl_b32 s%d, s%d, 1' % (S_T1, S_W))
    b('s_add_u32 s%d, s%d, s%d' % (S_T0, S_T0, S_T1))
    b('s_lshl_b32 s%d, s%d, 14' % (S_BB, S_T0))
    b('s_add_u32 s%d, s%d, 0x%x' % (S_BB, S_BB, WS_H2))
    b('s_mov_b32 s%d, 0' % S_OFFB)
    b('s_mov_b32 s%d, s%d' % (S_B1, S_BB))
    b('v_bfe_u32 v%d, v0, 2, 2' % T)
    b('v_lshrrev_b32 v%d, 4, v0' % (T + 1))
    b('v_lshl_add_u32 v%d, v%d, 2, v%d' % (T + 2, T + 1, T))
    b('v_mul_u32_u24 v%d, 192, v%d' % (T + 2, T + 2))
    b('v_and_b32 v%d, 3, v0' % (T + 3))
    b('v_lshl_add_u32 v%d, v%d, 3, v%d' % (T + 2, T + 3, T + 2))
    b('v_and_b32 v%d, 1, v%d' % (T + 1, T + 1))
    for nb in range(6):
        b('v_xor_b32 v%d, %d, v%d' % (T + 3, nb, T + 1))
        b('v_lshl_add_u32 v%d, v%d, 5, v%d' % (V_A + nb, T + 3, T + 2))
    for i in range(96):
        b('v_mov_b32 v%d, 0' % (V_ACC + i))
    b('s_mul_i32 s%d, s%d, %d' % (S_HB, S_T0, 43 * 1024))
    b('s_mul_i32 s%d, s%d, 3072' % (S_T1, S_FG))
    b('s_add_u32 s%d, s%d, s%d' % (S_HB, S_HB, S_T1))
    b('s_add_u32 s%d, s%d, 0x%x' % (S_HB, S_HB, WS_HH))
    b('s_mov_b32 s%d, 0' % S_P)
    b('s_mov_b32 s%d, %d' % (S_D, SLOT))
    b('s_mov_b32 s%d, %d' % (S_SLOT, SLOT))
    flag_off(b, S_SY + 3, F_H2, S_QT)
    yield
    for st in range(2):
        for t in b_load(st, S_B1, st): b(t)
    for t in next_b(S_B1): b(t)
    for t in b_load(2, S_B1, 0): b(t)
    for t in next_b(S_B2): b(t)
    stamp(b, 16)
    for t in a_reads(0, 0): b(t)

    b.loop_begin()
    b.label(name + '_loop')
    sc = Sched()
    for half in range(2):
        tag = 'WO' if half == 0 else 'WE'
        d = dma_w(tag)
        for i in range(2):
            st = 2 * half + i
            base = 24 * st
            k = 0
            for nb in range(6):
                for mat in range(2):
                    for qq in range(2):
                        dd = vr(V_ACC + ((mat * 6 + nb) * 2 + qq) * 4, 4)
                        sc.mfma(base + k, '%s %s, %s, %s, %s' % (MF, dd, vr(V_AF + 48 * i + 4 * (mat * 6 + nb), 4), ar(8 * st + 4 * qq, 4), dd))
                        k += 1
            rd = a_reads((i + 1) & 1, (i + 1) & 1)
            if i == 1:
                wt = 'WO' if half == 0 else 'WE'
                age = 1
                sc.add(base, lambda bb, wt=wt, half=half: (bb.waitvm(wt, 1), bb('s_barrier')))
                for nb in range(6):
                    sc.add(base + nb // 2, 'v_add_u32 v%d, s%d, v%d' % (V_A + nb, S_D, V_A + nb))
                for k, t in enumerate(rd):
                    sc.add(base + min(23, max(k, 3) if k < 4 else k), t)
            else:
                for k, t in enumerate(rd):
                    sc.add(base + k, t)
            ahead = i + 3
            sreg = S_B1 if ahead < 4 else S_B2
            bl = b_load((st + 3) & 3, sreg, ahead & 1)
            grp = d[i]
            sc.add(base + 1, grp[0][0]); sc.add(base + 2, grp[1][0]); sc.add(base + 3, grp[2][0])
            sc.add(base + 5, bl[0])
            sc.add(base + 8, grp[3][0], tag)
            sc.add(base + 11, bl[1])
            sc.add(base + 14, grp[4][0], tag)
            sc.add(base + 19, grp[5][0], tag)
        c0 = 48 * half
        upd = ['s_add_u32 s%d, s%d, 1' % (S_P, S_P), 's_mov_b32 s%d, s%d' % (S_B1, S_B2)] + next_b(S_B2) + \
              ['s_cmp_ge_u32 s%d, 6' % S_P, 's_cselect_b32 s%d, 0x%x, s%d' % (S_B2, OOB, S_B2),
               's_cmp_ge_u32 s%d, 7' % S_P, 's_cselect_b32 s%d, 0x%x, s%d' % (S_B1, OOB, S_B1)]
        groups = [upd[:2], upd[2:5], upd[5:7], upd[7:9]]
        adv = advance_a()
        groups += [adv[:1] + adv[1:3], adv[3:4], adv[4:7],
                   ['s_cmp_ge_u32 s%d, 5' % S_P, 's_cselect_b32 s%d, 0x%x, s%d' % (S_A3, OOB, S_A3)]]
        for k, grp in enumerate(groups):
            for t in grp: sc.add(c0 + 24 + 12 + k + (3 if k >= 4 else 0) + (1 if k >= 4 else 0), t)
        sc.add(c0 + 47, 's_mul_hi_u32 s%d, s%d, 0x2aaaaaab' % (S_T1, S_P))
        sc.add(c0 + 47, 's_mul_i32 s%d, s%d, 6' % (S_T1, S_T1))
        sc.add(c0 + 47, 's_sub_u32 s%d, s%d, s%d' % (S_T1, S_P, S_T1))
        sc.add(c0 + 47, 's_cmp_eq_u32 s%d, 5' % S_T1)
        sc.add(c0 + 47, 's_cselect_b32 s%d, 0x%x, s%d' % (S_D, (-5 * SLOT) & 0xffffffff, S_SLOT))
    sc.emit(b, 0, 96)
    b('s_cmp_lt_u32 s%d, 8' % S_P)
    b('s_cbranch_scc1 %s_loop' % name)
    b.loop_end(4)
    stamp(b, 17)
    b('v_lshlrev_b32 v%d, 4, v0' % V_T)
    for v in range(3):
        if v == 1:
            b('s_cmp_ge_u32 s%d, 14' % S_FG)
            b('s_cbranch_scc1 %s_stored' % name)
        for qq in range(2):
            t0 = 32 + 8 * (v * 2 + qq)
            for jj in range(2):
                nb = 2 * v + jj
                g = V_ACC + (nb * 2 + qq) * 4
                u = V_ACC + ((6 + nb) * 2 + qq) * 4
                for i in range(4):
                    b('v_mul_f32 v%d, v%d, v%d' % (g + i, g + i, u + i))
                for i in range(2):
                    b('v_cvt_pk_bf16_f32 v%d, v%d, v%d' % (t0 + 2 * jj + i, g + 2 * i, g + 2 * i + 1))
            b('s_add_u32 s%d, s%d, %d' % (S_T0, S_HB, qq * 43 * 1024))
            b('buffer_store_dwordx4 %s, v%d, s[%d:%d], s%d offen offset:%d sc1' % (vr(t0, 4), V_T, S_WS, S_WS + 3, S_T0, v * 1024))
    b.label(name + '_stored')
    flag_off(b, S_SY, F_HH, S_QT)


def p5(b, name):
    S_WD, S_OUT = 8, 16
    S_W, S_QT, S_NT, S_T0, S_T1, S_T2 = 20, 21, 22, 23, 24, 25
    S_A, S_B, S_LB, S_N, S_L, S_D, S_LIM, S_S, S_RING, S_SA = 26, 27, 28, 29, 30, 31, 32, 33, 34, 35
    V_WOFF, V_B, V_A, V_BR, V_T = 2, 4, 8, 12, 16
    V_AF, V_BF = 32, 48
    V_ACC = 64
    STEP, RING = 8192, 4
    NS = 11
    b('s_and_b32 s%d, s2, 7' % S_T0)
    b('s_lshr_b32 s%d, s2, 3' % S_T1)
    b('s_lshr_b32 s%d, s%d, 1' % (S_QT, S_T0))
    b('s_mov_b32 s%d, s%d' % (S_W, S_WAVE))
    b('s_lshl_b32 s%d, s%d, 3' % (S_QT, S_QT))
    b('s_lshr_b32 s%d, s%d, 2' % (S_T2, S_T1))
    b('s_add_u32 s%d, s%d, s%d' % (S_QT, S_QT, S_T2))
    b('s_and_b32 s%d, s%d, 1' % (S_NT, S_T0))
    b('s_lshl_b32 s%d, s%d, 2' % (S_NT, S_NT))
    b('s_and_b32 s%d, s%d, 3' % (S_T1, S_T1))
    b('s_add_u32 s%d, s%d, s%d' % (S_NT, S_NT, S_T1))
    T = V_T
    b('v_lshrrev_b32 v%d, 3, v0' % T)
    b('v_and_b32 v%d, 7, v0' % (T + 1))
    b('v_bfe_u32 v%d, v%d, 1, 2' % (T + 2, T))
    b('v_lshlrev_b32 v%d, 1, v%d' % (T + 2, T + 2))
    b('v_xor_b32 v%d, v%d, v%d' % (T + 1, T + 1, T + 2))
    b('v_lshlrev_b32 v%d, 4, v%d' % (T + 1, T + 1))
    b('v_lshl_add_u32 v%d, v%d, 10, v%d' % (V_WOFF, T, T + 1))
    b('v_lshlrev_b32 v%d, 4, v0' % V_B)
    for qb in range(1, 4):
        b('v_add_u32 v%d, %d, v%d' % (V_B + qb, qb * 43 * 1024, V_B))
    b('s_mul_i32 s%d, s%d, 11' % (S_T0, S_W))
    b('s_lshl_b32 s%d, s%d, 15' % (S_A, S_T0))
    b('s_lshl_b32 s%d, s%d, 7' % (S_T1, S_NT))
    b('s_add_u32 s%d, s%d, s%d' % (S_A, S_A, S_T1))
    b('s_mul_i32 s%d, s%d, %d' % (S_B, S_QT, 4 * 43 * 1024))
    b('s_lshl_b32 s%d, s%d, 10' % (S_T1, S_T0))
    b('s_add_u32 s%d, s%d, s%d' % (S_B, S_B, S_T1))
    b('s_add_u32 s%d, s%d, 0x%x' % (S_B, S_B, WS_HH))
    b('s_lshl_b32 s%d, s%d, 15' % (S_LB, S_W))
    b('s_mov_b32 s%d, s%d' % (S_L, S_LB))
    b('s_cmp_eq_u32 s%d, 3' % S_W)
    b('s_cselect_b32 s%d, 10, 11' % S_LIM)
    b('s_mov_b32 s%d, 0' % S_N)
    mk_srd(b, S_WD, P_WD, 1376 * 1024); mk_srd(b, S_OUT, P_OUT, 2048 * 1024)

    def request():
        ops = []
        for i in range(4):
            ops.append(['s_add_u32 m0, s%d, %d' % (S_L, i * 1024), 's_add_u32 s%d, s%d, %d' % (S_T2, S_A, i * 8192),
                        'buffer_load_dwordx4 v%d, s[%d:%d], s%d offen lds' % (V_WOFF, S_WD, S_WD + 3, S_T2)])
        for qb in range(4):
            ops.append(['s_add_u32 m0, s%d, %d' % (S_L, 4096 + qb * 1024), 's_nop 0',
                        'buffer_load_dwordx4 v%d, s[%d:%d], s%d offen sc1 lds' % (V_B + qb, S_WS, S_WS + 3, S_B)])
        nxt = ['s_add_u32 s%d, s%d, 1' % (S_N, S_N), 's_add_u32 s%d, s%d, 32768' % (S_A, S_A), 's_add_u32 s%d, s%d, 1024' % (S_B, S_B),
               's_cmp_ge_u32 s%d, s%d' % (S_N, S_LIM), 's_cselect_b32 s%d, 0x%x, s%d' % (S_A, OOB, S_A),
               's_cselect_b32 s%d, 0x%x, s%d' % (S_B, OOB, S_B),
               's_add_u32 s%d, s%d, %d' % (S_L, S_L, STEP), 's_and_b32 s%d, s%d, 0x7fff' % (S_L, S_L), 's_add_u32 s%d, s%d, s%d' % (S_L, S_L, S_LB)]
        return ops, nxt

    b('v_bfe_u32 v%d, v0, 2, 2' % T)
    b('v_lshrrev_b32 v%d, 4, v0' % (T + 1))
    b('v_lshl_add_u32 v%d, v%d, 2, v%d' % (T + 1, T + 1, T))
    b('v_bfe_u32 v%d, v%d, 1, 2' % (T + 2, T + 1))
    b('v_lshlrev_b32 v%d, 7, v%d' % (T + 1, T + 1))
    b('v_and_b32 v%d, 3, v0' % (T + 3))
    b('v_lshl_add_u32 v%d, v%d, 3, v%d' % (T + 1, T + 3, T + 1))
    for nb in range(4):
        b('v_xor_b32 v%d, %d, v%d' % (T + 3, nb, T + 2))
        b('v_lshlrev_b32 v%d, 5, v%d' % (T + 3, T + 3))
        b('v_add3_u32 v%d, v%d, v%d, s%d' % (V_A + nb, T + 3, T + 1, S_LB))
    b('v_add_u32 v%d, s%d, v%d' % (V_BR, S_LB, V_B))
    for i in range(64):
        b('v_mov_b32 v%d, 0' % (V_ACC + i))
    b('s_mov_b32 s%d, 0' % S_S)
    b('s_mov_b32 s%d, %d' % (S_RING, STEP))
    b('s_mov_b32 s%d, %d' % (S_D, STEP))
    b('s_lshr_b32 s%d, s%d, 1' % (S_T1, S_QT))
    flag_off(b, S_SY + 3, F_HH, S_T1)
    yield
    b('s_mov_b32 s%d, s%d' % (S_SA, S_A))
    for st in range(RING - 1):
        for i in range(4):
            b('s_add_u32 m0, s%d, %d' % (S_LB, st * STEP + i * 1024))
            b('s_add_u32 s%d, s%d, %d' % (S_T2, S_SA, st * 32768 + i * 8192))
            b('buffer_load_dwordx4 v%d, s[%d:%d], s%d offen lds' % (V_WOFF, S_WD, S_WD + 3, S_T2))
    yield
    for st in range(RING - 1):
        for qb in range(4):
            b('s_add_u32 m0, s%d, %d' % (S_LB, st * STEP + 4096 + qb * 1024))
            b('s_add_u32 s%d, s%d, %d' % (S_T2, S_B, st * 1024))
            b('buffer_load_dwordx4 v%d, s[%d:%d], s%d offen sc1 lds' % (V_B + qb, S_WS, S_WS + 3, S_T2))
    b('s_mov_b32 s%d, 3' % S_N)
    b('s_add_u32 s%d, s%d, %d' % (S_A, S_A, 3 * 32768))
    b('s_add_u32 s%d, s%d, %d' % (S_B, S_B, 3 * 1024))
    b('s_add_u32 s%d, s%d, %d' % (S_L, S_LB, 3 * STEP))
    b('s_waitcnt vmcnt(4)')
    stamp(b, 20)

    b.loop_begin()
    b.label(name + '_loop')
    b('s_waitcnt vmcnt(16)')
    for nb in range(4):
        for jj in range(2):
            b('ds_read_b64_tr_b16 %s, v%d offset:%d' % (vr(V_AF + 4 * nb + 2 * jj, 2), V_A + nb, jj * 2048))
        if nb == 0:
            for qb in range(4):
                b('ds_read_b128 %s, v%d offset:%d' % (vr(V_BF + 4 * qb, 4), V_BR, 4096 + qb * 1024))
    ops, nxt = request()
    sc = Sched()
    for nb in range(4):
        for qb in range(4):
            d = vr(V_ACC + (nb * 4 + qb) * 4, 4)
            sc.mfma(4 * nb + qb, '%s %s, %s, %s, %s' % (MF, d, vr(V_AF + 4 * nb, 4), vr(V_BF + 4 * qb, 4), d))
    for grp in ops[:2]:
        for t in grp: b(t)
    for k, grp in enumerate(ops[2:]):
        for t in grp: sc.add(2 * k, t)
    sc.add(12, 's_sub_u32 s%d, s%d, s%d' % (S_L, S_L, S_LB))
    for k, t in enumerate(nxt):
        sc.add(12 + (k // 3 if k < 3 else (1 if k < 6 else 2)), t)
    for nb in range(4):
        sc.add(4 * nb + 3, 'v_add_u32 v%d, s%d, v%d' % (V_A + nb, S_D, V_A + nb))
    sc.add(5, 'v_add_u32 v%d, s%d, v%d' % (V_BR, S_D, V_BR))
    sc.emit(b, 0, 16)
    b('s_add_u32 s%d, s%d, 1' % (S_S, S_S))
    b('s_and_b32 s%d, s%d, 3' % (S_T1, S_S))
    b('s_cmp_eq_u32 s%d, 3' % S_T1)
    b('s_cselect_b32 s%d, 0x%x, s%d' % (S_D, (-3 * STEP) & 0xffffffff, S_RING))
    b('s_cmp_lt_u32 s%d, %d' % (S_S, NS))
    b('s_cbranch_scc1 %s_loop' % name)
    b.loop_end(NS)
    stamp(b, 21)
    X, G = 32, 40
    b('s_lshl_b32 s%d, s%d, 2' % (S_T0, S_QT))
    b('s_add_u32 s%d, s%d, s%d' % (S_T0, S_T0, S_W))
    b('s_lshl_b32 s%d, s%d, 14' % (S_T1, S_T0))
    b('s_lshl_b32 s%d, s%d, 11' % (S_T2, S_NT))
    b('s_add_u32 s%d, s%d, s%d' % (S_T1, S_T1, S_T2))
    b('s_add_u32 s%d, s%d, 0x%x' % (S_T1, S_T1, WS_X1))
    for v in range(2):
        b('buffer_load_dwordx4 %s, v%d, s[%d:%d], s%d offen offset:%d sc1' % (vr(X + 4 * v, 4), V_B, S_WS, S_WS + 3, S_T1, v * 1024))
    b('v_lshrrev_b32 v%d, 4, v0' % T)
    b('v_lshlrev_b32 v%d, 4, v%d' % (T, T))
    b('s_lshl_b32 s%d, s%d, 8' % (S_T2, S_NT))
    b('s_add_u32 s%d, s%d, %d' % (S_T2, S_T2, WS_MOD + 5 * 2048))
    load_mod(b, ['buffer_load_dwordx4 %s, v%d, s[%d:%d], s%d offen offset:%d sc1' % (vr(G + 4 * nb, 4), T, S_WS, S_WS + 3, S_T2, nb * 64)
                 for nb in range(4)], list(range(G, G + 16)), T + 3)
    b('s_waitcnt vmcnt(0)')
    b('s_barrier')
    b('s_lshl_b32 s%d, s%d, 12' % (S_T1, S_W))
    b('v_add_u32 v%d, s%d, v%d' % (T + 1, S_T1, V_B))
    for qb in range(4):
        for nb in range(4):
            b('ds_write_b128 v%d, %s offset:%d' % (T + 1, vr(V_ACC + (nb * 4 + qb) * 4, 4), qb * 16384 + nb * 1024))
    b('s_waitcnt lgkmcnt(0)')
    b('s_barrier')
    b('s_lshl_b32 s%d, s%d, 14' % (S_T1, S_W))
    b('v_add_u32 v%d, s%d, v%d' % (T + 1, S_T1, V_B))
    R = 128
    for w in range(4):
        for nb in range(4):
            b('ds_read_b128 %s, v%d offset:%d' % (vr(R + 16 * w + 4 * nb, 4), T + 1, w * 4096 + nb * 1024))
    for i in range(16):
        b('v_add_f32 v%d, v%d, v%d' % (R + i, R + i, R + 16 + i))
        b('v_add_f32 v%d, v%d, v%d' % (R + 32 + i, R + 32 + i, R + 48 + i))
    for i in range(16):
        b('v_add_f32 v%d, v%d, v%d' % (R + i, R + i, R + 32 + i))
    Y = 96
    for p in range(8):
        b('v_lshlrev_b32 v%d, 16, v%d' % (Y + 2 * p, X + p))
        b('v_and_b32 v%d, 0xffff0000, v%d' % (Y + 2 * p + 1, X + p))
    for i in range(16):
        b('v_fmac_f32 v%d, v%d, v%d' % (Y + i, G + i, R + i))
    O = 112
    for p in range(8):
        b('v_cvt_pk_bf16_f32 v%d, v%d, v%d' % (O + p, Y + 2 * p, Y + 2 * p + 1))
    for v in range(2):
        b('v_permlane16_swap_b32 v%d, v%d' % (O + 4 * v, O + 4 * v + 2))
        b('v_permlane16_swap_b32 v%d, v%d' % (O + 4 * v + 1, O + 4 * v + 3))
    b('v_and_b32 v%d, 15, v0' % T)
    b('v_lshlrev_b32 v%d, 10, v%d' % (T, T))
    b('v_bfe_u32 v%d, v0, 4, 1' % (T + 1))
    b('v_lshlrev_b32 v%d, 5, v%d' % (T + 1, T + 1))
    b('v_lshrrev_b32 v%d, 5, v0' % (T + 2))
    b('v_lshlrev_b32 v%d, 4, v%d' % (T + 2, T + 2))
    b('v_add3_u32 v%d, v%d, v%d, v%d' % (T, T, T + 1, T + 2))
    b('s_lshl_b32 s%d, s%d, 14' % (S_T1, S_T0))
    b('s_lshl_b32 s%d, s%d, 7' % (S_T2, S_NT))
    b('s_add_u32 s%d, s%d, s%d' % (S_T1, S_T1, S_T2))
    for v in range(2):
        b('buffer_store_dwordx4 %s, v%d, s[%d:%d], s%d offen offset:%d' % (vr(O + 4 * v, 4), T, S_OUT, S_OUT + 3, S_T1, v * 64))
```

```python
import sys
from mc import *
import front, p2, p3, p45


def build_kernel(name):
    b = Block()
    b('s_cmp_ge_u32 s2, 256')
    b('s_cbranch_scc1 %s_end' % name)
    b('s_load_dwordx16 s[64:79], s[0:1], 0')
    b('s_load_dwordx8 s[80:87], s[0:1], 64')
    b('s_load_dwordx4 s[88:91], s[0:1], 96')
    b('v_lshrrev_b32 v1, 6, v0')
    b('v_and_b32 v0, 63, v0')
    b('s_nop 0')
    b('v_readfirstlane_b32 s%d, v1' % S_WAVE)
    b('s_waitcnt lgkmcnt(0)')
    mk_srd(b, S_WS, P_WSP, WS_BYTES)
    if STAMPS:
        b('s_lshl_b32 s96, s2, 2')
        b('s_add_u32 s96, s96, s%d' % S_WAVE)
        b('s_lshl_b32 s96, s96, 8')
        b('s_add_u32 s96, s96, 0x%x' % WS_STAMP)
    stamp(b, 0)
    front.front(b, name)
    b('s_lshr_b32 s%d, s2, 5' % S_SY)
    flag_off(b, S_SY, F_H, S_SY)
    p2.setup(b)
    signal(b, S_WS, S_SY)
    stamp(b, 3)
    p2.pre(b)
    p2.flag_index(b, S_SY + 3)
    await_flag(b, S_WS, S_SY + 3, 32)
    stamp(b, 4)
    p2.main(b, name)
    p2.out_flag(b, S_SY)
    stamp(b, 9)
    g3 = p3.p3(b, name + '_p3')
    next(g3)
    signal(b, S_WS, S_SY)
    stamp(b, 23)
    next(g3)
    await_flag(b, S_WS, S_SY + 3, 8)
    stamp(b, 10)
    for _ in g3: pass
    g4 = p45.p4(b, name + '_p4')
    next(g4)
    signal(b, S_WS, S_SY)
    stamp(b, 13)
    g3b = p3.p3b(b, name + '_p3b')
    next(g3b)
    next(g4)
    await_flag(b, S_WS, S_SY + 3, 16)
    stamp(b, 14)
    for _ in g3b: pass
    next(g4)
    signal(b, S_WS, S_SY)
    stamp(b, 15)
    b('s_cmp_ge_u32 s26, 15')
    b('s_cbranch_scc1 %s_p4_idle' % name)
    await_flag(b, S_WS, S_SY + 3, 16)
    for _ in g4: pass
    g5 = p45.p5(b, name + '_p5')
    next(g5)
    signal(b, S_WS, S_SY)
    next(g5)
    b('s_branch %s_p5_wait' % name)
    b.label(name + '_p4_idle')
    g5b = p45.p5(b, name + '_p5x')
    next(g5b)
    next(g5b)
    b.label(name + '_p5_wait')
    stamp(b, 18)
    await_flag(b, S_WS, S_SY + 3, 15)
    b('s_waitcnt vmcnt(0)')
    stamp(b, 19)
    for _ in g5: pass
    stamp(b, 22)
    b('s_endpgm')
    p2.fallback(b, name)
    b.label(name + '_end')
    b('s_endpgm')
    return b


def build(path, verbose=False):
    name = KNAME + '_kernel'
    head = open('cdna_kernels/' + KNAME + '.s.ref').read().split('; Override launch geometry')[0]
    b = build_kernel(name)
    log = []
    text = finalize(b, log)
    if verbose:
        print('%d lines, %d nop insertions' % (text.count('\n'), len(log)))
        for l in log:
            if 'permlane' not in l and 'lds"' not in l: print('   ', l)
    form = os.environ.get('FORM', 'single')
    if form == 'single':
        launch = '; @launch grid=(256,1,1) block=(256,1,1) lds=163840'
    else:
        launch = '; @launch kernel=%s grid=(256,1,1) block=(256,1,1) lds=163840' % name
    out = [head.rstrip(), launch, '.amdgcn_target "amdgcn-amd-amdhsa--gfx950"', '.text', kernel_header(name) + text,
           '.section .rodata,"a"', kernel_descriptor(name, 256, 256)]
    open(path, 'w').write('\n'.join(out))


if __name__ == '__main__':
    build(sys.argv[1] if len(sys.argv) > 1 else 'mega.s', verbose=True)
```

```python
from mc import *

LN_LDS = 163840 - 512
MF = 'v_mfma_f32_16x16x32_bf16'


def prefetches(b):
    lk = uid('pf')
    b('s_cmp_lt_u32 s2, 96')
    b('s_cbranch_scc1 %s' % lk)
    mk_srd(b, 28, P_WQ, 512 * 8192)
    b('v_lshrrev_b32 v72, 4, v0')
    b('v_lshlrev_b32 v72, 13, v72')
    b('v_and_b32 v73, 15, v0')
    b('v_lshl_add_u32 v72, v73, 7, v72')
    b('s_lshr_b32 s32, s2, 3')
    b('s_sub_u32 s32, s32, 12')
    b('s_lshl_b32 s32, s32, 2')
    b('s_add_u32 s32, s32, s%d' % S_WAVE)
    b('s_lshl_b32 s32, s32, 16')
    b('s_bfe_u32 s33, s2, 0x20001')
    b('s_lshl_b32 s33, s33, 11')
    b('s_add_u32 s32, s32, s33')
    b('s_add_u32 s33, s32, 32768')
    if 'nowqpf' not in OPT:
        raw(b, 'buffer_load_dword v250, v72, s[28:31], s32 offen')
        raw(b, 'buffer_load_dword v250, v72, s[28:31], s33 offen')
    if 'nokvpf' not in OPT:
        b('s_cmp_ge_u32 s%d, 2' % S_WAVE)
        b('s_cselect_b32 s28, s%d, s%d' % (P_V, P_K))
        b('s_cselect_b32 s29, s%d, s%d' % (P_V + 1, P_K + 1))
        b('s_mov_b32 s30, 0x%x' % (32 * 2048 * 256))
        b('s_mov_b32 s31, 0x20000')
        b('s_lshr_b32 s32, s2, 3')
        b('s_sub_u32 s32, s32, 12')
        b('s_lshr_b32 s33, s32, 1')
        b('s_bfe_u32 s34, s2, 0x20001')
        b('s_lshl_b32 s34, s34, 3')
        b('s_add_u32 s34, s34, s33')
        b('s_lshl_b32 s34, s34, 19')
        b('s_add_u32 s34, s34, %d' % (1536 * 256))
        b('s_and_b32 s35, s32, 1')
        b('s_lshl_b32 s35, s35, 14')
        b('s_add_u32 s34, s34, s35')
        b('s_and_b32 s35, s%d, 1' % S_WAVE)
        b('s_lshl_b32 s35, s35, 13')
        b('s_add_u32 s34, s34, s35')
        b('s_cmp_ge_u32 s33, 8')
        b('s_cselect_b32 s34, 0x%x, s34' % OOB)
        b('v_lshlrev_b32 v72, 7, v0')
        raw(b, 'buffer_load_dword v250, v72, s[28:31], s34 offen')
    b.label(lk)


def front(b, name):
    S_C, S_WM, S_X = 8, 12, 16
    S_T0, S_T1 = 24, 25
    mk_srd(b, S_DBGS, P_DBG, 256)
    b('s_lshl_b32 s%d, s%d, 6' % (S_T0, S_WAVE))
    b('v_add_u32 v3, s%d, v0' % S_T0)
    l0 = uid('notp0')
    b('s_cmp_ge_u32 s2, 96')
    b('s_cbranch_scc1 %s' % l0)
    mk_srd(b, S_C, P_C, 1024)
    mk_srd(b, S_WM, P_WMOD, 512 * 6144)
    b('v_lshlrev_b32 v80, 2, v0')
    b('s_lshl_b32 s26, s%d, 8' % S_WAVE)
    b('buffer_load_dword v84, v80, s[%d:%d], s26 offen' % (S_C, S_C + 3))
    b('v_lshrrev_b32 v81, 2, v0')
    b('v_mul_u32_u24 v81, 6144, v81')
    b('v_and_b32 v82, 3, v0')
    b('v_lshl_add_u32 v81, v82, 4, v81')
    b('s_mul_i32 s27, s%d, %d' % (S_WAVE, 128 * 6144))
    b('s_lshl_b32 s28, s2, 6')
    b('s_add_u32 s27, s27, s28')
    b('s_lshl_b32 s28, s%d, 13' % S_WAVE)
    for i in range(8):
        b('s_add_u32 m0, s28, %d' % (i * 1024))
        b('s_add_u32 s29, s27, %d' % (i * 16 * 6144))
        b('buffer_load_dwordx4 v81, s[%d:%d], s29 offen lds' % (S_WM, S_WM + 3), 'P0W')
    b.label(l0)
    l1 = uid('notclr')
    b('s_cmp_lg_u32 s2, 255')
    b('s_cbranch_scc1 %s' % l1)
    b('v_lshlrev_b32 v80, 4, v3')
    for i in range(4):
        b('v_mov_b32 v%d, -1' % (84 + i))
    for i in range(3):
        b('s_mov_b32 s26, %d' % (WS_MOD + i * 4096))
        b('buffer_store_dwordx4 v[84:87], v80, s[%d:%d], s26 offen sc1' % (S_WS, S_WS + 3))
    b('v_lshlrev_b32 v80, 7, v3')
    b('v_mov_b32 v88, 0')
    b('v_cmp_gt_u32 vcc, %d, v3' % F_COUNT)
    b('s_and_saveexec_b64 s[34:35], vcc')
    b('s_mov_b32 s26, 0x%x' % WS_FLAG)
    b('buffer_store_dword v88, v80, s[%d:%d], s26 offen sc1' % (S_WS, S_WS + 3))
    b('s_mov_b64 exec, s[34:35]')
    b('s_waitcnt vmcnt(0)')
    b('s_barrier')
    raw(b, '''s_cmp_lg_u32 s%d, 0
    s_cbranch_scc1 %s
    v_mov_b32 v88, 1
    buffer_store_dword v88, off, s[%d:%d], 0 sc1''' % (S_WAVE, l1, S_DBGS, S_DBGS + 3))
    b.label(l1)
    mk_srd(b, S_X, P_X, 2048 * 1024)
    b('v_and_b32 v1, 7, v0')
    b('v_lshrrev_b32 v2, 3, v3')
    b('v_lshlrev_b32 v4, 10, v1')
    b('v_lshrrev_b32 v5, 1, v2')
    b('v_lshl_add_u32 v4, v5, 6, v4')
    b('v_and_b32 v6, 1, v2')
    b('v_lshl_add_u32 v4, v6, 3, v4')
    b('s_lshl_b32 s36, s2, 13')
    for j in range(4):
        b('buffer_load_dwordx2 v[%d:%d], v4, s[%d:%d], s36 offen offset:%d' % (8 + 2 * j, 9 + 2 * j, S_X, S_X + 3, 16 * j))
    b('v_lshlrev_b32 v7, 7, v5')
    b('v_lshl_add_u32 v7, v6, 4, v7')
    b('v_lshlrev_b32 v74, 11, v5')
    b('v_lshl_add_u32 v74, v6, 9, v74')
    b('s_and_b32 s%d, s2, 3' % S_T0)
    b('s_lshl_b32 s%d, s%d, 3' % (S_T0, S_T0))
    b('v_add_u32 v6, s%d, v1' % S_T0)
    b('v_lshl_add_u32 v6, v6, 4, v74')
    l2, l2a = uid('p0done'), uid('nop0')
    b('s_cmp_ge_u32 s2, 96')
    b('s_cbranch_scc1 %s' % l2a)
    b('s_waitcnt vmcnt(12)')
    if 'fst' in OPT: raw_stamp(b, 24)
    b('v_lshlrev_b32 v64, 16, v84')
    b('v_and_b32 v65, 0xffff0000, v84')
    for i in range(2):
        b('v_mul_f32 v%d, %s, v%d' % (66 + i, f32(-LOG2E), 64 + i))
    for i in range(2):
        b('v_exp_f32 v%d, v%d' % (66 + i, 66 + i))
    for i in range(2):
        b('v_add_f32 v%d, 1.0, v%d' % (66 + i, 66 + i))
    for i in range(2):
        b('v_rcp_f32 v%d, v%d' % (66 + i, 66 + i))
    for i in range(2):
        b('v_mul_f32 v%d, v%d, v%d' % (64 + i, 64 + i, 66 + i))
    b('v_cvt_pk_bf16_f32 v64, v64, v65')
    b('s_lshl_b32 s26, s%d, 8' % S_WAVE)
    b('s_add_u32 s26, s26, 32768')
    b('v_lshl_add_u32 v65, v0, 2, s26')
    b('ds_write_b32 v65, v64')
    b('v_lshrrev_b32 v66, 4, v0')
    b('v_lshl_add_u32 v67, v66, 4, s26')
    b('v_bfe_u32 v68, v0, 2, 2')
    b('v_lshl_add_u32 v68, v66, 3, v68')
    b('v_lshlrev_b32 v68, 6, v68')
    b('v_and_b32 v69, 3, v0')
    b('v_lshl_add_u32 v68, v69, 3, v68')
    b('s_lshl_b32 s27, s%d, 13' % S_WAVE)
    b('v_add_u32 v68, s27, v68')
    b('s_waitcnt lgkmcnt(0)')
    for u in range(4):
        b('ds_read_b128 v[%d:%d], v67 offset:%d' % (96 + 4 * u, 99 + 4 * u, 64 * u))
    b('s_waitcnt vmcnt(4)' if 'fst' not in OPT else 's_waitcnt vmcnt(5)')
    if 'fst' in OPT: raw_stamp(b, 25)
    for u in range(4):
        for nb in range(2):
            for jj in range(2):
                r = 112 + 8 * u + 4 * nb + 2 * jj
                b('ds_read_b64_tr_b16 v[%d:%d], v68 offset:%d' % (r, r + 1, u * 2048 + jj * 256 + nb * 32))
    for u in range(4):
        for nb in range(2):
            r = 112 + 8 * u + 4 * nb
            d = 'v[%d:%d]' % (144 + 4 * nb, 147 + 4 * nb)
            b('%s %s, v[%d:%d], v[%d:%d], %s' % (MF, d, r, r + 3, 96 + 4 * u, 99 + 4 * u, '0' if u == 0 else d))
    b('s_lshl_b32 s26, s%d, 7' % S_WAVE)
    b('s_add_u32 s26, s26, 34816')
    b('v_lshl_add_u32 v69, v66, 4, s26')
    b('ds_write_b128 v69, v[144:147]')
    b('ds_write_b128 v69, v[148:151] offset:64')
    b('s_waitcnt lgkmcnt(0)')
    b('s_barrier')
    b('v_and_b32 v70, 31, v0')
    b('v_lshlrev_b32 v70, 2, v70')
    for w in range(4):
        b('ds_read_b32 v%d, v70 offset:%d' % (96 + w, 34816 + 128 * w))
    b('v_add_f32 v96, v96, v97')
    b('v_add_f32 v98, v98, v99')
    b('v_add_f32 v96, v96, v98')
    b('v_cvt_pk_bf16_f32 v96, v96, v96')
    b('v_and_b32 v96, 0xffff0000, v96')
    b('v_add_f32 v97, 1.0, v96')
    b('v_cvt_pk_bf16_f32 v97, v97, v97')
    b('v_and_b32 v97, 0xffff0000, v97')
    b('v_mul_f32 v98, %s, v96' % f32(QSCALE))
    b('s_lshr_b32 s26, s2, 4')
    b('s_cmp_eq_u32 s26, 0')
    b('s_cselect_b64 vcc, -1, 0')
    b('v_cndmask_b32 v96, v96, v98, vcc')
    b('s_cmp_eq_u32 s26, 1')
    b('s_cselect_b64 vcc, -1, 0')
    b('v_cndmask_b32 v96, v96, v97, vcc')
    b('s_cmp_eq_u32 s26, 4')
    b('s_cselect_b64 vcc, -1, 0')
    b('v_cndmask_b32 v96, v96, v97, vcc')
    if 'fst' in OPT: raw_stamp(b, 26)
    await_ready(b)
    if 'fst' in OPT: raw_stamp(b, 27)
    b('s_lshl_b32 s27, s2, 7')
    raw(b, '''s_cmp_lg_u32 s%d, 0
    s_cbranch_scc1 %s
    s_mov_b32 exec_hi, 0
    buffer_store_dword v96, v70, s[%d:%d], s27 offen offset:%d sc1
    s_mov_b32 exec_hi, -1''' % (S_WAVE, l2, S_WS, S_WS + 3, WS_MOD))
    b('s_branch %s' % l2)
    b.label(l2a)
    b('s_waitcnt vmcnt(0)')
    b.label(l2)
    stamp(b, 1)
    X = 16
    for p in range(8):
        b('v_lshlrev_b32 v%d, 16, v%d' % (X + 2 * p, 8 + p))
        b('v_and_b32 v%d, 0xffff0000, v%d' % (X + 2 * p + 1, 8 + p))
    if 'midpf' in OPT: prefetches(b)
    layernorm16(b, X, 32, 1, LN_LDS, QSCALE)
    if 'fst' in OPT: raw_stamp(b, 28)
    await_ready(b)
    if 'midpf' not in OPT: prefetches(b)
    if 'fst' in OPT: raw_stamp(b, 29)
    loads = []
    for j in range(4):
        loads.append('buffer_load_dwordx4 v[%d:%d], v7, s[%d:%d], 0 offen offset:%d sc1' % (48 + 4 * j, 51 + 4 * j, S_WS, S_WS + 3, WS_MOD + 32 * j))
        loads.append('buffer_load_dwordx4 v[%d:%d], v7, s[%d:%d], 0 offen offset:%d sc1' % (64 + 4 * j, 67 + 4 * j, S_WS, S_WS + 3, WS_MOD + 2048 + 32 * j))
    load_mod(b, loads, list(range(48, 80)), 40)
    stamp(b, 2)
    for i in range(16):
        b('v_fma_f32 v%d, v%d, v%d, v%d' % (X + i, X + i, 64 + i, 48 + i))
    for p in range(8):
        b('v_cvt_pk_bf16_f32 v%d, v%d, v%d' % (8 + p, X + 2 * p, X + 2 * p + 1))
    b('s_lshr_b32 s%d, s2, 2' % S_T0)
    b('s_lshl_b32 s%d, s%d, 15' % (S_T0, S_T0))
    b('s_add_u32 s%d, s%d, 0x%x' % (S_T0, S_T0, WS_H))
    b('buffer_store_dwordx4 v[8:11], v6, s[%d:%d], s%d offen sc1' % (S_WS, S_WS + 3, S_T0))
    b('buffer_store_dwordx4 v[12:15], v6, s[%d:%d], s%d offen offset:1024 sc1' % (S_WS, S_WS + 3, S_T0))
```

```python
from mc import *
from front import LN_LDS

MF = 'v_mfma_f32_16x16x32_bf16'


def p3(b, name):
    S_WO = 8
    S_W, S_KS, S_QT, S_NT, S_ROT, S_W8K = 16, 17, 18, 19, 20, 21
    S_AB, S_BB, S_T0, S_T1, S_T2, S_PB = 22, 23, 24, 25, 26, 27
    S_P, S_B1, S_B2, S_A2, S_L2, S_D, S_OFFB, S_OFFA, S_SLOT = 28, 29, 30, 31, 32, 33, 34, 35, 36
    V_WOFF, V_B, V_A, V_T = 2, 10, 12, 20
    V_AF = 32
    V_ACC = 128
    SLOT = 32768
    OOB = 0x10000000
    b('s_and_b32 s%d, s2, 7' % S_T0)
    b('s_lshr_b32 s%d, s2, 3' % S_T1)
    b('s_lshr_b32 s%d, s%d, 1' % (S_KS, S_T0))
    b('s_mov_b32 s%d, s%d' % (S_W, S_WAVE))
    b('s_and_b32 s%d, s%d, 1' % (S_T0, S_T0))
    b('s_lshl_b32 s%d, s%d, 3' % (S_T0, S_T0))
    b('s_lshr_b32 s%d, s%d, 2' % (S_QT, S_T1))
    b('s_and_b32 s%d, s%d, 3' % (S_NT, S_T1))
    b('s_lshl_b32 s%d, s%d, 1' % (S_ROT, S_NT))
    b('s_add_u32 s%d, s%d, s%d' % (S_ROT, S_ROT, S_QT))
    b('s_and_b32 s%d, s%d, 7' % (S_ROT, S_ROT))
    b('s_mov_b32 s%d, 0' % S_ROT)
    b('s_add_u32 s%d, s%d, s%d' % (S_QT, S_QT, S_T0))
    T = V_T
    b('v_lshrrev_b32 v%d, 4, v0' % T)
    b('v_and_b32 v%d, 15, v0' % (T + 1))
    b('v_lshlrev_b32 v%d, 1, v%d' % (T + 2, T))
    b('v_xor_b32 v%d, v%d, v%d' % (T + 2, T + 2, T + 1))
    b('v_lshlrev_b32 v%d, 4, v%d' % (T + 2, T + 2))
    b('v_lshl_add_u32 v%d, v%d, 10, v%d' % (V_WOFF, T, T + 2))
    b('v_xor_b32 v%d, 128, v%d' % (V_WOFF + 4, V_WOFF))
    for ii in range(1, 4):
        b('v_add_u32 v%d, %d, v%d' % (V_WOFF + ii, ii * 3072, V_WOFF))
        b('v_add_u32 v%d, %d, v%d' % (V_WOFF + 4 + ii, ii * 3072, V_WOFF + 4))
    b('v_lshlrev_b32 v%d, 4, v0' % V_B)
    b('v_add_u32 v%d, %d, v%d' % (V_B + 1, 131072, V_B))
    b('s_lshl_b32 s%d, s%d, 13' % (S_W8K, S_W))
    b('s_lshl_b32 s%d, s%d, 20' % (S_AB, S_KS))
    b('s_lshl_b32 s%d, s%d, 15' % (S_T0, S_W))
    b('s_add_u32 s%d, s%d, s%d' % (S_AB, S_AB, S_T0))
    b('s_lshl_b32 s%d, s%d, 8' % (S_T0, S_NT))
    b('s_add_u32 s%d, s%d, s%d' % (S_AB, S_AB, S_T0))
    b('s_lshl_b32 s%d, s%d, 3' % (S_T0, S_QT))
    b('s_lshl_b32 s%d, s%d, 1' % (S_T1, S_W))
    b('s_add_u32 s%d, s%d, s%d' % (S_T0, S_T0, S_T1))
    b('s_lshl_b32 s%d, s%d, 17' % (S_BB, S_T0))
    b('s_lshl_b32 s%d, s%d, 15' % (S_T1, S_KS))
    b('s_add_u32 s%d, s%d, s%d' % (S_BB, S_BB, S_T1))
    b('s_add_u32 s%d, s%d, 0x%x' % (S_BB, S_BB, WS_O))
    b('s_lshl_b32 s%d, s%d, 17' % (S_OFFA, S_ROT))
    b('s_lshl_b32 s%d, s%d, 12' % (S_OFFB, S_ROT))
    b('s_add_u32 s%d, s%d, s%d' % (S_A2, S_AB, S_OFFA))
    b('s_add_u32 s%d, s%d, s%d' % (S_B1, S_BB, S_OFFB))
    b('s_mov_b32 s%d, s%d' % (S_L2, S_W8K))
    mk_srd(b, S_WO, P_WO, 4096 * 1024)

    def dma_w(tag):
        out = []
        for half in range(2):
            grp = [('s_add_u32 m0, s%d, %d' % (S_L2, half * 4096), None),
                   ('s_add_u32 s%d, s%d, %d' % (S_T2, S_A2, half * 16 * 1024), None)]
            for ii in range(4):
                grp.append(('buffer_load_dwordx4 v%d, s[%d:%d], s%d offen offset:%d lds' %
                            (V_WOFF + 4 * half + ii, S_WO, S_WO + 3, S_T2, ii * 1024), tag))
            out.append(grp)
        return out

    def b_load(ring, sreg, step):
        return ['buffer_load_dwordx4 %s, v%d, s[%d:%d], s%d offen offset:%d sc1' %
                (ar(8 * ring + 4 * qq, 4), V_B + qq, S_WS, S_WS + 3, sreg, step * 1024) for qq in range(2)]

    def a_reads(buf, step):
        return ['ds_read_b64_tr_b16 %s, v%d offset:%d' % (vr(V_AF + 32 * buf + 4 * nb + 2 * jj, 2), V_A + nb, step * 8192 + jj * 2048)
                for nb in range(8) for jj in range(2)]

    def advance_a():
        return ['s_add_u32 s%d, s%d, 0x20000' % (S_OFFA, S_OFFA), 's_and_b32 s%d, s%d, 0xfffff' % (S_OFFA, S_OFFA),
                's_add_u32 s%d, s%d, s%d' % (S_A2, S_AB, S_OFFA),
                's_add_u32 s%d, s%d, %d' % (S_L2, S_L2, SLOT), 's_and_b32 s%d, s%d, 0x1ffff' % (S_L2, S_L2)]

    def advance_b():
        return ['s_mov_b32 s%d, s%d' % (S_B1, S_B2),
                's_add_u32 s%d, s%d, 0x1000' % (S_OFFB, S_OFFB), 's_and_b32 s%d, s%d, 0x7fff' % (S_OFFB, S_OFFB),
                's_add_u32 s%d, s%d, s%d' % (S_B2, S_BB, S_OFFB)]

    b('v_bfe_u32 v%d, v0, 2, 2' % T)
    b('v_bfe_u32 v%d, v0, 4, 1' % (T + 1))
    b('v_lshrrev_b32 v%d, 5, v0' % (T + 2))
    b('v_lshlrev_b32 v%d, 4, v%d' % (T + 3, T + 1))
    b('v_lshlrev_b32 v%d, 2, v%d' % (T + 4, T + 2))
    b('v_add3_u32 v%d, v%d, v%d, v%d' % (T + 3, T + 3, T + 4, T))
    b('v_lshlrev_b32 v%d, 8, v%d' % (T + 3, T + 3))
    b('v_and_b32 v%d, 3, v0' % (T + 4))
    b('v_lshl_add_u32 v%d, v%d, 3, v%d' % (T + 3, T + 4, T + 3))
    b('v_lshlrev_b32 v%d, 2, v%d' % (T + 1, T + 1))
    b('v_or_b32 v%d, v%d, v%d' % (T + 1, T + 1, T))
    for nb in range(8):
        b('v_xor_b32 v%d, %d, v%d' % (T + 4, nb, T + 1))
        b('v_lshl_add_u32 v%d, v%d, 5, v%d' % (V_A + nb, T + 4, T + 3))
    for i in range(64):
        b('v_mov_b32 v%d, 0' % (V_ACC + i))
    b('s_lshl_b32 s%d, s%d, 7' % (S_PB, S_KS))
    b('s_add_u32 s%d, s%d, s%d' % (S_PB, S_PB, S_T0))
    b('s_lshl_b32 s%d, s%d, 14' % (S_PB, S_PB))
    b('s_lshl_b32 s%d, s%d, 12' % (S_T1, S_NT))
    b('s_add_u32 s%d, s%d, s%d' % (S_PB, S_PB, S_T1))
    b('s_add_u32 s%d, s%d, 0x%x' % (S_PB, S_PB, WS_PART))
    b('s_mov_b32 s%d, 0' % S_P)
    b('s_mov_b32 s%d, %d' % (S_D, SLOT))
    b('s_mov_b32 s%d, %d' % (S_SLOT, SLOT))
    b('s_lshr_b32 s%d, s%d, 1' % (S_T1, S_QT))
    b('s_lshl_b32 s%d, s%d, 2' % (S_T1, S_T1))
    b('s_add_u32 s%d, s%d, s%d' % (S_T1, S_T1, S_KS))
    flag_off(b, S_SY + 3, F_O, S_T1)
    yield
    for grp in dma_w('W0'):
        for t, g in grp: b(t, g)
    for t in advance_a(): b(t)
    for grp in dma_w('WB'):
        for t, g in grp: b(t, g, epoch=-1)
    for t in advance_a(): b(t)
    yield
    for st in range(4):
        for t in b_load(st, S_B1, st): b(t)
    b('s_add_u32 s%d, s%d, 0x1000' % (S_OFFB, S_OFFB))
    b('s_and_b32 s%d, s%d, 0x7fff' % (S_OFFB, S_OFFB))
    b('s_add_u32 s%d, s%d, s%d' % (S_B1, S_BB, S_OFFB))
    for st in range(3):
        for t in b_load(4 + st, S_B1, st): b(t)
    b('s_add_u32 s%d, s%d, 0x1000' % (S_OFFB, S_OFFB))
    b('s_and_b32 s%d, s%d, 0x7fff' % (S_OFFB, S_OFFB))
    b('s_add_u32 s%d, s%d, s%d' % (S_B2, S_BB, S_OFFB))
    b.waitvm('W0')
    b('s_barrier')
    stamp(b, 11)
    for t in a_reads(0, 0): b(t)

    b.loop_begin()
    b.label(name + '_loop')
    sc = Sched()
    for half in range(2):
        tag = 'WA' if half == 0 else 'WB'
        d = dma_w(tag)
        for i in range(4):
            st = 4 * half + i
            base = 16 * st
            for nb in range(8):
                for qq in range(2):
                    dd = vr(V_ACC + (nb * 2 + qq) * 4, 4)
                    sc.mfma(base + 2 * nb + qq, '%s %s, %s, %s, %s' % (MF, dd, vr(V_AF + 32 * (i & 1) + 4 * nb, 4), ar(8 * st + 4 * qq, 4), dd))
            if i == 3:
                if half == 0:
                    sc.add(base, lambda bb: (bb.waitvm('WB', 1), bb('s_barrier')))
                else:
                    sc.add(base, lambda bb: (bb.waitvm('WA', 0), bb('s_barrier')))
                for nb in range(8):
                    sc.add(base + (nb + 1) // 2, 'v_add_u32 v%d, s%d, v%d' % (V_A + nb, S_D, V_A + nb))
            rd = a_reads((i + 1) & 1, (i + 1) & 3)
            for k, t in enumerate(rd):
                if i == 3:
                    sc.add(base + min(15, max(k, (k // 2 + 1) // 2 + 1) if k < 4 else k), t)
                else:
                    sc.add(base + k, t)
            ahead = i + 7
            sreg = S_B1 if ahead < 8 else S_B2
            bl = b_load((st + 7) & 7, sreg, ahead & 3)
            grp = d[i // 2]
            if i % 2 == 0:
                sc.add(base + 1, grp[0][0]); sc.add(base + 2, grp[1][0])
            sc.add(base + 3, bl[0])
            sc.add(base + 6, grp[2 + 2 * (i % 2)][0], tag)
            sc.add(base + 9, bl[1])
            sc.add(base + 12, grp[3 + 2 * (i % 2)][0], tag)
        c0 = 64 * half
        sc.add(c0 + 35, 's_add_u32 s%d, s%d, 1' % (S_P, S_P))
        for k, t in enumerate(advance_a()):
            sc.add(c0 + 36 + k, t)
        sc.add(c0 + 41, 's_cmp_ge_u32 s%d, 6' % S_P)
        sc.add(c0 + 41, 's_cselect_b32 s%d, 0x%x, s%d' % (S_A2, OOB, S_A2))
        sc.add(c0 + 53, 's_and_b32 s%d, s%d, 3' % (S_T1, S_P))
        sc.add(c0 + 54, 's_cmp_eq_u32 s%d, 3' % S_T1)
        sc.add(c0 + 54, 's_cselect_b32 s%d, 0x%x, s%d' % (S_D, (-3 * SLOT) & 0xffffffff, S_SLOT))
        for k, t in enumerate(advance_b()):
            sc.add(c0 + 58 + k // 2, t)
        sc.add(c0 + 60, 's_cmp_ge_u32 s%d, 6' % S_P)
        sc.add(c0 + 60, 's_cselect_b32 s%d, 0x%x, s%d' % (S_B2, OOB, S_B2))
        sc.add(c0 + 61, 's_cmp_ge_u32 s%d, 7' % S_P)
        sc.add(c0 + 61, 's_cselect_b32 s%d, 0x%x, s%d' % (S_B1, OOB, S_B1))
    sc.emit(b, 0, 128)
    b('s_cmp_lt_u32 s%d, 8' % S_P)
    b('s_cbranch_scc1 %s_loop' % name)
    b.loop_end(4)
    stamp(b, 12)
    b('v_lshlrev_b32 v%d, 4, v0' % V_T)
    for qq in range(2):
        b('s_add_u32 s%d, s%d, %d' % (S_T0, S_PB, qq * 16384))
        for v in range(4):
            o = V_AF + 4 * (qq * 4 + v)
            for jj in range(2):
                acc = V_ACC + ((2 * v + jj) * 2 + qq) * 4
                for i in range(2):
                    b('v_cvt_pk_bf16_f32 v%d, v%d, v%d' % (o + 2 * jj + i, acc + 2 * i, acc + 2 * i + 1))
            b('buffer_store_dwordx4 %s, v%d, s[%d:%d], s%d offen offset:%d sc1' % (vr(o, 4), V_T, S_WS, S_WS + 3, S_T0, v * 1024))
    flag_off(b, S_SY, F_PART, S_QT)


def p3b(b, name):
    mk_srd(b, 8, P_X, 2048 * 1024)
    b('s_lshl_b32 s45, s%d, 6' % S_WAVE)
    b('v_add_u32 v11, s45, v0')
    b('v_and_b32 v1, 7, v0')
    b('v_lshrrev_b32 v2, 3, v11')
    b('v_and_b32 v3, 3, v2')
    b('v_lshrrev_b32 v4, 2, v2')
    b('s_and_b32 s47, s2, 7')
    b('s_lshl_b32 s47, s47, 5')
    b('s_lshr_b32 s48, s2, 3')
    b('s_add_u32 s47, s47, s48')
    b('s_lshr_b32 s16, s47, 1')
    b('s_and_b32 s17, s47, 1')
    b('s_lshl_b32 s17, s17, 3')
    b('v_add_u32 v6, s17, v1')
    b('v_lshlrev_b32 v6, 4, v6')
    b('v_lshlrev_b32 v7, 11, v4')
    b('v_lshlrev_b32 v9, 8, v3')
    b('v_add3_u32 v7, v7, v9, v6')
    b('v_lshlrev_b32 v8, 10, v1')
    b('v_lshlrev_b32 v9, 7, v4')
    b('v_lshlrev_b32 v10, 3, v3')
    b('v_add3_u32 v8, v8, v9, v10')
    b('v_lshlrev_b32 v9, 8, v4')
    b('v_lshlrev_b32 v10, 4, v3')
    b('v_add_u32 v9, v9, v10')
    b('s_lshl_b32 s18, s47, 13')
    b('s_lshl_b32 s19, s16, 14')
    b('s_add_u32 s19, s19, 0x%x' % WS_PART)
    for bb in range(4):
        b('buffer_load_dwordx2 %s, v8, s[8:11], s18 offen offset:%d' % (vr(12 + 2 * bb, 2), 32 * bb))
    GA, SB, CB = 128, 144, 160
    loads = []
    for (reg, row) in ((GA, 2), (SB, 3), (CB, 4)):
        loads.append('s_mov_b32 s45, %d' % (WS_MOD + row * 2048))
        for bb in range(4):
            loads.append('buffer_load_dwordx4 %s, v9, s[%d:%d], s45 offen offset:%d sc1' % (vr(reg + 4 * bb, 4), S_WS, S_WS + 3, 64 * bb))
    load_mod(b, loads, list(range(128, 176)), 40)
    b('s_lshr_b32 s50, s47, 4')
    flag_off(b, S_SY + 3, F_PART, 50)
    yield
    P = 64
    for ks in range(4):
        if ks:
            b('s_add_u32 s19, s19, 0x200000')
        for v in range(2):
            b('buffer_load_dwordx4 %s, v7, s[%d:%d], s19 offen offset:%d sc1' % (vr(P + 8 * ks + 4 * v, 4), S_WS, S_WS + 3, v * 1024))
    yield
    A = 96
    for ks in range(4):
        for p in range(8):
            src = P + 8 * ks + p
            if ks == 0:
                b('v_lshlrev_b32 v%d, 16, v%d' % (A + 2 * p, src))
                b('v_and_b32 v%d, 0xffff0000, v%d' % (A + 2 * p + 1, src))
            else:
                b('v_lshlrev_b32 v%d, 16, v%d' % (A + 16 + 2 * p, src))
                b('v_and_b32 v%d, 0xffff0000, v%d' % (A + 17 + 2 * p, src))
        if ks:
            for i in range(16):
                b('v_add_f32 v%d, v%d, v%d' % (A + i, A + i, A + 16 + i))
    P = A
    X = 20
    for p in range(8):
        b('v_lshlrev_b32 v%d, 16, v%d' % (X + 2 * p, 12 + p))
        b('v_and_b32 v%d, 0xffff0000, v%d' % (X + 2 * p + 1, 12 + p))
    for i in range(16):
        b('v_fmac_f32 v%d, v%d, v%d' % (X + i, GA + i, P + i))
    for p in range(8):
        b('v_cvt_pk_bf16_f32 v%d, v%d, v%d' % (12 + p, X + 2 * p, X + 2 * p + 1))
    b('s_lshl_b32 s18, s16, 14')
    b('s_add_u32 s46, s18, 0x%x' % WS_X1)
    b('buffer_store_dwordx4 v[12:15], v7, s[%d:%d], s46 offen sc1' % (S_WS, S_WS + 3))
    b('buffer_store_dwordx4 v[16:19], v7, s[%d:%d], s46 offen offset:1024 sc1' % (S_WS, S_WS + 3))
    for p in range(8):
        b('v_lshlrev_b32 v%d, 16, v%d' % (X + 2 * p, 12 + p))
        b('v_and_b32 v%d, 0xffff0000, v%d' % (X + 2 * p + 1, 12 + p))
    layernorm16(b, X, 40, 1, LN_LDS)
    for i in range(16):
        b('v_fma_f32 v%d, v%d, v%d, v%d' % (X + i, X + i, CB + i, SB + i))
    for p in range(8):
        b('v_cvt_pk_bf16_f32 v%d, v%d, v%d' % (52 + p, X + 2 * p, X + 2 * p + 1))
    b('s_add_u32 s46, s18, 0x%x' % WS_H2)
    b('buffer_store_dwordx4 v[52:55], v7, s[%d:%d], s46 offen sc1' % (S_WS, S_WS + 3))
    b('buffer_store_dwordx4 v[56:59], v7, s[%d:%d], s46 offen offset:1024 sc1' % (S_WS, S_WS + 3))
    flag_off(b, S_SY, F_H2, 50)
```

```python
from mc import *

MF = 'v_mfma_f32_16x16x32_bf16'
WG_ROW = 2752


def p4(b, name):
    S_M = 20
    S_W, S_QT, S_FG, S_T0, S_T1, S_T2 = 24, 25, 26, 27, 28, 29
    S_AB, S_BB, S_HB, S_ROT = 30, 31, 33, 34
    S_P, S_B1, S_B2, S_A3, S_L3, S_D, S_OFFB, S_OFFA, S_SLOT, S_WL = 35, 36, 37, 38, 39, 40, 41, 42, 43, 44
    V_WOFF, V_B, V_A, V_T = 240, 6, 8, 20
    V_AF = 32
    V_ACC = 128
    SLOT, NSLOT = 24576, 6
    CH = 64 * WG_ROW
    OOB = 0x10000000
    b('s_and_b32 s%d, s2, 7' % S_T0)
    b('s_lshr_b32 s%d, s2, 3' % S_T1)
    b('s_and_b32 s%d, s%d, 1' % (S_FG, S_T0))
    b('s_lshl_b32 s%d, s%d, 3' % (S_FG, S_FG))
    b('s_and_b32 s%d, s%d, 7' % (S_T2, S_T1))
    b('s_add_u32 s%d, s%d, s%d' % (S_FG, S_FG, S_T2))
    b('s_lshr_b32 s%d, s%d, 1' % (S_QT, S_T0))
    b('s_mov_b32 s%d, s%d' % (S_W, S_WAVE))
    b('s_lshl_b32 s%d, s%d, 2' % (S_QT, S_QT))
    b('s_lshr_b32 s%d, s%d, 3' % (S_T1, S_T1))
    b('s_add_u32 s%d, s%d, s%d' % (S_QT, S_QT, S_T1))
    b('s_lshl_b32 s%d, s%d, 1' % (S_ROT, S_T1))
    b('s_add_u32 s%d, s%d, s%d' % (S_ROT, S_ROT, S_FG))
    b('s_and_b32 s%d, s%d, 7' % (S_ROT, S_ROT))
    b('s_mov_b32 s%d, 0' % S_ROT)
    T = V_T
    b('s_mov_b32 s%d, 0x15555556' % S_T0)
    b('s_mov_b32 s%d, %d' % (S_T1, WG_ROW))
    for i in range(3):
        b('v_add_u32 v%d, %d, v0' % (T, 64 * i))
        b('v_mul_hi_u32 v%d, v%d, s%d' % (T + 1, T, S_T0))
        b('v_mul_u32_u24 v%d, 12, v%d' % (T + 2, T + 1))
        b('v_sub_u32 v%d, v%d, v%d' % (T + 2, T, T + 2))
        b('v_bfe_u32 v%d, v%d, 2, 1' % (T + 3, T + 1))
        b('v_lshlrev_b32 v%d, 1, v%d' % (T + 3, T + 3))
        b('v_xor_b32 v%d, v%d, v%d' % (T + 2, T + 2, T + 3))
        b('v_lshlrev_b32 v%d, 4, v%d' % (T + 2, T + 2))
        b('v_mul_lo_u32 v%d, v%d, s%d' % (T + 1, T + 1, S_T1))
        b('v_add_u32 v%d, v%d, v%d' % (V_WOFF + i, T + 1, T + 2))
        if i:
            b('v_subrev_u32 v%d, %d, v%d' % (V_WOFF + i, 1024 * i, V_WOFF + i))
    b('s_and_b32 s%d, s%d, 1' % (S_T0, S_W))
    b('s_mul_i32 s%d, s%d, %d' % (S_AB, S_T0, 32 * WG_ROW))
    b('s_mul_i32 s%d, s%d, 192' % (S_T1, S_FG))
    b('s_add_u32 s%d, s%d, s%d' % (S_AB, S_AB, S_T1))
    b('s_mul_i32 s%d, s%d, 6144' % (S_WL, S_W))
    b('s_mul_i32 s%d, s%d, %d' % (S_A3, S_ROT, CH))
    b('s_mov_b32 s%d, s%d' % (S_OFFA, S_A3))
    b('s_add_u32 s%d, s%d, s%d' % (S_A3, S_A3, S_AB))
    b('s_mov_b32 s%d, 0' % S_L3)
    b('s_cmp_ge_u32 s%d, 2' % S_W)
    b('s_cselect_b32 s%d, s%d, s%d' % (S_M, P_WU, P_WG))
    b('s_cselect_b32 s%d, s%d, s%d' % (S_M + 1, P_WU + 1, P_WG + 1))
    b('s_mov_b32 s%d, 0x%x' % (S_M + 2, 512 * WG_ROW))
    b('s_mov_b32 s%d, 0x20000' % (S_M + 3))

    def dma_w(tag):
        out = []
        for half in range(2):
            grp = [('s_add_u32 s%d, s%d, s%d' % (S_T2, S_L3, S_WL), None),
                   ('s_add_u32 m0, s%d, %d' % (S_T2, half * 3072), None),
                   ('s_add_u32 s%d, s%d, %d' % (S_T2, S_A3, half * 16 * WG_ROW), None)]
            for i in range(3):
                grp.append(('buffer_load_dwordx4 v%d, s[%d:%d], s%d offen offset:%d lds' %
                            (V_WOFF + i, S_M, S_M + 3, S_T2, i * 1024), tag))
            out.append(grp)
        return out

    def b_load(ring, sreg, step):
        return ['buffer_load_dwordx4 %s, v%d, s[%d:%d], s%d offen offset:%d sc1' %
                (ar(8 * ring + 4 * qq, 4), V_B + qq, S_WS, S_WS + 3, sreg, step * 1024) for qq in range(2)]

    def a_reads(buf, step):
        return ['ds_read_b64_tr_b16 %s, v%d offset:%d' % (vr(V_AF + 48 * buf + 4 * (mat * 6 + nb) + 2 * jj, 2), V_A + nb, mat * 12288 + step * 6144 + jj * 3072)
                for nb in range(6) for mat in range(2) for jj in range(2)]

    def advance_a():
        return ['s_add_u32 s%d, s%d, %d' % (S_OFFA, S_OFFA, CH), 's_cmp_ge_u32 s%d, %d' % (S_OFFA, 8 * CH),
                's_cselect_b32 s%d, 0, s%d' % (S_OFFA, S_OFFA), 's_add_u32 s%d, s%d, s%d' % (S_A3, S_AB, S_OFFA),
                's_add_u32 s%d, s%d, %d' % (S_L3, S_L3, SLOT), 's_cmp_ge_u32 s%d, %d' % (S_L3, NSLOT * SLOT),
                's_cselect_b32 s%d, 0, s%d' % (S_L3, S_L3)]

    def next_b(reg):
        return ['s_add_u32 s%d, s%d, 0x800' % (S_OFFB, S_OFFB), 's_and_b32 s%d, s%d, 0x3fff' % (S_OFFB, S_OFFB),
                's_add_u32 s%d, s%d, s%d' % (reg, S_BB, S_OFFB)]

    yield
    for grp in dma_w('W0'):
        for t, g in grp: b(t, g)
    for t in advance_a(): b(t)
    for grp in dma_w('T2'):
        for t, g in grp: b(t, g, epoch=-1)
    for t in advance_a(): b(t)
    for grp in dma_w('T3'):
        for t, g in grp: b(t, g, epoch=-1)
    for t in advance_a(): b(t)
    yield
    b('v_lshlrev_b32 v%d, 4, v0' % V_B)
    b('v_add_u32 v%d, %d, v%d' % (V_B + 1, 16384, V_B))
    b('s_lshl_b32 s%d, s%d, 3' % (S_T0, S_QT))
    b('s_lshl_b32 s%d, s%d, 1' % (S_T1, S_W))
    b('s_add_u32 s%d, s%d, s%d' % (S_T0, S_T0, S_T1))
    b('s_lshl_b32 s%d, s%d, 14' % (S_BB, S_T0))
    b('s_add_u32 s%d, s%d, 0x%x' % (S_BB, S_BB, WS_H2))
    b('s_mov_b32 s%d, 0' % S_OFFB)
    b('s_mov_b32 s%d, s%d' % (S_B1, S_BB))
    b('v_bfe_u32 v%d, v0, 2, 2' % T)
    b('v_lshrrev_b32 v%d, 4, v0' % (T + 1))
    b('v_lshl_add_u32 v%d, v%d, 2, v%d' % (T + 2, T + 1, T))
    b('v_mul_u32_u24 v%d, 192, v%d' % (T + 2, T + 2))
    b('v_and_b32 v%d, 3, v0' % (T + 3))
    b('v_lshl_add_u32 v%d, v%d, 3, v%d' % (T + 2, T + 3, T + 2))
    b('v_and_b32 v%d, 1, v%d' % (T + 1, T + 1))
    for nb in range(6):
        b('v_xor_b32 v%d, %d, v%d' % (T + 3, nb, T + 1))
        b('v_lshl_add_u32 v%d, v%d, 5, v%d' % (V_A + nb, T + 3, T + 2))
    for i in range(96):
        b('v_mov_b32 v%d, 0' % (V_ACC + i))
    b('s_mul_i32 s%d, s%d, %d' % (S_HB, S_T0, 43 * 1024))
    b('s_mul_i32 s%d, s%d, 3072' % (S_T1, S_FG))
    b('s_add_u32 s%d, s%d, s%d' % (S_HB, S_HB, S_T1))
    b('s_add_u32 s%d, s%d, 0x%x' % (S_HB, S_HB, WS_HH))
    b('s_mov_b32 s%d, 0' % S_P)
    b('s_mov_b32 s%d, %d' % (S_D, SLOT))
    b('s_mov_b32 s%d, %d' % (S_SLOT, SLOT))
    flag_off(b, S_SY + 3, F_H2, S_QT)
    yield
    for st in range(7):
        if st and st % 2 == 0:
            for t in next_b(S_B1): b(t)
        for t in b_load(st, S_B1, st & 1): b(t)
    for t in next_b(S_B2): b(t)
    stamp(b, 16)
    for t in a_reads(0, 0): b(t)

    b.loop_begin()
    b.label(name + '_loop')
    sc = Sched()
    for pos in range(4):
        tag = 'T%d' % pos
        d = dma_w(tag)
        for i in range(2):
            st = 2 * pos + i
            base = 24 * st
            k = 0
            for nb in range(6):
                for mat in range(2):
                    for qq in range(2):
                        dd = vr(V_ACC + ((mat * 6 + nb) * 2 + qq) * 4, 4)
                        sc.mfma(base + k, '%s %s, %s, %s, %s' % (MF, dd, vr(V_AF + 48 * i + 4 * (mat * 6 + nb), 4), ar(8 * st + 4 * qq, 4), dd))
                        k += 1
            rd = a_reads((i + 1) & 1, (i + 1) & 1)
            if i == 1:
                sc.add(base, lambda bb, pos=pos: (bb.waitvm('T%d' % ((pos - 2) % 4), 1 if pos < 2 else 0), bb('s_barrier')))
                for nb in range(6):
                    sc.add(base + nb // 2, 'v_add_u32 v%d, s%d, v%d' % (V_A + nb, S_D, V_A + nb))
                for k, t in enumerate(rd):
                    sc.add(base + min(23, max(k, 3) if k < 4 else k), t)
            else:
                for k, t in enumerate(rd):
                    sc.add(base + k, t)
            bl = b_load((st + 7) & 7, S_B1 if i == 0 else S_B2, (i + 7) & 1)
            grp = d[i]
            sc.add(base + 1, grp[0][0]); sc.add(base + 2, grp[1][0]); sc.add(base + 3, grp[2][0])
            sc.add(base + 5, bl[0])
            sc.add(base + 8, grp[3][0], tag)
            sc.add(base + 11, bl[1])
            sc.add(base + 14, grp[4][0], tag)
            sc.add(base + 19, grp[5][0], tag)
        c0 = 48 * pos
        upd = ['s_add_u32 s%d, s%d, 1' % (S_P, S_P), 's_mov_b32 s%d, s%d' % (S_B1, S_B2)] + next_b(S_B2) + \
              ['s_cmp_ge_u32 s%d, 4' % S_P, 's_cselect_b32 s%d, 0x%x, s%d' % (S_B2, OOB, S_B2),
               's_cmp_ge_u32 s%d, 5' % S_P, 's_cselect_b32 s%d, 0x%x, s%d' % (S_B1, OOB, S_B1)]
        groups = [upd[:2], upd[2:5], upd[5:7], upd[7:9]]
        adv = advance_a()
        groups += [adv[:1] + adv[1:3], adv[3:4], adv[4:7],
                   ['s_cmp_ge_u32 s%d, 5' % S_P, 's_cselect_b32 s%d, 0x%x, s%d' % (S_A3, OOB, S_A3)]]
        for k, grp in enumerate(groups):
            for t in grp: sc.add(c0 + 24 + 12 + k + (4 if k >= 4 else 0), t)
        sc.add(c0 + 47, 's_cmp_eq_u32 s%d, 5' % S_P)
        sc.add(c0 + 47, 's_cselect_b32 s%d, 0x%x, s%d' % (S_D, (-5 * SLOT) & 0xffffffff, S_SLOT))
    sc.emit(b, 0, 192)
    b('s_cmp_lt_u32 s%d, 8' % S_P)
    b('s_cbranch_scc1 %s_loop' % name)
    b.loop_end(2)
    stamp(b, 17)
    b('v_lshlrev_b32 v%d, 4, v0' % V_T)
    for v in range(3):
        if v == 1:
            b('s_cmp_ge_u32 s%d, 14' % S_FG)
            b('s_cbranch_scc1 %s_stored' % name)
        for qq in range(2):
            t0 = 32 + 8 * (v * 2 + qq)
            for jj in range(2):
                nb = 2 * v + jj
                g = V_ACC + (nb * 2 + qq) * 4
                u = V_ACC + ((6 + nb) * 2 + qq) * 4
                for i in range(4):
                    b('v_mul_f32 v%d, v%d, v%d' % (g + i, g + i, u + i))
                for i in range(2):
                    b('v_cvt_pk_bf16_f32 v%d, v%d, v%d' % (t0 + 2 * jj + i, g + 2 * i, g + 2 * i + 1))
            b('s_add_u32 s%d, s%d, %d' % (S_T0, S_HB, qq * 43 * 1024))
            b('buffer_store_dwordx4 %s, v%d, s[%d:%d], s%d offen offset:%d sc1' % (vr(t0, 4), V_T, S_WS, S_WS + 3, S_T0, v * 1024))
    b.label(name + '_stored')
    flag_off(b, S_SY, F_HH, S_QT)


def p5(b, name):
    S_WD, S_OUT = 8, 16
    S_W, S_QT, S_NT, S_T0, S_T1, S_T2 = 20, 21, 22, 23, 24, 25
    S_A, S_B, S_LB, S_N, S_L, S_D, S_LIM, S_S, S_RING, S_SA = 26, 27, 28, 29, 30, 31, 32, 33, 34, 35
    V_WOFF, V_B, V_A, V_BR, V_T = 2, 4, 8, 12, 16
    V_AF, V_BF = 32, 48
    V_ACC = 64
    STEP, RING = 8192, 4
    NS = 11
    b('s_and_b32 s%d, s2, 7' % S_T0)
    b('s_lshr_b32 s%d, s2, 3' % S_T1)
    b('s_lshr_b32 s%d, s%d, 1' % (S_QT, S_T0))
    b('s_mov_b32 s%d, s%d' % (S_W, S_WAVE))
    b('s_lshl_b32 s%d, s%d, 3' % (S_QT, S_QT))
    b('s_lshr_b32 s%d, s%d, 2' % (S_T2, S_T1))
    b('s_add_u32 s%d, s%d, s%d' % (S_QT, S_QT, S_T2))
    b('s_and_b32 s%d, s%d, 1' % (S_NT, S_T0))
    b('s_lshl_b32 s%d, s%d, 2' % (S_NT, S_NT))
    b('s_and_b32 s%d, s%d, 3' % (S_T1, S_T1))
    b('s_add_u32 s%d, s%d, s%d' % (S_NT, S_NT, S_T1))
    T = V_T
    b('v_lshrrev_b32 v%d, 3, v0' % T)
    b('v_and_b32 v%d, 7, v0' % (T + 1))
    b('v_bfe_u32 v%d, v%d, 1, 2' % (T + 2, T))
    b('v_lshlrev_b32 v%d, 1, v%d' % (T + 2, T + 2))
    b('v_xor_b32 v%d, v%d, v%d' % (T + 1, T + 1, T + 2))
    b('v_lshlrev_b32 v%d, 4, v%d' % (T + 1, T + 1))
    b('v_lshl_add_u32 v%d, v%d, 10, v%d' % (V_WOFF, T, T + 1))
    b('v_lshlrev_b32 v%d, 4, v0' % V_B)
    for qb in range(1, 4):
        b('v_add_u32 v%d, %d, v%d' % (V_B + qb, qb * 43 * 1024, V_B))
    b('s_mul_i32 s%d, s%d, 11' % (S_T0, S_W))
    b('s_lshl_b32 s%d, s%d, 15' % (S_A, S_T0))
    b('s_lshl_b32 s%d, s%d, 7' % (S_T1, S_NT))
    b('s_add_u32 s%d, s%d, s%d' % (S_A, S_A, S_T1))
    b('s_mul_i32 s%d, s%d, %d' % (S_B, S_QT, 4 * 43 * 1024))
    b('s_lshl_b32 s%d, s%d, 10' % (S_T1, S_T0))
    b('s_add_u32 s%d, s%d, s%d' % (S_B, S_B, S_T1))
    b('s_add_u32 s%d, s%d, 0x%x' % (S_B, S_B, WS_HH))
    b('s_lshl_b32 s%d, s%d, 15' % (S_LB, S_W))
    b('s_mov_b32 s%d, s%d' % (S_L, S_LB))
    b('s_cmp_eq_u32 s%d, 3' % S_W)
    b('s_cselect_b32 s%d, 10, 11' % S_LIM)
    b('s_mov_b32 s%d, 0' % S_N)
    mk_srd(b, S_WD, P_WD, 1376 * 1024); mk_srd(b, S_OUT, P_OUT, 2048 * 1024)

    def request():
        ops = []
        for i in range(4):
            ops.append(['s_add_u32 m0, s%d, %d' % (S_L, i * 1024), 's_add_u32 s%d, s%d, %d' % (S_T2, S_A, i * 8192),
                        'buffer_load_dwordx4 v%d, s[%d:%d], s%d offen lds' % (V_WOFF, S_WD, S_WD + 3, S_T2)])
        for qb in range(4):
            ops.append(['s_add_u32 m0, s%d, %d' % (S_L, 4096 + qb * 1024), 's_nop 0',
                        'buffer_load_dwordx4 v%d, s[%d:%d], s%d offen sc1 lds' % (V_B + qb, S_WS, S_WS + 3, S_B)])
        nxt = ['s_add_u32 s%d, s%d, 1' % (S_N, S_N), 's_add_u32 s%d, s%d, 32768' % (S_A, S_A), 's_add_u32 s%d, s%d, 1024' % (S_B, S_B),
               's_cmp_ge_u32 s%d, s%d' % (S_N, S_LIM), 's_cselect_b32 s%d, 0x%x, s%d' % (S_A, OOB, S_A),
               's_cselect_b32 s%d, 0x%x, s%d' % (S_B, OOB, S_B),
               's_add_u32 s%d, s%d, %d' % (S_L, S_L, STEP), 's_and_b32 s%d, s%d, 0x7fff' % (S_L, S_L), 's_add_u32 s%d, s%d, s%d' % (S_L, S_L, S_LB)]
        return ops, nxt

    b('v_bfe_u32 v%d, v0, 2, 2' % T)
    b('v_lshrrev_b32 v%d, 4, v0' % (T + 1))
    b('v_lshl_add_u32 v%d, v%d, 2, v%d' % (T + 1, T + 1, T))
    b('v_bfe_u32 v%d, v%d, 1, 2' % (T + 2, T + 1))
    b('v_lshlrev_b32 v%d, 7, v%d' % (T + 1, T + 1))
    b('v_and_b32 v%d, 3, v0' % (T + 3))
    b('v_lshl_add_u32 v%d, v%d, 3, v%d' % (T + 1, T + 3, T + 1))
    for nb in range(4):
        b('v_xor_b32 v%d, %d, v%d' % (T + 3, nb, T + 2))
        b('v_lshlrev_b32 v%d, 5, v%d' % (T + 3, T + 3))
        b('v_add3_u32 v%d, v%d, v%d, s%d' % (V_A + nb, T + 3, T + 1, S_LB))
    b('v_add_u32 v%d, s%d, v%d' % (V_BR, S_LB, V_B))
    for i in range(64):
        b('v_mov_b32 v%d, 0' % (V_ACC + i))
    b('s_mov_b32 s%d, 0' % S_S)
    b('s_mov_b32 s%d, %d' % (S_RING, STEP))
    b('s_mov_b32 s%d, %d' % (S_D, STEP))
    b('s_lshr_b32 s%d, s%d, 1' % (S_T1, S_QT))
    flag_off(b, S_SY + 3, F_HH, S_T1)
    yield
    b('s_mov_b32 s%d, s%d' % (S_SA, S_A))
    for st in range(RING - 1):
        for i in range(4):
            b('s_add_u32 m0, s%d, %d' % (S_LB, st * STEP + i * 1024))
            b('s_add_u32 s%d, s%d, %d' % (S_T2, S_SA, st * 32768 + i * 8192))
            b('buffer_load_dwordx4 v%d, s[%d:%d], s%d offen lds' % (V_WOFF, S_WD, S_WD + 3, S_T2))
    yield
    for st in range(RING - 1):
        for qb in range(4):
            b('s_add_u32 m0, s%d, %d' % (S_LB, st * STEP + 4096 + qb * 1024))
            b('s_add_u32 s%d, s%d, %d' % (S_T2, S_B, st * 1024))
            b('buffer_load_dwordx4 v%d, s[%d:%d], s%d offen sc1 lds' % (V_B + qb, S_WS, S_WS + 3, S_T2))
    b('s_mov_b32 s%d, 3' % S_N)
    b('s_add_u32 s%d, s%d, %d' % (S_A, S_A, 3 * 32768))
    b('s_add_u32 s%d, s%d, %d' % (S_B, S_B, 3 * 1024))
    b('s_add_u32 s%d, s%d, %d' % (S_L, S_LB, 3 * STEP))
    b('s_waitcnt vmcnt(4)')
    stamp(b, 20)

    b.loop_begin()
    b.label(name + '_loop')
    b('s_waitcnt vmcnt(16)')
    for nb in range(4):
        for jj in range(2):
            b('ds_read_b64_tr_b16 %s, v%d offset:%d' % (vr(V_AF + 4 * nb + 2 * jj, 2), V_A + nb, jj * 2048))
        if nb == 0:
            for qb in range(4):
                b('ds_read_b128 %s, v%d offset:%d' % (vr(V_BF + 4 * qb, 4), V_BR, 4096 + qb * 1024))
    ops, nxt = request()
    sc = Sched()
    for nb in range(4):
        for qb in range(4):
            d = vr(V_ACC + (nb * 4 + qb) * 4, 4)
            sc.mfma(4 * nb + qb, '%s %s, %s, %s, %s' % (MF, d, vr(V_AF + 4 * nb, 4), vr(V_BF + 4 * qb, 4), d))
    for grp in ops[:2]:
        for t in grp: b(t)
    for k, grp in enumerate(ops[2:]):
        for t in grp: sc.add(2 * k, t)
    sc.add(12, 's_sub_u32 s%d, s%d, s%d' % (S_L, S_L, S_LB))
    for k, t in enumerate(nxt):
        sc.add(12 + (k // 3 if k < 3 else (1 if k < 6 else 2)), t)
    for nb in range(4):
        sc.add(4 * nb + 3, 'v_add_u32 v%d, s%d, v%d' % (V_A + nb, S_D, V_A + nb))
    sc.add(5, 'v_add_u32 v%d, s%d, v%d' % (V_BR, S_D, V_BR))
    sc.emit(b, 0, 16)
    b('s_add_u32 s%d, s%d, 1' % (S_S, S_S))
    b('s_and_b32 s%d, s%d, 3' % (S_T1, S_S))
    b('s_cmp_eq_u32 s%d, 3' % S_T1)
    b('s_cselect_b32 s%d, 0x%x, s%d' % (S_D, (-3 * STEP) & 0xffffffff, S_RING))
    b('s_cmp_lt_u32 s%d, %d' % (S_S, NS))
    b('s_cbranch_scc1 %s_loop' % name)
    b.loop_end(NS)
    stamp(b, 21)
    X, G = 32, 40
    b('s_lshl_b32 s%d, s%d, 2' % (S_T0, S_QT))
    b('s_add_u32 s%d, s%d, s%d' % (S_T0, S_T0, S_W))
    b('s_lshl_b32 s%d, s%d, 14' % (S_T1, S_T0))
    b('s_lshl_b32 s%d, s%d, 11' % (S_T2, S_NT))
    b('s_add_u32 s%d, s%d, s%d' % (S_T1, S_T1, S_T2))
    b('s_add_u32 s%d, s%d, 0x%x' % (S_T1, S_T1, WS_X1))
    for v in range(2):
        b('buffer_load_dwordx4 %s, v%d, s[%d:%d], s%d offen offset:%d sc1' % (vr(X + 4 * v, 4), V_B, S_WS, S_WS + 3, S_T1, v * 1024))
    b('v_lshrrev_b32 v%d, 4, v0' % T)
    b('v_lshlrev_b32 v%d, 4, v%d' % (T, T))
    b('s_lshl_b32 s%d, s%d, 8' % (S_T2, S_NT))
    b('s_add_u32 s%d, s%d, %d' % (S_T2, S_T2, WS_MOD + 5 * 2048))
    load_mod(b, ['buffer_load_dwordx4 %s, v%d, s[%d:%d], s%d offen offset:%d sc1' % (vr(G + 4 * nb, 4), T, S_WS, S_WS + 3, S_T2, nb * 64)
                 for nb in range(4)], list(range(G, G + 16)), T + 3)
    b('s_waitcnt vmcnt(0)')
    b('s_barrier')
    b('s_lshl_b32 s%d, s%d, 12' % (S_T1, S_W))
    b('v_add_u32 v%d, s%d, v%d' % (T + 1, S_T1, V_B))
    for qb in range(4):
        for nb in range(4):
            b('ds_write_b128 v%d, %s offset:%d' % (T + 1, vr(V_ACC + (nb * 4 + qb) * 4, 4), qb * 16384 + nb * 1024))
    b('s_waitcnt lgkmcnt(0)')
    b('s_barrier')
    b('s_lshl_b32 s%d, s%d, 14' % (S_T1, S_W))
    b('v_add_u32 v%d, s%d, v%d' % (T + 1, S_T1, V_B))
    R = 128
    for w in range(4):
        for nb in range(4):
            b('ds_read_b128 %s, v%d offset:%d' % (vr(R + 16 * w + 4 * nb, 4), T + 1, w * 4096 + nb * 1024))
    for i in range(16):
        b('v_add_f32 v%d, v%d, v%d' % (R + i, R + i, R + 16 + i))
        b('v_add_f32 v%d, v%d, v%d' % (R + 32 + i, R + 32 + i, R + 48 + i))
    for i in range(16):
        b('v_add_f32 v%d, v%d, v%d' % (R + i, R + i, R + 32 + i))
    Y = 96
    for p in range(8):
        b('v_lshlrev_b32 v%d, 16, v%d' % (Y + 2 * p, X + p))
        b('v_and_b32 v%d, 0xffff0000, v%d' % (Y + 2 * p + 1, X + p))
    for i in range(16):
        b('v_fmac_f32 v%d, v%d, v%d' % (Y + i, G + i, R + i))
    O = 112
    for p in range(8):
        b('v_cvt_pk_bf16_f32 v%d, v%d, v%d' % (O + p, Y + 2 * p, Y + 2 * p + 1))
    for v in range(2):
        b('v_permlane16_swap_b32 v%d, v%d' % (O + 4 * v, O + 4 * v + 2))
        b('v_permlane16_swap_b32 v%d, v%d' % (O + 4 * v + 1, O + 4 * v + 3))
    b('v_and_b32 v%d, 15, v0' % T)
    b('v_lshlrev_b32 v%d, 10, v%d' % (T, T))
    b('v_bfe_u32 v%d, v0, 4, 1' % (T + 1))
    b('v_lshlrev_b32 v%d, 5, v%d' % (T + 1, T + 1))
    b('v_lshrrev_b32 v%d, 5, v0' % (T + 2))
    b('v_lshlrev_b32 v%d, 4, v%d' % (T + 2, T + 2))
    b('v_add3_u32 v%d, v%d, v%d, v%d' % (T, T, T + 1, T + 2))
    b('s_lshl_b32 s%d, s%d, 14' % (S_T1, S_T0))
    b('s_lshl_b32 s%d, s%d, 7' % (S_T2, S_NT))
    b('s_add_u32 s%d, s%d, s%d' % (S_T1, S_T1, S_T2))
    for v in range(2):
        b('buffer_store_dwordx4 %s, v%d, s[%d:%d], s%d offen offset:%d' % (vr(O + 4 * v, 4), T, S_OUT, S_OUT + 3, S_T1, v * 64))
```

```python
import sys
from mc import *
import front, p2, p3, p45


def build_kernel(name):
    b = Block()
    b('s_cmp_ge_u32 s2, 256')
    b('s_cbranch_scc1 %s_end' % name)
    b('s_load_dwordx16 s[64:79], s[0:1], 0')
    b('s_load_dwordx8 s[80:87], s[0:1], 64')
    b('s_load_dwordx4 s[88:91], s[0:1], 96')
    b('v_lshrrev_b32 v1, 6, v0')
    b('v_and_b32 v0, 63, v0')
    b('s_nop 0')
    b('v_readfirstlane_b32 s%d, v1' % S_WAVE)
    b('s_waitcnt lgkmcnt(0)')
    mk_srd(b, S_WS, P_WSP, WS_BYTES)
    if STAMPS:
        b('s_lshl_b32 s96, s2, 2')
        b('s_add_u32 s96, s96, s%d' % S_WAVE)
        b('s_lshl_b32 s96, s96, 8')
        b('s_add_u32 s96, s96, 0x%x' % WS_STAMP)
    stamp(b, 0)
    if 'nocodepf' not in OPT:
        lc = uid('codepf')
        b('s_lshr_b32 s24, s2, 3')
        b('s_sub_u32 s24, s24, 28')
        b('s_cmp_ge_u32 s24, 2')
        b('s_cbranch_scc1 %s' % lc)
        raw(b, '''s_getpc_b64 s[8:9]
        s_and_b32 s8, s8, 0xffffff00
        s_mov_b32 s10, %s_end - %s + 256
        s_mov_b32 s11, 0x20000
        s_lshl_b32 s24, s24, 2
        s_add_u32 s24, s24, s%d
        s_lshl_b32 s24, s24, 13
        v_lshlrev_b32 v2, 7, v0
        buffer_load_dword v251, v2, s[8:11], s24 offen''' % (name, name, S_WAVE))
        b.label(lc)
    front.front(b, name)
    b('s_lshr_b32 s%d, s2, 5' % S_SY)
    flag_off(b, S_SY, F_H, S_SY)
    p2.setup(b)
    signal(b, S_WS, S_SY)
    stamp(b, 3)
    p2.pre(b)
    p2.flag_index(b, S_SY + 3)
    await_flag(b, S_WS, S_SY + 3, 32)
    stamp(b, 4)
    p2.main(b, name)
    p2.out_flag(b, S_SY)
    stamp(b, 9)
    g3 = p3.p3(b, name + '_p3')
    next(g3)
    signal(b, S_WS, S_SY)
    stamp(b, 23)
    next(g3)
    await_flag(b, S_WS, S_SY + 3, 8)
    stamp(b, 10)
    for _ in g3: pass
    g4 = p45.p4(b, name + '_p4')
    next(g4)
    signal(b, S_WS, S_SY)
    stamp(b, 13)
    g3b = p3.p3b(b, name + '_p3b')
    next(g3b)
    next(g4)
    await_flag(b, S_WS, S_SY + 3, 16)
    stamp(b, 14)
    for _ in g3b: pass
    signal(b, S_WS, S_SY)
    stamp(b, 15)
    b('s_cmp_ge_u32 s26, 15')
    b('s_cbranch_scc1 %s_p4_idle' % name)
    next(g4)
    await_flag(b, S_WS, S_SY + 3, 16)
    for _ in g4: pass
    g5 = p45.p5(b, name + '_p5')
    next(g5)
    signal(b, S_WS, S_SY)
    next(g5)
    b('s_branch %s_p5_wait' % name)
    b.label(name + '_p4_idle')
    g5b = p45.p5(b, name + '_p5x')
    next(g5b)
    next(g5b)
    b.label(name + '_p5_wait')
    stamp(b, 18)
    await_flag(b, S_WS, S_SY + 3, 15)
    b('s_waitcnt vmcnt(0)')
    stamp(b, 19)
    for _ in g5: pass
    stamp(b, 22)
    b('s_endpgm')
    p2.fallback(b, name)
    b.label(name + '_end')
    b('s_endpgm')
    return b


def build(path, verbose=False):
    name = KNAME + '_kernel'
    head = open('cdna_kernels/' + KNAME + '.s.ref').read().split('; Override launch geometry')[0]
    b = build_kernel(name)
    log = []
    text = finalize(b, log)
    if verbose:
        print('%d lines, %d nop insertions' % (text.count('\n'), len(log)))
        for l in log:
            if 'permlane' not in l and 'lds"' not in l: print('   ', l)
    form = os.environ.get('FORM', 'single')
    if form == 'single':
        launch = '; @launch grid=(256,1,1) block=(256,1,1) lds=163840'
    else:
        launch = '; @launch kernel=%s grid=(256,1,1) block=(256,1,1) lds=163840' % name
    out = [head.rstrip(), launch, '.amdgcn_target "amdgcn-amd-amdhsa--gfx950"', '.text', kernel_header(name) + text,
           '.section .rodata,"a"', kernel_descriptor(name, 256, 256)]
    open(path, 'w').write('\n'.join(out))


if __name__ == '__main__':
    build(sys.argv[1] if len(sys.argv) > 1 else 'mega.s', verbose=True)
```

```python
import os, struct
from asm import *

KNAME = 'adaLN_cond__sliding_block_cached__glu_gated_bilinear__prompt'
STAMPS = bool(os.environ.get('STAMPS'))
OPT = set(os.environ.get('OPT', '').split(','))

WS_MOD = 0x0
WS_FLAG = 0x10000
WS_H = 0x100000
WS_O = 0x400000
WS_PART = 0x1400000
WS_X1 = 0x2400000
WS_H2 = 0x2600000
WS_HH = 0x2800000
WS_STAMP = 0x9000000
WS_BYTES = 0x10000000
OOB = 0x10000000

F_H, F_O, F_PART, F_H2, F_HH, F_COUNT = 0, 8, 40, 56, 72, 88

LOG2E = 1.4426950408889634
QSCALE = LOG2E / (128.0 ** 0.5)

S_WAVE = 3
S_WS = 4
S_DBGS = 56
S_SY = 60
P_X, P_K, P_V, P_WQ, P_WO, P_BX, P_WG, P_WU = 64, 66, 68, 70, 72, 74, 76, 78
P_WD, P_C, P_WMOD, P_OUT, P_DBG, P_WSP = 80, 82, 84, 86, 88, 90
V_SY = 255
SPIN_LIMIT = 100000


def f32(x):
    return '0x%08x' % struct.unpack('<I', struct.pack('<f', x))[0]


def vr(base, n=1):
    return 'v%d' % base if n == 1 else 'v[%d:%d]' % (base, base + n - 1)


def ar(base, n=1):
    return 'a%d' % base if n == 1 else 'a[%d:%d]' % (base, base + n - 1)


def mk_srd(b, dst, ptr, nbytes, off=None):
    if off is None:
        b('s_mov_b32 s%d, s%d' % (dst, ptr))
        b('s_mov_b32 s%d, s%d' % (dst + 1, ptr + 1))
    else:
        b('s_add_u32 s%d, s%d, s%d' % (dst, ptr, off))
        b('s_addc_u32 s%d, s%d, 0' % (dst + 1, ptr + 1))
    if nbytes is not None:
        b('s_mov_b32 s%d, 0x%x' % (dst + 2, nbytes))
    b('s_mov_b32 s%d, 0x20000' % (dst + 3))


def raw(b, text):
    for l in text.strip().split('\n'):
        l = l.strip()
        if l:
            b.add(Raw(l if l.endswith(':') else '  ' + l))


_uid = [0]


def uid(p):
    _uid[0] += 1
    return 'L%s%d' % (p, _uid[0])


def signal(b, srd, soff):
    b('s_waitcnt vmcnt(0)')
    b('s_barrier')
    l = uid('sig')
    raw(b, '''s_cmp_lg_u32 s%d, 0
    s_cbranch_scc1 %s
    s_mov_b64 exec, 1
    v_mov_b32 v%d, 1
    buffer_atomic_add v%d, off, s[%d:%d], s%d
    s_mov_b64 exec, -1
    %s:''' % (S_WAVE, l, V_SY, V_SY, srd, srd + 3, soff, l))


def await_flag(b, srd, soff, target):
    l, d = uid('poll'), uid('got')
    raw(b, '''s_cmp_lg_u32 s%d, 0
    s_cbranch_scc1 %s
    s_mov_b32 s%d, %d
    %s:
    buffer_load_dword v%d, off, s[%d:%d], s%d sc1
    s_waitcnt vmcnt(0)
    v_readfirstlane_b32 s%d, v%d
    s_nop 3
    s_cmp_ge_u32 s%d, %d
    s_cbranch_scc1 %s
    s_sub_u32 s%d, s%d, 1
    s_cmp_lg_u32 s%d, 0
    s_cbranch_scc1 %s
    %s:''' % (S_WAVE, d, S_SY + 1, SPIN_LIMIT, l, V_SY, srd, srd + 3, soff, S_SY + 2, V_SY, S_SY + 2, target, d,
              S_SY + 1, S_SY + 1, S_SY + 1, l, d))
    b('s_barrier')


def flag_off(b, dst, first, idx_sgpr):
    b('s_lshl_b32 s%d, s%d, 7' % (dst, idx_sgpr))
    b('s_add_u32 s%d, s%d, 0x%x' % (dst, dst, WS_FLAG + first * 128))


DBG_SLOTS = {0: 1, 2: 2, 4: 3, 6: 4, 8: 5, 9: 6, 10: 7, 12: 8, 14: 9, 15: 10, 17: 11, 19: 12, 21: 13, 22: 14}


def stamp(b, i):
    if 'dbgph' in OPT and i in DBG_SLOTS:
        l = uid('dbg')
        raw(b, '''s_cmp_lg_u32 s2, %d
        s_cbranch_scc1 %s
        s_cmp_lg_u32 s%d, 0
        s_cbranch_scc1 %s
        s_memrealtime s[92:93]
        s_memtime s[94:95]
        s_mov_b32 s96, s%d
        s_mov_b32 s97, s%d
        s_mov_b32 s98, 256
        s_mov_b32 s99, 0x20000
        s_waitcnt lgkmcnt(0)
        v_mov_b32 v252, s92
        buffer_store_dword v252, off, s[96:99], 0 offset:%d
        v_mov_b32 v253, s94
        buffer_store_dword v253, off, s[96:99], 0 offset:%d
        %s:''' % (int(os.environ.get('DBGWG', '100')), l, S_WAVE, l, P_DBG, P_DBG + 1, 4 * DBG_SLOTS[i], 128 + 4 * DBG_SLOTS[i], l))
    if STAMPS:
        b('s_memrealtime s[92:93]')
        b('s_memtime s[94:95]')
        b('s_waitcnt lgkmcnt(0)')
        b('v_mov_b32 v252, s92')
        b('v_mov_b32 v253, s94')
        b('buffer_store_dwordx2 v[252:253], off, s[%d:%d], s96 offset:%d' % (S_WS, S_WS + 3, 8 * i))


class Sched:
    def __init__(self):
        self.m = {}
        self.f = {}

    def mfma(self, slot, text):
        assert slot not in self.m
        self.m[slot] = text

    def add(self, slot, item, tag=None):
        self.f.setdefault(slot, []).append((item, tag))

    def emit(self, b, lo, hi, valu_last=False):
        for s in range(lo, hi):
            if s in self.m:
                b(self.m[s])
            items = self.f.get(s, [])
            if valu_last:
                isv = lambda it: isinstance(it[0], str) and it[0].startswith('v_')
                items = [x for x in items if not isv(x)] + [x for x in items if isv(x)]
            for item, tag in items:
                if callable(item):
                    item(b)
                else:
                    b(item, tag)


def xor16_32_add(b, x, tmp):
    b('v_mov_b32 v%d, v%d' % (tmp, x))
    b('v_permlane16_swap_b32 v%d, v%d' % (x, tmp))
    b('v_add_f32 v%d, v%d, v%d' % (x, x, tmp))
    b('v_mov_b32 v%d, v%d' % (tmp, x))
    b('v_permlane32_swap_b32 v%d, v%d' % (x, tmp))
    b('v_add_f32 v%d, v%d, v%d' % (x, x, tmp))


def row_reduce(b, x, tmp, lds_off, wave_v, r_v):
    b('v_add_f32_dpp v%d, v%d, v%d row_ror:8 row_mask:0xf bank_mask:0xf' % (tmp, x, x))
    b('v_mov_b32 v%d, v%d' % (x, tmp))
    xor16_32_add(b, x, tmp)
    b('ds_write_b32 v%d, v%d offset:%d' % (wave_v, x, lds_off))
    b('s_waitcnt lgkmcnt(0)')
    b('s_barrier')
    b('ds_read_b128 v[%d:%d], v%d offset:%d' % (tmp, tmp + 3, r_v, lds_off))
    b('v_add_f32 v%d, v%d, v%d' % (tmp, tmp, tmp + 1))
    b('v_add_f32 v%d, v%d, v%d' % (tmp + 2, tmp + 2, tmp + 3))
    b('v_add_f32 v%d, v%d, v%d' % (x, tmp, tmp + 2))


def layernorm16(b, X, T, r8, lds_base, scale=None):
    b('v_lshlrev_b32 v%d, 4, v%d' % (T + 7, r8))
    b('v_add_u32 v%d, %d, v%d' % (T + 7, lds_base, T + 7))
    b('s_lshl_b32 s%d, s%d, 2' % (S_SY + 3, S_WAVE))
    b('v_add_u32 v%d, s%d, v%d' % (T + 6, S_SY + 3, T + 7))
    S = T + 4
    b('v_add_f32 v%d, v%d, v%d' % (S, X, X + 1))
    for i in range(2, 16):
        b('v_add_f32 v%d, v%d, v%d' % (S, S, X + i))
    row_reduce(b, S, T, 0, T + 6, T + 7)
    b('v_mul_f32 v%d, %s, v%d' % (S, f32(1.0 / 512), S))
    for i in range(16):
        b('v_sub_f32 v%d, v%d, v%d' % (X + i, X + i, S))
    b('v_mul_f32 v%d, v%d, v%d' % (S, X, X))
    for i in range(1, 16):
        b('v_fmac_f32 v%d, v%d, v%d' % (S, X + i, X + i))
    row_reduce(b, S, T, 128, T + 6, T + 7)
    b('v_mov_b32 v%d, %s' % (T, f32(1e-5)))
    b('v_fmac_f32 v%d, %s, v%d' % (T, f32(1.0 / 512), S))
    b('v_rsq_f32 v%d, v%d' % (T, T))
    if scale is not None:
        b('v_mul_f32 v%d, %s, v%d' % (T, f32(scale), T))
    for i in range(16):
        b('v_mul_f32 v%d, v%d, v%d' % (X + i, X + i, T))


def await_ready(b):
    l, d = uid('rdy'), uid('rdyok')
    raw(b, '''s_mov_b32 s%d, %d
    %s:
    buffer_load_dword v%d, off, s[%d:%d], 0 sc1
    s_waitcnt vmcnt(0)
    v_readfirstlane_b32 s%d, v%d
    s_nop 3
    s_cmp_lg_u32 s%d, 0
    s_cbranch_scc1 %s
    s_sub_u32 s%d, s%d, 1
    s_cmp_lg_u32 s%d, 0
    s_cbranch_scc1 %s
    %s:''' % (S_SY + 1, SPIN_LIMIT, l, V_SY, S_DBGS, S_DBGS + 3, S_SY + 2, V_SY, S_SY + 2, d, S_SY + 1, S_SY + 1, S_SY + 1, l, d))


def load_mod(b, loads, regs, tmp):
    l, d = uid('mod'), uid('modok')
    lines = ['s_mov_b32 s%d, %d' % (S_SY + 1, SPIN_LIMIT), l + ':'] + loads + ['s_waitcnt vmcnt(0)']
    lines.append('v_max3_u32 v%d, v%d, v%d, v%d' % (tmp, regs[0], regs[1], regs[2]))
    rest = regs[3:]
    while len(rest) >= 2:
        lines.append('v_max3_u32 v%d, v%d, v%d, v%d' % (tmp, tmp, rest[0], rest[1]))
        rest = rest[2:]
    if rest:
        lines.append('v_max_u32 v%d, v%d, v%d' % (tmp, tmp, rest[0]))
    lines += ['v_cmp_eq_u32 vcc, -1, v%d' % tmp, 's_nop 4', 's_cmp_eq_u64 vcc, 0', 's_cbranch_scc1 ' + d,
              's_sub_u32 s%d, s%d, 1' % (S_SY + 1, S_SY + 1), 's_cmp_lg_u32 s%d, 0' % (S_SY + 1), 's_cbranch_scc1 ' + l, d + ':']
    raw(b, '\n'.join(lines))


def raw_stamp(b, i):
    raw(b, '''s_memrealtime s[92:93]
    s_memtime s[94:95]
    s_waitcnt lgkmcnt(0)
    v_mov_b32 v252, s92
    v_mov_b32 v253, s94
    buffer_store_dwordx2 v[252:253], off, s[%d:%d], s96 offset:%d''' % (S_WS, S_WS + 3, 8 * i))
```

```python
import sys
from mc import *
import front, p2, p3, p45


def build_kernel(name):
    b = Block()
    b('s_cmp_ge_u32 s2, 256')
    b('s_cbranch_scc1 %s_end' % name)
    b('s_load_dwordx16 s[64:79], s[0:1], 0')
    b('s_load_dwordx8 s[80:87], s[0:1], 64')
    b('s_load_dwordx4 s[88:91], s[0:1], 96')
    b('v_lshrrev_b32 v1, 6, v0')
    b('v_and_b32 v0, 63, v0')
    b('s_nop 0')
    b('v_readfirstlane_b32 s%d, v1' % S_WAVE)
    b('s_waitcnt lgkmcnt(0)')
    mk_srd(b, S_WS, P_WSP, WS_BYTES)
    if STAMPS:
        b('s_lshl_b32 s96, s2, 2')
        b('s_add_u32 s96, s96, s%d' % S_WAVE)
        b('s_lshl_b32 s96, s96, 8')
        b('s_add_u32 s96, s96, 0x%x' % WS_STAMP)
    stamp(b, 0)
    if 'dbgtime' in OPT:
        mk_srd(b, 92 - 0 if False else 52, P_DBG, 256)
        raw(b, '''s_memrealtime s[98:99]
        s_waitcnt lgkmcnt(0)
        s_not_b32 s98, s98
        v_mov_b32 v251, s98
        s_mov_b64 exec, 1
        buffer_atomic_umax v251, off, s[52:55], 0 offset:16
        s_mov_b64 exec, -1''')
    if 'nocodepf' not in OPT:
        lc = uid('codepf')
        b('s_lshr_b32 s24, s2, 3')
        b('s_sub_u32 s24, s24, 28')
        b('s_cmp_ge_u32 s24, 2')
        b('s_cbranch_scc1 %s' % lc)
        raw(b, '''s_getpc_b64 s[8:9]
        s_and_b32 s8, s8, 0xffffff00
        s_mov_b32 s10, %s_end - %s + 256
        s_mov_b32 s11, 0x20000
        s_lshl_b32 s24, s24, 2
        s_add_u32 s24, s24, s%d
        s_lshl_b32 s24, s24, 13
        v_lshlrev_b32 v2, 7, v0
        buffer_load_dword v251, v2, s[8:11], s24 offen''' % (name, name, S_WAVE))
        b.label(lc)
    front.front(b, name)
    b('s_lshr_b32 s%d, s2, 5' % S_SY)
    flag_off(b, S_SY, F_H, S_SY)
    p2.setup(b)
    signal(b, S_WS, S_SY)
    stamp(b, 3)
    p2.pre(b)
    p2.flag_index(b, S_SY + 3)
    await_flag(b, S_WS, S_SY + 3, 32)
    stamp(b, 4)
    p2.main(b, name)
    p2.out_flag(b, S_SY)
    stamp(b, 9)
    g3 = p3.p3(b, name + '_p3')
    next(g3)
    signal(b, S_WS, S_SY)
    stamp(b, 23)
    p3.p3b_pre(b)
    next(g3)
    await_flag(b, S_WS, S_SY + 3, 8)
    stamp(b, 10)
    for _ in g3: pass
    g4 = p45.p4(b, name + '_p4')
    p4_first = next(g4)
    signal(b, S_WS, S_SY)
    stamp(b, 13)
    g3b = p3.p3b(b, name + '_p3b')
    next(g3b)
    hidden(b, p4_first)
    await_flag(b, S_WS, S_SY + 3, 16)
    stamp(b, 14)
    for _ in g3b: pass
    signal(b, S_WS, S_SY)
    stamp(b, 15)
    b('s_cmp_ge_u32 s26, 15')
    b('s_cbranch_scc1 %s_p4_idle' % name)
    next(g4)
    await_flag(b, S_WS, S_SY + 3, 16)
    for _ in g4: pass
    g5 = p45.p5(b, name + '_p5')
    next(g5)
    signal(b, S_WS, S_SY)
    next(g5)
    b('s_branch %s_p5_wait' % name)
    b.label(name + '_p4_idle')
    g5b = p45.p5(b, name + '_p5x')
    next(g5b)
    next(g5b)
    b.label(name + '_p5_wait')
    stamp(b, 18)
    await_flag(b, S_WS, S_SY + 3, 15)
    b('s_waitcnt vmcnt(0)')
    stamp(b, 19)
    for _ in g5: pass
    stamp(b, 22)
    if 'dbgtime' in OPT:
        mk_srd(b, 52, P_DBG, 256)
        raw(b, '''s_waitcnt vmcnt(0)
        s_memrealtime s[98:99]
        s_waitcnt lgkmcnt(0)
        v_mov_b32 v251, s98
        s_mov_b64 exec, 1
        buffer_atomic_umax v251, off, s[52:55], 0 offset:20''')
    b('s_endpgm')
    p2.fallback(b, name)
    b.label(name + '_end')
    b('s_endpgm')
    return b


def build(path, verbose=False):
    name = KNAME + '_kernel'
    head = open('cdna_kernels/' + KNAME + '.s.ref').read().split('; Override launch geometry')[0]
    b = build_kernel(name)
    log = []
    text = finalize(b, log)
    if verbose:
        print('%d lines, %d nop insertions' % (text.count('\n'), len(log)))
        for l in log:
            if 'permlane' not in l and 'lds"' not in l: print('   ', l)
    form = os.environ.get('FORM', 'single')
    if form == 'single':
        launch = '; @launch grid=(256,1,1) block=(256,1,1) lds=163840'
    else:
        launch = '; @launch kernel=%s grid=(256,1,1) block=(256,1,1) lds=163840' % name
    out = [head.rstrip(), launch, '.amdgcn_target "amdgcn-amd-amdhsa--gfx950"', '.text', kernel_header(name) + text,
           '.section .rodata,"a"', kernel_descriptor(name, 256, 256)]
    open(path, 'w').write('\n'.join(out))


if __name__ == '__main__':
    build(sys.argv[1] if len(sys.argv) > 1 else 'mega.s', verbose=True)
```

```python
from mc import *

LN_LDS = 163840 - 512
MF = 'v_mfma_f32_16x16x32_bf16'


def prefetches(b):
    lk = uid('pf')
    b('s_cmp_lt_u32 s2, 96')
    b('s_cbranch_scc1 %s' % lk)
    mk_srd(b, 28, P_WQ, 512 * 8192)
    b('v_lshrrev_b32 v72, 4, v0')
    b('v_lshlrev_b32 v72, 13, v72')
    b('v_and_b32 v73, 15, v0')
    b('v_lshl_add_u32 v72, v73, 7, v72')
    b('s_lshr_b32 s32, s2, 3')
    b('s_sub_u32 s32, s32, 12')
    b('s_lshl_b32 s32, s32, 2')
    b('s_add_u32 s32, s32, s%d' % S_WAVE)
    b('s_lshl_b32 s32, s32, 16')
    b('s_bfe_u32 s33, s2, 0x20001')
    b('s_lshl_b32 s33, s33, 11')
    b('s_add_u32 s32, s32, s33')
    b('s_add_u32 s33, s32, 32768')
    if 'nowqpf' not in OPT:
        raw(b, 'buffer_load_dword v250, v72, s[28:31], s32 offen')
        raw(b, 'buffer_load_dword v250, v72, s[28:31], s33 offen')
    if 'nokvpf' not in OPT:
        b('s_cmp_ge_u32 s%d, 2' % S_WAVE)
        b('s_cselect_b32 s28, s%d, s%d' % (P_V, P_K))
        b('s_cselect_b32 s29, s%d, s%d' % (P_V + 1, P_K + 1))
        b('s_mov_b32 s30, 0x%x' % (32 * 2048 * 256))
        b('s_mov_b32 s31, 0x20000')
        b('s_lshr_b32 s32, s2, 3')
        b('s_sub_u32 s32, s32, 12')
        b('s_lshr_b32 s33, s32, 1')
        b('s_bfe_u32 s34, s2, 0x20001')
        b('s_lshl_b32 s34, s34, 3')
        b('s_add_u32 s34, s34, s33')
        b('s_lshl_b32 s34, s34, 19')
        b('s_add_u32 s34, s34, %d' % (1536 * 256))
        b('s_and_b32 s35, s32, 1')
        b('s_lshl_b32 s35, s35, 14')
        b('s_add_u32 s34, s34, s35')
        b('s_and_b32 s35, s%d, 1' % S_WAVE)
        b('s_lshl_b32 s35, s35, 13')
        b('s_add_u32 s34, s34, s35')
        b('s_cmp_ge_u32 s33, 8')
        b('s_cselect_b32 s34, 0x%x, s34' % OOB)
        b('v_lshlrev_b32 v72, 7, v0')
        raw(b, 'buffer_load_dword v250, v72, s[28:31], s34 offen')
    b.label(lk)


def front(b, name):
    S_C, S_WM, S_X = 8, 12, 16
    S_T0, S_T1 = 24, 25
    mk_srd(b, S_DBGS, P_DBG, 256)
    b('s_lshl_b32 s%d, s%d, 6' % (S_T0, S_WAVE))
    b('v_add_u32 v3, s%d, v0' % S_T0)
    l0 = uid('notp0')
    b('s_cmp_ge_u32 s2, 96')
    b('s_cbranch_scc1 %s' % l0)
    mk_srd(b, S_C, P_C, 1024)
    mk_srd(b, S_WM, P_WMOD, 512 * 6144)
    b('v_lshlrev_b32 v80, 2, v0')
    b('s_lshl_b32 s26, s%d, 8' % S_WAVE)
    b('buffer_load_dword v84, v80, s[%d:%d], s26 offen' % (S_C, S_C + 3))
    b('v_lshrrev_b32 v81, 2, v0')
    b('v_mul_u32_u24 v81, 6144, v81')
    b('v_and_b32 v82, 3, v0')
    b('v_lshl_add_u32 v81, v82, 4, v81')
    b('s_and_b32 s37, s2, 7')
    b('s_lshl_b32 s37, s37, 1')
    b('s_bfe_u32 s38, s2, 0x10003')
    b('s_or_b32 s37, s37, s38')
    b('s_and_b32 s38, s2, 0x70')
    b('s_or_b32 s37, s37, s38')
    b('s_mul_i32 s27, s%d, %d' % (S_WAVE, 128 * 6144))
    b('s_lshl_b32 s28, s37, 6')
    b('s_add_u32 s27, s27, s28')
    b('s_lshl_b32 s28, s%d, 13' % S_WAVE)
    for i in range(8):
        b('s_add_u32 m0, s28, %d' % (i * 1024))
        b('s_add_u32 s29, s27, %d' % (i * 16 * 6144))
        b('buffer_load_dwordx4 v81, s[%d:%d], s29 offen lds' % (S_WM, S_WM + 3), 'P0W')
    b.label(l0)
    l1 = uid('notclr')
    b('s_cmp_lg_u32 s2, 255')
    b('s_cbranch_scc1 %s' % l1)
    b('v_lshlrev_b32 v80, 4, v3')
    for i in range(4):
        b('v_mov_b32 v%d, -1' % (84 + i))
    for i in range(3):
        b('s_mov_b32 s26, %d' % (WS_MOD + i * 4096))
        b('buffer_store_dwordx4 v[84:87], v80, s[%d:%d], s26 offen sc1' % (S_WS, S_WS + 3))
    b('v_lshlrev_b32 v80, 7, v3')
    b('v_mov_b32 v88, 0')
    b('v_cmp_gt_u32 vcc, %d, v3' % F_COUNT)
    b('s_and_saveexec_b64 s[34:35], vcc')
    b('s_mov_b32 s26, 0x%x' % WS_FLAG)
    b('buffer_store_dword v88, v80, s[%d:%d], s26 offen sc1' % (S_WS, S_WS + 3))
    b('s_mov_b64 exec, s[34:35]')
    b('s_waitcnt vmcnt(0)')
    b('s_barrier')
    raw(b, '''s_cmp_lg_u32 s%d, 0
    s_cbranch_scc1 %s
    v_mov_b32 v88, 1
    buffer_store_dword v88, off, s[%d:%d], 0 sc1''' % (S_WAVE, l1, S_DBGS, S_DBGS + 3))
    b.label(l1)
    mk_srd(b, S_X, P_X, 2048 * 1024)
    b('v_and_b32 v1, 7, v0')
    b('v_lshrrev_b32 v2, 3, v3')
    b('v_lshlrev_b32 v4, 10, v1')
    b('v_lshrrev_b32 v5, 1, v2')
    b('v_lshl_add_u32 v4, v5, 6, v4')
    b('v_and_b32 v6, 1, v2')
    b('v_lshl_add_u32 v4, v6, 3, v4')
    b('s_lshl_b32 s36, s2, 13')
    for j in range(4):
        b('buffer_load_dwordx2 v[%d:%d], v4, s[%d:%d], s36 offen offset:%d' % (8 + 2 * j, 9 + 2 * j, S_X, S_X + 3, 16 * j))
    b('v_lshlrev_b32 v7, 7, v5')
    b('v_lshl_add_u32 v7, v6, 4, v7')
    b('v_lshlrev_b32 v74, 11, v5')
    b('v_lshl_add_u32 v74, v6, 9, v74')
    b('s_and_b32 s%d, s2, 3' % S_T0)
    b('s_lshl_b32 s%d, s%d, 3' % (S_T0, S_T0))
    b('v_add_u32 v6, s%d, v1' % S_T0)
    b('v_lshl_add_u32 v6, v6, 4, v74')
    l2, l2a = uid('p0done'), uid('nop0')
    b('s_cmp_ge_u32 s2, 96')
    b('s_cbranch_scc1 %s' % l2a)
    b('s_waitcnt vmcnt(12)')
    if 'fst' in OPT: raw_stamp(b, 24)
    b('v_lshlrev_b32 v64, 16, v84')
    b('v_and_b32 v65, 0xffff0000, v84')
    for i in range(2):
        b('v_mul_f32 v%d, %s, v%d' % (66 + i, f32(-LOG2E), 64 + i))
    for i in range(2):
        b('v_exp_f32 v%d, v%d' % (66 + i, 66 + i))
    for i in range(2):
        b('v_add_f32 v%d, 1.0, v%d' % (66 + i, 66 + i))
    for i in range(2):
        b('v_rcp_f32 v%d, v%d' % (66 + i, 66 + i))
    for i in range(2):
        b('v_mul_f32 v%d, v%d, v%d' % (64 + i, 64 + i, 66 + i))
    b('v_cvt_pk_bf16_f32 v64, v64, v65')
    b('s_lshl_b32 s26, s%d, 8' % S_WAVE)
    b('s_add_u32 s26, s26, 32768')
    b('v_lshl_add_u32 v65, v0, 2, s26')
    b('ds_write_b32 v65, v64')
    b('v_lshrrev_b32 v66, 4, v0')
    b('v_lshl_add_u32 v67, v66, 4, s26')
    b('v_bfe_u32 v68, v0, 2, 2')
    b('v_lshl_add_u32 v68, v66, 3, v68')
    b('v_lshlrev_b32 v68, 6, v68')
    b('v_and_b32 v69, 3, v0')
    b('v_lshl_add_u32 v68, v69, 3, v68')
    b('s_lshl_b32 s27, s%d, 13' % S_WAVE)
    b('v_add_u32 v68, s27, v68')
    b('s_waitcnt lgkmcnt(0)')
    for u in range(4):
        b('ds_read_b128 v[%d:%d], v67 offset:%d' % (96 + 4 * u, 99 + 4 * u, 64 * u))
    b('s_waitcnt vmcnt(4)' if 'fst' not in OPT else 's_waitcnt vmcnt(5)')
    if 'fst' in OPT: raw_stamp(b, 25)
    for u in range(4):
        for nb in range(2):
            for jj in range(2):
                r = 112 + 8 * u + 4 * nb + 2 * jj
                b('ds_read_b64_tr_b16 v[%d:%d], v68 offset:%d' % (r, r + 1, u * 2048 + jj * 256 + nb * 32))
    for u in range(4):
        for nb in range(2):
            r = 112 + 8 * u + 4 * nb
            d = 'v[%d:%d]' % (144 + 4 * nb, 147 + 4 * nb)
            b('%s %s, v[%d:%d], v[%d:%d], %s' % (MF, d, r, r + 3, 96 + 4 * u, 99 + 4 * u, '0' if u == 0 else d))
    b('s_lshl_b32 s26, s%d, 7' % S_WAVE)
    b('s_add_u32 s26, s26, 34816')
    b('v_lshl_add_u32 v69, v66, 4, s26')
    b('ds_write_b128 v69, v[144:147]')
    b('ds_write_b128 v69, v[148:151] offset:64')
    b('s_waitcnt lgkmcnt(0)')
    b('s_barrier')
    b('v_and_b32 v70, 31, v0')
    b('v_lshlrev_b32 v70, 2, v70')
    for w in range(4):
        b('ds_read_b32 v%d, v70 offset:%d' % (96 + w, 34816 + 128 * w))
    b('v_add_f32 v96, v96, v97')
    b('v_add_f32 v98, v98, v99')
    b('v_add_f32 v96, v96, v98')
    b('v_cvt_pk_bf16_f32 v96, v96, v96')
    b('v_and_b32 v96, 0xffff0000, v96')
    b('v_add_f32 v97, 1.0, v96')
    b('v_cvt_pk_bf16_f32 v97, v97, v97')
    b('v_and_b32 v97, 0xffff0000, v97')
    b('v_mul_f32 v98, %s, v96' % f32(QSCALE))
    b('s_lshr_b32 s26, s37, 4')
    b('s_cmp_eq_u32 s26, 0')
    b('s_cselect_b64 vcc, -1, 0')
    b('v_cndmask_b32 v96, v96, v98, vcc')
    b('s_cmp_eq_u32 s26, 1')
    b('s_cselect_b64 vcc, -1, 0')
    b('v_cndmask_b32 v96, v96, v97, vcc')
    b('s_cmp_eq_u32 s26, 4')
    b('s_cselect_b64 vcc, -1, 0')
    b('v_cndmask_b32 v96, v96, v97, vcc')
    if 'fst' in OPT: raw_stamp(b, 26)
    await_ready(b)
    if 'fst' in OPT: raw_stamp(b, 27)
    b('s_lshl_b32 s27, s37, 7')
    raw(b, '''s_cmp_lg_u32 s%d, 0
    s_cbranch_scc1 %s
    s_mov_b32 exec_hi, 0
    buffer_store_dword v96, v70, s[%d:%d], s27 offen offset:%d sc1
    s_mov_b32 exec_hi, -1''' % (S_WAVE, l2, S_WS, S_WS + 3, WS_MOD))
    b('s_branch %s' % l2)
    b.label(l2a)
    b('s_waitcnt vmcnt(0)')
    b.label(l2)
    stamp(b, 1)
    X = 16
    for p in range(8):
        b('v_lshlrev_b32 v%d, 16, v%d' % (X + 2 * p, 8 + p))
        b('v_and_b32 v%d, 0xffff0000, v%d' % (X + 2 * p + 1, 8 + p))
    if 'midpf' in OPT: prefetches(b)
    layernorm16(b, X, 32, 1, LN_LDS, QSCALE)
    if 'fst' in OPT: raw_stamp(b, 28)
    await_ready(b)
    if 'midpf' not in OPT: prefetches(b)
    if 'fst' in OPT: raw_stamp(b, 29)
    loads = []
    for j in range(4):
        loads.append('buffer_load_dwordx4 v[%d:%d], v7, s[%d:%d], 0 offen offset:%d sc1' % (48 + 4 * j, 51 + 4 * j, S_WS, S_WS + 3, WS_MOD + 32 * j))
        loads.append('buffer_load_dwordx4 v[%d:%d], v7, s[%d:%d], 0 offen offset:%d sc1' % (64 + 4 * j, 67 + 4 * j, S_WS, S_WS + 3, WS_MOD + 2048 + 32 * j))
    load_mod(b, loads, list(range(48, 80)), 40)
    stamp(b, 2)
    for i in range(16):
        b('v_fma_f32 v%d, v%d, v%d, v%d' % (X + i, X + i, 64 + i, 48 + i))
    for p in range(8):
        b('v_cvt_pk_bf16_f32 v%d, v%d, v%d' % (8 + p, X + 2 * p, X + 2 * p + 1))
    b('s_lshr_b32 s%d, s2, 2' % S_T0)
    b('s_lshl_b32 s%d, s%d, 15' % (S_T0, S_T0))
    b('s_add_u32 s%d, s%d, 0x%x' % (S_T0, S_T0, WS_H))
    b('buffer_store_dwordx4 v[8:11], v6, s[%d:%d], s%d offen sc1' % (S_WS, S_WS + 3, S_T0))
    b('buffer_store_dwordx4 v[12:15], v6, s[%d:%d], s%d offen offset:1024 sc1' % (S_WS, S_WS + 3, S_T0))
```

```python
import os, struct
from asm import *

KNAME = 'adaLN_cond__sliding_block_cached__glu_gated_bilinear__prompt'
STAMPS = bool(os.environ.get('STAMPS'))
OPT = set(os.environ.get('OPT', '').split(','))
M16 = os.environ.get('M16', '1') == '1'

WS_MOD = 0x0
WS_FLAG = 0x10000
WS_H = 0x100000
WS_O = 0x400000
WS_PART = 0x1400000
WS_X1 = 0x2400000
WS_H2 = 0x2600000
WS_HH = 0x2800000
WS_STAMP = 0x9000000
WS_BYTES = 0x10000000
OOB = 0x10000000

F_H, F_O, F_PART, F_H2, F_HH, F_COUNT = 0, 8, 40, 56, 72, 88

LOG2E = 1.4426950408889634
QSCALE = LOG2E / (128.0 ** 0.5)

S_WAVE = 3
S_WS = 4
S_DBGS = 56
S_SY = 60
P_X, P_K, P_V, P_WQ, P_WO, P_BX, P_WG, P_WU = 64, 66, 68, 70, 72, 74, 76, 78
P_WD, P_C, P_WMOD, P_OUT, P_DBG, P_WSP = 80, 82, 84, 86, 88, 90
V_SY = 255
SPIN_LIMIT = 100000


def f32(x):
    return '0x%08x' % struct.unpack('<I', struct.pack('<f', x))[0]


def vr(base, n=1):
    return 'v%d' % base if n == 1 else 'v[%d:%d]' % (base, base + n - 1)


def ar(base, n=1):
    return 'a%d' % base if n == 1 else 'a[%d:%d]' % (base, base + n - 1)


def mk_srd(b, dst, ptr, nbytes, off=None):
    if off is None:
        b('s_mov_b32 s%d, s%d' % (dst, ptr))
        b('s_mov_b32 s%d, s%d' % (dst + 1, ptr + 1))
    else:
        b('s_add_u32 s%d, s%d, s%d' % (dst, ptr, off))
        b('s_addc_u32 s%d, s%d, 0' % (dst + 1, ptr + 1))
    if nbytes is not None:
        b('s_mov_b32 s%d, 0x%x' % (dst + 2, nbytes))
    b('s_mov_b32 s%d, 0x20000' % (dst + 3))


def raw(b, text):
    for l in text.strip().split('\n'):
        l = l.strip()
        if l:
            b.add(Raw(l if l.endswith(':') else '  ' + l))


_uid = [0]


def uid(p):
    _uid[0] += 1
    return 'L%s%d' % (p, _uid[0])


def signal(b, srd, soff):
    b('s_waitcnt vmcnt(0)')
    b('s_barrier')
    l = uid('sig')
    raw(b, '''s_cmp_lg_u32 s%d, 0
    s_cbranch_scc1 %s
    s_mov_b64 exec, 1
    v_mov_b32 v%d, 1
    buffer_atomic_add v%d, off, s[%d:%d], s%d
    s_mov_b64 exec, -1
    %s:''' % (S_WAVE, l, V_SY, V_SY, srd, srd + 3, soff, l))


def await_flag(b, srd, soff, target):
    l, d = uid('poll'), uid('got')
    raw(b, '''s_cmp_lg_u32 s%d, 0
    s_cbranch_scc1 %s
    s_mov_b32 s%d, %d
    %s:
    buffer_load_dword v%d, off, s[%d:%d], s%d sc1
    s_waitcnt vmcnt(0)
    v_readfirstlane_b32 s%d, v%d
    s_nop 3
    s_cmp_ge_u32 s%d, %d
    s_cbranch_scc1 %s
    s_sub_u32 s%d, s%d, 1
    s_cmp_lg_u32 s%d, 0
    s_cbranch_scc1 %s
    %s:''' % (S_WAVE, d, S_SY + 1, SPIN_LIMIT, l, V_SY, srd, srd + 3, soff, S_SY + 2, V_SY, S_SY + 2, target, d,
              S_SY + 1, S_SY + 1, S_SY + 1, l, d))
    b('s_barrier')


def flag_off(b, dst, first, idx_sgpr):
    b('s_lshl_b32 s%d, s%d, 7' % (dst, idx_sgpr))
    b('s_add_u32 s%d, s%d, 0x%x' % (dst, dst, WS_FLAG + first * 128))


DBG_SLOTS = {0: 1, 2: 2, 4: 3, 6: 4, 8: 5, 9: 6, 10: 7, 12: 8, 14: 9, 15: 10, 17: 11, 19: 12, 21: 13, 22: 14}


def stamp(b, i):
    if 'dbgph' in OPT and i in DBG_SLOTS:
        l = uid('dbg')
        raw(b, '''s_cmp_lg_u32 s2, %d
        s_cbranch_scc1 %s
        s_cmp_lg_u32 s%d, 0
        s_cbranch_scc1 %s
        s_memrealtime s[92:93]
        s_memtime s[94:95]
        s_mov_b32 s96, s%d
        s_mov_b32 s97, s%d
        s_mov_b32 s98, 256
        s_mov_b32 s99, 0x20000
        s_waitcnt lgkmcnt(0)
        v_mov_b32 v252, s92
        buffer_store_dword v252, off, s[96:99], 0 offset:%d
        v_mov_b32 v253, s94
        buffer_store_dword v253, off, s[96:99], 0 offset:%d
        %s:''' % (int(os.environ.get('DBGWG', '100')), l, S_WAVE, l, P_DBG, P_DBG + 1, 4 * DBG_SLOTS[i], 128 + 4 * DBG_SLOTS[i], l))
    if STAMPS:
        b('s_memrealtime s[92:93]')
        b('s_memtime s[94:95]')
        b('s_waitcnt lgkmcnt(0)')
        b('v_mov_b32 v252, s92')
        b('v_mov_b32 v253, s94')
        b('buffer_store_dwordx2 v[252:253], off, s[%d:%d], s96 offset:%d' % (S_WS, S_WS + 3, 8 * i))


class Sched:
    def __init__(self):
        self.m = {}
        self.f = {}

    def mfma(self, slot, text):
        assert slot not in self.m
        self.m[slot] = text

    def add(self, slot, item, tag=None):
        self.f.setdefault(slot, []).append((item, tag))

    def emit(self, b, lo, hi, valu_last=False):
        for s in range(lo, hi):
            if s in self.m:
                b(self.m[s])
            items = self.f.get(s, [])
            if valu_last:
                isv = lambda it: isinstance(it[0], str) and it[0].startswith('v_')
                items = [x for x in items if not isv(x)] + [x for x in items if isv(x)]
            for item, tag in items:
                if callable(item):
                    item(b)
                else:
                    b(item, tag)


def xor16_32_add(b, x, tmp):
    b('v_mov_b32 v%d, v%d' % (tmp, x))
    b('v_permlane16_swap_b32 v%d, v%d' % (x, tmp))
    b('v_add_f32 v%d, v%d, v%d' % (x, x, tmp))
    b('v_mov_b32 v%d, v%d' % (tmp, x))
    b('v_permlane32_swap_b32 v%d, v%d' % (x, tmp))
    b('v_add_f32 v%d, v%d, v%d' % (x, x, tmp))


def row_reduce(b, x, tmp, lds_off, wave_v, r_v):
    b('v_add_f32_dpp v%d, v%d, v%d row_ror:8 row_mask:0xf bank_mask:0xf' % (tmp, x, x))
    b('v_mov_b32 v%d, v%d' % (x, tmp))
    xor16_32_add(b, x, tmp)
    b('ds_write_b32 v%d, v%d offset:%d' % (wave_v, x, lds_off))
    b('s_waitcnt lgkmcnt(0)')
    b('s_barrier')
    b('ds_read_b128 v[%d:%d], v%d offset:%d' % (tmp, tmp + 3, r_v, lds_off))
    b('v_add_f32 v%d, v%d, v%d' % (tmp, tmp, tmp + 1))
    b('v_add_f32 v%d, v%d, v%d' % (tmp + 2, tmp + 2, tmp + 3))
    b('v_add_f32 v%d, v%d, v%d' % (x, tmp, tmp + 2))


def layernorm16(b, X, T, r8, lds_base, scale=None):
    b('v_lshlrev_b32 v%d, 4, v%d' % (T + 7, r8))
    b('v_add_u32 v%d, %d, v%d' % (T + 7, lds_base, T + 7))
    b('s_lshl_b32 s%d, s%d, 2' % (S_SY + 3, S_WAVE))
    b('v_add_u32 v%d, s%d, v%d' % (T + 6, S_SY + 3, T + 7))
    S = T + 4
    b('v_add_f32 v%d, v%d, v%d' % (S, X, X + 1))
    for i in range(2, 16):
        b('v_add_f32 v%d, v%d, v%d' % (S, S, X + i))
    row_reduce(b, S, T, 0, T + 6, T + 7)
    b('v_mul_f32 v%d, %s, v%d' % (S, f32(1.0 / 512), S))
    for i in range(16):
        b('v_sub_f32 v%d, v%d, v%d' % (X + i, X + i, S))
    b('v_mul_f32 v%d, v%d, v%d' % (S, X, X))
    for i in range(1, 16):
        b('v_fmac_f32 v%d, v%d, v%d' % (S, X + i, X + i))
    row_reduce(b, S, T, 128, T + 6, T + 7)
    b('v_mov_b32 v%d, %s' % (T, f32(1e-5)))
    b('v_fmac_f32 v%d, %s, v%d' % (T, f32(1.0 / 512), S))
    b('v_rsq_f32 v%d, v%d' % (T, T))
    if scale is not None:
        b('v_mul_f32 v%d, %s, v%d' % (T, f32(scale), T))
    for i in range(16):
        b('v_mul_f32 v%d, v%d, v%d' % (X + i, X + i, T))


def await_ready(b):
    l, d = uid('rdy'), uid('rdyok')
    raw(b, '''s_mov_b32 s%d, %d
    %s:
    buffer_load_dword v%d, off, s[%d:%d], 0 sc1
    s_waitcnt vmcnt(0)
    v_readfirstlane_b32 s%d, v%d
    s_nop 3
    s_cmp_lg_u32 s%d, 0
    s_cbranch_scc1 %s
    s_sub_u32 s%d, s%d, 1
    s_cmp_lg_u32 s%d, 0
    s_cbranch_scc1 %s
    %s:''' % (S_SY + 1, SPIN_LIMIT, l, V_SY, S_DBGS, S_DBGS + 3, S_SY + 2, V_SY, S_SY + 2, d, S_SY + 1, S_SY + 1, S_SY + 1, l, d))


def load_mod(b, loads, regs, tmp):
    l, d = uid('mod'), uid('modok')
    lines = ['s_mov_b32 s%d, %d' % (S_SY + 1, SPIN_LIMIT), l + ':'] + loads + ['s_waitcnt vmcnt(0)']
    lines.append('v_max3_u32 v%d, v%d, v%d, v%d' % (tmp, regs[0], regs[1], regs[2]))
    rest = regs[3:]
    while len(rest) >= 2:
        lines.append('v_max3_u32 v%d, v%d, v%d, v%d' % (tmp, tmp, rest[0], rest[1]))
        rest = rest[2:]
    if rest:
        lines.append('v_max_u32 v%d, v%d, v%d' % (tmp, tmp, rest[0]))
    lines += ['v_cmp_eq_u32 vcc, -1, v%d' % tmp, 's_nop 4', 's_cmp_eq_u64 vcc, 0', 's_cbranch_scc1 ' + d,
              's_sub_u32 s%d, s%d, 1' % (S_SY + 1, S_SY + 1), 's_cmp_lg_u32 s%d, 0' % (S_SY + 1), 's_cbranch_scc1 ' + l, d + ':']
    raw(b, '\n'.join(lines))


def raw_stamp(b, i):
    raw(b, '''s_memrealtime s[92:93]
    s_memtime s[94:95]
    s_waitcnt lgkmcnt(0)
    v_mov_b32 v252, s92
    v_mov_b32 v253, s94
    buffer_store_dwordx2 v[252:253], off, s[%d:%d], s96 offset:%d''' % (S_WS, S_WS + 3, 8 * i))


def check_mod(b, loads, regs, tmp):
    d = uid('chk')
    lines = ['v_max3_u32 v%d, v%d, v%d, v%d' % (tmp, regs[0], regs[1], regs[2])]
    rest = regs[3:]
    while len(rest) >= 2:
        lines.append('v_max3_u32 v%d, v%d, v%d, v%d' % (tmp, tmp, rest[0], rest[1]))
        rest = rest[2:]
    if rest:
        lines.append('v_max_u32 v%d, v%d, v%d' % (tmp, tmp, rest[0]))
    for l in lines: b(l)
    b('v_cmp_eq_u32 vcc, -1, v%d' % tmp)
    b('s_cmp_eq_u64 vcc, 0')
    b('s_cbranch_scc1 %s' % d)
    load_mod(b, loads, regs, tmp)
    b.label(d)


def hidden(b, f):
    t = Block()
    f(t)
    for l in finalize(t).rstrip('\n').split('\n'):
        b.add(Raw(l))
```

```python
from mc import *

PF = True

S_WQ, S_K, S_V = 8, 12, 16
S_HEAD, S_QT, S_W, S_ROT = 24, 25, 26, 27
S_W8K, S_W4K = 28, 29
S_WB = 32
S_HB = 36
S_T0, S_T1, S_T2 = 40, 41, 42
S_OB = 43
S_MODE = 44
S_KVB = 45
S_KROT = 47
S_CH = 46
S_WO, S_WG, S_WU, S_WD = 20, 48, 52, 56
S_PFO = 30

V_WOFF = 2
V_KOFF = 6
V_VOFF = 10
V_H = 11
V_WA = 16
V_VA = 20
V_KA = 24
V_L = 32
V_LANE16 = 36
V_OOFF = 37
V_PF = 248
V_T = 40
V_Q = 64
V_ACC = 128
V_S = 128
V_NEG = 160
V_P = 192
V_M = 208
A_O = 0
A_KF = 128
A_VF = 160

SLOT = 32768
MAX_OFF = 24.0
L_LIMIT = 2.0 ** 80


def kv_slot(i):
    return (i + 4) % 5


def dma_kv(i, w4k=S_W4K):
    out = []
    base = kv_slot(i) * SLOT
    out.append(('s_add_u32 s%d, s%d, %d' % (S_CH, S_KROT, i), None))
    out.append(('s_and_b32 s%d, s%d, 7' % (S_CH, S_CH), None))
    out.append(('s_add_u32 m0, s%d, %d' % (w4k, base), None))
    out.append(('s_lshl_b32 s%d, s%d, 14' % (S_CH, S_CH), None))
    out.append(('s_add_u32 s%d, s%d, s%d' % (S_CH, S_CH, w4k), None))
    for ii in range(4):
        out.append(('buffer_load_dwordx4 v%d, s[%d:%d], s%d offen offset:%d lds' % (V_KOFF + ii, S_K, S_K + 3, S_CH, ii * 1024), 'C%d' % i))
    out.append(('s_add_u32 m0, s%d, %d' % (w4k, base + 16384), None))
    for ii in range(4):
        out.append(('buffer_load_dwordx4 v%d, s[%d:%d], s%d offen offset:%d lds' % (V_VOFF, S_V, S_V + 3, S_CH, ii * 1024), 'C%d' % i))
    return out


def dma_w(p):
    out = []
    for half in range(2):
        out.append(('s_add_u32 m0, s%d, %d' % (S_W8K, p * SLOT + half * 4096), None))
        if half:
            out.append(('s_add_u32 s%d, s%d, %d' % (S_T0, S_WB + p, 4 * 32768), None))
        for ii in range(4):
            out.append(('buffer_load_dwordx4 v%d, s[%d:%d], s%d offen offset:%d lds' %
                        (V_WOFF + ii, S_WQ, S_WQ + 3, S_T0 if half else S_WB + p, ii * 1024), 'W%d' % p))
    return out


def h_load(s):
    p = s // 8
    out = []
    for qq in range(2):
        out.append(('buffer_load_dwordx4 %s, v%d, s[%d:%d], s%d offen offset:%d sc1' %
                    (ar(8 * s + 4 * qq, 4), V_H + 2 * qq + ((s & 7) >> 2), S_WS, S_WS + 3, S_HB + p, (s & 3) * 1024), None))
    return out


def setup(b):
    b('s_and_b32 s%d, s2, 7' % S_T0)
    b('s_lshr_b32 s%d, s2, 3' % S_T1)
    b('s_lshr_b32 s%d, s%d, 1' % (S_HEAD, S_T0))
    b('s_lshl_b32 s%d, s%d, 3' % (S_HEAD, S_HEAD))
    b('s_lshr_b32 s%d, s%d, 2' % (S_ROT, S_T1))
    b('s_add_u32 s%d, s%d, s%d' % (S_HEAD, S_HEAD, S_ROT))
    b('s_and_b32 s%d, s%d, 1' % (S_QT, S_T0))
    b('s_lshl_b32 s%d, s%d, 2' % (S_QT, S_QT))
    b('s_and_b32 s%d, s%d, 3' % (S_T1, S_T1))
    b('s_add_u32 s%d, s%d, s%d' % (S_QT, S_QT, S_T1))
    b('s_add_u32 s%d, s%d, s%d' % (S_ROT, S_ROT, S_T1))
    b('s_and_b32 s%d, s%d, 3' % (S_ROT, S_ROT))
    b('s_lshl_b32 s%d, s%d, 1' % (S_KROT, S_T1))
    if 'rot' not in OPT:
        b('s_mov_b32 s%d, 0' % S_ROT)
        b('s_mov_b32 s%d, 0' % S_KROT)
    b('s_mov_b32 s%d, s%d' % (S_W, S_WAVE))
    T = V_T
    b('v_lshrrev_b32 v%d, 4, v0' % T)
    b('v_and_b32 v%d, 15, v0' % (T + 1))
    b('v_lshlrev_b32 v%d, 2, v%d' % (T + 2, T))
    b('v_xor_b32 v%d, v%d, v%d' % (T + 2, T + 2, T + 1))
    b('v_lshlrev_b32 v%d, 4, v%d' % (T + 2, T + 2))
    b('v_lshlrev_b32 v%d, 8, v%d' % (T + 3, T))
    b('v_add_u32 v%d, v%d, v%d' % (V_VOFF, T + 2, T + 3))
    b('v_lshlrev_b32 v%d, 13, v%d' % (T + 3, T))
    b('v_add_u32 v%d, v%d, v%d' % (V_WOFF, T + 2, T + 3))
    for ii in range(1, 4):
        b('v_add_u32 v%d, %d, v%d' % (V_WOFF + ii, ii * (32768 - 1024), V_WOFF))
    for ii in range(4):
        b('v_add_u32 v%d, %d, v%d' % (T + 2, 4 * ii, T))
        b('v_xor_b32 v%d, v%d, v%d' % (T + 2, T + 2, T + 1))
        b('v_lshlrev_b32 v%d, 4, v%d' % (T + 2, T + 2))
        b('v_lshlrev_b32 v%d, 8, v%d' % (T + 3, T))
        b('v_add_u32 v%d, v%d, v%d' % (V_KOFF + ii, T + 2, T + 3))
    b('v_lshlrev_b32 v%d, 4, v0' % V_LANE16)
    b('v_bfe_u32 v%d, v0, 4, 1' % (T + 2))
    b('v_lshlrev_b32 v%d, 17, v%d' % (V_OOFF, T + 2))
    b('v_lshrrev_b32 v%d, 5, v0' % (T + 2))
    b('v_lshlrev_b32 v%d, 9, v%d' % (T + 2, T + 2))
    b('v_add_u32 v%d, v%d, v%d' % (V_OOFF, V_OOFF, T + 2))
    b('v_and_b32 v%d, 15, v0' % (T + 2))
    b('v_lshlrev_b32 v%d, 4, v%d' % (T + 2, T + 2))
    b('v_add_u32 v%d, v%d, v%d' % (V_OOFF, V_OOFF, T + 2))
    for qq in range(2):
        for half in range(2):
            b('v_add_u32 v%d, %d, v%d' % (V_H + 2 * qq + half, qq * 32768 + half * 4096, V_LANE16))
    b('v_lshrrev_b32 v%d, 5, v0' % T)
    b('v_lshlrev_b32 v%d, 2, v%d' % (T + 1, T))
    b('v_bfe_u32 v%d, v0, 2, 2' % (T + 2))
    b('v_add_u32 v%d, v%d, v%d' % (T + 1, T + 1, T + 2))
    b('v_lshlrev_b32 v%d, 8, v%d' % (T + 1, T + 1))
    b('v_bfe_u32 v%d, v0, 4, 1' % (T + 3))
    b('v_lshlrev_b32 v%d, 5, v%d' % (T + 3, T + 3))
    b('v_add_u32 v%d, v%d, v%d' % (T + 1, T + 1, T + 3))
    b('v_and_b32 v%d, 3, v0' % (T + 3))
    b('v_lshlrev_b32 v%d, 3, v%d' % (T + 4, T + 3))
    b('v_and_b32 v%d, 1, v0' % (T + 5))
    b('v_lshlrev_b32 v%d, 4, v%d' % (T + 5, T + 5))
    b('v_bfe_u32 v%d, v0, 1, 1' % (T + 6))
    b('v_lshlrev_b32 v%d, 3, v%d' % (T + 6, T + 6))
    b('v_add_u32 v%d, v%d, v%d' % (T + 5, T + 5, T + 6))
    for db in range(4):
        b('v_xor_b32 v%d, %d, v%d' % (T + 6, db, T + 2))
        b('v_lshlrev_b32 v%d, 6, v%d' % (T + 6, T + 6))
        b('v_add_u32 v%d, v%d, v%d' % (T + 6, T + 6, T + 1))
        b('v_add_u32 v%d, v%d, v%d' % (V_VA + db, T + 6, T + 4))
        b('v_add_u32 v%d, v%d, v%d' % (V_WA + db, T + 6, T + 5))
    b('v_and_b32 v%d, 31, v0' % (T + 1))
    b('v_and_b32 v%d, 15, v0' % (T + 2))
    b('v_xor_b32 v%d, v%d, v%d' % (T + 2, T + 2, T))
    b('v_lshlrev_b32 v%d, 8, v%d' % (T + 1, T + 1))
    for tt in range(8):
        b('v_xor_b32 v%d, %d, v%d' % (T + 3, 2 * tt, T + 2))
        b('v_lshlrev_b32 v%d, 4, v%d' % (T + 3, T + 3))
        b('v_add_u32 v%d, v%d, v%d' % (V_KA + tt, T + 3, T + 1))
    b('s_lshl_b32 s%d, s%d, 13' % (S_W8K, S_W))
    b('s_lshl_b32 s%d, s%d, 12' % (S_W4K, S_W))
    b('s_lshl_b32 s%d, s%d, 8' % (S_T0, S_HEAD))
    mk_srd(b, S_WQ, P_WQ, None, S_T0)
    b('s_sub_u32 s%d, %d, s%d' % (S_WQ + 2, 512 * 8192, S_T0))
    b('s_lshl_b32 s%d, s%d, 19' % (S_T0, S_HEAD))
    b('s_add_u32 s%d, s%d, %d' % (S_T0, S_T0, 1536 * 256))
    mk_srd(b, S_K, P_K, 512 * 256, S_T0)
    mk_srd(b, S_V, P_V, 512 * 256, S_T0)
    b('s_lshl_b32 s%d, s%d, 3' % (S_T0, S_QT))
    b('s_lshl_b32 s%d, s%d, 1' % (S_T1, S_W))
    b('s_add_u32 s%d, s%d, s%d' % (S_T0, S_T0, S_T1))
    b('s_lshl_b32 s%d, s%d, 15' % (S_T1, S_T0))
    b('s_add_u32 s%d, s%d, 0x%x' % (S_T1, S_T1, WS_H))
    b('s_lshl_b32 s%d, s%d, 18' % (S_T2, S_W))
    for p in range(4):
        b('s_add_u32 s%d, s%d, %d' % (S_CH, S_ROT, p))
        b('s_and_b32 s%d, s%d, 3' % (S_CH, S_CH))
        b('s_lshl_b32 s%d, s%d, 20' % (S_WB + p, S_CH))
        b('s_add_u32 s%d, s%d, s%d' % (S_WB + p, S_WB + p, S_T2))
        b('s_lshl_b32 s%d, s%d, 13' % (S_HB + p, S_CH))
        b('s_add_u32 s%d, s%d, s%d' % (S_HB + p, S_HB + p, S_T1))
    b('s_lshl_b32 s%d, s%d, 18' % (S_OB, S_T0))
    b('s_lshl_b32 s%d, s%d, 12' % (S_T1, S_HEAD))
    b('s_add_u32 s%d, s%d, s%d' % (S_OB, S_OB, S_T1))
    b('s_add_u32 s%d, s%d, 0x%x' % (S_OB, S_OB, WS_O))
    b('s_add_u32 s%d, s%d, 262144' % (S_OB2, S_OB))
    b('s_mov_b32 s%d, 0' % S_MODE)
    if PF:
        mk_srd(b, S_WO, P_WO, 4096 * 1024); mk_srd(b, S_WG, P_WG, 512 * 2752); mk_srd(b, S_WU, P_WU, 512 * 2752); mk_srd(b, S_WD, P_WD, 1376 * 1024)
        b('s_bfe_u32 s%d, s2, 0x20001' % S_PFO)
        b('s_lshl_b32 s%d, s%d, 20' % (S_PFO, S_PFO))
        b('s_lshr_b32 s%d, s2, 3' % S_T1)
        b('s_lshl_b32 s%d, s%d, 15' % (S_T1, S_T1))
        b('s_add_u32 s%d, s%d, s%d' % (S_PFO, S_PFO, S_T1))
        b('s_add_u32 s%d, s%d, s%d' % (S_PFO, S_PFO, S_W8K))


def qproj(b, stamps):
    H_AHEAD = int(os.environ.get("HA", "10"))
    sc = Sched()
    for s in range(0, H_AHEAD):
        for t, g in h_load(s): b(t, g)
    b.waitvm('W0')
    b('s_barrier')
    stamp(b, 5)

    def a_reads(s):
        buf = V_Q + 16 * (s & 1)
        p = s // 8
        out = []
        for db in range(4):
            for jj in range(2):
                off = (p & 1) * SLOT + (s & 7) * 4096 + jj * 2048
                out.append('ds_read_b64_tr_b16 %s, v%d offset:%d' % (vr(buf + 4 * db + 2 * jj, 2), V_WA + db, off))
        return out
    for t in a_reads(0): b(t)
    stream = []
    for first, span, ops in ((0, 4, dma_w(2)), (4, 4, dma_kv(0)), (8, 8, dma_w(3)), (16, 8, dma_kv(1)), (24, 8, dma_kv(2))):
        for k, x in enumerate(ops):
            stream.append((first + (k * span) // len(ops), x))
    for s in range(32):
        base = 8 * s
        for db in range(4):
            for qq in range(2):
                d = vr(V_ACC + (db * 2 + qq) * 16, 16)
                sc.mfma(base + 2 * db + qq, 'v_mfma_f32_32x32x16_bf16 %s, %s, %s, %s' %
                        (d, vr(V_Q + 16 * (s & 1) + 4 * db, 4), ar(8 * s + 4 * qq, 4), '0' if s == 0 else d))
        if s + 1 < 32:
            if (s + 1) % 8 == 0:
                p = (s + 1) // 8
                sc.add(base, lambda bb, p=p: (bb.waitvm('W%d' % p), bb('s_barrier')))
                if p == 2:
                    for db in range(4):
                        sc.add(base, 'v_add_u32 v%d, 0x10000, v%d' % (V_WA + db, V_WA + db))
            for k, t in enumerate(a_reads(s + 1)):
                sc.add(base + k, t)
        if s + H_AHEAD < 32:
            for k, (t, g) in enumerate(h_load(s + H_AHEAD)):
                sc.add(base + 1 + 4 * k, t, g)
        k = 0
        for (st, (t, g)) in stream:
            if st == s:
                sc.add(base + 2 + (k % 6), t, g)
                k += 1
    sc.emit(b, 0, 256)
    for db in range(4):
        for qq in range(2):
            acc = V_ACC + (db * 2 + qq) * 16
            for tp in range(2):
                for k in range(4):
                    b('v_cvt_pk_bf16_f32 v%d, v%d, v%d' % (V_Q + qq * 32 + (2 * db + tp) * 4 + k, acc + 8 * tp + 2 * k, acc + 8 * tp + 2 * k + 1))


def k_read(tt, blk):
    return 'ds_read_b128 %s, v%d offset:%d' % (ar(A_KF + 4 * tt, 4), V_KA + tt, (blk & 1) * 8192)


def v_reads(f, blk):
    ks, db = f // 4, f % 4
    return ['ds_read_b64_tr_b16 %s, v%d offset:%d' % (ar(A_VF + 4 * f + 2 * jj, 2), V_VA + db, 16384 + (blk & 1) * 8192 + ks * 4096 + jj * 2048)
            for jj in range(2)]


def qk(qq, tt, first_c):
    s = vr(V_S + 16 * qq, 16)
    c = s if tt else first_c
    return 'v_mfma_f32_32x32x16_bf16 %s, %s, %s, %s' % (s, ar(A_KF + 4 * tt, 4), vr(V_Q + 32 * qq + 4 * tt, 4), c)


def pv(qq, f, first):
    ks, db = f // 4, f % 4
    o = ar(A_O + (db * 2 + qq) * 16, 16)
    return 'v_mfma_f32_32x32x16_bf16 %s, %s, %s, %s' % (o, ar(A_VF + 4 * f, 4), vr(V_P + 8 * qq + 4 * ks, 4), '0' if (first and ks == 0) else o)


def softmax_pair(qq, p, first=False):
    s0, s1 = V_S + 16 * qq + 2 * p, V_S + 16 * qq + 2 * p + 1
    la, lb = V_L + 2 * qq, V_L + 2 * qq + 1
    e = ['v_exp_f32 v%d, v%d' % (s0, s0), 'v_exp_f32 v%d, v%d' % (s1, s1)]
    if first and p == 0:
        a = ['v_mov_b32 v%d, v%d' % (la, s0), 'v_mov_b32 v%d, v%d' % (lb, s1)]
    else:
        a = ['v_add_f32 v%d, v%d, v%d' % (la, la, s0), 'v_add_f32 v%d, v%d, v%d' % (lb, lb, s1)]
    a.append('v_cvt_pk_bf16_f32 v%d, v%d, v%d' % (V_P + 8 * qq + p, s0, s1))
    return e, a


def half_swap(b, x, tmp, op):
    b('v_mov_b32 v%d, v%d' % (tmp, x))
    b('v_permlane32_swap_b32 v%d, v%d' % (x, tmp))
    b('%s v%d, v%d, v%d' % (op, x, x, tmp))


def prefetches():
    T = V_T
    pre = ['v_lshlrev_b32 v%d, 7, v0' % V_PF,
           'v_min_u32 v%d, 10, v0' % (V_PF + 1),
           's_lshl_b32 s%d, s2, 2' % S_T1, 's_add_u32 s%d, s%d, s%d' % (S_T1, S_T1, S_W), 's_mul_i32 s%d, s%d, 11' % (S_T1, S_T1),
           'v_add_u32 v%d, s%d, v%d' % (V_PF + 1, S_T1, V_PF + 1), 'v_lshlrev_b32 v%d, 7, v%d' % (V_PF + 1, V_PF + 1),
           'v_lshrrev_b32 v%d, 5, v0' % T, 'v_lshlrev_b32 v%d, 17, v%d' % (T, T),
           'v_and_b32 v%d, 31, v0' % (T + 1), 'v_lshl_add_u32 v%d, v%d, 7, v%d' % (T, T + 1, T),
           's_add_u32 s%d, s%d, 262144' % (S_T2, S_OB)]
    DUMMY = 250
    loads = ['buffer_load_dword v%d, v%d, s[%d:%d], s%d offen' % (DUMMY, V_PF, S_WO, S_WO + 3, S_PFO),
             'buffer_load_dword v%d, v%d, s[%d:%d], s%d offen' % (DUMMY, T, S_WS, S_WS + 3, S_OB),
             'buffer_load_dword v%d, v%d, s[%d:%d], s%d offen' % (DUMMY, T, S_WS, S_WS + 3, S_T2)]
    if 'tlb' in OPT:
        pre += ['v_min_u32 v%d, 23, v0' % (T + 3), 'v_lshlrev_b32 v%d, 21, v%d' % (T + 3, T + 3),
                's_lshl_b32 s%d, s2, 7' % S_T2, 'v_add_u32 v%d, s%d, v%d' % (T + 3, S_T2, T + 3)]
        loads[1] = 'buffer_load_dword v%d, v%d, s[%d:%d], 0 offen' % (DUMMY, T + 3, S_WS, S_WS + 3)
    for srd_ in (S_WG, S_WU, S_WD):
        loads.append('buffer_load_dword v%d, v%d, s[%d:%d], 0 offen' % (DUMMY, V_PF + 1, srd_, srd_ + 3))
    return pre, loads


def if_fallback_dma(b, name):
    l = uid('kv12')
    b('s_cmp_eq_u32 s%d, 0' % S_MODE)
    b('s_cbranch_scc1 %s' % l)
    for i in (1, 2):
        for t, g in dma_kv(i):
            raw(b, t)
            if ' m0,' in t: raw(b, 's_nop 0')
    raw(b, 's_waitcnt vmcnt(0)')
    b.label(l)


V_L0 = 39
S_OB2 = 31
OUT_SCRATCH = (160, 172, 210, 222)


def out_group(qq, n):
    db, tp = n // 2, n & 1
    o = A_O + (db * 2 + qq) * 16
    t0 = OUT_SCRATCH[n % 4]
    ops = ['v_accvgpr_read_b32 v%d, a%d' % (t0 + k, o + 8 * tp + k) for k in range(8)]
    ops += ['v_mul_f32 v%d, v%d, v%d' % (t0 + k, t0 + k, V_L + 2 * qq) for k in range(8)]
    ops += ['v_cvt_pk_bf16_f32 v%d, v%d, v%d' % (t0 + 8 + k, t0 + 2 * k, t0 + 2 * k + 1) for k in range(4)]
    st = 'buffer_store_dwordx4 %s, v%d, s[%d:%d], s%d offen offset:%d sc1' % (vr(t0 + 8, 4), V_OOFF, S_WS, S_WS + 3, S_OB2 if qq else S_OB, db * 1024 + tp * 256)
    return ops, st


def attention(b, name, stamps):
    b.label(name + '_attn')
    for tt in range(8):
        b('v_add_u32 v%d, %d, v%d' % (V_KA + tt, kv_slot(0) * SLOT, V_KA + tt))
    for db in range(4):
        b('v_add_u32 v%d, %d, v%d' % (V_VA + db, kv_slot(0) * SLOT, V_VA + db))
    b.waitvm('C0')
    b('s_barrier')
    for tt in range(8):
        b(k_read(tt, 0))
    if_fallback_dma(b, name)
    for tt in range(8):
        for qq in range(2):
            b(qk(qq, tt, '0'))
        b(k_read(tt, 1))
    for f in range(8):
        for t in v_reads(f, 0): b(t)
    b('s_cmp_lg_u32 s%d, 0' % S_MODE)
    b('s_cbranch_scc1 %s_havemax' % name)
    for qq in range(2):
        S = V_S + 16 * qq
        M = V_M + qq
        b('v_max3_f32 v%d, v%d, v%d, v%d' % (M, S, S + 1, S + 2))
        for i in range(3, 15, 2):
            b('v_max3_f32 v%d, v%d, v%d, v%d' % (M, M, S + i, S + i + 1))
        b('v_max_f32 v%d, v%d, v%d' % (M, M, S + 15))
        half_swap(b, M, V_T + qq, 'v_max_f32')
        b('v_add_f32 v%d, %s, v%d' % (M, f32(MAX_OFF), M))
    b.label(name + '_havemax')
    b('s_nop 7')
    b('s_nop 3')
    for qq in range(2):
        for i in range(16):
            b('v_sub_f32 v%d, 0, v%d' % (V_NEG + 16 * qq + i, V_M + qq))
        for i in range(16):
            b('v_sub_f32 v%d, v%d, v%d' % (V_S + 16 * qq + i, V_S + 16 * qq + i, V_M + qq))
    for p in range(8):
        e, a = softmax_pair(0, p, first=True)
        for t in e + a: b(t)
    stamp(b, 7)

    sc = Sched()
    NB = 16
    for j in range(NB):
        base = 32 * j
        last = j == NB - 1
        for f in range(8):
            sc.mfma(base + f, pv(0, f, j == 0))
            sc.mfma(base + 16 + f, pv(1, f, j == 0))
        if not last:
            for tt in range(8):
                sc.mfma(base + 8 + tt, qk(0, tt, vr(V_NEG, 16)))
                sc.mfma(base + 24 + tt, qk(1, tt, vr(V_NEG + 16, 16)))
        for qq, w0, on in ((1, 2, True), (0, 18, not last)):
            if not on:
                continue
            for p in range(8):
                e, a = softmax_pair(qq, p, first=(j == 0 and qq == 1))
                sc.add(base + w0 + 2 * p, e[0])
                sc.add(base + w0 + 2 * p + 1, e[1])
                sc.add(base + w0 + 2 * p + 1, a[0])
                sc.add(base + w0 + 2 * p + 2, a[1])
                sc.add(base + w0 + 2 * p + 2, a[2])
        if j + 1 < NB:
            for f in range(8):
                for jj, t in enumerate(v_reads(f, j + 1)):
                    sc.add(base + 17 + 2 * f + jj, t)
        if j + 2 < NB:
            for tt in range(8):
                sc.add(base + 33 + tt, k_read(tt, j + 2))
        if j == 0:
            ops = dma_kv(3)
            for k, (t, g) in enumerate(ops):
                sc.add(base + 9 + (k * 8) // len(ops), t, g)
        if j % 2 == 0 and j + 2 < NB:
            c = j // 2
            delta = (kv_slot(c + 1) - kv_slot(c)) * SLOT
            lit = '0x%x' % (delta & 0xffffffff)
            for tt in range(8):
                sc.add(base + 9 + tt, 'v_add_u32 v%d, %s, v%d' % (V_KA + tt, lit, V_KA + tt))
            for db in range(4):
                sc.add(base + 32 + 9 + db, 'v_add_u32 v%d, %s, v%d' % (V_VA + db, lit, V_VA + db))
            sc.add(base + 32, lambda bb, c=c: (bb.waitvm('C%d' % (c + 1)), bb('s_barrier')))
            if c + 4 < 8:
                ops = dma_kv(c + 4)
                for k, (t, g) in enumerate(ops):
                    sc.add(base + 32 + 9 + (k * 8) // len(ops), t, g)
    base = 32 * (NB - 1)
    sc.add(base + 3, 'v_add_f32 v%d, v%d, v%d' % (V_L, V_L, V_L + 1))
    sc.add(base + 3, 'v_mov_b32 v%d, v%d' % (V_T, V_L))
    sc.add(base + 4, 'v_permlane32_swap_b32 v%d, v%d' % (V_L, V_T))
    sc.add(base + 5, 'v_add_f32 v%d, v%d, v%d' % (V_L, V_L, V_T))
    sc.add(base + 5, 'v_mov_b32 v%d, v%d' % (V_L0, V_L))
    sc.add(base + 6, 'v_rcp_f32 v%d, v%d' % (V_L, V_L))
    for n in range(8):
        ops, st = out_group(0, n)
        for t in ops: sc.add(base + 9 + 2 * n, t)
        sc.add(base + 10 + 2 * n, st)
    if PF:
        pre, loads = prefetches()
        for k, t in enumerate(pre):
            sc.add(32 * 6 + 9 + k // 2, t)
        order = [0, 3, 4, 5] + ([1, 2] if 'otouch' in OPT else []) + ([1] if 'tlb' in OPT else [])
        for k, i in enumerate(order):
            sc.add(32 * (8 + k // 2) + 10 + 4 * (k % 2), loads[i], 'pf')
    sc.emit(b, 0, 32 * NB, valu_last=True)
    stamp(b, 8)


def epilogue(b, name, stamps):
    T = V_T
    b('v_add_f32 v%d, v%d, v%d' % (V_L + 2, V_L + 2, V_L + 3))
    half_swap(b, V_L + 2, T + 1, 'v_add_f32')
    b('s_cmp_lg_u32 s%d, 0' % S_MODE)
    b('s_cbranch_scc1 %s_noguard' % name)
    b('v_add_f32 v%d, v%d, v%d' % (T + 1, V_L0, V_L + 2))
    b('v_mov_b32 v%d, %s' % (T + 2, f32(L_LIMIT)))
    b('v_cmp_nle_f32 vcc, v%d, v%d' % (T + 1, T + 2))
    b('v_mov_b32 v%d, 0' % (T + 3))
    b('s_cmp_lg_u64 vcc, 0')
    b('s_cselect_b32 s%d, 1, 0' % S_T0)
    b('v_mov_b32 v%d, s%d' % (T + 3, S_T0))
    b('s_lshl_b32 s%d, s%d, 2' % (S_T1, S_W))
    b('s_add_u32 s%d, s%d, %d' % (S_T1, S_T1, 2 * SLOT))
    b('v_mov_b32 v%d, s%d' % (T + 4, S_T1))
    b('ds_write_b32 v%d, v%d' % (T + 4, T + 3))
    b('s_waitcnt lgkmcnt(0)')
    b('s_barrier')
    b('v_mov_b32 v%d, %d' % (T + 4, 2 * SLOT))
    b('ds_read_b128 %s, v%d' % (vr(T + 8, 4), T + 4))
    b('v_or_b32 v%d, v%d, v%d' % (T + 8, T + 8, T + 9))
    b('v_or_b32 v%d, v%d, v%d' % (T + 10, T + 10, T + 11))
    b('v_or_b32 v%d, v%d, v%d' % (T + 8, T + 8, T + 10))
    b('v_readfirstlane_b32 s%d, v%d' % (S_T0, T + 8))
    b('s_cmp_lg_u32 s%d, 0' % S_T0)
    b('s_cbranch_scc1 %s_fallback' % name)
    b.label(name + '_noguard')
    b('s_barrier')
    b('v_rcp_f32 v%d, v%d' % (V_L + 2, V_L + 2))
    for n in range(8):
        ops, st = out_group(1, n)
        for t in ops: b(t)
        b(st)


def fallback(b, name):
    b.label(name + '_fallback')
    b('s_waitcnt vmcnt(0) lgkmcnt(0)')
    b('s_barrier')
    cur = kv_slot(7) * SLOT
    for tt in range(8):
        b('v_add_u32 v%d, 0x%x, v%d' % (V_KA + tt, (-cur) & 0xffffffff, V_KA + tt))
    for db in range(4):
        b('v_add_u32 v%d, 0x%x, v%d' % (V_VA + db, (-cur) & 0xffffffff, V_VA + db))
    for qq in range(2):
        b('v_mov_b32 v%d, 0xff800000' % (V_M + qq))
    b('s_mov_b32 s%d, 0' % S_T2)
    b.label(name + '_fb_loop')
    b('s_lshl_b32 s%d, s%d, 14' % (S_CH, S_T2))
    b('s_add_u32 s%d, s%d, s%d' % (S_CH, S_CH, S_W4K))
    b('s_mov_b32 m0, s%d' % S_W4K)
    for ii in range(4):
        b('buffer_load_dwordx4 v%d, s[%d:%d], s%d offen offset:%d lds' % (V_KOFF + ii, S_K, S_K + 3, S_CH, ii * 1024))
    b('s_waitcnt vmcnt(0)')
    b('s_barrier')
    for blk in range(2):
        for tt in range(8):
            b(k_read(tt, blk))
        for tt in range(8):
            for qq in range(2):
                b(qk(qq, tt, '0'))
        for qq in range(2):
            for i in range(0, 16, 2):
                b('v_max3_f32 v%d, v%d, v%d, v%d' % (V_M + qq, V_M + qq, V_S + 16 * qq + i, V_S + 16 * qq + i + 1))
    b('s_waitcnt lgkmcnt(0)')
    b('s_barrier')
    b('s_add_u32 s%d, s%d, 1' % (S_T2, S_T2))
    b('s_cmp_lt_u32 s%d, 8' % S_T2)
    b('s_cbranch_scc1 %s_fb_loop' % name)
    for qq in range(2):
        half_swap(b, V_M + qq, V_T + qq, 'v_max_f32')
    b('s_mov_b32 s%d, 1' % S_MODE)
    for t, g in dma_kv(0): b(t)
    b('s_waitcnt vmcnt(0)')
    b('s_branch %s_attn' % name)


def pre(b):
    for p in range(2):
        for t, g in dma_w(p): b(t, g)


def flag_index(b, dst):
    flag_off(b, dst, F_H, S_QT)


def main(b, name):
    qproj(b, None)
    stamp(b, 6)
    attention(b, name, None)
    epilogue(b, name, None)


def out_flag(b, dst):
    b('s_lshl_b32 s%d, s%d, 2' % (dst, S_QT))
    b('s_lshr_b32 s%d, s%d, 3' % (S_T0, S_HEAD))
    b('s_add_u32 s%d, s%d, s%d' % (dst, dst, S_T0))
    flag_off(b, dst, F_O, dst)
```

```python
from mc import *
from front import LN_LDS

MF = 'v_mfma_f32_16x16x32_bf16'


def p3(b, name):
    S_WO = 8
    S_W, S_KS, S_QT, S_NT, S_ROT, S_W8K = 16, 17, 18, 19, 20, 21
    S_AB, S_BB, S_T0, S_T1, S_T2, S_PB = 22, 23, 24, 25, 26, 27
    S_P, S_B1, S_B2, S_A2, S_L2, S_D, S_OFFB, S_OFFA, S_SLOT = 28, 29, 30, 31, 32, 33, 34, 35, 36
    V_WOFF, V_B, V_A, V_T = 2, 10, 12, 20
    V_AF = 32
    V_ACC = 128
    SLOT = 32768
    OOB = 0x10000000
    b('s_and_b32 s%d, s2, 7' % S_T0)
    b('s_lshr_b32 s%d, s2, 3' % S_T1)
    b('s_lshr_b32 s%d, s%d, 1' % (S_KS, S_T0))
    b('s_mov_b32 s%d, s%d' % (S_W, S_WAVE))
    b('s_and_b32 s%d, s%d, 1' % (S_T0, S_T0))
    b('s_lshl_b32 s%d, s%d, 3' % (S_T0, S_T0))
    b('s_lshr_b32 s%d, s%d, 2' % (S_QT, S_T1))
    b('s_and_b32 s%d, s%d, 3' % (S_NT, S_T1))
    b('s_lshl_b32 s%d, s%d, 1' % (S_ROT, S_NT))
    b('s_add_u32 s%d, s%d, s%d' % (S_ROT, S_ROT, S_QT))
    b('s_and_b32 s%d, s%d, 7' % (S_ROT, S_ROT))
    b('s_mov_b32 s%d, 0' % S_ROT)
    b('s_add_u32 s%d, s%d, s%d' % (S_QT, S_QT, S_T0))
    T = V_T
    b('v_lshrrev_b32 v%d, 4, v0' % T)
    b('v_and_b32 v%d, 15, v0' % (T + 1))
    b('v_lshlrev_b32 v%d, 1, v%d' % (T + 2, T))
    b('v_xor_b32 v%d, v%d, v%d' % (T + 2, T + 2, T + 1))
    b('v_lshlrev_b32 v%d, 4, v%d' % (T + 2, T + 2))
    b('v_lshl_add_u32 v%d, v%d, 10, v%d' % (V_WOFF, T, T + 2))
    b('v_xor_b32 v%d, 128, v%d' % (V_WOFF + 4, V_WOFF))
    for ii in range(1, 4):
        b('v_add_u32 v%d, %d, v%d' % (V_WOFF + ii, ii * 3072, V_WOFF))
        b('v_add_u32 v%d, %d, v%d' % (V_WOFF + 4 + ii, ii * 3072, V_WOFF + 4))
    b('v_lshlrev_b32 v%d, 4, v0' % V_B)
    b('v_add_u32 v%d, %d, v%d' % (V_B + 1, 131072, V_B))
    b('s_lshl_b32 s%d, s%d, 13' % (S_W8K, S_W))
    b('s_lshl_b32 s%d, s%d, 20' % (S_AB, S_KS))
    b('s_lshl_b32 s%d, s%d, 15' % (S_T0, S_W))
    b('s_add_u32 s%d, s%d, s%d' % (S_AB, S_AB, S_T0))
    b('s_lshl_b32 s%d, s%d, 8' % (S_T0, S_NT))
    b('s_add_u32 s%d, s%d, s%d' % (S_AB, S_AB, S_T0))
    b('s_lshl_b32 s%d, s%d, 3' % (S_T0, S_QT))
    b('s_lshl_b32 s%d, s%d, 1' % (S_T1, S_W))
    b('s_add_u32 s%d, s%d, s%d' % (S_T0, S_T0, S_T1))
    b('s_lshl_b32 s%d, s%d, 17' % (S_BB, S_T0))
    b('s_lshl_b32 s%d, s%d, 15' % (S_T1, S_KS))
    b('s_add_u32 s%d, s%d, s%d' % (S_BB, S_BB, S_T1))
    b('s_add_u32 s%d, s%d, 0x%x' % (S_BB, S_BB, WS_O))
    b('s_lshl_b32 s%d, s%d, 17' % (S_OFFA, S_ROT))
    b('s_lshl_b32 s%d, s%d, 12' % (S_OFFB, S_ROT))
    b('s_add_u32 s%d, s%d, s%d' % (S_A2, S_AB, S_OFFA))
    b('s_add_u32 s%d, s%d, s%d' % (S_B1, S_BB, S_OFFB))
    b('s_mov_b32 s%d, s%d' % (S_L2, S_W8K))
    mk_srd(b, S_WO, P_WO, 4096 * 1024)

    def dma_w(tag):
        out = []
        for half in range(2):
            grp = [('s_add_u32 m0, s%d, %d' % (S_L2, half * 4096), None),
                   ('s_add_u32 s%d, s%d, %d' % (S_T2, S_A2, half * 16 * 1024), None)]
            for ii in range(4):
                grp.append(('buffer_load_dwordx4 v%d, s[%d:%d], s%d offen offset:%d lds' %
                            (V_WOFF + 4 * half + ii, S_WO, S_WO + 3, S_T2, ii * 1024), tag))
            out.append(grp)
        return out

    def b_load(ring, sreg, step):
        return ['buffer_load_dwordx4 %s, v%d, s[%d:%d], s%d offen offset:%d sc1' %
                (ar(8 * ring + 4 * qq, 4), V_B + qq, S_WS, S_WS + 3, sreg, step * 1024) for qq in range(2)]

    def a_reads(buf, step):
        return ['ds_read_b64_tr_b16 %s, v%d offset:%d' % (vr(V_AF + 32 * buf + 4 * nb + 2 * jj, 2), V_A + nb, step * 8192 + jj * 2048)
                for nb in range(8) for jj in range(2)]

    def advance_a():
        return ['s_add_u32 s%d, s%d, 0x20000' % (S_OFFA, S_OFFA), 's_and_b32 s%d, s%d, 0xfffff' % (S_OFFA, S_OFFA),
                's_add_u32 s%d, s%d, s%d' % (S_A2, S_AB, S_OFFA),
                's_add_u32 s%d, s%d, %d' % (S_L2, S_L2, SLOT), 's_cmp_ge_u32 s%d, %d' % (S_L2, 5 * SLOT),
                's_cselect_b32 s%d, s%d, s%d' % (S_L2, S_W8K, S_L2)]

    def advance_b():
        return ['s_mov_b32 s%d, s%d' % (S_B1, S_B2),
                's_add_u32 s%d, s%d, 0x1000' % (S_OFFB, S_OFFB), 's_and_b32 s%d, s%d, 0x7fff' % (S_OFFB, S_OFFB),
                's_add_u32 s%d, s%d, s%d' % (S_B2, S_BB, S_OFFB)]

    b('v_bfe_u32 v%d, v0, 2, 2' % T)
    b('v_bfe_u32 v%d, v0, 4, 1' % (T + 1))
    b('v_lshrrev_b32 v%d, 5, v0' % (T + 2))
    b('v_lshlrev_b32 v%d, 4, v%d' % (T + 3, T + 1))
    b('v_lshlrev_b32 v%d, 2, v%d' % (T + 4, T + 2))
    b('v_add3_u32 v%d, v%d, v%d, v%d' % (T + 3, T + 3, T + 4, T))
    b('v_lshlrev_b32 v%d, 8, v%d' % (T + 3, T + 3))
    b('v_and_b32 v%d, 3, v0' % (T + 4))
    b('v_lshl_add_u32 v%d, v%d, 3, v%d' % (T + 3, T + 4, T + 3))
    b('v_lshlrev_b32 v%d, 2, v%d' % (T + 1, T + 1))
    b('v_or_b32 v%d, v%d, v%d' % (T + 1, T + 1, T))
    for nb in range(8):
        b('v_xor_b32 v%d, %d, v%d' % (T + 4, nb, T + 1))
        b('v_lshl_add_u32 v%d, v%d, 5, v%d' % (V_A + nb, T + 4, T + 3))
    for i in range(64):
        b('v_mov_b32 v%d, 0' % (V_ACC + i))
    b('s_lshl_b32 s%d, s%d, 7' % (S_PB, S_KS))
    b('s_add_u32 s%d, s%d, s%d' % (S_PB, S_PB, S_T0))
    b('s_lshl_b32 s%d, s%d, 14' % (S_PB, S_PB))
    b('s_lshl_b32 s%d, s%d, 12' % (S_T1, S_NT))
    b('s_add_u32 s%d, s%d, s%d' % (S_PB, S_PB, S_T1))
    b('s_add_u32 s%d, s%d, 0x%x' % (S_PB, S_PB, WS_PART))
    b('s_mov_b32 s%d, 0' % S_P)
    b('s_mov_b32 s%d, %d' % (S_D, SLOT))
    b('s_mov_b32 s%d, %d' % (S_SLOT, SLOT))
    b('s_lshr_b32 s%d, s%d, 1' % (S_T1, S_QT))
    b('s_lshl_b32 s%d, s%d, 2' % (S_T1, S_T1))
    b('s_add_u32 s%d, s%d, s%d' % (S_T1, S_T1, S_KS))
    flag_off(b, S_SY + 3, F_O, S_T1)
    yield
    for tag, ep in (('W0', None), ('WA', -1), ('WB', -1)):
        for grp in dma_w(tag):
            for t, g in grp: b(t, g, epoch=ep)
        for t in advance_a(): b(t)
    yield
    for st in range(4):
        for t in b_load(st, S_B1, st): b(t)
    b('s_add_u32 s%d, s%d, 0x1000' % (S_OFFB, S_OFFB))
    b('s_and_b32 s%d, s%d, 0x7fff' % (S_OFFB, S_OFFB))
    b('s_add_u32 s%d, s%d, s%d' % (S_B1, S_BB, S_OFFB))
    for st in range(3):
        for t in b_load(4 + st, S_B1, st): b(t)
    b('s_add_u32 s%d, s%d, 0x1000' % (S_OFFB, S_OFFB))
    b('s_and_b32 s%d, s%d, 0x7fff' % (S_OFFB, S_OFFB))
    b('s_add_u32 s%d, s%d, s%d' % (S_B2, S_BB, S_OFFB))
    b.waitvm('W0')
    b('s_barrier')
    stamp(b, 11)
    for t in a_reads(0, 0): b(t)

    b.loop_begin()
    b.label(name + '_loop')
    sc = Sched()
    for half in range(2):
        tag = 'WA' if half == 0 else 'WB'
        d = dma_w(tag)
        for i in range(4):
            st = 4 * half + i
            base = 16 * st
            for nb in range(8):
                for qq in range(2):
                    dd = vr(V_ACC + (nb * 2 + qq) * 4, 4)
                    sc.mfma(base + 2 * nb + qq, '%s %s, %s, %s, %s' % (MF, dd, vr(V_AF + 32 * (i & 1) + 4 * nb, 4), ar(8 * st + 4 * qq, 4), dd))
            if i == 3:
                sc.add(base, lambda bb, tag=tag: (bb.waitvm(tag, 1), bb('s_barrier')))
                for nb in range(8):
                    sc.add(base + (nb + 1) // 2, 'v_add_u32 v%d, s%d, v%d' % (V_A + nb, S_D, V_A + nb))
            rd = a_reads((i + 1) & 1, (i + 1) & 3)
            for k, t in enumerate(rd):
                if i == 3:
                    sc.add(base + min(15, max(k, (k // 2 + 1) // 2 + 1) if k < 4 else k), t)
                else:
                    sc.add(base + k, t)
            ahead = i + 7
            sreg = S_B1 if ahead < 8 else S_B2
            bl = b_load((st + 7) & 7, sreg, ahead & 3)
            grp = d[i // 2]
            if i % 2 == 0:
                sc.add(base + 1, grp[0][0]); sc.add(base + 2, grp[1][0])
            sc.add(base + 3, bl[0])
            sc.add(base + 6, grp[2 + 2 * (i % 2)][0], tag)
            sc.add(base + 9, bl[1])
            sc.add(base + 12, grp[3 + 2 * (i % 2)][0], tag)
        c0 = 64 * half
        sc.add(c0 + 35, 's_add_u32 s%d, s%d, 1' % (S_P, S_P))
        adv = advance_a()
        for k, t in enumerate(adv[:4]):
            sc.add(c0 + 36 + k, t)
        for t in adv[4:]:
            sc.add(c0 + 40, t)
        sc.add(c0 + 41, 's_cmp_ge_u32 s%d, 5' % S_P)
        sc.add(c0 + 41, 's_cselect_b32 s%d, 0x%x, s%d' % (S_A2, OOB, S_A2))
        sc.add(c0 + 54, 's_cmp_eq_u32 s%d, 4' % S_P)
        sc.add(c0 + 54, 's_cselect_b32 s%d, 0x%x, s%d' % (S_D, (-4 * SLOT) & 0xffffffff, S_SLOT))
        for k, t in enumerate(advance_b()):
            sc.add(c0 + 58 + k // 2, t)
        sc.add(c0 + 60, 's_cmp_ge_u32 s%d, 6' % S_P)
        sc.add(c0 + 60, 's_cselect_b32 s%d, 0x%x, s%d' % (S_B2, OOB, S_B2))
        sc.add(c0 + 61, 's_cmp_ge_u32 s%d, 7' % S_P)
        sc.add(c0 + 61, 's_cselect_b32 s%d, 0x%x, s%d' % (S_B1, OOB, S_B1))
    sc.emit(b, 0, 128)
    b('s_cmp_lt_u32 s%d, 8' % S_P)
    b('s_cbranch_scc1 %s_loop' % name)
    b.loop_end(4)
    stamp(b, 12)
    b('v_lshlrev_b32 v%d, 4, v0' % V_T)
    for qq in range(2):
        b('s_add_u32 s%d, s%d, %d' % (S_T0, S_PB, qq * 16384))
        for v in range(4):
            o = V_AF + 4 * (qq * 4 + v)
            for jj in range(2):
                acc = V_ACC + ((2 * v + jj) * 2 + qq) * 4
                for i in range(2):
                    b('v_cvt_pk_bf16_f32 v%d, v%d, v%d' % (o + 2 * jj + i, acc + 2 * i, acc + 2 * i + 1))
            b('buffer_store_dwordx4 %s, v%d, s[%d:%d], s%d offen offset:%d sc1' % (vr(o, 4), V_T, S_WS, S_WS + 3, S_T0, v * 1024))
    flag_off(b, S_SY, F_PART, S_QT)


GA, SB, CB, XR = 192, 208, 224, 240


def mod_loads(addr):
    loads = []
    for (reg, row) in ((GA, 2), (SB, 3), (CB, 4)):
        loads.append('s_mov_b32 s45, %d' % (WS_MOD + row * 2048))
        for bb in range(4):
            loads.append('buffer_load_dwordx4 %s, v%d, s[%d:%d], s45 offen offset:%d sc1' % (vr(reg + 4 * bb, 4), addr, S_WS, S_WS + 3, 64 * bb))
    return loads


def p3b_pre(b):
    mk_srd(b, 48, P_X, 2048 * 1024)
    b('s_lshl_b32 s45, s%d, 6' % S_WAVE)
    b('v_add_u32 v32, s45, v0')
    b('v_lshrrev_b32 v32, 3, v32')
    b('v_and_b32 v33, 3, v32')
    b('v_lshrrev_b32 v34, 2, v32')
    b('v_and_b32 v35, 7, v0')
    b('v_lshlrev_b32 v35, 10, v35')
    b('v_lshl_add_u32 v35, v34, 7, v35')
    b('v_lshl_add_u32 v35, v33, 3, v35')
    b('v_lshlrev_b32 v36, 8, v34')
    b('v_lshl_add_u32 v36, v33, 4, v36')
    b('s_and_b32 s47, s2, 7')
    b('s_lshl_b32 s47, s47, 5')
    b('s_lshr_b32 s46, s2, 3')
    b('s_add_u32 s47, s47, s46')
    b('s_lshl_b32 s46, s47, 13')
    for bb in range(4):
        b('buffer_load_dwordx2 %s, v35, s[48:51], s46 offen offset:%d' % (vr(XR + 2 * bb, 2), 32 * bb))
    for t in mod_loads(36): b(t)


def p3b(b, name):
    b('s_lshl_b32 s45, s%d, 6' % S_WAVE)
    b('v_add_u32 v11, s45, v0')
    b('v_and_b32 v1, 7, v0')
    b('v_lshrrev_b32 v2, 3, v11')
    b('v_and_b32 v3, 3, v2')
    b('v_lshrrev_b32 v4, 2, v2')
    b('s_and_b32 s47, s2, 7')
    b('s_lshl_b32 s47, s47, 5')
    b('s_lshr_b32 s48, s2, 3')
    b('s_add_u32 s47, s47, s48')
    b('s_lshr_b32 s16, s47, 1')
    b('s_and_b32 s17, s47, 1')
    b('s_lshl_b32 s17, s17, 3')
    b('v_add_u32 v6, s17, v1')
    b('v_lshlrev_b32 v6, 4, v6')
    b('v_lshlrev_b32 v7, 11, v4')
    b('v_lshlrev_b32 v9, 8, v3')
    b('v_add3_u32 v7, v7, v9, v6')
    b('v_lshlrev_b32 v9, 8, v4')
    b('v_lshlrev_b32 v10, 4, v3')
    b('v_add_u32 v9, v9, v10')
    b('s_lshl_b32 s19, s16, 14')
    b('s_add_u32 s19, s19, 0x%x' % WS_PART)
    b('s_lshr_b32 s50, s47, 4')
    flag_off(b, S_SY + 3, F_PART, 50)
    yield
    P = 64
    for ks in range(4):
        if ks:
            b('s_add_u32 s19, s19, 0x200000')
        for v in range(2):
            b('buffer_load_dwordx4 %s, v7, s[%d:%d], s19 offen offset:%d sc1' % (vr(P + 8 * ks + 4 * v, 4), S_WS, S_WS + 3, v * 1024))
    yield
    check_mod(b, mod_loads(9), list(range(GA, GA + 48)), 40)
    A = 96
    for ks in range(4):
        for p in range(8):
            src = P + 8 * ks + p
            if ks == 0:
                b('v_lshlrev_b32 v%d, 16, v%d' % (A + 2 * p, src))
                b('v_and_b32 v%d, 0xffff0000, v%d' % (A + 2 * p + 1, src))
            else:
                b('v_lshlrev_b32 v%d, 16, v%d' % (A + 16 + 2 * p, src))
                b('v_and_b32 v%d, 0xffff0000, v%d' % (A + 17 + 2 * p, src))
        if ks:
            for i in range(16):
                b('v_add_f32 v%d, v%d, v%d' % (A + i, A + i, A + 16 + i))
    P = A
    X = 20
    for p in range(8):
        b('v_lshlrev_b32 v%d, 16, v%d' % (X + 2 * p, XR + p))
        b('v_and_b32 v%d, 0xffff0000, v%d' % (X + 2 * p + 1, XR + p))
    for i in range(16):
        b('v_fmac_f32 v%d, v%d, v%d' % (X + i, GA + i, P + i))
    for p in range(8):
        b('v_cvt_pk_bf16_f32 v%d, v%d, v%d' % (12 + p, X + 2 * p, X + 2 * p + 1))
    b('s_lshl_b32 s18, s16, 14')
    b('s_add_u32 s46, s18, 0x%x' % WS_X1)
    b('buffer_store_dwordx4 v[12:15], v7, s[%d:%d], s46 offen sc1' % (S_WS, S_WS + 3))
    b('buffer_store_dwordx4 v[16:19], v7, s[%d:%d], s46 offen offset:1024 sc1' % (S_WS, S_WS + 3))
    for p in range(8):
        b('v_lshlrev_b32 v%d, 16, v%d' % (X + 2 * p, 12 + p))
        b('v_and_b32 v%d, 0xffff0000, v%d' % (X + 2 * p + 1, 12 + p))
    layernorm16(b, X, 40, 1, LN_LDS)
    for i in range(16):
        b('v_fma_f32 v%d, v%d, v%d, v%d' % (X + i, X + i, CB + i, SB + i))
    for p in range(8):
        b('v_cvt_pk_bf16_f32 v%d, v%d, v%d' % (52 + p, X + 2 * p, X + 2 * p + 1))
    b('s_add_u32 s46, s18, 0x%x' % WS_H2)
    b('buffer_store_dwordx4 v[52:55], v7, s[%d:%d], s46 offen sc1' % (S_WS, S_WS + 3))
    b('buffer_store_dwordx4 v[56:59], v7, s[%d:%d], s46 offen offset:1024 sc1' % (S_WS, S_WS + 3))
    flag_off(b, S_SY, F_H2, 50)
```

```python
from mc import *

MF = 'v_mfma_f32_16x16x32_bf16'
WG_ROW = 2752


def p4(b, name):
    S_M = 20
    S_W, S_QT, S_FG, S_T0, S_T1, S_T2 = 24, 25, 26, 27, 28, 29
    S_AB, S_BB, S_HB, S_ROT = 30, 31, 33, 34
    S_P, S_B1, S_B2, S_A3, S_L3, S_D, S_OFFB, S_OFFA, S_SLOT, S_WL = 35, 36, 37, 38, 39, 40, 41, 42, 43, 44
    V_WOFF, V_B, V_A, V_T = 248, 6, 8, 20
    V_AF = 32
    V_ACC = 128
    SLOT, NSLOT = 24576, 6
    CH = 64 * WG_ROW
    OOB = 0x10000000
    b('s_and_b32 s%d, s2, 7' % S_T0)
    b('s_lshr_b32 s%d, s2, 3' % S_T1)
    b('s_and_b32 s%d, s%d, 1' % (S_FG, S_T0))
    b('s_lshl_b32 s%d, s%d, 3' % (S_FG, S_FG))
    b('s_and_b32 s%d, s%d, 7' % (S_T2, S_T1))
    b('s_add_u32 s%d, s%d, s%d' % (S_FG, S_FG, S_T2))
    b('s_lshr_b32 s%d, s%d, 1' % (S_QT, S_T0))
    b('s_mov_b32 s%d, s%d' % (S_W, S_WAVE))
    b('s_lshl_b32 s%d, s%d, 2' % (S_QT, S_QT))
    b('s_lshr_b32 s%d, s%d, 3' % (S_T1, S_T1))
    b('s_add_u32 s%d, s%d, s%d' % (S_QT, S_QT, S_T1))
    b('s_lshl_b32 s%d, s%d, 1' % (S_ROT, S_T1))
    b('s_add_u32 s%d, s%d, s%d' % (S_ROT, S_ROT, S_FG))
    b('s_and_b32 s%d, s%d, 7' % (S_ROT, S_ROT))
    b('s_mov_b32 s%d, 0' % S_ROT)
    T = V_T
    b('s_mov_b32 s%d, 0x15555556' % S_T0)
    b('s_mov_b32 s%d, %d' % (S_T1, WG_ROW))
    for i in range(3):
        b('v_add_u32 v%d, %d, v0' % (T, 64 * i))
        b('v_mul_hi_u32 v%d, v%d, s%d' % (T + 1, T, S_T0))
        b('v_mul_u32_u24 v%d, 12, v%d' % (T + 2, T + 1))
        b('v_sub_u32 v%d, v%d, v%d' % (T + 2, T, T + 2))
        b('v_bfe_u32 v%d, v%d, 2, 1' % (T + 3, T + 1))
        b('v_lshlrev_b32 v%d, 1, v%d' % (T + 3, T + 3))
        b('v_xor_b32 v%d, v%d, v%d' % (T + 2, T + 2, T + 3))
        b('v_lshlrev_b32 v%d, 4, v%d' % (T + 2, T + 2))
        b('v_mul_lo_u32 v%d, v%d, s%d' % (T + 1, T + 1, S_T1))
        b('v_add_u32 v%d, v%d, v%d' % (V_WOFF + i, T + 1, T + 2))
        if i:
            b('v_subrev_u32 v%d, %d, v%d' % (V_WOFF + i, 1024 * i, V_WOFF + i))
    b('s_and_b32 s%d, s%d, 1' % (S_T0, S_W))
    b('s_mul_i32 s%d, s%d, %d' % (S_AB, S_T0, 32 * WG_ROW))
    b('s_mul_i32 s%d, s%d, 192' % (S_T1, S_FG))
    b('s_add_u32 s%d, s%d, s%d' % (S_AB, S_AB, S_T1))
    b('s_mul_i32 s%d, s%d, 6144' % (S_WL, S_W))
    b('s_mul_i32 s%d, s%d, %d' % (S_A3, S_ROT, CH))
    b('s_mov_b32 s%d, s%d' % (S_OFFA, S_A3))
    b('s_add_u32 s%d, s%d, s%d' % (S_A3, S_A3, S_AB))
    b('s_mov_b32 s%d, 0' % S_L3)
    b('s_cmp_ge_u32 s%d, 2' % S_W)
    b('s_cselect_b32 s%d, s%d, s%d' % (S_M, P_WU, P_WG))
    b('s_cselect_b32 s%d, s%d, s%d' % (S_M + 1, P_WU + 1, P_WG + 1))
    b('s_mov_b32 s%d, 0x%x' % (S_M + 2, 512 * WG_ROW))
    b('s_mov_b32 s%d, 0x20000' % (S_M + 3))

    def dma_w(tag):
        out = []
        for half in range(2):
            grp = [('s_add_u32 s%d, s%d, s%d' % (S_T2, S_L3, S_WL), None),
                   ('s_add_u32 m0, s%d, %d' % (S_T2, half * 3072), None),
                   ('s_add_u32 s%d, s%d, %d' % (S_T2, S_A3, half * 16 * WG_ROW), None)]
            for i in range(3):
                grp.append(('buffer_load_dwordx4 v%d, s[%d:%d], s%d offen offset:%d lds' %
                            (V_WOFF + i, S_M, S_M + 3, S_T2, i * 1024), tag))
            out.append(grp)
        return out

    def b_load(ring, sreg, step):
        return ['buffer_load_dwordx4 %s, v%d, s[%d:%d], s%d offen offset:%d sc1' %
                (ar(8 * ring + 4 * qq, 4), V_B + qq, S_WS, S_WS + 3, sreg, step * 1024) for qq in range(2)]

    def a_reads(buf, step):
        return ['ds_read_b64_tr_b16 %s, v%d offset:%d' % (vr(V_AF + 48 * buf + 4 * (mat * 6 + nb) + 2 * jj, 2), V_A + nb, mat * 12288 + step * 6144 + jj * 3072)
                for nb in range(6) for mat in range(2) for jj in range(2)]

    def advance_a():
        return ['s_add_u32 s%d, s%d, %d' % (S_OFFA, S_OFFA, CH), 's_cmp_ge_u32 s%d, %d' % (S_OFFA, 8 * CH),
                's_cselect_b32 s%d, 0, s%d' % (S_OFFA, S_OFFA), 's_add_u32 s%d, s%d, s%d' % (S_A3, S_AB, S_OFFA),
                's_add_u32 s%d, s%d, %d' % (S_L3, S_L3, SLOT), 's_cmp_ge_u32 s%d, %d' % (S_L3, NSLOT * SLOT),
                's_cselect_b32 s%d, 0, s%d' % (S_L3, S_L3)]

    def next_b(reg):
        return ['s_add_u32 s%d, s%d, 0x800' % (S_OFFB, S_OFFB), 's_and_b32 s%d, s%d, 0x3fff' % (S_OFFB, S_OFFB),
                's_add_u32 s%d, s%d, s%d' % (reg, S_BB, S_OFFB)]

    def first_chunks(bb):
        lskip = uid('w0')
        bb('s_cmp_eq_u32 s%d, 0' % S_W)
        bb('s_cbranch_scc1 %s' % lskip)
        mk_srd(bb, 52, P_WG, 512 * WG_ROW)
        bb('s_sub_u32 s56, s%d, 1' % S_W)
        bb('s_mul_i32 s57, s56, %d' % SLOT)
        bb('s_mul_i32 s56, s56, %d' % CH)
        bb('s_mul_i32 s58, s%d, 192' % S_FG)
        bb('s_add_u32 s56, s56, s58')
        for half in range(2):
            bb('s_add_u32 m0, s57, %d' % (half * 3072))
            bb('s_add_u32 s58, s56, %d' % (half * 16 * WG_ROW))
            for i in range(3):
                bb('buffer_load_dwordx4 v%d, s[52:55], s58 offen offset:%d lds' % (V_WOFF + i, i * 1024))
        for k in range(3):
            for grp in dma_w(None):
                for t, g in grp: bb(t)
            for t in advance_a(): bb(t)
        ldone = uid('w0d')
        bb('s_branch %s' % ldone)
        bb.label(lskip)
        for k in range(3):
            for t in advance_a(): bb(t)
        bb.label(ldone)
    yield first_chunks
    b('v_lshlrev_b32 v%d, 4, v0' % V_B)
    b('v_add_u32 v%d, %d, v%d' % (V_B + 1, 16384, V_B))
    b('s_lshl_b32 s%d, s%d, 3' % (S_T0, S_QT))
    b('s_lshl_b32 s%d, s%d, 1' % (S_T1, S_W))
    b('s_add_u32 s%d, s%d, s%d' % (S_T0, S_T0, S_T1))
    b('s_lshl_b32 s%d, s%d, 14' % (S_BB, S_T0))
    b('s_add_u32 s%d, s%d, 0x%x' % (S_BB, S_BB, WS_H2))
    b('s_mov_b32 s%d, 0' % S_OFFB)
    b('s_mov_b32 s%d, s%d' % (S_B1, S_BB))
    b('v_bfe_u32 v%d, v0, 2, 2' % T)
    b('v_lshrrev_b32 v%d, 4, v0' % (T + 1))
    b('v_lshl_add_u32 v%d, v%d, 2, v%d' % (T + 2, T + 1, T))
    b('v_mul_u32_u24 v%d, 192, v%d' % (T + 2, T + 2))
    b('v_and_b32 v%d, 3, v0' % (T + 3))
    b('v_lshl_add_u32 v%d, v%d, 3, v%d' % (T + 2, T + 3, T + 2))
    b('v_and_b32 v%d, 1, v%d' % (T + 1, T + 1))
    for nb in range(6):
        b('v_xor_b32 v%d, %d, v%d' % (T + 3, nb, T + 1))
        b('v_lshl_add_u32 v%d, v%d, 5, v%d' % (V_A + nb, T + 3, T + 2))
    for i in range(96):
        b('v_mov_b32 v%d, 0' % (V_ACC + i))
    b('s_mul_i32 s%d, s%d, %d' % (S_HB, S_T0, 43 * 1024))
    b('s_mul_i32 s%d, s%d, 3072' % (S_T1, S_FG))
    b('s_add_u32 s%d, s%d, s%d' % (S_HB, S_HB, S_T1))
    b('s_add_u32 s%d, s%d, 0x%x' % (S_HB, S_HB, WS_HH))
    b('s_mov_b32 s%d, 0' % S_P)
    b('s_mov_b32 s%d, %d' % (S_D, SLOT))
    b('s_mov_b32 s%d, %d' % (S_SLOT, SLOT))
    flag_off(b, S_SY + 3, F_H2, S_QT)
    yield
    for st in range(7):
        if st and st % 2 == 0:
            for t in next_b(S_B1): b(t)
        for t in b_load(st, S_B1, st & 1): b(t)
    for t in next_b(S_B2): b(t)
    stamp(b, 16)
    for t in a_reads(0, 0): b(t)

    b.loop_begin()
    b.label(name + '_loop')
    sc = Sched()
    for pos in range(4):
        tag = 'T%d' % pos
        d = dma_w(tag)
        for i in range(2):
            st = 2 * pos + i
            base = 24 * st
            k = 0
            for nb in range(6):
                for mat in range(2):
                    for qq in range(2):
                        dd = vr(V_ACC + ((mat * 6 + nb) * 2 + qq) * 4, 4)
                        sc.mfma(base + k, '%s %s, %s, %s, %s' % (MF, dd, vr(V_AF + 48 * i + 4 * (mat * 6 + nb), 4), ar(8 * st + 4 * qq, 4), dd))
                        k += 1
            rd = a_reads((i + 1) & 1, (i + 1) & 1)
            if i == 1:
                sc.add(base, lambda bb, pos=pos: (bb.waitvm('T%d' % ((pos - 2) % 4), 1 if pos < 2 else 0), bb('s_barrier')))
                for nb in range(6):
                    sc.add(base + nb // 2, 'v_add_u32 v%d, s%d, v%d' % (V_A + nb, S_D, V_A + nb))
                for k, t in enumerate(rd):
                    sc.add(base + min(23, max(k, 3) if k < 4 else k), t)
            else:
                for k, t in enumerate(rd):
                    sc.add(base + k, t)
            bl = b_load((st + 7) & 7, S_B1 if i == 0 else S_B2, (i + 7) & 1)
            grp = d[i]
            sc.add(base + 1, grp[0][0]); sc.add(base + 2, grp[1][0]); sc.add(base + 3, grp[2][0])
            sc.add(base + 5, bl[0])
            sc.add(base + 8, grp[3][0], tag)
            sc.add(base + 11, bl[1])
            sc.add(base + 14, grp[4][0], tag)
            sc.add(base + 19, grp[5][0], tag)
        c0 = 48 * pos
        upd = ['s_add_u32 s%d, s%d, 1' % (S_P, S_P), 's_mov_b32 s%d, s%d' % (S_B1, S_B2)] + next_b(S_B2) + \
              ['s_cmp_ge_u32 s%d, 4' % S_P, 's_cselect_b32 s%d, 0x%x, s%d' % (S_B2, OOB, S_B2),
               's_cmp_ge_u32 s%d, 5' % S_P, 's_cselect_b32 s%d, 0x%x, s%d' % (S_B1, OOB, S_B1)]
        groups = [upd[:2], upd[2:5], upd[5:7], upd[7:9]]
        adv = advance_a()
        groups += [adv[:1] + adv[1:3], adv[3:4], adv[4:7],
                   ['s_cmp_ge_u32 s%d, 5' % S_P, 's_cselect_b32 s%d, 0x%x, s%d' % (S_A3, OOB, S_A3)]]
        for k, grp in enumerate(groups):
            for t in grp: sc.add(c0 + 24 + 12 + k + (4 if k >= 4 else 0), t)
        sc.add(c0 + 47, 's_cmp_eq_u32 s%d, 5' % S_P)
        sc.add(c0 + 47, 's_cselect_b32 s%d, 0x%x, s%d' % (S_D, (-5 * SLOT) & 0xffffffff, S_SLOT))
    sc.emit(b, 0, 192)
    b('s_cmp_lt_u32 s%d, 8' % S_P)
    b('s_cbranch_scc1 %s_loop' % name)
    b.loop_end(2)
    stamp(b, 17)
    b('v_lshlrev_b32 v%d, 4, v0' % V_T)
    for v in range(3):
        if v == 1:
            b('s_cmp_ge_u32 s%d, 14' % S_FG)
            b('s_cbranch_scc1 %s_stored' % name)
        for qq in range(2):
            t0 = 32 + 8 * (v * 2 + qq)
            for jj in range(2):
                nb = 2 * v + jj
                g = V_ACC + (nb * 2 + qq) * 4
                u = V_ACC + ((6 + nb) * 2 + qq) * 4
                for i in range(4):
                    b('v_mul_f32 v%d, v%d, v%d' % (g + i, g + i, u + i))
                for i in range(2):
                    b('v_cvt_pk_bf16_f32 v%d, v%d, v%d' % (t0 + 2 * jj + i, g + 2 * i, g + 2 * i + 1))
            b('s_add_u32 s%d, s%d, %d' % (S_T0, S_HB, qq * 43 * 1024))
            b('buffer_store_dwordx4 %s, v%d, s[%d:%d], s%d offen offset:%d sc1' % (vr(t0, 4), V_T, S_WS, S_WS + 3, S_T0, v * 1024))
    b.label(name + '_stored')
    flag_off(b, S_SY, F_HH, S_QT)


def p5(b, name):
    S_WD, S_OUT = 8, 16
    S_W, S_QT, S_NT, S_T0, S_T1, S_T2 = 20, 21, 22, 23, 24, 25
    S_A, S_B, S_LB, S_N, S_L, S_D, S_LIM, S_S, S_RING, S_SA = 26, 27, 28, 29, 30, 31, 32, 33, 34, 35
    V_WOFF, V_B, V_A, V_BR, V_T = 2, 4, 8, 12, 16
    V_AF, V_BF = 32, 48
    V_ACC = 64
    STEP, RING = 8192, 4
    NS = 11
    b('s_and_b32 s%d, s2, 7' % S_T0)
    b('s_lshr_b32 s%d, s2, 3' % S_T1)
    b('s_lshr_b32 s%d, s%d, 1' % (S_QT, S_T0))
    b('s_mov_b32 s%d, s%d' % (S_W, S_WAVE))
    b('s_lshl_b32 s%d, s%d, 3' % (S_QT, S_QT))
    b('s_lshr_b32 s%d, s%d, 2' % (S_T2, S_T1))
    b('s_add_u32 s%d, s%d, s%d' % (S_QT, S_QT, S_T2))
    b('s_and_b32 s%d, s%d, 1' % (S_NT, S_T0))
    b('s_lshl_b32 s%d, s%d, 2' % (S_NT, S_NT))
    b('s_and_b32 s%d, s%d, 3' % (S_T1, S_T1))
    b('s_add_u32 s%d, s%d, s%d' % (S_NT, S_NT, S_T1))
    T = V_T
    b('v_lshrrev_b32 v%d, 3, v0' % T)
    b('v_and_b32 v%d, 7, v0' % (T + 1))
    b('v_bfe_u32 v%d, v%d, 1, 2' % (T + 2, T))
    b('v_lshlrev_b32 v%d, 1, v%d' % (T + 2, T + 2))
    b('v_xor_b32 v%d, v%d, v%d' % (T + 1, T + 1, T + 2))
    b('v_lshlrev_b32 v%d, 4, v%d' % (T + 1, T + 1))
    b('v_lshl_add_u32 v%d, v%d, 10, v%d' % (V_WOFF, T, T + 1))
    b('v_lshlrev_b32 v%d, 4, v0' % V_B)
    for qb in range(1, 4):
        b('v_add_u32 v%d, %d, v%d' % (V_B + qb, qb * 43 * 1024, V_B))
    b('s_mul_i32 s%d, s%d, 11' % (S_T0, S_W))
    b('s_lshl_b32 s%d, s%d, 15' % (S_A, S_T0))
    b('s_lshl_b32 s%d, s%d, 7' % (S_T1, S_NT))
    b('s_add_u32 s%d, s%d, s%d' % (S_A, S_A, S_T1))
    b('s_mul_i32 s%d, s%d, %d' % (S_B, S_QT, 4 * 43 * 1024))
    b('s_lshl_b32 s%d, s%d, 10' % (S_T1, S_T0))
    b('s_add_u32 s%d, s%d, s%d' % (S_B, S_B, S_T1))
    b('s_add_u32 s%d, s%d, 0x%x' % (S_B, S_B, WS_HH))
    b('s_lshl_b32 s%d, s%d, 15' % (S_LB, S_W))
    b('s_mov_b32 s%d, s%d' % (S_L, S_LB))
    b('s_cmp_eq_u32 s%d, 3' % S_W)
    b('s_cselect_b32 s%d, 10, 11' % S_LIM)
    b('s_mov_b32 s%d, 0' % S_N)
    mk_srd(b, S_WD, P_WD, 1376 * 1024); mk_srd(b, S_OUT, P_OUT, 2048 * 1024)

    def request():
        ops = []
        for i in range(4):
            ops.append(['s_add_u32 m0, s%d, %d' % (S_L, i * 1024), 's_add_u32 s%d, s%d, %d' % (S_T2, S_A, i * 8192),
                        'buffer_load_dwordx4 v%d, s[%d:%d], s%d offen lds' % (V_WOFF, S_WD, S_WD + 3, S_T2)])
        for qb in range(4):
            ops.append(['s_add_u32 m0, s%d, %d' % (S_L, 4096 + qb * 1024), 's_nop 0',
                        'buffer_load_dwordx4 v%d, s[%d:%d], s%d offen sc1 lds' % (V_B + qb, S_WS, S_WS + 3, S_B)])
        nxt = ['s_add_u32 s%d, s%d, 1' % (S_N, S_N), 's_add_u32 s%d, s%d, 32768' % (S_A, S_A), 's_add_u32 s%d, s%d, 1024' % (S_B, S_B),
               's_cmp_ge_u32 s%d, s%d' % (S_N, S_LIM), 's_cselect_b32 s%d, 0x%x, s%d' % (S_A, OOB, S_A),
               's_cselect_b32 s%d, 0x%x, s%d' % (S_B, OOB, S_B),
               's_add_u32 s%d, s%d, %d' % (S_L, S_L, STEP), 's_and_b32 s%d, s%d, 0x7fff' % (S_L, S_L), 's_add_u32 s%d, s%d, s%d' % (S_L, S_L, S_LB)]
        return ops, nxt

    b('v_bfe_u32 v%d, v0, 2, 2' % T)
    b('v_lshrrev_b32 v%d, 4, v0' % (T + 1))
    b('v_lshl_add_u32 v%d, v%d, 2, v%d' % (T + 1, T + 1, T))
    b('v_bfe_u32 v%d, v%d, 1, 2' % (T + 2, T + 1))
    b('v_lshlrev_b32 v%d, 7, v%d' % (T + 1, T + 1))
    b('v_and_b32 v%d, 3, v0' % (T + 3))
    b('v_lshl_add_u32 v%d, v%d, 3, v%d' % (T + 1, T + 3, T + 1))
    for nb in range(4):
        b('v_xor_b32 v%d, %d, v%d' % (T + 3, nb, T + 2))
        b('v_lshlrev_b32 v%d, 5, v%d' % (T + 3, T + 3))
        b('v_add3_u32 v%d, v%d, v%d, s%d' % (V_A + nb, T + 3, T + 1, S_LB))
    b('v_add_u32 v%d, s%d, v%d' % (V_BR, S_LB, V_B))
    for i in range(64):
        b('v_mov_b32 v%d, 0' % (V_ACC + i))
    b('s_mov_b32 s%d, 0' % S_S)
    b('s_mov_b32 s%d, %d' % (S_RING, STEP))
    b('s_mov_b32 s%d, %d' % (S_D, STEP))
    b('s_lshr_b32 s%d, s%d, 1' % (S_T1, S_QT))
    flag_off(b, S_SY + 3, F_HH, S_T1)
    yield
    b('s_mov_b32 s%d, s%d' % (S_SA, S_A))
    for st in range(RING - 1):
        for i in range(4):
            b('s_add_u32 m0, s%d, %d' % (S_LB, st * STEP + i * 1024))
            b('s_add_u32 s%d, s%d, %d' % (S_T2, S_SA, st * 32768 + i * 8192))
            b('buffer_load_dwordx4 v%d, s[%d:%d], s%d offen lds' % (V_WOFF, S_WD, S_WD + 3, S_T2))
    yield
    for st in range(RING - 1):
        for qb in range(4):
            b('s_add_u32 m0, s%d, %d' % (S_LB, st * STEP + 4096 + qb * 1024))
            b('s_add_u32 s%d, s%d, %d' % (S_T2, S_B, st * 1024))
            b('buffer_load_dwordx4 v%d, s[%d:%d], s%d offen sc1 lds' % (V_B + qb, S_WS, S_WS + 3, S_T2))
    X, G = 192, 200
    b('s_lshl_b32 s%d, s%d, 2' % (S_T0, S_QT))
    b('s_add_u32 s%d, s%d, s%d' % (S_T0, S_T0, S_W))
    b('s_lshl_b32 s%d, s%d, 14' % (S_T1, S_T0))
    b('s_lshl_b32 s%d, s%d, 11' % (S_T2, S_NT))
    b('s_add_u32 s%d, s%d, s%d' % (S_T1, S_T1, S_T2))
    b('s_add_u32 s%d, s%d, 0x%x' % (S_T1, S_T1, WS_X1))
    for v in range(2):
        b('buffer_load_dwordx4 %s, v%d, s[%d:%d], s%d offen offset:%d sc1' % (vr(X + 4 * v, 4), V_B, S_WS, S_WS + 3, S_T1, v * 1024))
    V_G = 216
    b('v_lshrrev_b32 v%d, 4, v0' % V_G)
    b('v_lshlrev_b32 v%d, 4, v%d' % (V_G, V_G))
    b('s_lshl_b32 s36, s%d, 8' % S_NT)
    b('s_add_u32 s36, s36, %d' % (WS_MOD + 5 * 2048))
    g_loads = ['buffer_load_dwordx4 %s, v%d, s[%d:%d], s36 offen offset:%d sc1' % (vr(G + 4 * nb, 4), V_G, S_WS, S_WS + 3, nb * 64) for nb in range(4)]
    for t in g_loads: b(t)
    b('s_mov_b32 s%d, 3' % S_N)
    b('s_add_u32 s%d, s%d, %d' % (S_A, S_A, 3 * 32768))
    b('s_add_u32 s%d, s%d, %d' % (S_B, S_B, 3 * 1024))
    b('s_add_u32 s%d, s%d, %d' % (S_L, S_LB, 3 * STEP))
    b('s_waitcnt vmcnt(10)')
    stamp(b, 20)

    b.loop_begin()
    b.label(name + '_loop')
    b('s_waitcnt vmcnt(16)')
    for nb in range(4):
        for jj in range(2):
            b('ds_read_b64_tr_b16 %s, v%d offset:%d' % (vr(V_AF + 4 * nb + 2 * jj, 2), V_A + nb, jj * 2048))
        if nb == 0:
            for qb in range(4):
                b('ds_read_b128 %s, v%d offset:%d' % (vr(V_BF + 4 * qb, 4), V_BR, 4096 + qb * 1024))
    ops, nxt = request()
    sc = Sched()
    for nb in range(4):
        for qb in range(4):
            d = vr(V_ACC + (nb * 4 + qb) * 4, 4)
            sc.mfma(4 * nb + qb, '%s %s, %s, %s, %s' % (MF, d, vr(V_AF + 4 * nb, 4), vr(V_BF + 4 * qb, 4), d))
    for grp in ops[:2]:
        for t in grp: b(t)
    for k, grp in enumerate(ops[2:]):
        for t in grp: sc.add(2 * k, t)
    sc.add(12, 's_sub_u32 s%d, s%d, s%d' % (S_L, S_L, S_LB))
    for k, t in enumerate(nxt):
        sc.add(12 + (k // 3 if k < 3 else (1 if k < 6 else 2)), t)
    for nb in range(4):
        sc.add(4 * nb + 3, 'v_add_u32 v%d, s%d, v%d' % (V_A + nb, S_D, V_A + nb))
    sc.add(5, 'v_add_u32 v%d, s%d, v%d' % (V_BR, S_D, V_BR))
    sc.emit(b, 0, 16)
    b('s_add_u32 s%d, s%d, 1' % (S_S, S_S))
    b('s_and_b32 s%d, s%d, 3' % (S_T1, S_S))
    b('s_cmp_eq_u32 s%d, 3' % S_T1)
    b('s_cselect_b32 s%d, 0x%x, s%d' % (S_D, (-3 * STEP) & 0xffffffff, S_RING))
    b('s_cmp_lt_u32 s%d, %d' % (S_S, NS))
    b('s_cbranch_scc1 %s_loop' % name)
    b.loop_end(NS)
    stamp(b, 21)
    check_mod(b, g_loads, list(range(G, G + 16)), T + 3)
    b('s_waitcnt vmcnt(0)')
    b('s_barrier')
    b('s_lshl_b32 s%d, s%d, 12' % (S_T1, S_W))
    b('v_add_u32 v%d, s%d, v%d' % (T + 1, S_T1, V_B))
    for qb in range(4):
        for nb in range(4):
            b('ds_write_b128 v%d, %s offset:%d' % (T + 1, vr(V_ACC + (nb * 4 + qb) * 4, 4), qb * 16384 + nb * 1024))
    b('s_waitcnt lgkmcnt(0)')
    b('s_barrier')
    b('s_lshl_b32 s%d, s%d, 14' % (S_T1, S_W))
    b('v_add_u32 v%d, s%d, v%d' % (T + 1, S_T1, V_B))
    R = 128
    for w in range(4):
        for nb in range(4):
            b('ds_read_b128 %s, v%d offset:%d' % (vr(R + 16 * w + 4 * nb, 4), T + 1, w * 4096 + nb * 1024))
    for i in range(16):
        b('v_add_f32 v%d, v%d, v%d' % (R + i, R + i, R + 16 + i))
        b('v_add_f32 v%d, v%d, v%d' % (R + 32 + i, R + 32 + i, R + 48 + i))
    for i in range(16):
        b('v_add_f32 v%d, v%d, v%d' % (R + i, R + i, R + 32 + i))
    Y = 96
    for p in range(8):
        b('v_lshlrev_b32 v%d, 16, v%d' % (Y + 2 * p, X + p))
        b('v_and_b32 v%d, 0xffff0000, v%d' % (Y + 2 * p + 1, X + p))
    for i in range(16):
        b('v_fmac_f32 v%d, v%d, v%d' % (Y + i, G + i, R + i))
    O = 112
    for p in range(8):
        b('v_cvt_pk_bf16_f32 v%d, v%d, v%d' % (O + p, Y + 2 * p, Y + 2 * p + 1))
    for v in range(2):
        b('v_permlane16_swap_b32 v%d, v%d' % (O + 4 * v, O + 4 * v + 2))
        b('v_permlane16_swap_b32 v%d, v%d' % (O + 4 * v + 1, O + 4 * v + 3))
    b('v_and_b32 v%d, 15, v0' % T)
    b('v_lshlrev_b32 v%d, 10, v%d' % (T, T))
    b('v_bfe_u32 v%d, v0, 4, 1' % (T + 1))
    b('v_lshlrev_b32 v%d, 5, v%d' % (T + 1, T + 1))
    b('v_lshrrev_b32 v%d, 5, v0' % (T + 2))
    b('v_lshlrev_b32 v%d, 4, v%d' % (T + 2, T + 2))
    b('v_add3_u32 v%d, v%d, v%d, v%d' % (T, T, T + 1, T + 2))
    b('s_lshl_b32 s%d, s%d, 14' % (S_T1, S_T0))
    b('s_lshl_b32 s%d, s%d, 7' % (S_T2, S_NT))
    b('s_add_u32 s%d, s%d, s%d' % (S_T1, S_T1, S_T2))
    for v in range(2):
        b('buffer_store_dwordx4 %s, v%d, s[%d:%d], s%d offen offset:%d' % (vr(O + 4 * v, 4), T, S_OUT, S_OUT + 3, S_T1, v * 64))
```

```python
from mc import *

LN_LDS = 163840 - 512
MF = 'v_mfma_f32_16x16x32_bf16'


def prefetches(b):
    lk = uid('pf')
    b('s_cmp_lt_u32 s2, 96')
    b('s_cbranch_scc1 %s' % lk)
    mk_srd(b, 28, P_WQ, 512 * 8192)
    b('v_lshrrev_b32 v72, 4, v0')
    b('v_lshlrev_b32 v72, 13, v72')
    b('v_and_b32 v73, 15, v0')
    b('v_lshl_add_u32 v72, v73, 7, v72')
    b('s_lshr_b32 s32, s2, 3')
    b('s_sub_u32 s32, s32, 12')
    b('s_lshl_b32 s32, s32, 2')
    b('s_add_u32 s32, s32, s%d' % S_WAVE)
    b('s_lshl_b32 s32, s32, 16')
    b('s_bfe_u32 s33, s2, 0x20001')
    b('s_lshl_b32 s33, s33, 11')
    b('s_add_u32 s32, s32, s33')
    b('s_add_u32 s33, s32, 32768')
    if 'nowqpf' not in OPT:
        raw(b, 'buffer_load_dword v250, v72, s[28:31], s32 offen')
        raw(b, 'buffer_load_dword v250, v72, s[28:31], s33 offen')
    if 'nokvpf' not in OPT:
        b('s_cmp_ge_u32 s%d, 2' % S_WAVE)
        b('s_cselect_b32 s28, s%d, s%d' % (P_V, P_K))
        b('s_cselect_b32 s29, s%d, s%d' % (P_V + 1, P_K + 1))
        b('s_mov_b32 s30, 0x%x' % (32 * 2048 * 256))
        b('s_mov_b32 s31, 0x20000')
        b('s_lshr_b32 s32, s2, 3')
        b('s_sub_u32 s32, s32, 12')
        b('s_lshr_b32 s33, s32, 1')
        b('s_bfe_u32 s34, s2, 0x20001')
        b('s_lshl_b32 s34, s34, 3')
        b('s_add_u32 s34, s34, s33')
        b('s_lshl_b32 s34, s34, 19')
        b('s_add_u32 s34, s34, %d' % (1536 * 256))
        b('s_and_b32 s35, s32, 1')
        b('s_lshl_b32 s35, s35, 14')
        b('s_add_u32 s34, s34, s35')
        b('s_and_b32 s35, s%d, 1' % S_WAVE)
        b('s_lshl_b32 s35, s35, 13')
        b('s_add_u32 s34, s34, s35')
        b('s_cmp_ge_u32 s33, 8')
        b('s_cselect_b32 s34, 0x%x, s34' % OOB)
        b('v_lshlrev_b32 v72, 7, v0')
        raw(b, 'buffer_load_dword v250, v72, s[28:31], s34 offen')
    b.label(lk)


def front(b, name):
    S_C, S_WM, S_X = 8, 12, 16
    S_T0, S_T1 = 24, 25
    mk_srd(b, S_DBGS, P_DBG, 256)
    b('s_lshl_b32 s%d, s%d, 6' % (S_T0, S_WAVE))
    b('v_add_u32 v3, s%d, v0' % S_T0)
    l0 = uid('notp0')
    b('s_cmp_ge_u32 s2, 96')
    b('s_cbranch_scc1 %s' % l0)
    mk_srd(b, S_C, P_C, 1024)
    mk_srd(b, S_WM, P_WMOD, 512 * 6144)
    b('v_lshlrev_b32 v80, 2, v0')
    b('s_lshl_b32 s26, s%d, 8' % S_WAVE)
    b('buffer_load_dword v84, v80, s[%d:%d], s26 offen' % (S_C, S_C + 3))
    b('v_lshrrev_b32 v81, 2, v0')
    b('v_mul_u32_u24 v81, 6144, v81')
    b('v_and_b32 v82, 3, v0')
    b('v_lshl_add_u32 v81, v82, 4, v81')
    b('s_and_b32 s37, s2, 7')
    b('s_lshl_b32 s37, s37, 1')
    b('s_bfe_u32 s38, s2, 0x10003')
    b('s_or_b32 s37, s37, s38')
    b('s_and_b32 s38, s2, 0x70')
    b('s_or_b32 s37, s37, s38')
    b('s_mul_i32 s27, s%d, %d' % (S_WAVE, 128 * 6144))
    b('s_lshl_b32 s28, s37, 6')
    b('s_add_u32 s27, s27, s28')
    b('s_lshl_b32 s28, s%d, 13' % S_WAVE)
    for i in range(8):
        b('s_add_u32 m0, s28, %d' % (i * 1024))
        b('s_add_u32 s29, s27, %d' % (i * 16 * 6144))
        b('buffer_load_dwordx4 v81, s[%d:%d], s29 offen lds' % (S_WM, S_WM + 3), 'P0W')
    b.label(l0)
    l1 = uid('notclr')
    b('s_cmp_lg_u32 s2, 255')
    b('s_cbranch_scc1 %s' % l1)
    b('v_lshlrev_b32 v80, 4, v3')
    for i in range(4):
        b('v_mov_b32 v%d, -1' % (84 + i))
    for i in range(3):
        b('s_mov_b32 s26, %d' % (WS_MOD + i * 4096))
        b('buffer_store_dwordx4 v[84:87], v80, s[%d:%d], s26 offen sc1' % (S_WS, S_WS + 3))
    b('v_lshlrev_b32 v80, 7, v3')
    b('v_mov_b32 v88, 0')
    b('v_cmp_gt_u32 vcc, %d, v3' % F_COUNT)
    b('s_and_saveexec_b64 s[34:35], vcc')
    b('s_mov_b32 s26, 0x%x' % WS_FLAG)
    b('buffer_store_dword v88, v80, s[%d:%d], s26 offen sc1' % (S_WS, S_WS + 3))
    b('s_mov_b64 exec, s[34:35]')
    b('s_waitcnt vmcnt(0)')
    b('s_barrier')
    raw(b, '''s_cmp_lg_u32 s%d, 0
    s_cbranch_scc1 %s
    v_mov_b32 v88, 1
    buffer_store_dword v88, off, s[%d:%d], 0 sc1''' % (S_WAVE, l1, S_DBGS, S_DBGS + 3))
    b.label(l1)
    mk_srd(b, S_X, P_X, 2048 * 1024)
    b('v_and_b32 v1, 7, v0')
    b('v_lshrrev_b32 v2, 3, v3')
    if M16:
        b('v_and_b32 v5, 3, v2')
        b('v_lshrrev_b32 v6, 2, v2')
        b('v_lshlrev_b32 v4, 10, v1')
        b('v_lshl_add_u32 v4, v6, 7, v4')
        b('v_lshl_add_u32 v4, v5, 3, v4')
        b('s_lshl_b32 s36, s2, 13')
        for j in range(4):
            b('buffer_load_dwordx2 v[%d:%d], v4, s[%d:%d], s36 offen offset:%d' % (8 + 2 * j, 9 + 2 * j, S_X, S_X + 3, 32 * j))
        b('v_lshlrev_b32 v7, 8, v6')
        b('v_lshl_add_u32 v7, v5, 4, v7')
        b('v_lshlrev_b32 v74, 11, v6')
        b('v_lshl_add_u32 v74, v5, 8, v74')
        b('s_and_b32 s%d, s2, 1' % S_T0)
    else:
        b('v_lshlrev_b32 v4, 10, v1')
        b('v_lshrrev_b32 v5, 1, v2')
        b('v_lshl_add_u32 v4, v5, 6, v4')
        b('v_and_b32 v6, 1, v2')
        b('v_lshl_add_u32 v4, v6, 3, v4')
        b('s_lshl_b32 s36, s2, 13')
        for j in range(4):
            b('buffer_load_dwordx2 v[%d:%d], v4, s[%d:%d], s36 offen offset:%d' % (8 + 2 * j, 9 + 2 * j, S_X, S_X + 3, 16 * j))
        b('v_lshlrev_b32 v7, 7, v5')
        b('v_lshl_add_u32 v7, v6, 4, v7')
        b('v_lshlrev_b32 v74, 11, v5')
        b('v_lshl_add_u32 v74, v6, 9, v74')
        b('s_and_b32 s%d, s2, 3' % S_T0)
    b('s_lshl_b32 s%d, s%d, 3' % (S_T0, S_T0))
    b('v_add_u32 v6, s%d, v1' % S_T0)
    b('v_lshl_add_u32 v6, v6, 4, v74')
    l2, l2a = uid('p0done'), uid('nop0')
    b('s_cmp_ge_u32 s2, 96')
    b('s_cbranch_scc1 %s' % l2a)
    b('s_waitcnt vmcnt(12)')
    if 'fst' in OPT: raw_stamp(b, 24)
    b('v_lshlrev_b32 v64, 16, v84')
    b('v_and_b32 v65, 0xffff0000, v84')
    for i in range(2):
        b('v_mul_f32 v%d, %s, v%d' % (66 + i, f32(-LOG2E), 64 + i))
    for i in range(2):
        b('v_exp_f32 v%d, v%d' % (66 + i, 66 + i))
    for i in range(2):
        b('v_add_f32 v%d, 1.0, v%d' % (66 + i, 66 + i))
    for i in range(2):
        b('v_rcp_f32 v%d, v%d' % (66 + i, 66 + i))
    for i in range(2):
        b('v_mul_f32 v%d, v%d, v%d' % (64 + i, 64 + i, 66 + i))
    b('v_cvt_pk_bf16_f32 v64, v64, v65')
    b('s_lshl_b32 s26, s%d, 8' % S_WAVE)
    b('s_add_u32 s26, s26, 32768')
    b('v_lshl_add_u32 v65, v0, 2, s26')
    b('ds_write_b32 v65, v64')
    b('v_lshrrev_b32 v66, 4, v0')
    b('v_lshl_add_u32 v67, v66, 4, s26')
    b('v_bfe_u32 v68, v0, 2, 2')
    b('v_lshl_add_u32 v68, v66, 3, v68')
    b('v_lshlrev_b32 v68, 6, v68')
    b('v_and_b32 v69, 3, v0')
    b('v_lshl_add_u32 v68, v69, 3, v68')
    b('s_lshl_b32 s27, s%d, 13' % S_WAVE)
    b('v_add_u32 v68, s27, v68')
    b('s_waitcnt lgkmcnt(0)')
    for u in range(4):
        b('ds_read_b128 v[%d:%d], v67 offset:%d' % (96 + 4 * u, 99 + 4 * u, 64 * u))
    b('s_waitcnt vmcnt(4)' if 'fst' not in OPT else 's_waitcnt vmcnt(5)')
    if 'fst' in OPT: raw_stamp(b, 25)
    for u in range(4):
        for nb in range(2):
            for jj in range(2):
                r = 112 + 8 * u + 4 * nb + 2 * jj
                b('ds_read_b64_tr_b16 v[%d:%d], v68 offset:%d' % (r, r + 1, u * 2048 + jj * 256 + nb * 32))
    for u in range(4):
        for nb in range(2):
            r = 112 + 8 * u + 4 * nb
            d = 'v[%d:%d]' % (144 + 4 * nb, 147 + 4 * nb)
            b('%s %s, v[%d:%d], v[%d:%d], %s' % (MF, d, r, r + 3, 96 + 4 * u, 99 + 4 * u, '0' if u == 0 else d))
    b('s_lshl_b32 s26, s%d, 7' % S_WAVE)
    b('s_add_u32 s26, s26, 34816')
    b('v_lshl_add_u32 v69, v66, 4, s26')
    b('ds_write_b128 v69, v[144:147]')
    b('ds_write_b128 v69, v[148:151] offset:64')
    b('s_waitcnt lgkmcnt(0)')
    b('s_barrier')
    b('v_and_b32 v70, 31, v0')
    b('v_lshlrev_b32 v70, 2, v70')
    for w in range(4):
        b('ds_read_b32 v%d, v70 offset:%d' % (96 + w, 34816 + 128 * w))
    b('v_add_f32 v96, v96, v97')
    b('v_add_f32 v98, v98, v99')
    b('v_add_f32 v96, v96, v98')
    b('v_cvt_pk_bf16_f32 v96, v96, v96')
    b('v_and_b32 v96, 0xffff0000, v96')
    b('v_add_f32 v97, 1.0, v96')
    b('v_cvt_pk_bf16_f32 v97, v97, v97')
    b('v_and_b32 v97, 0xffff0000, v97')
    b('v_mul_f32 v98, %s, v96' % f32(QSCALE))
    b('s_lshr_b32 s26, s37, 4')
    b('s_cmp_eq_u32 s26, 0')
    b('s_cselect_b64 vcc, -1, 0')
    b('v_cndmask_b32 v96, v96, v98, vcc')
    b('s_cmp_eq_u32 s26, 1')
    b('s_cselect_b64 vcc, -1, 0')
    b('v_cndmask_b32 v96, v96, v97, vcc')
    b('s_cmp_eq_u32 s26, 4')
    b('s_cselect_b64 vcc, -1, 0')
    b('v_cndmask_b32 v96, v96, v97, vcc')
    if 'fst' in OPT: raw_stamp(b, 26)
    await_ready(b)
    if 'fst' in OPT: raw_stamp(b, 27)
    b('s_lshl_b32 s27, s37, 7')
    raw(b, '''s_cmp_lg_u32 s%d, 0
    s_cbranch_scc1 %s
    s_mov_b32 exec_hi, 0
    buffer_store_dword v96, v70, s[%d:%d], s27 offen offset:%d sc1
    s_mov_b32 exec_hi, -1''' % (S_WAVE, l2, S_WS, S_WS + 3, WS_MOD))
    b('s_branch %s' % l2)
    b.label(l2a)
    b('s_waitcnt vmcnt(0)')
    b.label(l2)
    stamp(b, 1)
    X = 16
    for p in range(8):
        b('v_lshlrev_b32 v%d, 16, v%d' % (X + 2 * p, 8 + p))
        b('v_and_b32 v%d, 0xffff0000, v%d' % (X + 2 * p + 1, 8 + p))
    if 'midpf' in OPT: prefetches(b)
    layernorm16(b, X, 32, 1, LN_LDS, QSCALE)
    if 'fst' in OPT: raw_stamp(b, 28)
    await_ready(b)
    if 'midpf' not in OPT: prefetches(b)
    if 'fst' in OPT: raw_stamp(b, 29)
    loads = []
    for j in range(4):
        step = 64 if M16 else 32
        loads.append('buffer_load_dwordx4 v[%d:%d], v7, s[%d:%d], 0 offen offset:%d sc1' % (48 + 4 * j, 51 + 4 * j, S_WS, S_WS + 3, WS_MOD + step * j))
        loads.append('buffer_load_dwordx4 v[%d:%d], v7, s[%d:%d], 0 offen offset:%d sc1' % (64 + 4 * j, 67 + 4 * j, S_WS, S_WS + 3, WS_MOD + 2048 + step * j))
    load_mod(b, loads, list(range(48, 80)), 40)
    stamp(b, 2)
    for i in range(16):
        b('v_fma_f32 v%d, v%d, v%d, v%d' % (X + i, X + i, 64 + i, 48 + i))
    for p in range(8):
        b('v_cvt_pk_bf16_f32 v%d, v%d, v%d' % (8 + p, X + 2 * p, X + 2 * p + 1))
    b('s_lshr_b32 s%d, s2, %d' % (S_T0, 1 if M16 else 2))
    b('s_lshl_b32 s%d, s%d, %d' % (S_T0, S_T0, 14 if M16 else 15))
    b('s_add_u32 s%d, s%d, 0x%x' % (S_T0, S_T0, WS_H))
    b('buffer_store_dwordx4 v[8:11], v6, s[%d:%d], s%d offen sc1' % (S_WS, S_WS + 3, S_T0))
    b('buffer_store_dwordx4 v[12:15], v6, s[%d:%d], s%d offen offset:1024 sc1' % (S_WS, S_WS + 3, S_T0))
```

```python
from mc import *

MF = 'v_mfma_f32_16x16x32_bf16'

S_WQ, S_K, S_V = 8, 12, 16
S_HEAD, S_QT, S_W = 24, 25, 26
S_W8K, S_W4K, S_PFO = 28, 29, 30
S_WSRC, S_HB = 32, 33
S_T0, S_T1, S_T2 = 40, 41, 42
S_OB = 43
S_MODE = 44
S_CH = 46
S_WO, S_WG, S_WU, S_WD = 20, 48, 52, 56

V_WOFF = 2
V_KOFF = 6
V_VOFF = 10
V_H = 12
V_TA = 16
V_KA = 24
V_LANE16 = 32
V_T = 40
V_Q = 64
V_ACC = 128
V_S = 128
V_NEG = 160
V_P = 176
V_L = 192
V_ONES = 208
V_M = 212
V_R = 216
OUT_SCRATCH = (220, 232)
V_PF = 248
A_O = 0
A_KF = 128
A_VF = 192
SLOT = 32768
MAX_OFF = 24.0
L_LIMIT = 2.0 ** 80


def kv_slot(i):
    return (i + 4) % 5


def dma_kv(i):
    out = []
    base = kv_slot(i) * SLOT
    out.append(('s_add_u32 m0, s%d, %d' % (S_W4K, base), None))
    out.append(('s_add_u32 s%d, s%d, %d' % (S_CH, S_W4K, i * 16384), None))
    for ii in range(4):
        out.append(('buffer_load_dwordx4 v%d, s[%d:%d], s%d offen offset:%d lds' % (V_KOFF + ii, S_K, S_K + 3, S_CH, ii * 1024), 'C%d' % i))
    out.append(('s_add_u32 m0, s%d, %d' % (S_W4K, base + 16384), None))
    for ii in range(4):
        out.append(('buffer_load_dwordx4 v%d, s[%d:%d], s%d offen offset:%d lds' % (V_VOFF + (ii & 1), S_V, S_V + 3, S_CH, ii * 1024), 'C%d' % i))
    return out


def dma_w(p):
    out = []
    for half in range(2):
        out.append(('s_add_u32 m0, s%d, %d' % (S_W8K, p * SLOT + half * 4096), None))
        out.append(('s_add_u32 s%d, s%d, %d' % (S_T0, S_WSRC, p * 128 * 8192 + half * 4 * 32768), None))
        for ii in range(4):
            out.append(('buffer_load_dwordx4 v%d, s[%d:%d], s%d offen offset:%d lds' % (V_WOFF + ii, S_WQ, S_WQ + 3, S_T0, ii * 1024), 'W%d' % p))
    return out


def h_load(u):
    out = []
    if u % 4 == 0:
        out.append(('s_add_u32 s%d, s%d, %d' % (S_T2, S_HB, u * 1024), None))
    for qb in range(4):
        out.append(('buffer_load_dwordx4 %s, v%d, s[%d:%d], s%d offen offset:%d sc1' %
                    (ar(16 * u + 4 * qb, 4), V_H + qb, S_WS, S_WS + 3, S_T2, (u & 3) * 1024), None))
    return out


def setup(b):
    b('s_and_b32 s%d, s2, 7' % S_T0)
    b('s_lshr_b32 s%d, s2, 3' % S_T1)
    b('s_lshr_b32 s%d, s%d, 1' % (S_HEAD, S_T0))
    b('s_lshl_b32 s%d, s%d, 3' % (S_HEAD, S_HEAD))
    b('s_lshr_b32 s%d, s%d, 2' % (S_T2, S_T1))
    b('s_add_u32 s%d, s%d, s%d' % (S_HEAD, S_HEAD, S_T2))
    b('s_and_b32 s%d, s%d, 1' % (S_QT, S_T0))
    b('s_lshl_b32 s%d, s%d, 2' % (S_QT, S_QT))
    b('s_and_b32 s%d, s%d, 3' % (S_T1, S_T1))
    b('s_add_u32 s%d, s%d, s%d' % (S_QT, S_QT, S_T1))
    b('s_mov_b32 s%d, s%d' % (S_W, S_WAVE))
    T = V_T
    b('v_lshrrev_b32 v%d, 4, v0' % T)
    b('v_and_b32 v%d, 15, v0' % (T + 1))
    b('v_lshlrev_b32 v%d, 1, v%d' % (T + 2, T))
    b('v_xor_b32 v%d, v%d, v%d' % (T + 2, T + 2, T + 1))
    b('v_lshlrev_b32 v%d, 4, v%d' % (T + 2, T + 2))
    b('v_lshl_add_u32 v%d, v%d, 8, v%d' % (V_VOFF, T, T + 2))
    b('v_xor_b32 v%d, 128, v%d' % (V_VOFF + 1, V_VOFF))
    b('v_lshl_add_u32 v%d, v%d, 13, v%d' % (V_WOFF, T, T + 2))
    b('v_xor_b32 v%d, 128, v%d' % (T + 4, V_WOFF))
    b('v_add_u32 v%d, %d, v%d' % (V_WOFF + 1, 1 * (32768 - 1024), T + 4))
    b('v_add_u32 v%d, %d, v%d' % (V_WOFF + 2, 2 * (32768 - 1024), V_WOFF))
    b('v_add_u32 v%d, %d, v%d' % (V_WOFF + 3, 3 * (32768 - 1024), T + 4))
    for ii in range(4):
        b('v_add_u32 v%d, %d, v%d' % (T + 2, 4 * ii, T))
        b('v_xor_b32 v%d, v%d, v%d' % (T + 2, T + 2, T + 1))
        b('v_lshlrev_b32 v%d, 4, v%d' % (T + 2, T + 2))
        b('v_lshl_add_u32 v%d, v%d, 8, v%d' % (V_KOFF + ii, T, T + 2))
    b('v_lshlrev_b32 v%d, 4, v0' % V_LANE16)
    for qb in range(4):
        b('v_add_u32 v%d, %d, v%d' % (V_H + qb, qb * 16384, V_LANE16))
    b('v_bfe_u32 v%d, v0, 2, 2' % (T + 2))
    b('v_lshl_add_u32 v%d, v%d, 2, v%d' % (T + 3, T, T + 2))
    b('v_and_b32 v%d, 7, v%d' % (T + 4, T + 3))
    b('v_lshlrev_b32 v%d, 8, v%d' % (T + 3, T + 3))
    b('v_and_b32 v%d, 3, v0' % (T + 5))
    b('v_lshl_add_u32 v%d, v%d, 3, v%d' % (T + 3, T + 5, T + 3))
    for db in range(8):
        b('v_xor_b32 v%d, %d, v%d' % (T + 5, db, T + 4))
        b('v_lshl_add_u32 v%d, v%d, 5, v%d' % (V_TA + db, T + 5, T + 3))
    b('v_lshrrev_b32 v%d, 5, v0' % (T + 2))
    b('v_xor_b32 v%d, v%d, v%d' % (T + 2, T + 2, T + 1))
    b('v_bfe_u32 v%d, v0, 4, 1' % (T + 3))
    b('v_lshlrev_b32 v%d, 3, v%d' % (T + 3, T + 3))
    b('v_lshl_add_u32 v%d, v%d, 8, v%d' % (T + 3, T + 1, T + 3))
    for u in range(4):
        for jj in range(2):
            b('v_xor_b32 v%d, %d, v%d' % (T + 4, 4 * u + 2 * jj, T + 2))
            b('v_lshl_add_u32 v%d, v%d, 4, v%d' % (V_KA + 2 * u + jj, T + 4, T + 3))
    b('s_lshl_b32 s%d, s%d, 13' % (S_W8K, S_W))
    b('s_lshl_b32 s%d, s%d, 12' % (S_W4K, S_W))
    b('s_lshl_b32 s%d, s%d, 8' % (S_T0, S_HEAD))
    mk_srd(b, S_WQ, P_WQ, None, S_T0)
    b('s_sub_u32 s%d, %d, s%d' % (S_WQ + 2, 512 * 8192, S_T0))
    b('s_lshl_b32 s%d, s%d, 19' % (S_T0, S_HEAD))
    b('s_add_u32 s%d, s%d, %d' % (S_T0, S_T0, 1536 * 256))
    mk_srd(b, S_K, P_K, 512 * 256, S_T0)
    mk_srd(b, S_V, P_V, 512 * 256, S_T0)
    b('s_lshl_b32 s%d, s%d, 18' % (S_WSRC, S_W))
    b('s_lshl_b32 s%d, s%d, 4' % (S_T0, S_QT))
    b('s_lshl_b32 s%d, s%d, 2' % (S_T1, S_W))
    b('s_add_u32 s%d, s%d, s%d' % (S_T0, S_T0, S_T1))
    b('s_lshl_b32 s%d, s%d, 14' % (S_HB, S_T0))
    b('s_add_u32 s%d, s%d, 0x%x' % (S_HB, S_HB, WS_H))
    b('s_lshl_b32 s%d, s%d, 17' % (S_OB, S_T0))
    b('s_lshl_b32 s%d, s%d, 12' % (S_T1, S_HEAD))
    b('s_add_u32 s%d, s%d, s%d' % (S_OB, S_OB, S_T1))
    b('s_add_u32 s%d, s%d, 0x%x' % (S_OB, S_OB, WS_O))
    b('s_mov_b32 s%d, 0' % S_MODE)
    mk_srd(b, S_WO, P_WO, 4096 * 1024); mk_srd(b, S_WG, P_WG, 512 * 2752); mk_srd(b, S_WU, P_WU, 512 * 2752); mk_srd(b, S_WD, P_WD, 1376 * 1024)
    b('s_bfe_u32 s%d, s2, 0x20001' % S_PFO)
    b('s_lshl_b32 s%d, s%d, 20' % (S_PFO, S_PFO))
    b('s_lshr_b32 s%d, s2, 3' % S_T1)
    b('s_lshl_b32 s%d, s%d, 15' % (S_T1, S_T1))
    b('s_add_u32 s%d, s%d, s%d' % (S_PFO, S_PFO, S_T1))
    b('s_add_u32 s%d, s%d, s%d' % (S_PFO, S_PFO, S_W8K))


def qproj(b):
    AHEAD = int(os.environ.get('HA16', '4'))
    for u in range(AHEAD):
        for t, g in h_load(u): b(t, g)
    b.waitvm('W0')
    b('s_barrier')
    stamp(b, 5)

    def a_reads(s):
        buf = V_Q + 32 * (s & 1)
        p = s // 4
        return ['ds_read_b64_tr_b16 %s, v%d offset:%d' % (vr(buf + 4 * db + 2 * jj, 2), V_TA + db, (p & 1) * SLOT + (s & 3) * 8192 + jj * 4096)
                for db in range(8) for jj in range(2)]
    for t in a_reads(0): b(t)
    stream = []
    for first, span, ops in ((0, 2, dma_w(2)), (2, 2, dma_kv(0)), (4, 4, dma_w(3)), (8, 4, dma_kv(1)), (12, 4, dma_kv(2))):
        for k, x in enumerate(ops):
            stream.append((first + (k * span) // len(ops), x))
    sc = Sched()
    for s in range(16):
        base = 32 * s
        for db in range(8):
            for qb in range(4):
                d = vr(V_ACC + (db * 4 + qb) * 4, 4)
                sc.mfma(base + 4 * db + qb, '%s %s, %s, %s, %s' % (MF, d, vr(V_Q + 32 * (s & 1) + 4 * db, 4), ar(16 * s + 4 * qb, 4), '0' if s == 0 else d))
        if s + 1 < 16:
            first = 0
            if (s + 1) % 4 == 0:
                p = (s + 1) // 4
                sc.add(base, lambda bb, p=p: (bb.waitvm('W%d' % p), bb('s_barrier')))
                if p == 2:
                    for db in range(8):
                        sc.add(base + db // 2, 'v_add_u32 v%d, 0x10000, v%d' % (V_TA + db, V_TA + db))
                    first = 4
            for k, t in enumerate(a_reads(s + 1)):
                sc.add(base + max(first, 2 * k) if k < 4 else base + 2 * k, t)
        if s + AHEAD < 16:
            for k, (t, g) in enumerate(h_load(s + AHEAD)):
                sc.add(base + 1 + 6 * k, t, g)
        k = 0
        for (st, (t, g)) in stream:
            if st == s:
                sc.add(base + 3 + 4 * k, t, g)
                k += 1
    sc.emit(b, 0, 512)
    for qb in range(4):
        for u in range(4):
            for jj in range(2):
                acc = V_ACC + ((2 * u + jj) * 4 + qb) * 4
                for i in range(2):
                    b('v_cvt_pk_bf16_f32 v%d, v%d, v%d' % (V_Q + (qb * 4 + u) * 4 + 2 * jj + i, acc + 2 * i, acc + 2 * i + 1))


def k_reads(blk, buf):
    return ['ds_read_b64 %s, v%d offset:%d' % (ar(A_KF + 32 * buf + (kb * 4 + u) * 4 + 2 * jj, 2), V_KA + 2 * u + jj, (blk & 1) * 8192 + kb * 4096)
            for kb in range(2) for u in range(4) for jj in range(2)]


def v_reads(blk, buf):
    return ['ds_read_b64_tr_b16 %s, v%d offset:%d' % (ar(A_VF + 32 * buf + 4 * db + 2 * jj, 2), V_TA + db, (blk & 1) * 8192 + jj * 4096)
            for db in range(8) for jj in range(2)]


def qk(qb, kb, u, buf, first_c):
    s = vr(V_S + (qb * 2 + kb) * 4, 4)
    return '%s %s, %s, %s, %s' % (MF, s, ar(A_KF + 32 * buf + (kb * 4 + u) * 4, 4), vr(V_Q + (qb * 4 + u) * 4, 4), s if u else first_c)


def pv(qb, db, buf, first):
    o = ar(A_O + (db * 4 + qb) * 4, 4)
    return '%s %s, %s, %s, %s' % (MF, o, ar(A_VF + 32 * buf + 4 * db, 4), vr(V_P + 4 * qb, 4), '0' if first else o)


def lsum(qb, first):
    l = vr(V_L + 4 * qb, 4)
    return '%s %s, %s, %s, %s' % (MF, l, vr(V_ONES, 4), vr(V_P + 4 * qb, 4), '0' if first else l)


def exps(qb):
    return ['v_exp_f32 v%d, v%d' % (V_S + 8 * qb + e, V_S + 8 * qb + e) for e in range(8)]


def cvts(qb):
    return ['v_cvt_pk_bf16_f32 v%d, v%d, v%d' % (V_P + 4 * qb + k, V_S + 8 * qb + 2 * k, V_S + 8 * qb + 2 * k + 1) for k in range(4)]


def lanes_16_32(b, x, tmp, op):
    for sw in ('v_permlane16_swap_b32', 'v_permlane32_swap_b32'):
        b('v_mov_b32 v%d, v%d' % (tmp, x))
        b('%s v%d, v%d' % (sw, x, tmp))
        b('%s v%d, v%d, v%d' % (op, x, x, tmp))


def prefetches():
    DUMMY = 250
    pre = ['v_lshlrev_b32 v%d, 7, v0' % V_PF, 'v_min_u32 v%d, 10, v0' % (V_PF + 1),
           's_lshl_b32 s%d, s2, 2' % S_T1, 's_add_u32 s%d, s%d, s%d' % (S_T1, S_T1, S_W), 's_mul_i32 s%d, s%d, 11' % (S_T1, S_T1),
           'v_add_u32 v%d, s%d, v%d' % (V_PF + 1, S_T1, V_PF + 1), 'v_lshlrev_b32 v%d, 7, v%d' % (V_PF + 1, V_PF + 1)]
    loads = ['buffer_load_dword v%d, v%d, s[%d:%d], s%d offen' % (DUMMY, V_PF, S_WO, S_WO + 3, S_PFO)]
    for srd_ in (S_WG, S_WU, S_WD):
        loads.append('buffer_load_dword v%d, v%d, s[%d:%d], 0 offen' % (DUMMY, V_PF + 1, srd_, srd_ + 3))
    return pre, loads


def out_group(qb, db32):
    t0 = OUT_SCRATCH[db32 & 1]
    ops = []
    for jj in range(2):
        o = A_O + ((2 * db32 + jj) * 4 + qb) * 4
        ops += ['v_accvgpr_read_b32 v%d, a%d' % (t0 + 4 * jj + k, o + k) for k in range(4)]
    ops += ['v_mul_f32 v%d, v%d, v%d' % (t0 + k, t0 + k, V_R + qb) for k in range(8)]
    ops += ['v_cvt_pk_bf16_f32 v%d, v%d, v%d' % (t0 + 8 + k, t0 + 2 * k, t0 + 2 * k + 1) for k in range(4)]
    soff = ['s_add_u32 s%d, s%d, %d' % (S_T2, S_OB, qb * 131072)] if db32 == 0 else []
    st = 'buffer_store_dwordx4 %s, v%d, s[%d:%d], s%d offen offset:%d sc1' % (vr(t0 + 8, 4), V_LANE16, S_WS, S_WS + 3, S_T2, db32 * 1024)
    return ops, soff, st


def attention(b, name):
    b.label(name + '_attn')
    for k in range(8):
        b('v_add_u32 v%d, %d, v%d' % (V_KA + k, kv_slot(0) * SLOT, V_KA + k))
    for k in range(8):
        b('v_add_u32 v%d, %d, v%d' % (V_TA + k, kv_slot(0) * SLOT + 16384 - 2 * SLOT, V_TA + k))
    for k in range(4):
        b('v_mov_b32 v%d, 0x3f803f80' % (V_ONES + k))
    b.waitvm('C0')
    b('s_barrier')
    for t in k_reads(0, 0): b(t)
    l = uid('kv12')
    b('s_cmp_eq_u32 s%d, 0' % S_MODE)
    b('s_cbranch_scc1 %s' % l)
    for i in (1, 2):
        for t, g in dma_kv(i):
            raw(b, t)
            if ' m0,' in t: raw(b, 's_nop 0')
    raw(b, 's_waitcnt vmcnt(0)')
    b.label(l)
    for t in k_reads(1, 1): b(t)
    for qb in range(4):
        for kb in range(2):
            for u in range(4):
                b(qk(qb, kb, u, 0, '0'))
        if qb < 2:
            for t in v_reads(0, 0)[8 * qb:8 * qb + 8]: b(t)
    for k in range(8):
        b('v_add_u32 v%d, 0x%x, v%d' % (V_KA + k, ((kv_slot(1) - kv_slot(0)) * SLOT) & 0xffffffff, V_KA + k))
    b('s_cmp_lg_u32 s%d, 0' % S_MODE)
    b('s_cbranch_scc1 %s_havemax' % name)
    for qb in range(4):
        S, M = V_S + 8 * qb, V_M + qb
        b('v_max3_f32 v%d, v%d, v%d, v%d' % (M, S, S + 1, S + 2))
        b('v_max3_f32 v%d, v%d, v%d, v%d' % (M, M, S + 3, S + 4))
        b('v_max3_f32 v%d, v%d, v%d, v%d' % (M, M, S + 5, S + 6))
        b('v_max_f32 v%d, v%d, v%d' % (M, M, S + 7))
    for qb in range(4):
        lanes_16_32(b, V_M + qb, V_T + qb, 'v_max_f32')
        b('v_add_f32 v%d, %s, v%d' % (V_M + qb, f32(MAX_OFF), V_M + qb))
    b.label(name + '_havemax')
    b('s_nop 7')
    for qb in range(4):
        for i in range(4):
            b('v_sub_f32 v%d, 0, v%d' % (V_NEG + 4 * qb + i, V_M + qb))
        for i in range(8):
            b('v_sub_f32 v%d, v%d, v%d' % (V_S + 8 * qb + i, V_S + 8 * qb + i, V_M + qb))
    for qb in range(3):
        for t in exps(qb): b(t)
        for t in cvts(qb): b(t)
    stamp(b, 7)

    NB = 16
    S_C, S_D, S_LREQ, S_SRC, S_SLOT = 34, 35, 36, 37, 38

    def dma_dyn():
        out = [('s_mov_b32 m0, s%d' % S_LREQ, None), ('s_nop 0', None)]
        for ii in range(4):
            out.append(('buffer_load_dwordx4 v%d, s[%d:%d], s%d offen offset:%d lds' % (V_KOFF + ii, S_K, S_K + 3, S_SRC, ii * 1024), None))
        out.append(('s_add_u32 m0, s%d, 16384' % S_LREQ, None))
        for ii in range(4):
            out.append(('buffer_load_dwordx4 v%d, s[%d:%d], s%d offen offset:%d lds' % (V_VOFF + (ii & 1), S_V, S_V + 3, S_SRC, ii * 1024), None))
        return out

    def block(sc, pos, j, loop):
        last = j == NB - 1
        G = 9 if last else 17
        if j > 0:
            sc.add(pos, cvts(2)[3])
        for qb in range(4):
            g0 = pos + G * qb
            for db in range(8):
                sc.mfma(g0 + db, pv(qb, db, j & 1, j == 0))
            sc.mfma(g0 + 8, lsum(qb, j == 0))
            if not last:
                k = 0
                for kb in range(2):
                    for u in range(4):
                        sc.mfma(g0 + 9 + k, qk(qb, kb, u, (j + 1) & 1, vr(V_NEG + 4 * qb, 4)))
                        k += 1
            sq = (qb - 1) % 4
            if not (last and qb > 0):
                e, c = exps(sq), cvts(sq)
                for i in range(8):
                    sc.add(g0 + 2 + 2 * i, e[i])
                for i in range(4):
                    if not (qb == 3 and i == 3):
                        sc.add(g0 + 5 + 4 * i, c[i])
        if j + 1 < NB:
            for k, t in enumerate(v_reads(j + 1, (j + 1) & 1)):
                sc.add(pos + G * (k // 8) + 1 + 2 * (k % 8), t)
        if j + 2 < NB:
            for k, t in enumerate(k_reads(j + 2, j & 1)):
                sc.add(pos + G * (2 + k // 8) + 1 + 2 * (k % 8), t)
        c = j // 2
        free = [G * g + o for g in range(4) for o in (0, 1, 3, 7, 11, 15)]
        lo, hi = [f for f in free if f < 2 * G], [f for f in free if f >= 2 * G]
        step = ('s%d' % S_D) if loop else '0x%x' % (((kv_slot(c + 1) - kv_slot(c)) * SLOT) & 0xffffffff)
        if j % 2 == 0 and j + 2 < NB:
            if loop:
                sc.add(pos, lambda bb: (bb('s_waitcnt vmcnt(16)'), bb('s_barrier')))
            else:
                sc.add(pos, lambda bb, c=c: (bb.waitvm('C%d' % (c + 1)), bb('s_barrier')))
            if c >= 1:
                for k in range(8):
                    sc.add(pos + lo[1 + k], 'v_add_u32 v%d, %s, v%d' % (V_KA + k, step, V_KA + k))
        if j % 2 == 0 and c + 1 < 8:
            for k in range(8):
                sc.add(pos + hi[1 + k], 'v_add_u32 v%d, %s, v%d' % (V_TA + k, step, V_TA + k))
        if j == 0:
            for k, (t, g) in enumerate(dma_kv(3)):
                sc.add(pos + free[(2, 4, 5, 6, 8, 10, 12, 14, 16, 18, 20)[k]], t, g)
        elif j % 2 == 1 and not last and (loop or c + 4 < 8):
            for k, (t, g) in enumerate(dma_dyn() if loop else dma_kv(c + 4)):
                sc.add(pos + free[2 * k + 1], t, g)
        return 4 * G

    sc = Sched()
    pos = block(sc, 0, 0, False)
    pos += block(sc, pos, 1, False)
    sc.emit(b, 0, pos, valu_last=True)
    b('s_mov_b32 s%d, 1' % S_C)
    b('s_mov_b32 s%d, %d' % (S_SLOT, SLOT))
    b('s_mov_b32 s%d, %d' % (S_D, SLOT))
    b('s_add_u32 s%d, s%d, %d' % (S_LREQ, S_W4K, kv_slot(5) * SLOT))
    b('s_add_u32 s%d, s%d, %d' % (S_SRC, S_W4K, 5 * 16384))
    b.loop_begin()
    b.label(name + '_kv_loop')
    sc = Sched()
    pos = block(sc, 0, 2, True)
    pos += block(sc, pos, 3, True)
    upd = ['s_add_u32 s%d, s%d, 1' % (S_C, S_C), 's_add_u32 s%d, s%d, 16384' % (S_SRC, S_SRC),
           's_add_u32 s%d, s%d, %d' % (S_LREQ, S_LREQ, SLOT)]
    for k, t in enumerate(upd):
        sc.add(pos - 6 + k, t)
    sc.add(pos - 3, 's_cmp_ge_u32 s%d, %d' % (S_LREQ, 5 * SLOT))
    sc.add(pos - 3, 's_cselect_b32 s%d, s%d, s%d' % (S_LREQ, S_W4K, S_LREQ))
    sc.add(pos - 2, 's_cmp_eq_u32 s%d, 5' % S_C)
    sc.add(pos - 2, 's_cselect_b32 s%d, 0x%x, s%d' % (S_D, (-4 * SLOT) & 0xffffffff, S_SLOT))
    sc.emit(b, 0, pos, valu_last=True)
    pre, loads = prefetches()
    lp = uid('nopf')
    raw(b, 's_cmp_lg_u32 s%d, 5\ns_cbranch_scc1 %s' % (S_C, lp))
    for t in pre + loads: raw(b, t)
    raw(b, lp + ':')
    b('s_cmp_lt_u32 s%d, 7' % S_C)
    b('s_cbranch_scc1 %s_kv_loop' % name)
    b.loop_end(6)
    sc = Sched()
    pos = block(sc, 0, 14, False)
    lb = pos
    pos += block(sc, pos, 15, False)
    for qb in range(3):
        s0 = lb + 9 * (qb + 1) + 2
        sc.add(s0, 'v_rcp_f32 v%d, v%d' % (V_R + qb, V_L + 4 * qb))
        for db32 in range(4):
            ops, soff, st = out_group(qb, db32)
            for t in soff: sc.add(s0, t)
            for t in ops: sc.add(s0 + 1 + 2 * db32 if db32 < 3 else s0 + 6, t)
            sc.add(s0 + 2 + 2 * db32 if db32 < 3 else s0 + 7, st)
    sc.emit(b, 0, pos + 8, valu_last=True)
    stamp(b, 8)


def epilogue(b, name):
    T = V_T
    b('s_cmp_lg_u32 s%d, 0' % S_MODE)
    b('s_cbranch_scc1 %s_noguard' % name)
    b('v_add_f32 v%d, v%d, v%d' % (T + 1, V_L, V_L + 4))
    b('v_add_f32 v%d, v%d, v%d' % (T + 2, V_L + 8, V_L + 12))
    b('v_add_f32 v%d, v%d, v%d' % (T + 1, T + 1, T + 2))
    b('v_mov_b32 v%d, %s' % (T + 2, f32(L_LIMIT)))
    b('v_cmp_nle_f32 vcc, v%d, v%d' % (T + 1, T + 2))
    b('s_cmp_lg_u64 vcc, 0')
    b('s_cselect_b32 s%d, 1, 0' % S_T0)
    b('v_mov_b32 v%d, s%d' % (T + 3, S_T0))
    b('s_lshl_b32 s%d, s%d, 2' % (S_T1, S_W))
    b('s_add_u32 s%d, s%d, %d' % (S_T1, S_T1, 2 * SLOT))
    b('v_mov_b32 v%d, s%d' % (T + 4, S_T1))
    b('ds_write_b32 v%d, v%d' % (T + 4, T + 3))
    b('s_waitcnt lgkmcnt(0)')
    b('s_barrier')
    b('v_mov_b32 v%d, %d' % (T + 4, 2 * SLOT))
    b('ds_read_b128 %s, v%d' % (vr(T + 8, 4), T + 4))
    b('v_or_b32 v%d, v%d, v%d' % (T + 8, T + 8, T + 9))
    b('v_or_b32 v%d, v%d, v%d' % (T + 10, T + 10, T + 11))
    b('v_or_b32 v%d, v%d, v%d' % (T + 8, T + 8, T + 10))
    b('v_readfirstlane_b32 s%d, v%d' % (S_T0, T + 8))
    b('s_cmp_lg_u32 s%d, 0' % S_T0)
    b('s_cbranch_scc1 %s_fallback' % name)
    b.label(name + '_noguard')
    b('s_barrier')
    b('v_rcp_f32 v%d, v%d' % (V_R + 3, V_L + 12))
    for db32 in range(4):
        ops, soff, st = out_group(3, db32)
        for t in soff + ops: b(t)
        b(st)


def fallback(b, name):
    b.label(name + '_fallback')
    b('s_waitcnt vmcnt(0) lgkmcnt(0)')
    b('s_barrier')
    for k in range(8):
        b('v_add_u32 v%d, 0x%x, v%d' % (V_KA + k, (-kv_slot(7) * SLOT) & 0xffffffff, V_KA + k))
    for k in range(8):
        b('v_add_u32 v%d, 0x%x, v%d' % (V_TA + k, (2 * SLOT - kv_slot(7) * SLOT - 16384) & 0xffffffff, V_TA + k))
    for qb in range(4):
        b('v_mov_b32 v%d, 0xff800000' % (V_M + qb))
    b('s_mov_b32 s%d, 0' % S_T2)
    b.label(name + '_fb_loop')
    b('s_lshl_b32 s%d, s%d, 14' % (S_CH, S_T2))
    b('s_add_u32 s%d, s%d, s%d' % (S_CH, S_CH, S_W4K))
    b('s_mov_b32 m0, s%d' % S_W4K)
    for ii in range(4):
        b('buffer_load_dwordx4 v%d, s[%d:%d], s%d offen offset:%d lds' % (V_KOFF + ii, S_K, S_K + 3, S_CH, ii * 1024))
    b('s_waitcnt vmcnt(0)')
    b('s_barrier')
    for blk in range(2):
        for t in k_reads(blk, 0): b(t)
        for qb in range(4):
            for kb in range(2):
                for u in range(4):
                    b(qk(qb, kb, u, 0, '0'))
        for qb in range(4):
            for i in range(0, 8, 2):
                b('v_max3_f32 v%d, v%d, v%d, v%d' % (V_M + qb, V_M + qb, V_S + 8 * qb + i, V_S + 8 * qb + i + 1))
    b('s_waitcnt lgkmcnt(0)')
    b('s_barrier')
    b('s_add_u32 s%d, s%d, 1' % (S_T2, S_T2))
    b('s_cmp_lt_u32 s%d, 8' % S_T2)
    b('s_cbranch_scc1 %s_fb_loop' % name)
    for qb in range(4):
        lanes_16_32(b, V_M + qb, V_T + qb, 'v_max_f32')
    b('s_mov_b32 s%d, 1' % S_MODE)
    for t, g in dma_kv(0): b(t)
    b('s_waitcnt vmcnt(0)')
    b('s_branch %s_attn' % name)


def pre(b):
    for p in range(2):
        for t, g in dma_w(p): b(t, g)


def flag_index(b, dst):
    flag_off(b, dst, F_H, S_QT)


def main(b, name):
    qproj(b)
    stamp(b, 6)
    attention(b, name)
    epilogue(b, name)


def out_flag(b, dst):
    b('s_lshl_b32 s%d, s%d, 2' % (dst, S_QT))
    b('s_lshr_b32 s%d, s%d, 3' % (S_T0, S_HEAD))
    b('s_add_u32 s%d, s%d, s%d' % (dst, dst, S_T0))
    flag_off(b, dst, F_O, dst)
```

```python
from mc import *
from front import LN_LDS

MF = 'v_mfma_f32_16x16x32_bf16'


def p3(b, name):
    S_WO = 8
    S_W, S_KS, S_QT, S_NT, S_ROT, S_W8K = 16, 17, 18, 19, 20, 21
    S_AB, S_BB, S_T0, S_T1, S_T2, S_PB = 22, 23, 24, 25, 26, 27
    S_P, S_B1, S_B2, S_A2, S_L2, S_D, S_OFFB, S_OFFA, S_SLOT = 28, 29, 30, 31, 32, 33, 34, 35, 36
    V_WOFF, V_B, V_A, V_T = 2, 10, 12, 20
    V_AF = 32
    V_ACC = 128
    SLOT = 32768
    OOB = 0x10000000
    b('s_and_b32 s%d, s2, 7' % S_T0)
    b('s_lshr_b32 s%d, s2, 3' % S_T1)
    b('s_lshr_b32 s%d, s%d, 1' % (S_KS, S_T0))
    b('s_mov_b32 s%d, s%d' % (S_W, S_WAVE))
    b('s_and_b32 s%d, s%d, 1' % (S_T0, S_T0))
    b('s_lshl_b32 s%d, s%d, 3' % (S_T0, S_T0))
    b('s_lshr_b32 s%d, s%d, 2' % (S_QT, S_T1))
    b('s_and_b32 s%d, s%d, 3' % (S_NT, S_T1))
    b('s_lshl_b32 s%d, s%d, 1' % (S_ROT, S_NT))
    b('s_add_u32 s%d, s%d, s%d' % (S_ROT, S_ROT, S_QT))
    b('s_and_b32 s%d, s%d, 7' % (S_ROT, S_ROT))
    b('s_mov_b32 s%d, 0' % S_ROT)
    b('s_add_u32 s%d, s%d, s%d' % (S_QT, S_QT, S_T0))
    T = V_T
    b('v_lshrrev_b32 v%d, 4, v0' % T)
    b('v_and_b32 v%d, 15, v0' % (T + 1))
    b('v_lshlrev_b32 v%d, 1, v%d' % (T + 2, T))
    b('v_xor_b32 v%d, v%d, v%d' % (T + 2, T + 2, T + 1))
    b('v_lshlrev_b32 v%d, 4, v%d' % (T + 2, T + 2))
    b('v_lshl_add_u32 v%d, v%d, 10, v%d' % (V_WOFF, T, T + 2))
    if M16:
        b('v_xor_b32 v%d, 128, v%d' % (T + 3, V_WOFF))
        for ii in range(1, 8):
            b('v_add_u32 v%d, %d, v%d' % (V_WOFF + ii, (ii & 3) * 3072, T + 3 if ii & 1 else V_WOFF))
    else:
        b('v_xor_b32 v%d, 128, v%d' % (V_WOFF + 4, V_WOFF))
        for ii in range(1, 4):
            b('v_add_u32 v%d, %d, v%d' % (V_WOFF + ii, ii * 3072, V_WOFF))
            b('v_add_u32 v%d, %d, v%d' % (V_WOFF + 4 + ii, ii * 3072, V_WOFF + 4))
    b('v_lshlrev_b32 v%d, 4, v0' % V_B)
    b('v_add_u32 v%d, %d, v%d' % (V_B + 1, 131072, V_B))
    b('s_lshl_b32 s%d, s%d, 13' % (S_W8K, S_W))
    b('s_lshl_b32 s%d, s%d, 20' % (S_AB, S_KS))
    b('s_lshl_b32 s%d, s%d, 15' % (S_T0, S_W))
    b('s_add_u32 s%d, s%d, s%d' % (S_AB, S_AB, S_T0))
    b('s_lshl_b32 s%d, s%d, 8' % (S_T0, S_NT))
    b('s_add_u32 s%d, s%d, s%d' % (S_AB, S_AB, S_T0))
    b('s_lshl_b32 s%d, s%d, 3' % (S_T0, S_QT))
    b('s_lshl_b32 s%d, s%d, 1' % (S_T1, S_W))
    b('s_add_u32 s%d, s%d, s%d' % (S_T0, S_T0, S_T1))
    b('s_lshl_b32 s%d, s%d, 17' % (S_BB, S_T0))
    b('s_lshl_b32 s%d, s%d, 15' % (S_T1, S_KS))
    b('s_add_u32 s%d, s%d, s%d' % (S_BB, S_BB, S_T1))
    b('s_add_u32 s%d, s%d, 0x%x' % (S_BB, S_BB, WS_O))
    b('s_lshl_b32 s%d, s%d, 17' % (S_OFFA, S_ROT))
    b('s_lshl_b32 s%d, s%d, 12' % (S_OFFB, S_ROT))
    b('s_add_u32 s%d, s%d, s%d' % (S_A2, S_AB, S_OFFA))
    b('s_add_u32 s%d, s%d, s%d' % (S_B1, S_BB, S_OFFB))
    b('s_mov_b32 s%d, s%d' % (S_L2, S_W8K))
    mk_srd(b, S_WO, P_WO, 4096 * 1024)

    def dma_w(tag):
        out = []
        for half in range(2):
            grp = [('s_add_u32 m0, s%d, %d' % (S_L2, half * 4096), None),
                   ('s_add_u32 s%d, s%d, %d' % (S_T2, S_A2, half * 16 * 1024), None)]
            for ii in range(4):
                grp.append(('buffer_load_dwordx4 v%d, s[%d:%d], s%d offen offset:%d lds' %
                            (V_WOFF + 4 * half + ii, S_WO, S_WO + 3, S_T2, ii * 1024), tag))
            out.append(grp)
        return out

    def b_load(ring, sreg, step):
        return ['buffer_load_dwordx4 %s, v%d, s[%d:%d], s%d offen offset:%d sc1' %
                (ar(8 * ring + 4 * qq, 4), V_B + qq, S_WS, S_WS + 3, sreg, step * 1024) for qq in range(2)]

    def a_reads(buf, step):
        return ['ds_read_b64_tr_b16 %s, v%d offset:%d' % (vr(V_AF + 32 * buf + 4 * nb + 2 * jj, 2), V_A + nb, step * 8192 + jj * (4096 if M16 else 2048))
                for nb in range(8) for jj in range(2)]

    def advance_a():
        return ['s_add_u32 s%d, s%d, 0x20000' % (S_OFFA, S_OFFA), 's_and_b32 s%d, s%d, 0xfffff' % (S_OFFA, S_OFFA),
                's_add_u32 s%d, s%d, s%d' % (S_A2, S_AB, S_OFFA),
                's_add_u32 s%d, s%d, %d' % (S_L2, S_L2, SLOT), 's_cmp_ge_u32 s%d, %d' % (S_L2, 5 * SLOT),
                's_cselect_b32 s%d, s%d, s%d' % (S_L2, S_W8K, S_L2)]

    def advance_b():
        return ['s_mov_b32 s%d, s%d' % (S_B1, S_B2),
                's_add_u32 s%d, s%d, 0x1000' % (S_OFFB, S_OFFB), 's_and_b32 s%d, s%d, 0x7fff' % (S_OFFB, S_OFFB),
                's_add_u32 s%d, s%d, s%d' % (S_B2, S_BB, S_OFFB)]

    if M16:
        b('v_bfe_u32 v%d, v0, 2, 2' % T)
        b('v_lshrrev_b32 v%d, 4, v0' % (T + 1))
        b('v_lshl_add_u32 v%d, v%d, 2, v%d' % (T + 3, T + 1, T))
        b('v_and_b32 v%d, 7, v%d' % (T + 1, T + 3))
        b('v_lshlrev_b32 v%d, 8, v%d' % (T + 3, T + 3))
        b('v_and_b32 v%d, 3, v0' % (T + 4))
        b('v_lshl_add_u32 v%d, v%d, 3, v%d' % (T + 3, T + 4, T + 3))
    else:
        b('v_bfe_u32 v%d, v0, 2, 2' % T)
        b('v_bfe_u32 v%d, v0, 4, 1' % (T + 1))
        b('v_lshrrev_b32 v%d, 5, v0' % (T + 2))
        b('v_lshlrev_b32 v%d, 4, v%d' % (T + 3, T + 1))
        b('v_lshlrev_b32 v%d, 2, v%d' % (T + 4, T + 2))
        b('v_add3_u32 v%d, v%d, v%d, v%d' % (T + 3, T + 3, T + 4, T))
        b('v_lshlrev_b32 v%d, 8, v%d' % (T + 3, T + 3))
        b('v_and_b32 v%d, 3, v0' % (T + 4))
        b('v_lshl_add_u32 v%d, v%d, 3, v%d' % (T + 3, T + 4, T + 3))
        b('v_lshlrev_b32 v%d, 2, v%d' % (T + 1, T + 1))
        b('v_or_b32 v%d, v%d, v%d' % (T + 1, T + 1, T))
    for nb in range(8):
        b('v_xor_b32 v%d, %d, v%d' % (T + 4, nb, T + 1))
        b('v_lshl_add_u32 v%d, v%d, 5, v%d' % (V_A + nb, T + 4, T + 3))
    for i in range(64):
        b('v_mov_b32 v%d, 0' % (V_ACC + i))
    b('s_lshl_b32 s%d, s%d, 7' % (S_PB, S_KS))
    b('s_add_u32 s%d, s%d, s%d' % (S_PB, S_PB, S_T0))
    b('s_lshl_b32 s%d, s%d, 14' % (S_PB, S_PB))
    b('s_lshl_b32 s%d, s%d, 12' % (S_T1, S_NT))
    b('s_add_u32 s%d, s%d, s%d' % (S_PB, S_PB, S_T1))
    b('s_add_u32 s%d, s%d, 0x%x' % (S_PB, S_PB, WS_PART))
    b('s_mov_b32 s%d, 0' % S_P)
    b('s_mov_b32 s%d, %d' % (S_D, SLOT))
    b('s_mov_b32 s%d, %d' % (S_SLOT, SLOT))
    b('s_lshr_b32 s%d, s%d, 1' % (S_T1, S_QT))
    b('s_lshl_b32 s%d, s%d, 2' % (S_T1, S_T1))
    b('s_add_u32 s%d, s%d, s%d' % (S_T1, S_T1, S_KS))
    flag_off(b, S_SY + 3, F_O, S_T1)
    yield
    for tag, ep in (('W0', None), ('WA', -1), ('WB', -1)):
        for grp in dma_w(tag):
            for t, g in grp: b(t, g, epoch=ep)
        for t in advance_a(): b(t)
    yield
    for st in range(4):
        for t in b_load(st, S_B1, st): b(t)
    b('s_add_u32 s%d, s%d, 0x1000' % (S_OFFB, S_OFFB))
    b('s_and_b32 s%d, s%d, 0x7fff' % (S_OFFB, S_OFFB))
    b('s_add_u32 s%d, s%d, s%d' % (S_B1, S_BB, S_OFFB))
    for st in range(3):
        for t in b_load(4 + st, S_B1, st): b(t)
    b('s_add_u32 s%d, s%d, 0x1000' % (S_OFFB, S_OFFB))
    b('s_and_b32 s%d, s%d, 0x7fff' % (S_OFFB, S_OFFB))
    b('s_add_u32 s%d, s%d, s%d' % (S_B2, S_BB, S_OFFB))
    b.waitvm('W0')
    b('s_barrier')
    stamp(b, 11)
    for t in a_reads(0, 0): b(t)

    b.loop_begin()
    b.label(name + '_loop')
    sc = Sched()
    for half in range(2):
        tag = 'WA' if half == 0 else 'WB'
        d = dma_w(tag)
        for i in range(4):
            st = 4 * half + i
            base = 16 * st
            for nb in range(8):
                for qq in range(2):
                    dd = vr(V_ACC + (nb * 2 + qq) * 4, 4)
                    sc.mfma(base + 2 * nb + qq, '%s %s, %s, %s, %s' % (MF, dd, vr(V_AF + 32 * (i & 1) + 4 * nb, 4), ar(8 * st + 4 * qq, 4), dd))
            if i == 3:
                sc.add(base, lambda bb, tag=tag: (bb.waitvm(tag, 1), bb('s_barrier')))
                for nb in range(8):
                    sc.add(base + (nb + 1) // 2, 'v_add_u32 v%d, s%d, v%d' % (V_A + nb, S_D, V_A + nb))
            rd = a_reads((i + 1) & 1, (i + 1) & 3)
            for k, t in enumerate(rd):
                if i == 3:
                    sc.add(base + min(15, max(k, (k // 2 + 1) // 2 + 1) if k < 4 else k), t)
                else:
                    sc.add(base + k, t)
            ahead = i + 7
            sreg = S_B1 if ahead < 8 else S_B2
            bl = b_load((st + 7) & 7, sreg, ahead & 3)
            grp = d[i // 2]
            if i % 2 == 0:
                sc.add(base + 1, grp[0][0]); sc.add(base + 2, grp[1][0])
            sc.add(base + 3, bl[0])
            sc.add(base + 6, grp[2 + 2 * (i % 2)][0], tag)
            sc.add(base + 9, bl[1])
            sc.add(base + 12, grp[3 + 2 * (i % 2)][0], tag)
        c0 = 64 * half
        sc.add(c0 + 35, 's_add_u32 s%d, s%d, 1' % (S_P, S_P))
        adv = advance_a()
        for k, t in enumerate(adv[:4]):
            sc.add(c0 + 36 + k, t)
        for t in adv[4:]:
            sc.add(c0 + 40, t)
        sc.add(c0 + 41, 's_cmp_ge_u32 s%d, 5' % S_P)
        sc.add(c0 + 41, 's_cselect_b32 s%d, 0x%x, s%d' % (S_A2, OOB, S_A2))
        sc.add(c0 + 54, 's_cmp_eq_u32 s%d, 4' % S_P)
        sc.add(c0 + 54, 's_cselect_b32 s%d, 0x%x, s%d' % (S_D, (-4 * SLOT) & 0xffffffff, S_SLOT))
        for k, t in enumerate(advance_b()):
            sc.add(c0 + 58 + k // 2, t)
        sc.add(c0 + 60, 's_cmp_ge_u32 s%d, 6' % S_P)
        sc.add(c0 + 60, 's_cselect_b32 s%d, 0x%x, s%d' % (S_B2, OOB, S_B2))
        sc.add(c0 + 61, 's_cmp_ge_u32 s%d, 7' % S_P)
        sc.add(c0 + 61, 's_cselect_b32 s%d, 0x%x, s%d' % (S_B1, OOB, S_B1))
    sc.emit(b, 0, 128)
    b('s_cmp_lt_u32 s%d, 8' % S_P)
    b('s_cbranch_scc1 %s_loop' % name)
    b.loop_end(4)
    stamp(b, 12)
    b('v_lshlrev_b32 v%d, 4, v0' % V_T)
    for qq in range(2):
        b('s_add_u32 s%d, s%d, %d' % (S_T0, S_PB, qq * 16384))
        for v in range(4):
            o = V_AF + 4 * (qq * 4 + v)
            for jj in range(2):
                acc = V_ACC + ((2 * v + jj) * 2 + qq) * 4
                for i in range(2):
                    b('v_cvt_pk_bf16_f32 v%d, v%d, v%d' % (o + 2 * jj + i, acc + 2 * i, acc + 2 * i + 1))
            b('buffer_store_dwordx4 %s, v%d, s[%d:%d], s%d offen offset:%d sc1' % (vr(o, 4), V_T, S_WS, S_WS + 3, S_T0, v * 1024))
    flag_off(b, S_SY, F_PART, S_QT)


GA, SB, CB, XR = 192, 208, 224, 240


def mod_loads(addr):
    loads = []
    for (reg, row) in ((GA, 2), (SB, 3), (CB, 4)):
        loads.append('s_mov_b32 s45, %d' % (WS_MOD + row * 2048))
        for bb in range(4):
            loads.append('buffer_load_dwordx4 %s, v%d, s[%d:%d], s45 offen offset:%d sc1' % (vr(reg + 4 * bb, 4), addr, S_WS, S_WS + 3, 64 * bb))
    return loads


def p3b_pre(b):
    mk_srd(b, 48, P_X, 2048 * 1024)
    b('s_lshl_b32 s45, s%d, 6' % S_WAVE)
    b('v_add_u32 v32, s45, v0')
    b('v_lshrrev_b32 v32, 3, v32')
    b('v_and_b32 v33, 3, v32')
    b('v_lshrrev_b32 v34, 2, v32')
    b('v_and_b32 v35, 7, v0')
    b('v_lshlrev_b32 v35, 10, v35')
    b('v_lshl_add_u32 v35, v34, 7, v35')
    b('v_lshl_add_u32 v35, v33, 3, v35')
    b('v_lshlrev_b32 v36, 8, v34')
    b('v_lshl_add_u32 v36, v33, 4, v36')
    b('s_and_b32 s47, s2, 7')
    b('s_lshl_b32 s47, s47, 5')
    b('s_lshr_b32 s46, s2, 3')
    b('s_add_u32 s47, s47, s46')
    b('s_lshl_b32 s46, s47, 13')
    for bb in range(4):
        b('buffer_load_dwordx2 %s, v35, s[48:51], s46 offen offset:%d' % (vr(XR + 2 * bb, 2), 32 * bb))
    for t in mod_loads(36): b(t)


def p3b(b, name):
    b('s_lshl_b32 s45, s%d, 6' % S_WAVE)
    b('v_add_u32 v11, s45, v0')
    b('v_and_b32 v1, 7, v0')
    b('v_lshrrev_b32 v2, 3, v11')
    b('v_and_b32 v3, 3, v2')
    b('v_lshrrev_b32 v4, 2, v2')
    b('s_and_b32 s47, s2, 7')
    b('s_lshl_b32 s47, s47, 5')
    b('s_lshr_b32 s48, s2, 3')
    b('s_add_u32 s47, s47, s48')
    b('s_lshr_b32 s16, s47, 1')
    b('s_and_b32 s17, s47, 1')
    b('s_lshl_b32 s17, s17, 3')
    b('v_add_u32 v6, s17, v1')
    b('v_lshlrev_b32 v6, 4, v6')
    b('v_lshlrev_b32 v7, 11, v4')
    b('v_lshlrev_b32 v9, 8, v3')
    b('v_add3_u32 v7, v7, v9, v6')
    b('v_lshlrev_b32 v9, 8, v4')
    b('v_lshlrev_b32 v10, 4, v3')
    b('v_add_u32 v9, v9, v10')
    b('s_lshl_b32 s19, s16, 14')
    b('s_add_u32 s19, s19, 0x%x' % WS_PART)
    b('s_lshr_b32 s50, s47, 4')
    flag_off(b, S_SY + 3, F_PART, 50)
    yield
    P = 64
    for ks in range(4):
        if ks:
            b('s_add_u32 s19, s19, 0x200000')
        for v in range(2):
            b('buffer_load_dwordx4 %s, v7, s[%d:%d], s19 offen offset:%d sc1' % (vr(P + 8 * ks + 4 * v, 4), S_WS, S_WS + 3, v * 1024))
    yield
    check_mod(b, mod_loads(9), list(range(GA, GA + 48)), 40)
    A = 96
    for ks in range(4):
        for p in range(8):
            src = P + 8 * ks + p
            if ks == 0:
                b('v_lshlrev_b32 v%d, 16, v%d' % (A + 2 * p, src))
                b('v_and_b32 v%d, 0xffff0000, v%d' % (A + 2 * p + 1, src))
            else:
                b('v_lshlrev_b32 v%d, 16, v%d' % (A + 16 + 2 * p, src))
                b('v_and_b32 v%d, 0xffff0000, v%d' % (A + 17 + 2 * p, src))
        if ks:
            for i in range(16):
                b('v_add_f32 v%d, v%d, v%d' % (A + i, A + i, A + 16 + i))
    P = A
    X = 20
    for p in range(8):
        b('v_lshlrev_b32 v%d, 16, v%d' % (X + 2 * p, XR + p))
        b('v_and_b32 v%d, 0xffff0000, v%d' % (X + 2 * p + 1, XR + p))
    for i in range(16):
        b('v_fmac_f32 v%d, v%d, v%d' % (X + i, GA + i, P + i))
    for p in range(8):
        b('v_cvt_pk_bf16_f32 v%d, v%d, v%d' % (12 + p, X + 2 * p, X + 2 * p + 1))
    b('s_lshl_b32 s18, s16, 14')
    b('s_add_u32 s46, s18, 0x%x' % WS_X1)
    b('buffer_store_dwordx4 v[12:15], v7, s[%d:%d], s46 offen sc1' % (S_WS, S_WS + 3))
    b('buffer_store_dwordx4 v[16:19], v7, s[%d:%d], s46 offen offset:1024 sc1' % (S_WS, S_WS + 3))
    for p in range(8):
        b('v_lshlrev_b32 v%d, 16, v%d' % (X + 2 * p, 12 + p))
        b('v_and_b32 v%d, 0xffff0000, v%d' % (X + 2 * p + 1, 12 + p))
    layernorm16(b, X, 40, 1, LN_LDS)
    for i in range(16):
        b('v_fma_f32 v%d, v%d, v%d, v%d' % (X + i, X + i, CB + i, SB + i))
    for p in range(8):
        b('v_cvt_pk_bf16_f32 v%d, v%d, v%d' % (52 + p, X + 2 * p, X + 2 * p + 1))
    b('s_add_u32 s46, s18, 0x%x' % WS_H2)
    b('buffer_store_dwordx4 v[52:55], v7, s[%d:%d], s46 offen sc1' % (S_WS, S_WS + 3))
    b('buffer_store_dwordx4 v[56:59], v7, s[%d:%d], s46 offen offset:1024 sc1' % (S_WS, S_WS + 3))
    flag_off(b, S_SY, F_H2, 50)
```

```python
import sys
from mc import *
import front, p3, p45
if M16:
    import p2b as p2
else:
    import p2


def build_kernel(name):
    b = Block()
    b('s_cmp_ge_u32 s2, 256')
    b('s_cbranch_scc1 %s_end' % name)
    b('s_load_dwordx16 s[64:79], s[0:1], 0')
    b('s_load_dwordx8 s[80:87], s[0:1], 64')
    b('s_load_dwordx4 s[88:91], s[0:1], 96')
    b('v_lshrrev_b32 v1, 6, v0')
    b('v_and_b32 v0, 63, v0')
    b('s_nop 0')
    b('v_readfirstlane_b32 s%d, v1' % S_WAVE)
    b('s_waitcnt lgkmcnt(0)')
    mk_srd(b, S_WS, P_WSP, WS_BYTES)
    if STAMPS:
        b('s_lshl_b32 s96, s2, 2')
        b('s_add_u32 s96, s96, s%d' % S_WAVE)
        b('s_lshl_b32 s96, s96, 8')
        b('s_add_u32 s96, s96, 0x%x' % WS_STAMP)
    stamp(b, 0)
    if 'dbgtime' in OPT:
        mk_srd(b, 92 - 0 if False else 52, P_DBG, 256)
        raw(b, '''s_memrealtime s[98:99]
        s_waitcnt lgkmcnt(0)
        s_not_b32 s98, s98
        v_mov_b32 v251, s98
        s_mov_b64 exec, 1
        buffer_atomic_umax v251, off, s[52:55], 0 offset:16
        s_mov_b64 exec, -1''')
    if 'nocodepf' not in OPT:
        lc = uid('codepf')
        b('s_lshr_b32 s24, s2, 3')
        b('s_sub_u32 s24, s24, 28')
        b('s_cmp_ge_u32 s24, 2')
        b('s_cbranch_scc1 %s' % lc)
        raw(b, '''s_getpc_b64 s[8:9]
        s_and_b32 s8, s8, 0xffffff00
        s_mov_b32 s10, %s_end - %s + 256
        s_mov_b32 s11, 0x20000
        s_lshl_b32 s24, s24, 2
        s_add_u32 s24, s24, s%d
        s_lshl_b32 s24, s24, 13
        v_lshlrev_b32 v2, 7, v0
        buffer_load_dword v251, v2, s[8:11], s24 offen''' % (name, name, S_WAVE))
        b.label(lc)
    front.front(b, name)
    b('s_lshr_b32 s%d, s2, 5' % S_SY)
    flag_off(b, S_SY, F_H, S_SY)
    p2.setup(b)
    signal(b, S_WS, S_SY)
    stamp(b, 3)
    p2.pre(b)
    p2.flag_index(b, S_SY + 3)
    await_flag(b, S_WS, S_SY + 3, 32)
    stamp(b, 4)
    p2.main(b, name)
    p2.out_flag(b, S_SY)
    stamp(b, 9)
    g3 = p3.p3(b, name + '_p3')
    next(g3)
    signal(b, S_WS, S_SY)
    stamp(b, 23)
    p3.p3b_pre(b)
    next(g3)
    await_flag(b, S_WS, S_SY + 3, 8)
    stamp(b, 10)
    for _ in g3: pass
    g4 = p45.p4(b, name + '_p4')
    p4_first = next(g4)
    signal(b, S_WS, S_SY)
    stamp(b, 13)
    g3b = p3.p3b(b, name + '_p3b')
    next(g3b)
    hidden(b, p4_first)
    await_flag(b, S_WS, S_SY + 3, 16)
    stamp(b, 14)
    for _ in g3b: pass
    signal(b, S_WS, S_SY)
    stamp(b, 15)
    b('s_cmp_ge_u32 s26, 15')
    b('s_cbranch_scc1 %s_p4_idle' % name)
    next(g4)
    await_flag(b, S_WS, S_SY + 3, 16)
    for _ in g4: pass
    g5 = p45.p5(b, name + '_p5')
    next(g5)
    signal(b, S_WS, S_SY)
    next(g5)
    b('s_branch %s_p5_wait' % name)
    b.label(name + '_p4_idle')
    g5b = p45.p5(b, name + '_p5x')
    next(g5b)
    next(g5b)
    b.label(name + '_p5_wait')
    stamp(b, 18)
    await_flag(b, S_WS, S_SY + 3, 15)
    b('s_waitcnt vmcnt(0)')
    stamp(b, 19)
    for _ in g5: pass
    stamp(b, 22)
    if 'dbgtime' in OPT:
        mk_srd(b, 52, P_DBG, 256)
        raw(b, '''s_waitcnt vmcnt(0)
        s_memrealtime s[98:99]
        s_waitcnt lgkmcnt(0)
        v_mov_b32 v251, s98
        s_mov_b64 exec, 1
        buffer_atomic_umax v251, off, s[52:55], 0 offset:20''')
    b('s_endpgm')
    p2.fallback(b, name)
    b.label(name + '_end')
    b('s_endpgm')
    return b


def build(path, verbose=False):
    name = KNAME + '_kernel'
    head = open('cdna_kernels/' + KNAME + '.s.ref').read().split('; Override launch geometry')[0]
    b = build_kernel(name)
    log = []
    text = finalize(b, log)
    if verbose:
        print('%d lines, %d nop insertions' % (text.count('\n'), len(log)))
        for l in log:
            if 'permlane' not in l and 'lds"' not in l: print('   ', l)
    form = os.environ.get('FORM', 'single')
    if form == 'single':
        launch = '; @launch grid=(256,1,1) block=(256,1,1) lds=163840'
    else:
        launch = '; @launch kernel=%s grid=(256,1,1) block=(256,1,1) lds=163840' % name
    out = [head.rstrip(), launch, '.amdgcn_target "amdgcn-amd-amdhsa--gfx950"', '.text', kernel_header(name) + text,
           '.section .rodata,"a"', kernel_descriptor(name, 256, 256)]
    open(path, 'w').write('\n'.join(out))


if __name__ == '__main__':
    build(sys.argv[1] if len(sys.argv) > 1 else 'mega.s', verbose=True)
```

```python
import re, os

LG_AGE = int(os.environ.get('LG_AGE', '12'))

TRANS = ('v_exp_f32', 'v_log_f32', 'v_rcp_f32', 'v_rsq_f32', 'v_sqrt_f32', 'v_sin_f32', 'v_cos_f32', 'v_rcp_iflag_f32')
_reg_re = re.compile(r'^(-|abs\()?([vas])(\d+|\[(\d+):(\d+)\])\)?$')


def regs_of(tok):
    tok = tok.strip()
    if tok in ('vcc',):
        return [('s', 'vcc')]
    if tok in ('vcc_lo', 'vcc_hi'):
        return [('s', 'vcc')]
    if tok == 'exec':
        return [('s', 'exec')]
    if tok == 'm0':
        return [('s', 'm0')]
    m = _reg_re.match(tok)
    if not m:
        return []
    k = m.group(2)
    if m.group(4) is not None:
        return [(k, i) for i in range(int(m.group(4)), int(m.group(5)) + 1)]
    return [(k, int(m.group(3)))]


class Ins:
    __slots__ = ('text', 'op', 'ops', 'mods', 'r', 'w', 'cls', 'tag', 'waittag', 'vm_wait', 'lgkm_wait', 'nops',
                 'passes', 'srcc', 'srcab', 'note', 'pre', 'epoch')

    def __init__(self, text, tag=None):
        self.text = text
        self.tag = tag
        self.epoch = None
        self.waittag = None
        self.vm_wait = None
        self.lgkm_wait = None
        self.nops = 0
        self.passes = 0
        self.srcc = []
        self.srcab = []
        self.note = None
        body = text.split(';')[0].strip()
        parts = body.split(None, 1)
        self.op = parts[0]
        rest = parts[1] if len(parts) > 1 else ''
        toks = [t.strip() for t in rest.split(',')] if rest else []
        self.mods = ''
        if toks:
            last = toks[-1].split(None, 1)
            if len(last) > 1 and not last[0].startswith('hwreg') and not self.op.startswith('s_waitcnt'):
                toks[-1] = last[0]
                self.mods = last[1]
        self.ops = toks
        self.classify()

    def classify(self):
        op, ops, mods = self.op, self.ops, self.mods
        R = lambda idx: [x for i in idx for x in regs_of(ops[i])]
        n = len(ops)
        allr = R(range(n))
        self.r, self.w = [], []
        if op.startswith('v_mfma'):
            self.cls = 'mfma'
            self.w = R([0])
            self.srcab = R([1, 2])
            self.srcc = R([3])
            self.r = self.srcab + self.srcc
            self.passes = 8 if ('32x32x16' in op or '32x32x8' in op) else 4
        elif op.startswith('ds_read') or op.startswith('ds_bpermute') or op.startswith('ds_swizzle') or op.startswith('ds_permute'):
            self.cls = 'ds'
            self.w = R([0])
            self.r = R(range(1, n))
        elif op.startswith('ds_write') or op.startswith('ds_'):
            self.cls = 'ds'
            self.r = allr
        elif op.startswith('buffer_load') or op.startswith('global_load'):
            self.cls = 'vmem'
            if 'lds' in mods.split() or op.startswith('global_load_lds'):
                self.r = allr + [('s', 'm0')]
            else:
                self.w = R([0])
                self.r = R(range(1, n))
        elif op.startswith('buffer_store') or op.startswith('global_store'):
            self.cls = 'vmem'
            self.r = allr
        elif op.startswith('buffer_atomic') or op.startswith('global_atomic'):
            self.cls = 'vmem'
            self.r = allr
            if 'sc0' in mods.split():
                self.w = R([0])
        elif op.startswith('buffer_wbl2') or op.startswith('buffer_inv'):
            self.cls = 'vmem'
        elif op.startswith('s_load') or op.startswith('s_buffer_load'):
            self.cls = 'smem'
            self.w = R([0])
            self.r = R(range(1, n))
        elif op in ('s_memtime', 's_memrealtime'):
            self.cls = 'smem'
            self.w = R([0])
        elif op in ('s_waitcnt', 's_barrier', 's_nop', 's_endpgm', 's_setprio', 's_sleep', 's_branch') or op.startswith('s_cbranch'):
            self.cls = 'ctl'
        elif op.startswith('s_cmp') or op.startswith('s_bitcmp'):
            self.cls = 'salu'
            self.r = allr
        elif op.startswith('s_'):
            self.cls = 'salu'
            self.w = R([0])
            self.r = R(range(1, n))
            if 'saveexec' in op:
                self.w += [('s', 'exec')]
                self.r += [('s', 'exec')]
            if op in ('s_addk_i32', 's_mulk_i32'):
                self.r += self.w
        elif op.startswith('v_'):
            self.cls = 'valu'
            if op.startswith('v_cmp'):
                self.w = R([0])
                self.r = R(range(1, n))
            elif op.startswith('v_permlane') and 'swap' in op:
                self.w = R([0, 1])
                self.r = R([0, 1])
            elif op.startswith(('v_add_co', 'v_sub_co', 'v_addc_co', 'v_subb_co', 'v_subrev_co', 'v_div_scale')):
                self.w = R([0, 1])
                self.r = R(range(2, n))
            else:
                self.w = R([0])
                self.r = R(range(1, n))
                if op.startswith(('v_fmac', 'v_mac', 'v_pk_fmac', 'v_dot2c', 'v_writelane')):
                    self.r += self.w
                if op.startswith('v_cndmask') and n == 3:
                    self.r += [('s', 'vcc')]
            if 'dpp' in op or 'row_' in mods or 'quad_perm' in mods:
                self.r += self.w if 'bound_ctrl' not in mods else []
        else:
            raise ValueError('unknown instruction: ' + self.text)

    def is_trans(self):
        return self.op.replace('_e32', '').replace('_e64', '') in TRANS

    def is_dpp(self):
        return 'dpp' in self.op or 'row_' in self.mods or 'quad_perm' in self.mods

    def is_dma(self):
        return self.cls == 'vmem' and ('lds' in self.mods.split() or self.op.startswith('global_load_lds'))


class Label:
    def __init__(self, name):
        self.name = name


class Raw:
    def __init__(self, text):
        self.text = text


class Loop:
    def __init__(self, body, count):
        self.body = body
        self.count = count


class WaitVm:
    def __init__(self, tag, age=None):
        self.tag = tag
        self.age = age
        self.n = None


class Fence:
    pass


class Block:
    def __init__(self):
        self.items = []
        self._stack = [self.items]
        self._lab = 0

    def __call__(self, text, tag=None, epoch=None):
        out = None
        for line in text.strip().split('\n'):
            line = line.strip()
            if not line or line.startswith(';'):
                continue
            if line.endswith(':'):
                self._stack[-1].append(Label(line[:-1]))
            else:
                out = Ins(line, tag)
                out.epoch = epoch
                self._stack[-1].append(out)
        return out

    def add(self, item):
        self._stack[-1].append(item)

    def label(self, name):
        self._stack[-1].append(Label(name))

    def waitvm(self, tag, age=None):
        self._stack[-1].append(WaitVm(tag, age))

    def fence(self):
        self('s_waitcnt vmcnt(0) lgkmcnt(0)')

    def loop_begin(self):
        self._stack.append([])

    def loop_end(self, count):
        body = self._stack.pop()
        self._stack[-1].append(Loop(body, count))


def _trace_e(items, reps=4):
    out = []
    for it in items:
        if isinstance(it, Loop):
            for k in range(min(it.count, reps)):
                out.extend((x, k) for x, _ in _trace_e(it.body, reps))
        else:
            out.append((it, getattr(it, 'epoch', None)))
    return out


def _trace(items, reps=4):
    return [x for x, _ in _trace_e(items, reps)]


def _parse_wait(ins):
    vm = re.search(r'vmcnt\((\d+)\)', ins.text)
    lg = re.search(r'lgkmcnt\((\d+)\)', ins.text)
    return (int(vm.group(1)) if vm else None, int(lg.group(1)) if lg else None)


def insert_waits(items):
    changed = True
    rounds = 0
    while changed:
        changed = False
        rounds += 1
        assert rounds < 50
        vmq, lgq = [], []
        born = {}
        npos = 0
        for it, ep in _trace_e(items):
            npos += 1
            if isinstance(it, WaitVm):
                idx = None
                for i, (q, _, qe) in enumerate(vmq):
                    if q.tag == it.tag and (it.age is None or qe == ep - it.age):
                        idx = i
                need = None if idx is None else len(vmq) - 1 - idx
                if need is not None and (it.n is None or need < it.n):
                    it.n = need
                    changed = True
                if it.n is not None:
                    del vmq[:max(0, len(vmq) - it.n)]
                continue
            if not isinstance(it, Ins):
                continue
            touched = set(it.r) | (set() if it.tag == 'pf' else set(it.w))
            if it.op == 's_waitcnt':
                vm, lg = _parse_wait(it)
                if vm is not None:
                    del vmq[:max(0, len(vmq) - vm)]
                if lg is not None:
                    if lg == 0:
                        lgq.clear()
                    elif not any(q.cls == 'smem' for q, _ in lgq):
                        del lgq[:max(0, len(lgq) - lg)]
                continue
            need = None
            for i, (q, d, _) in enumerate(vmq):
                if d & touched:
                    need = len(vmq) - 1 - i
            if need is not None and (it.vm_wait is None or need < it.vm_wait):
                it.vm_wait = need
                changed = True
            if it.vm_wait is not None:
                del vmq[:max(0, len(vmq) - it.vm_wait)]
            need = None
            for i, (q, d) in enumerate(lgq):
                if d & touched:
                    need = len(lgq) - 1 - i
                    if any(x.cls == 'smem' for x, _ in lgq):
                        need = 0
            if need is not None and LG_AGE:
                while need > 0 and npos - born[len(born) - need] >= LG_AGE:
                    need -= 1
            if need is not None and (it.lgkm_wait is None or need < it.lgkm_wait):
                it.lgkm_wait = need
                changed = True
            if it.lgkm_wait is not None:
                if it.lgkm_wait == 0:
                    lgq.clear()
                else:
                    del lgq[:max(0, len(lgq) - it.lgkm_wait)]
            if it.cls == 'vmem':
                vmq.append((it, set() if it.tag == 'pf' else set(it.w), ep))
                if len(vmq) > 63:
                    del vmq[0]
            elif it.cls in ('ds', 'smem'):
                lgq.append((it, set(it.w)))
                born[len(born)] = npos
            if it.op == 's_endpgm':
                vmq.clear(); lgq.clear()


def _states(it):
    n = 0
    if isinstance(it, Ins):
        if it.op == 's_nop':
            n = int(it.ops[0]) + 1
        else:
            n = 1
        if it.vm_wait is not None or it.lgkm_wait is not None:
            n += 1
        n += it.nops
    elif isinstance(it, WaitVm):
        n = 1 if it.n is not None else 0
    return n


def required_gap(p, c):
    need = 0
    pw, pr = set(p.w), set(p.r)
    cr, cw = set(c.r), set(c.w)
    vreg = lambda s: {x for x in s if x[0] in 'va'}
    sreg = lambda s: {x for x in s if x[0] == 's'}
    if p.cls == 'mfma':
        big = p.passes == 8
        if c.cls == 'mfma':
            if pw & set(c.srcab):
                need = max(need, 12 if big else 8)
            if pw & set(c.srcc):
                if not (set(c.srcc) == pw and c.passes == p.passes):
                    need = max(need, 10 if big else 6)
            elif pw & cw:
                need = max(need, 10 if big else 6)
        elif c.cls in ('valu', 'vmem', 'ds'):
            if pw & (cr | cw):
                need = max(need, 12 if big else 8)
            if c.cls == 'valu' and set(p.srcc) & cw:
                need = max(need, 7 if big else 3)
    if p.cls == 'valu':
        if c.cls == 'mfma' and vreg(pw) & cr:
            need = max(need, 2)
        if c.cls == 'vmem' and sreg(pw) & cr:
            need = max(need, 5)
        if c.cls == 'valu' and sreg(pw) & cr:
            need = max(need, 4 if c.op.startswith(('v_readlane', 'v_writelane')) else 2)
        if c.cls in ('salu', 'smem') and sreg(pw) & cr:
            need = max(need, 3)
        if c.cls == 'valu' and vreg(pw) & cr:
            if c.op.startswith(('v_readfirstlane', 'v_readlane')):
                need = max(need, 1)
            if c.op.startswith('v_permlane') or c.is_dpp():
                need = max(need, 2)
            if p.is_trans() and not c.is_trans():
                need = max(need, 1)
        if p.is_trans() and c.cls in ('vmem', 'ds') and vreg(pw) & cr:
            need = max(need, 1)
    if p.cls == 'vmem' and ('store' in p.op or 'atomic' in p.op) and ('x4' in p.op or 'x3' in p.op):
        data = set(regs_of(p.ops[0])) if p.op.startswith('buffer') else set(regs_of(p.ops[1]))
        if data & cw:
            need = max(need, 2)
    if p.cls == 'salu' and ('s', 'm0') in pw and c.is_dma():
        need = max(need, 1)
    if p.cls == 'salu' and ('s', 'exec') in pw and c.cls == 'valu' and (c.is_dpp() or c.op.startswith('v_permlane')):
        need = max(need, 1)
    return need


def insert_nops(items, log=None):
    changed = True
    rounds = 0
    while changed:
        changed = False
        rounds += 1
        assert rounds < 50
        tr = [x for x in _trace(items) if isinstance(x, (Ins, WaitVm))]
        for i, c in enumerate(tr):
            if not isinstance(c, Ins):
                continue
            pre = c.nops + (1 if (c.vm_wait is not None or c.lgkm_wait is not None) else 0)
            dist = pre
            j = i - 1
            while j >= 0 and dist < 12:
                p = tr[j]
                if isinstance(p, Ins):
                    need = required_gap(p, c)
                    if need > dist:
                        c.nops += need - dist
                        if log is not None:
                            log.append('nop +%d before "%s" (after "%s")' % (need - dist, c.text, p.text))
                        dist = need
                        changed = True
                dist += _states(p)
                j -= 1


def _nop_text(n):
    out = []
    while n > 0:
        k = min(n, 16)
        out.append('  s_nop %d' % (k - 1))
        n -= k
    return out


def emit(items, out):
    for it in items:
        if isinstance(it, Loop):
            emit(it.body, out)
        elif isinstance(it, Label):
            out.append(it.name + ':')
        elif isinstance(it, Raw):
            out.append(it.text)
        elif isinstance(it, WaitVm):
            if it.n is not None:
                out.append('  s_waitcnt vmcnt(%d)' % it.n)
        else:
            w = []
            if it.vm_wait is not None:
                w.append('vmcnt(%d)' % it.vm_wait)
            if it.lgkm_wait is not None:
                w.append('lgkmcnt(%d)' % min(it.lgkm_wait, 15))
            out.extend(_nop_text(it.nops))
            if w:
                out.append('  s_waitcnt ' + ' '.join(w))
            out.append('  ' + it.text)


def finalize(block, log=None):
    insert_waits(block.items)
    insert_nops(block.items, log)
    out = []
    emit(block.items, out)
    return '\n'.join(out) + '\n'


def kernel_header(name):
    return '.globl %s\n.p2align 8\n.type %s,@function\n%s:\n' % (name, name, name)


def kernel_descriptor(name, vgpr, agpr=0, sgpr=102):
    acc = (vgpr + 3) // 4 * 4
    tot = acc + agpr if agpr else vgpr
    return """.p2align 6
.amdhsa_kernel %s
  .amdhsa_next_free_vgpr %d
  .amdhsa_next_free_sgpr %d
  .amdhsa_accum_offset %d
  .amdhsa_group_segment_fixed_size 0
  .amdhsa_kernarg_size 112
  .amdhsa_user_sgpr_count 2
  .amdhsa_user_sgpr_kernarg_segment_ptr 1
  .amdhsa_system_sgpr_workgroup_id_x 1
  .amdhsa_float_denorm_mode_32 3
.end_amdhsa_kernel
""" % (name, tot, sgpr, acc)
```

```python
from mc import *

MF = 'v_mfma_f32_16x16x32_bf16'

S_WQ, S_K, S_V = 8, 12, 16
S_HEAD, S_QT, S_W = 24, 25, 26
S_W8K, S_W4K, S_PFO = 28, 29, 30
S_WSRC, S_HB = 32, 33
S_T0, S_T1, S_T2 = 40, 41, 42
S_OB = 43
S_MODE = 44
S_CH = 46
S_WO, S_WG, S_WU, S_WD = 20, 48, 52, 56

V_WOFF = 2
V_KOFF = 6
V_VOFF = 10
V_H = 12
V_TA = 16
V_KA = 24
V_WA = 28
V_LANE16 = 32
V_T = 40
V_Q = 64
V_ACC = 128
V_S = 128
V_NEG = 160
V_P = 176
V_L = 192
V_ONES = 208
V_M = 212
V_R = 216
OUT_SCRATCH = (220, 232)
V_PF = 248
A_O = 0
A_KF = 128
A_VF = 192
SLOT = 32768
MAX_OFF = 24.0
L_LIMIT = 2.0 ** 80


def kv_slot(i):
    return (i + 4) % 5


def dma_kv(i):
    out = []
    base = kv_slot(i) * SLOT
    out.append(('s_add_u32 m0, s%d, %d' % (S_W4K, base), None))
    out.append(('s_add_u32 s%d, s%d, %d' % (S_CH, S_W4K, i * 16384), None))
    for ii in range(4):
        out.append(('buffer_load_dwordx4 v%d, s[%d:%d], s%d offen offset:%d lds' % (V_KOFF + ii, S_K, S_K + 3, S_CH, ii * 1024), 'C%d' % i))
    out.append(('s_add_u32 m0, s%d, %d' % (S_W4K, base + 16384), None))
    for ii in range(4):
        out.append(('buffer_load_dwordx4 v%d, s[%d:%d], s%d offen offset:%d lds' % (V_VOFF + (ii & 1), S_V, S_V + 3, S_CH, ii * 1024), 'C%d' % i))
    return out


def dma_w(p):
    out = []
    for half in range(2):
        out.append(('s_add_u32 m0, s%d, %d' % (S_W8K, p * SLOT + half * 4096), None))
        out.append(('s_add_u32 s%d, s%d, %d' % (S_T0, S_WSRC, p * 128 * 8192 + half * 4 * 32768), None))
        for ii in range(4):
            out.append(('buffer_load_dwordx4 v%d, s[%d:%d], s%d offen offset:%d lds' % (V_WOFF + ii, S_WQ, S_WQ + 3, S_T0, ii * 1024), 'W%d' % p))
    return out


def h_load(u):
    out = []
    if u % 4 == 0:
        out.append(('s_add_u32 s%d, s%d, %d' % (S_T2, S_HB, u * 1024), None))
    for qb in range(4):
        out.append(('buffer_load_dwordx4 %s, v%d, s[%d:%d], s%d offen offset:%d sc1' %
                    (ar(16 * u + 4 * qb, 4), V_H + qb, S_WS, S_WS + 3, S_T2, (u & 3) * 1024), None))
    return out


def setup(b):
    b('s_and_b32 s%d, s2, 7' % S_T0)
    b('s_lshr_b32 s%d, s2, 3' % S_T1)
    b('s_lshr_b32 s%d, s%d, 1' % (S_HEAD, S_T0))
    b('s_lshl_b32 s%d, s%d, 3' % (S_HEAD, S_HEAD))
    b('s_lshr_b32 s%d, s%d, 2' % (S_T2, S_T1))
    b('s_add_u32 s%d, s%d, s%d' % (S_HEAD, S_HEAD, S_T2))
    b('s_and_b32 s%d, s%d, 1' % (S_QT, S_T0))
    b('s_lshl_b32 s%d, s%d, 2' % (S_QT, S_QT))
    b('s_and_b32 s%d, s%d, 3' % (S_T1, S_T1))
    b('s_add_u32 s%d, s%d, s%d' % (S_QT, S_QT, S_T1))
    b('s_mov_b32 s%d, s%d' % (S_W, S_WAVE))
    T = V_T
    b('v_lshrrev_b32 v%d, 4, v0' % T)
    b('v_and_b32 v%d, 15, v0' % (T + 1))
    b('v_lshlrev_b32 v%d, 1, v%d' % (T + 2, T))
    b('v_xor_b32 v%d, v%d, v%d' % (T + 2, T + 2, T + 1))
    b('v_lshlrev_b32 v%d, 4, v%d' % (T + 2, T + 2))
    b('v_lshl_add_u32 v%d, v%d, 8, v%d' % (V_VOFF, T, T + 2))
    b('v_xor_b32 v%d, 128, v%d' % (V_VOFF + 1, V_VOFF))
    b('v_lshl_add_u32 v%d, v%d, 13, v%d' % (V_WOFF, T, T + 2))
    b('v_xor_b32 v%d, 128, v%d' % (T + 4, V_WOFF))
    b('v_add_u32 v%d, %d, v%d' % (V_WOFF + 1, 1 * (32768 - 1024), T + 4))
    b('v_add_u32 v%d, %d, v%d' % (V_WOFF + 2, 2 * (32768 - 1024), V_WOFF))
    b('v_add_u32 v%d, %d, v%d' % (V_WOFF + 3, 3 * (32768 - 1024), T + 4))
    for ii in range(4):
        b('v_add_u32 v%d, %d, v%d' % (T + 2, 4 * ii, T))
        b('v_xor_b32 v%d, v%d, v%d' % (T + 2, T + 2, T + 1))
        b('v_lshlrev_b32 v%d, 4, v%d' % (T + 2, T + 2))
        b('v_lshl_add_u32 v%d, v%d, 8, v%d' % (V_KOFF + ii, T, T + 2))
    b('v_lshlrev_b32 v%d, 4, v0' % V_LANE16)
    for qb in range(4):
        b('v_add_u32 v%d, %d, v%d' % (V_H + qb, qb * 16384, V_LANE16))
    b('v_bfe_u32 v%d, v0, 2, 2' % (T + 2))
    b('v_lshl_add_u32 v%d, v%d, 2, v%d' % (T + 3, T, T + 2))
    b('v_and_b32 v%d, 7, v%d' % (T + 4, T + 3))
    b('v_lshlrev_b32 v%d, 8, v%d' % (T + 3, T + 3))
    b('v_and_b32 v%d, 3, v0' % (T + 5))
    b('v_lshl_add_u32 v%d, v%d, 3, v%d' % (T + 3, T + 5, T + 3))
    for db in range(8):
        b('v_xor_b32 v%d, %d, v%d' % (T + 5, db, T + 4))
        b('v_lshl_add_u32 v%d, v%d, 5, v%d' % (V_TA + db, T + 5, T + 3))
    b('v_lshlrev_b32 v%d, 1, v%d' % (T + 4, T + 4))
    b('v_and_b32 v%d, 3, v0' % (T + 5))
    b('v_xor_b32 v%d, v%d, v%d' % (T + 4, T + 4, T + 5))
    b('v_bfe_u32 v%d, v0, 2, 2' % (T + 2))
    b('v_lshl_add_u32 v%d, v%d, 2, v%d' % (T + 3, T, T + 2))
    b('v_lshlrev_b32 v%d, 8, v%d' % (T + 3, T + 3))
    for u in range(4):
        b('v_xor_b32 v%d, %d, v%d' % (T + 5, 4 * u, T + 4))
        b('v_lshl_add_u32 v%d, v%d, 4, v%d' % (V_WA + u, T + 5, T + 3))
    b('v_xor_b32 v%d, v%d, v%d' % (T + 2, T, T + 1))
    b('v_lshlrev_b32 v%d, 8, v%d' % (T + 3, T + 1))
    for u in range(4):
        b('v_xor_b32 v%d, %d, v%d' % (T + 4, 4 * u, T + 2))
        b('v_lshl_add_u32 v%d, v%d, 4, v%d' % (V_KA + u, T + 4, T + 3))
    b('s_lshl_b32 s%d, s%d, 13' % (S_W8K, S_W))
    b('s_lshl_b32 s%d, s%d, 12' % (S_W4K, S_W))
    b('s_lshl_b32 s%d, s%d, 8' % (S_T0, S_HEAD))
    mk_srd(b, S_WQ, P_WQ, None, S_T0)
    b('s_sub_u32 s%d, %d, s%d' % (S_WQ + 2, 512 * 8192, S_T0))
    b('s_lshl_b32 s%d, s%d, 19' % (S_T0, S_HEAD))
    b('s_add_u32 s%d, s%d, %d' % (S_T0, S_T0, 1536 * 256))
    mk_srd(b, S_K, P_K, 512 * 256, S_T0)
    mk_srd(b, S_V, P_V, 512 * 256, S_T0)
    b('s_lshl_b32 s%d, s%d, 18' % (S_WSRC, S_W))
    b('s_lshl_b32 s%d, s%d, 4' % (S_T0, S_QT))
    b('s_lshl_b32 s%d, s%d, 2' % (S_T1, S_W))
    b('s_add_u32 s%d, s%d, s%d' % (S_T0, S_T0, S_T1))
    b('s_lshl_b32 s%d, s%d, 14' % (S_HB, S_T0))
    b('s_add_u32 s%d, s%d, 0x%x' % (S_HB, S_HB, WS_H))
    b('s_lshl_b32 s%d, s%d, 17' % (S_OB, S_T0))
    b('s_lshl_b32 s%d, s%d, 12' % (S_T1, S_HEAD))
    b('s_add_u32 s%d, s%d, s%d' % (S_OB, S_OB, S_T1))
    b('s_add_u32 s%d, s%d, 0x%x' % (S_OB, S_OB, WS_O))
    b('s_mov_b32 s%d, 0' % S_MODE)
    mk_srd(b, S_WO, P_WO, 4096 * 1024); mk_srd(b, S_WG, P_WG, 512 * 2752); mk_srd(b, S_WU, P_WU, 512 * 2752); mk_srd(b, S_WD, P_WD, 1376 * 1024)
    b('s_bfe_u32 s%d, s2, 0x20001' % S_PFO)
    b('s_lshl_b32 s%d, s%d, 20' % (S_PFO, S_PFO))
    b('s_lshr_b32 s%d, s2, 3' % S_T1)
    b('s_lshl_b32 s%d, s%d, 15' % (S_T1, S_T1))
    b('s_add_u32 s%d, s%d, s%d' % (S_PFO, S_PFO, S_T1))
    b('s_add_u32 s%d, s%d, s%d' % (S_PFO, S_PFO, S_W8K))


def qproj(b):
    AHEAD = int(os.environ.get('HA16', '4'))
    for u in range(AHEAD):
        for t, g in h_load(u): b(t, g)
    b.waitvm('W0')
    b('s_barrier')
    stamp(b, 5)

    def a_reads(s):
        buf = V_Q + 32 * (s & 1)
        p = s // 4
        return ['ds_read_b64_tr_b16 %s, v%d offset:%d' % (vr(buf + 4 * db + 2 * kk, 2), V_WA + db // 2, (p & 1) * SLOT + (s & 3) * 8192 + kk * 4096 + 8 * (db & 1))
                for db in range(8) for kk in range(2)]
    for t in a_reads(0): b(t)
    stream = []
    streams = ((0, 2, dma_w(2)), (2, 2, dma_kv(0)), (4, 4, dma_w(3)), (8, 4, dma_kv(1)), (12, 4, dma_kv(2)))
    if 'w3pre' in OPT:
        streams = ((0, 4, dma_w(3)), (4, 4, dma_kv(0)), (8, 4, dma_kv(1)), (12, 4, dma_kv(2)))
    for first, span, ops in streams:
        for k, x in enumerate(ops):
            stream.append((first + (k * span) // len(ops), x))
    sc = Sched()
    for s in range(16):
        base = 32 * s
        for db in range(8):
            for qb in range(4):
                d = vr(V_ACC + (db * 4 + qb) * 4, 4)
                sc.mfma(base + 4 * db + qb, '%s %s, %s, %s, %s' % (MF, d, vr(V_Q + 32 * (s & 1) + 4 * db, 4), ar(16 * s + 4 * qb, 4), '0' if s == 0 else d))
        if s + 1 < 16:
            first = 0
            if (s + 1) % 4 == 0:
                p = (s + 1) // 4
                sc.add(base, lambda bb, p=p: (bb.waitvm('W%d' % p), bb('s_barrier')))
                if p == 2:
                    for u in range(4):
                        sc.add(base + u // 2, 'v_add_u32 v%d, 0x10000, v%d' % (V_WA + u, V_WA + u))
                    first = 2
            for k, t in enumerate(a_reads(s + 1)):
                sc.add(base + max(first, 2 * k) if k < 4 else base + 2 * k, t)
        if s + AHEAD < 16:
            for k, (t, g) in enumerate(h_load(s + AHEAD)):
                sc.add(base + 1 + 6 * k, t, g)
        k = 0
        for (st, (t, g)) in stream:
            if st == s:
                sc.add(base + 3 + 4 * k, t, g)
                k += 1
    sc.emit(b, 0, 512)
    for qb in range(4):
        for u in range(4):
            for jj in range(2):
                acc = V_ACC + ((2 * u + jj) * 4 + qb) * 4
                for i in range(2):
                    b('v_cvt_pk_bf16_f32 v%d, v%d, v%d' % (V_Q + (qb * 4 + u) * 4 + 2 * jj + i, acc + 2 * i, acc + 2 * i + 1))


def k_reads(blk, buf):
    return ['ds_read_b128 %s, v%d offset:%d' % (ar(A_KF + 32 * buf + (kb * 4 + u) * 4, 4), V_KA + u, (blk & 1) * 8192 + kb * 4096)
            for kb in range(2) for u in range(4)]


def v_reads(blk, buf):
    return ['ds_read_b64_tr_b16 %s, v%d offset:%d' % (ar(A_VF + 32 * buf + 4 * db + 2 * jj, 2), V_TA + db, (blk & 1) * 8192 + jj * 4096)
            for db in range(8) for jj in range(2)]


def qk(qb, kb, u, buf, first_c):
    s = vr(V_S + (qb * 2 + kb) * 4, 4)
    return '%s %s, %s, %s, %s' % (MF, s, ar(A_KF + 32 * buf + (kb * 4 + u) * 4, 4), vr(V_Q + (qb * 4 + u) * 4, 4), s if u else first_c)


def pv(qb, db, buf, first):
    o = ar(A_O + (db * 4 + qb) * 4, 4)
    return '%s %s, %s, %s, %s' % (MF, o, ar(A_VF + 32 * buf + 4 * db, 4), vr(V_P + 4 * qb, 4), '0' if first else o)


def lsum(qb, first):
    l = vr(V_L + 4 * qb, 4)
    return '%s %s, %s, %s, %s' % (MF, l, vr(V_ONES, 4), vr(V_P + 4 * qb, 4), '0' if first else l)


def exps(qb):
    return ['v_exp_f32 v%d, v%d' % (V_S + 8 * qb + e, V_S + 8 * qb + e) for e in range(8)]


def cvts(qb):
    return ['v_cvt_pk_bf16_f32 v%d, v%d, v%d' % (V_P + 4 * qb + k, V_S + 8 * qb + 2 * k, V_S + 8 * qb + 2 * k + 1) for k in range(4)]


def lanes_16_32(b, x, tmp, op):
    for sw in ('v_permlane16_swap_b32', 'v_permlane32_swap_b32'):
        b('v_mov_b32 v%d, v%d' % (tmp, x))
        b('%s v%d, v%d' % (sw, x, tmp))
        b('%s v%d, v%d, v%d' % (op, x, x, tmp))


def prefetches():
    DUMMY = 250
    pre = ['v_lshlrev_b32 v%d, 7, v0' % V_PF, 'v_min_u32 v%d, 10, v0' % (V_PF + 1),
           's_lshl_b32 s%d, s2, 2' % S_T1, 's_add_u32 s%d, s%d, s%d' % (S_T1, S_T1, S_W), 's_mul_i32 s%d, s%d, 11' % (S_T1, S_T1),
           'v_add_u32 v%d, s%d, v%d' % (V_PF + 1, S_T1, V_PF + 1), 'v_lshlrev_b32 v%d, 7, v%d' % (V_PF + 1, V_PF + 1)]
    loads = ['buffer_load_dword v%d, v%d, s[%d:%d], s%d offen' % (DUMMY, V_PF, S_WO, S_WO + 3, S_PFO)]
    for srd_ in (S_WG, S_WU, S_WD):
        loads.append('buffer_load_dword v%d, v%d, s[%d:%d], 0 offen' % (DUMMY, V_PF + 1, srd_, srd_ + 3))
    return pre, loads


def out_group(qb, db32):
    t0 = OUT_SCRATCH[db32 & 1]
    ops = []
    for jj in range(2):
        o = A_O + ((2 * db32 + jj) * 4 + qb) * 4
        ops += ['v_accvgpr_read_b32 v%d, a%d' % (t0 + 4 * jj + k, o + k) for k in range(4)]
    ops += ['v_mul_f32 v%d, v%d, v%d' % (t0 + k, t0 + k, V_R + qb) for k in range(8)]
    ops += ['v_cvt_pk_bf16_f32 v%d, v%d, v%d' % (t0 + 8 + k, t0 + 2 * k, t0 + 2 * k + 1) for k in range(4)]
    soff = ['s_add_u32 s%d, s%d, %d' % (S_T2, S_OB, qb * 131072)] if db32 == 0 else []
    st = 'buffer_store_dwordx4 %s, v%d, s[%d:%d], s%d offen offset:%d sc1' % (vr(t0 + 8, 4), V_LANE16, S_WS, S_WS + 3, S_T2, db32 * 1024)
    return ops, soff, st


def attention(b, name):
    b.label(name + '_attn')
    for k in range(4):
        b('v_add_u32 v%d, %d, v%d' % (V_KA + k, kv_slot(0) * SLOT, V_KA + k))
    for k in range(8):
        b('v_add_u32 v%d, %d, v%d' % (V_TA + k, kv_slot(0) * SLOT + 16384, V_TA + k))
    for k in range(4):
        b('v_mov_b32 v%d, 0x3f803f80' % (V_ONES + k))
    b.waitvm('C0')
    b('s_barrier')
    for t in k_reads(0, 0): b(t)
    l = uid('kv12')
    b('s_cmp_eq_u32 s%d, 0' % S_MODE)
    b('s_cbranch_scc1 %s' % l)
    for i in (1, 2):
        for t, g in dma_kv(i):
            raw(b, t)
            if ' m0,' in t: raw(b, 's_nop 0')
    raw(b, 's_waitcnt vmcnt(0)')
    b.label(l)
    for t in k_reads(1, 1): b(t)
    for qb in range(4):
        for kb in range(2):
            for u in range(4):
                b(qk(qb, kb, u, 0, '0'))
        if qb < 2:
            for t in v_reads(0, 0)[8 * qb:8 * qb + 8]: b(t)
    for k in range(4):
        b('v_add_u32 v%d, 0x%x, v%d' % (V_KA + k, ((kv_slot(1) - kv_slot(0)) * SLOT) & 0xffffffff, V_KA + k))
    b('s_cmp_lg_u32 s%d, 0' % S_MODE)
    b('s_cbranch_scc1 %s_havemax' % name)
    for qb in range(4):
        S, M = V_S + 8 * qb, V_M + qb
        b('v_max3_f32 v%d, v%d, v%d, v%d' % (M, S, S + 1, S + 2))
        b('v_max3_f32 v%d, v%d, v%d, v%d' % (M, M, S + 3, S + 4))
        b('v_max3_f32 v%d, v%d, v%d, v%d' % (M, M, S + 5, S + 6))
        b('v_max_f32 v%d, v%d, v%d' % (M, M, S + 7))
    for qb in range(4):
        lanes_16_32(b, V_M + qb, V_T + qb, 'v_max_f32')
        b('v_add_f32 v%d, %s, v%d' % (V_M + qb, f32(MAX_OFF), V_M + qb))
    b.label(name + '_havemax')
    b('s_nop 7')
    for qb in range(4):
        for i in range(4):
            b('v_sub_f32 v%d, 0, v%d' % (V_NEG + 4 * qb + i, V_M + qb))
        for i in range(8):
            b('v_sub_f32 v%d, v%d, v%d' % (V_S + 8 * qb + i, V_S + 8 * qb + i, V_M + qb))
    for qb in range(3):
        for t in exps(qb): b(t)
        for t in cvts(qb): b(t)
    stamp(b, 7)

    NB = 16
    S_C, S_D, S_LREQ, S_SRC, S_SLOT = 34, 35, 36, 37, 38

    def dma_dyn():
        out = [('s_mov_b32 m0, s%d' % S_LREQ, None), ('s_nop 0', None)]
        for ii in range(4):
            out.append(('buffer_load_dwordx4 v%d, s[%d:%d], s%d offen offset:%d lds' % (V_KOFF + ii, S_K, S_K + 3, S_SRC, ii * 1024), None))
        out.append(('s_add_u32 m0, s%d, 16384' % S_LREQ, None))
        for ii in range(4):
            out.append(('buffer_load_dwordx4 v%d, s[%d:%d], s%d offen offset:%d lds' % (V_VOFF + (ii & 1), S_V, S_V + 3, S_SRC, ii * 1024), None))
        return out

    def block(sc, pos, j, loop):
        last = j == NB - 1
        G = 9 if last else 17
        if j > 0:
            sc.add(pos, cvts(2)[3])
        for qb in range(4):
            g0 = pos + G * qb
            for db in range(8):
                sc.mfma(g0 + db, pv(qb, db, j & 1, j == 0))
            sc.mfma(g0 + 8, lsum(qb, j == 0))
            if not last:
                k = 0
                for kb in range(2):
                    for u in range(4):
                        sc.mfma(g0 + 9 + k, qk(qb, kb, u, (j + 1) & 1, vr(V_NEG + 4 * qb, 4)))
                        k += 1
            sq = (qb - 1) % 4
            if not (last and qb > 0):
                e, c = exps(sq), cvts(sq)
                for i in range(8):
                    sc.add(g0 + 2 + 2 * i, e[i])
                for i in range(4):
                    if not (qb == 3 and i == 3):
                        sc.add(g0 + 5 + 4 * i, c[i])
        if j + 1 < NB:
            for k, t in enumerate(v_reads(j + 1, (j + 1) & 1)):
                sc.add(pos + G * (k // 8) + 1 + 2 * (k % 8), t)
        if j + 2 < NB:
            for k, t in enumerate(k_reads(j + 2, j & 1)):
                sc.add(pos + G * (2 + k // 4) + 1 + 4 * (k % 4), t)
        c = j // 2
        free = [G * g + o for g in range(4) for o in (0, 1, 3, 7, 11, 15)]
        lo, hi = [f for f in free if f < 2 * G], [f for f in free if f >= 2 * G]
        step = ('s%d' % S_D) if loop else '0x%x' % (((kv_slot(c + 1) - kv_slot(c)) * SLOT) & 0xffffffff)
        if j % 2 == 0 and j + 2 < NB:
            if loop:
                sc.add(pos, lambda bb: (bb('s_waitcnt vmcnt(16)'), bb('s_barrier')))
            else:
                sc.add(pos, lambda bb, c=c: (bb.waitvm('C%d' % (c + 1)), bb('s_barrier')))
            if c >= 1:
                for k in range(4):
                    sc.add(pos + lo[1 + 2 * k], 'v_add_u32 v%d, %s, v%d' % (V_KA + k, step, V_KA + k))
        if j % 2 == 0 and c + 1 < 8:
            for k in range(8):
                sc.add(pos + hi[1 + k], 'v_add_u32 v%d, %s, v%d' % (V_TA + k, step, V_TA + k))
        if j == 0:
            for k, (t, g) in enumerate(dma_kv(3)):
                sc.add(pos + free[(2, 4, 5, 6, 8, 10, 12, 14, 16, 18, 20)[k]], t, g)
        elif j % 2 == 1 and not last and (loop or c + 4 < 8):
            for k, (t, g) in enumerate(dma_dyn() if loop else dma_kv(c + 4)):
                sc.add(pos + free[2 * k + 1], t, g)
        return 4 * G

    sc = Sched()
    pos = block(sc, 0, 0, False)
    pos += block(sc, pos, 1, False)
    sc.emit(b, 0, pos, valu_last=True)
    if 'lst' in OPT: stamp(b, 24)
    b('s_mov_b32 s%d, 1' % S_C)
    b('s_mov_b32 s%d, %d' % (S_SLOT, SLOT))
    b('s_mov_b32 s%d, %d' % (S_D, SLOT))
    b('s_add_u32 s%d, s%d, %d' % (S_LREQ, S_W4K, kv_slot(5) * SLOT))
    b('s_add_u32 s%d, s%d, %d' % (S_SRC, S_W4K, 5 * 16384))
    b.loop_begin()
    b.label(name + '_kv_loop')
    sc = Sched()
    pos = block(sc, 0, 2, True)
    pos += block(sc, pos, 3, True)
    upd = ['s_add_u32 s%d, s%d, 1' % (S_C, S_C), 's_add_u32 s%d, s%d, 16384' % (S_SRC, S_SRC),
           's_add_u32 s%d, s%d, %d' % (S_LREQ, S_LREQ, SLOT)]
    for k, t in enumerate(upd):
        sc.add(pos - 6 + k, t)
    sc.add(pos - 3, 's_cmp_ge_u32 s%d, %d' % (S_LREQ, 5 * SLOT))
    sc.add(pos - 3, 's_cselect_b32 s%d, s%d, s%d' % (S_LREQ, S_W4K, S_LREQ))
    sc.add(pos - 2, 's_cmp_eq_u32 s%d, 5' % S_C)
    sc.add(pos - 2, 's_cselect_b32 s%d, 0x%x, s%d' % (S_D, (-4 * SLOT) & 0xffffffff, S_SLOT))
    sc.emit(b, 0, pos, valu_last=True)
    pre, loads = prefetches()
    lp = uid('nopf')
    raw(b, 's_cmp_lg_u32 s%d, 5\ns_cbranch_scc1 %s' % (S_C, lp))
    for t in pre + loads: raw(b, t)
    raw(b, lp + ':')
    b('s_cmp_lt_u32 s%d, 7' % S_C)
    b('s_cbranch_scc1 %s_kv_loop' % name)
    b.loop_end(6)
    if 'lst' in OPT: stamp(b, 25)
    sc = Sched()
    pos = block(sc, 0, 14, False)
    lb = pos
    pos += block(sc, pos, 15, False)
    for qb in range(3):
        s0 = lb + 9 * (qb + 1) + 2
        sc.add(s0, 'v_rcp_f32 v%d, v%d' % (V_R + qb, V_L + 4 * qb))
        for db32 in range(4):
            ops, soff, st = out_group(qb, db32)
            for t in soff: sc.add(s0, t)
            for t in ops: sc.add(s0 + 1 + 2 * db32 if db32 < 3 else s0 + 6, t)
            sc.add(s0 + 2 + 2 * db32 if db32 < 3 else s0 + 7, st)
    sc.emit(b, 0, pos + 8, valu_last=True)
    stamp(b, 8)


def epilogue(b, name):
    T = V_T
    b('s_cmp_lg_u32 s%d, 0' % S_MODE)
    b('s_cbranch_scc1 %s_noguard' % name)
    b('v_add_f32 v%d, v%d, v%d' % (T + 1, V_L, V_L + 4))
    b('v_add_f32 v%d, v%d, v%d' % (T + 2, V_L + 8, V_L + 12))
    b('v_add_f32 v%d, v%d, v%d' % (T + 1, T + 1, T + 2))
    b('v_mov_b32 v%d, %s' % (T + 2, f32(L_LIMIT)))
    b('v_cmp_nle_f32 vcc, v%d, v%d' % (T + 1, T + 2))
    b('s_cmp_lg_u64 vcc, 0')
    b('s_cselect_b32 s%d, 1, 0' % S_T0)
    b('v_mov_b32 v%d, s%d' % (T + 3, S_T0))
    b('s_lshl_b32 s%d, s%d, 2' % (S_T1, S_W))
    b('s_add_u32 s%d, s%d, %d' % (S_T1, S_T1, 2 * SLOT))
    b('v_mov_b32 v%d, s%d' % (T + 4, S_T1))
    b('ds_write_b32 v%d, v%d' % (T + 4, T + 3))
    b('s_waitcnt lgkmcnt(0)')
    b('s_barrier')
    b('v_mov_b32 v%d, %d' % (T + 4, 2 * SLOT))
    b('ds_read_b128 %s, v%d' % (vr(T + 8, 4), T + 4))
    b('v_or_b32 v%d, v%d, v%d' % (T + 8, T + 8, T + 9))
    b('v_or_b32 v%d, v%d, v%d' % (T + 10, T + 10, T + 11))
    b('v_or_b32 v%d, v%d, v%d' % (T + 8, T + 8, T + 10))
    b('v_readfirstlane_b32 s%d, v%d' % (S_T0, T + 8))
    b('s_cmp_lg_u32 s%d, 0' % S_T0)
    b('s_cbranch_scc1 %s_fallback' % name)
    b.label(name + '_noguard')
    b('s_barrier')
    b('v_rcp_f32 v%d, v%d' % (V_R + 3, V_L + 12))
    for db32 in range(4):
        ops, soff, st = out_group(3, db32)
        for t in soff + ops: b(t)
        b(st)


def fallback(b, name):
    b.label(name + '_fallback')
    b('s_waitcnt vmcnt(0) lgkmcnt(0)')
    b('s_barrier')
    for k in range(4):
        b('v_add_u32 v%d, 0x%x, v%d' % (V_KA + k, (-kv_slot(7) * SLOT) & 0xffffffff, V_KA + k))
    for k in range(8):
        b('v_add_u32 v%d, 0x%x, v%d' % (V_TA + k, (-kv_slot(7) * SLOT - 16384) & 0xffffffff, V_TA + k))
    for qb in range(4):
        b('v_mov_b32 v%d, 0xff800000' % (V_M + qb))
    b('s_mov_b32 s%d, 0' % S_T2)
    b.label(name + '_fb_loop')
    b('s_lshl_b32 s%d, s%d, 14' % (S_CH, S_T2))
    b('s_add_u32 s%d, s%d, s%d' % (S_CH, S_CH, S_W4K))
    b('s_mov_b32 m0, s%d' % S_W4K)
    for ii in range(4):
        b('buffer_load_dwordx4 v%d, s[%d:%d], s%d offen offset:%d lds' % (V_KOFF + ii, S_K, S_K + 3, S_CH, ii * 1024))
    b('s_waitcnt vmcnt(0)')
    b('s_barrier')
    for blk in range(2):
        for t in k_reads(blk, 0): b(t)
        for qb in range(4):
            for kb in range(2):
                for u in range(4):
                    b(qk(qb, kb, u, 0, '0'))
        for qb in range(4):
            for i in range(0, 8, 2):
                b('v_max3_f32 v%d, v%d, v%d, v%d' % (V_M + qb, V_M + qb, V_S + 8 * qb + i, V_S + 8 * qb + i + 1))
    b('s_waitcnt lgkmcnt(0)')
    b('s_barrier')
    b('s_add_u32 s%d, s%d, 1' % (S_T2, S_T2))
    b('s_cmp_lt_u32 s%d, 8' % S_T2)
    b('s_cbranch_scc1 %s_fb_loop' % name)
    for qb in range(4):
        lanes_16_32(b, V_M + qb, V_T + qb, 'v_max_f32')
    b('s_mov_b32 s%d, 1' % S_MODE)
    for t, g in dma_kv(0): b(t)
    b('s_waitcnt vmcnt(0)')
    b('s_branch %s_attn' % name)


def pre(b):
    for p in range(3 if 'w3pre' in OPT else 2):
        for t, g in dma_w(p): b(t, g)


def flag_index(b, dst):
    flag_off(b, dst, F_H, S_QT)


def main(b, name):
    qproj(b)
    stamp(b, 6)
    attention(b, name)
    epilogue(b, name)


def out_flag(b, dst):
    b('s_lshl_b32 s%d, s%d, 2' % (dst, S_QT))
    b('s_lshr_b32 s%d, s%d, 3' % (S_T0, S_HEAD))
    b('s_add_u32 s%d, s%d, s%d' % (dst, dst, S_T0))
    flag_off(b, dst, F_O, dst)
```

```python
from mc import *
from front import LN_LDS

MF = 'v_mfma_f32_16x16x32_bf16'


def p3(b, name):
    S_WO = 8
    S_W, S_KS, S_QT, S_NT, S_ROT, S_W8K = 16, 17, 18, 19, 20, 21
    S_AB, S_BB, S_T0, S_T1, S_T2, S_PB = 22, 23, 24, 25, 26, 27
    S_P, S_G1, S_G2, S_A2, S_L2, S_D, S_G3, S_SLOT = 28, 29, 30, 31, 32, 33, 34, 36
    S_BQ = (12, 40)
    V_WOFF, V_B, V_A, V_T = 2, 10, 12, 20
    V_AF = 32
    V_ACC = 128
    SLOT = 32768
    OOB = 0x10000000
    b('s_and_b32 s%d, s2, 7' % S_T0)
    b('s_lshr_b32 s%d, s2, 3' % S_T1)
    b('s_lshr_b32 s%d, s%d, 1' % (S_KS, S_T0))
    b('s_mov_b32 s%d, s%d' % (S_W, S_WAVE))
    b('s_and_b32 s%d, s%d, 1' % (S_T0, S_T0))
    b('s_lshl_b32 s%d, s%d, 3' % (S_T0, S_T0))
    b('s_lshr_b32 s%d, s%d, 2' % (S_QT, S_T1))
    b('s_and_b32 s%d, s%d, 3' % (S_NT, S_T1))
    b('s_add_u32 s%d, s%d, s%d' % (S_QT, S_QT, S_T0))
    T = V_T
    b('v_lshrrev_b32 v%d, 4, v0' % T)
    b('v_and_b32 v%d, 15, v0' % (T + 1))
    b('v_lshlrev_b32 v%d, 1, v%d' % (T + 2, T))
    b('v_xor_b32 v%d, v%d, v%d' % (T + 2, T + 2, T + 1))
    b('v_lshlrev_b32 v%d, 4, v%d' % (T + 2, T + 2))
    b('v_lshl_add_u32 v%d, v%d, 10, v%d' % (V_WOFF, T, T + 2))
    if M16:
        b('v_xor_b32 v%d, 128, v%d' % (T + 3, V_WOFF))
        for ii in range(1, 8):
            b('v_add_u32 v%d, %d, v%d' % (V_WOFF + ii, (ii & 3) * 3072 + (ii >> 2) * 16384, T + 3 if ii & 1 else V_WOFF))
    else:
        b('v_xor_b32 v%d, 128, v%d' % (V_WOFF + 4, V_WOFF))
        b('v_add_u32 v%d, 16384, v%d' % (V_WOFF + 4, V_WOFF + 4))
        for ii in range(1, 4):
            b('v_add_u32 v%d, %d, v%d' % (V_WOFF + ii, ii * 3072, V_WOFF))
            b('v_add_u32 v%d, %d, v%d' % (V_WOFF + 4 + ii, ii * 3072, V_WOFF + 4))
    b('v_lshlrev_b32 v%d, 4, v0' % V_B)
    b('s_lshl_b32 s%d, s%d, 13' % (S_W8K, S_W))
    b('s_lshl_b32 s%d, s%d, 20' % (S_T0, S_KS))
    mk_srd(b, S_WO, P_WO, 0x100000, S_T0)
    b('s_lshl_b32 s%d, s%d, 15' % (S_A2, S_W))
    b('s_lshl_b32 s%d, s%d, 8' % (S_T0, S_NT))
    b('s_add_u32 s%d, s%d, s%d' % (S_A2, S_A2, S_T0))
    b('s_lshl_b32 s%d, s%d, 3' % (S_T0, S_QT))
    b('s_lshl_b32 s%d, s%d, 1' % (S_T1, S_W))
    b('s_add_u32 s%d, s%d, s%d' % (S_T0, S_T0, S_T1))
    b('s_lshl_b32 s%d, s%d, 17' % (S_BB, S_T0))
    b('s_lshl_b32 s%d, s%d, 15' % (S_T1, S_KS))
    b('s_add_u32 s%d, s%d, s%d' % (S_BB, S_BB, S_T1))
    b('s_add_u32 s%d, s%d, 0x%x' % (S_BB, S_BB, WS_O))
    mk_srd(b, S_BQ[0], P_WSP, 32768, S_BB)
    b('s_add_u32 s%d, s%d, 131072' % (S_BB, S_BB))
    mk_srd(b, S_BQ[1], P_WSP, 32768, S_BB)
    b('s_mov_b32 s%d, s%d' % (S_L2, S_W8K))

    def dma_w(tag):
        out = []
        for half in range(2):
            grp = [('s_add_u32 m0, s%d, %d' % (S_L2, half * 4096), None)]
            for ii in range(4):
                grp.append(('buffer_load_dwordx4 v%d, s[%d:%d], s%d offen offset:%d lds' %
                            (V_WOFF + 4 * half + ii, S_WO, S_WO + 3, S_A2, ii * 1024), tag))
            out.append(grp)
        return out

    def b_load(ring, sreg, step):
        return ['buffer_load_dwordx4 %s, v%d, s[%d:%d], %s offen offset:%d sc1' %
                (ar(8 * ring + 4 * qq, 4), V_B, S_BQ[qq], S_BQ[qq] + 3, sreg, step * 1024) for qq in range(2)]

    def a_reads(buf, step):
        return ['ds_read_b64_tr_b16 %s, v%d offset:%d' % (vr(V_AF + 32 * buf + 4 * nb + 2 * jj, 2), V_A + nb, step * 8192 + jj * (4096 if M16 else 2048))
                for nb in range(8) for jj in range(2)]

    def advance_a():
        return ['s_add_u32 s%d, s%d, 0x20000' % (S_A2, S_A2),
                's_add_u32 s%d, s%d, %d' % (S_L2, S_L2, SLOT), 's_cmp_ge_u32 s%d, %d' % (S_L2, 5 * SLOT),
                's_cselect_b32 s%d, s%d, s%d' % (S_L2, S_W8K, S_L2)]

    if M16:
        b('v_bfe_u32 v%d, v0, 2, 2' % T)
        b('v_lshrrev_b32 v%d, 4, v0' % (T + 1))
        b('v_lshl_add_u32 v%d, v%d, 2, v%d' % (T + 3, T + 1, T))
        b('v_and_b32 v%d, 7, v%d' % (T + 1, T + 3))
        b('v_lshlrev_b32 v%d, 8, v%d' % (T + 3, T + 3))
        b('v_and_b32 v%d, 3, v0' % (T + 4))
        b('v_lshl_add_u32 v%d, v%d, 3, v%d' % (T + 3, T + 4, T + 3))
    else:
        b('v_bfe_u32 v%d, v0, 2, 2' % T)
        b('v_bfe_u32 v%d, v0, 4, 1' % (T + 1))
        b('v_lshrrev_b32 v%d, 5, v0' % (T + 2))
        b('v_lshlrev_b32 v%d, 4, v%d' % (T + 3, T + 1))
        b('v_lshlrev_b32 v%d, 2, v%d' % (T + 4, T + 2))
        b('v_add3_u32 v%d, v%d, v%d, v%d' % (T + 3, T + 3, T + 4, T))
        b('v_lshlrev_b32 v%d, 8, v%d' % (T + 3, T + 3))
        b('v_and_b32 v%d, 3, v0' % (T + 4))
        b('v_lshl_add_u32 v%d, v%d, 3, v%d' % (T + 3, T + 4, T + 3))
        b('v_lshlrev_b32 v%d, 2, v%d' % (T + 1, T + 1))
        b('v_or_b32 v%d, v%d, v%d' % (T + 1, T + 1, T))
    for nb in range(8):
        b('v_xor_b32 v%d, %d, v%d' % (T + 4, nb, T + 1))
        b('v_lshl_add_u32 v%d, v%d, 5, v%d' % (V_A + nb, T + 4, T + 3))
    for i in range(64):
        b('v_mov_b32 v%d, 0' % (V_ACC + i))
    b('s_lshl_b32 s%d, s%d, 7' % (S_PB, S_KS))
    b('s_add_u32 s%d, s%d, s%d' % (S_PB, S_PB, S_T0))
    b('s_lshl_b32 s%d, s%d, 14' % (S_PB, S_PB))
    b('s_lshl_b32 s%d, s%d, 12' % (S_T1, S_NT))
    b('s_add_u32 s%d, s%d, s%d' % (S_PB, S_PB, S_T1))
    b('s_add_u32 s%d, s%d, 0x%x' % (S_PB, S_PB, WS_PART))
    b('s_mov_b32 s%d, 0' % S_P)
    b('s_mov_b32 s%d, %d' % (S_D, SLOT))
    b('s_mov_b32 s%d, %d' % (S_SLOT, SLOT))
    b('s_lshr_b32 s%d, s%d, 1' % (S_T1, S_QT))
    b('s_lshl_b32 s%d, s%d, 2' % (S_T1, S_T1))
    b('s_add_u32 s%d, s%d, s%d' % (S_T1, S_T1, S_KS))
    flag_off(b, S_SY + 3, F_O, S_T1)
    yield
    for tag, ep in (('W0', None), ('WA', -1), ('WB', -1)):
        for grp in dma_w(tag):
            for t, g in grp: b(t, g, epoch=ep)
        for t in advance_a(): b(t)
    yield
    b('s_mov_b32 s%d, 4096' % S_G1)
    b('s_mov_b32 s%d, 8192' % S_G2)
    b('s_mov_b32 s%d, 12288' % S_G3)
    for st in range(7):
        for t in b_load(st, '0' if st < 4 else 's%d' % S_G1, st & 3): b(t)
    b.waitvm('W0')
    b('s_barrier')
    stamp(b, 11)
    for t in a_reads(0, 0): b(t)

    b.loop_begin()
    b.label(name + '_loop')
    sc = Sched()
    for half in range(2):
        tag = 'WA' if half == 0 else 'WB'
        d = dma_w(tag)
        for i in range(4):
            st = 4 * half + i
            base = 16 * st
            for nb in range(8):
                for qq in range(2):
                    dd = vr(V_ACC + (nb * 2 + qq) * 4, 4)
                    sc.mfma(base + 2 * nb + qq, '%s %s, %s, %s, %s' % (MF, dd, vr(V_AF + 32 * (i & 1) + 4 * nb, 4), ar(8 * st + 4 * qq, 4), dd))
            if i == 3:
                sc.add(base, lambda bb, tag=tag: (bb.waitvm(tag, 1), bb('s_barrier')))
                dstep = ('s%d' % S_D) if half == 0 else '0x%x' % SLOT
                for nb in range(8):
                    sc.add(base + (nb + 1) // 2, 'v_add_u32 v%d, %s, v%d' % (V_A + nb, dstep, V_A + nb))
            rd = a_reads((i + 1) & 1, (i + 1) & 3)
            for k, t in enumerate(rd):
                if i == 3:
                    sc.add(base + min(15, max(k, (k // 2 + 1) // 2 + 1) if k < 4 else k), t)
                else:
                    sc.add(base + k, t)
            bl = b_load((st + 7) & 7, 's%d' % (S_G1, S_G2, S_G3)[((st + 7) >> 2) - 1], (st + 7) & 3)
            grp = d[i // 2]
            if i % 2 == 0:
                sc.add(base + 1, grp[0][0])
            sc.add(base + 3, bl[0])
            sc.add(base + 6, grp[1 + 2 * (i % 2)][0], tag)
            sc.add(base + 9, bl[1])
            sc.add(base + 12, grp[2 + 2 * (i % 2)][0], tag)
        c0 = 64 * half
        adv = advance_a()
        sc.add(c0 + 61, adv[0])
        sc.add(c0 + 62, adv[1])
        for t in adv[2:]:
            sc.add(c0 + 63, t)
    sc.add(20, 's_add_u32 s%d, s%d, 8192' % (S_G1, S_G1))
    sc.add(84, 's_add_u32 s%d, s%d, 8192' % (S_G2, S_G2))
    sc.add(126, 's_add_u32 s%d, s%d, 8192' % (S_G3, S_G3))
    sc.add(70, 's_add_u32 s%d, s%d, 1' % (S_P, S_P))
    sc.add(72, 's_cmp_eq_u32 s%d, 2' % S_P)
    sc.add(72, 's_cselect_b32 s%d, 0x%x, s%d' % (S_D, (-4 * SLOT) & 0xffffffff, S_SLOT))
    sc.emit(b, 0, 128)
    b('s_cmp_lt_u32 s%d, 4' % S_P)
    b('s_cbranch_scc1 %s_loop' % name)
    b.loop_end(4)
    stamp(b, 12)
    b('v_lshlrev_b32 v%d, 4, v0' % V_T)
    for qq in range(2):
        b('s_add_u32 s%d, s%d, %d' % (S_T0, S_PB, qq * 16384))
        for v in range(4):
            o = V_AF + 4 * (qq * 4 + v)
            for jj in range(2):
                acc = V_ACC + ((2 * v + jj) * 2 + qq) * 4
                for i in range(2):
                    b('v_cvt_pk_bf16_f32 v%d, v%d, v%d' % (o + 2 * jj + i, acc + 2 * i, acc + 2 * i + 1))
            b('buffer_store_dwordx4 %s, v%d, s[%d:%d], s%d offen offset:%d sc1' % (vr(o, 4), V_T, S_WS, S_WS + 3, S_T0, v * 1024))
    flag_off(b, S_SY, F_PART, S_QT)


GA, SB, CB, XR = 192, 208, 224, 240


def mod_loads(addr):
    loads = []
    for (reg, row) in ((GA, 2), (SB, 3), (CB, 4)):
        loads.append('s_mov_b32 s45, %d' % (WS_MOD + row * 2048))
        for bb in range(4):
            loads.append('buffer_load_dwordx4 %s, v%d, s[%d:%d], s45 offen offset:%d sc1' % (vr(reg + 4 * bb, 4), addr, S_WS, S_WS + 3, 64 * bb))
    return loads


def p3b_pre(b):
    mk_srd(b, 48, P_X, 2048 * 1024)
    b('s_lshl_b32 s45, s%d, 6' % S_WAVE)
    b('v_add_u32 v32, s45, v0')
    b('v_lshrrev_b32 v32, 3, v32')
    b('v_and_b32 v33, 3, v32')
    b('v_lshrrev_b32 v34, 2, v32')
    b('v_and_b32 v35, 7, v0')
    b('v_lshlrev_b32 v35, 10, v35')
    b('v_lshl_add_u32 v35, v34, 7, v35')
    b('v_lshl_add_u32 v35, v33, 3, v35')
    b('v_lshlrev_b32 v36, 8, v34')
    b('v_lshl_add_u32 v36, v33, 4, v36')
    b('s_and_b32 s47, s2, 7')
    b('s_lshl_b32 s47, s47, 5')
    b('s_lshr_b32 s46, s2, 3')
    b('s_add_u32 s47, s47, s46')
    b('s_lshl_b32 s46, s47, 13')
    for bb in range(4):
        b('buffer_load_dwordx2 %s, v35, s[48:51], s46 offen offset:%d' % (vr(XR + 2 * bb, 2), 32 * bb))
    for t in mod_loads(36): b(t)


def p3b(b, name):
    b('s_lshl_b32 s45, s%d, 6' % S_WAVE)
    b('v_add_u32 v11, s45, v0')
    b('v_and_b32 v1, 7, v0')
    b('v_lshrrev_b32 v2, 3, v11')
    b('v_and_b32 v3, 3, v2')
    b('v_lshrrev_b32 v4, 2, v2')
    b('s_and_b32 s47, s2, 7')
    b('s_lshl_b32 s47, s47, 5')
    b('s_lshr_b32 s48, s2, 3')
    b('s_add_u32 s47, s47, s48')
    b('s_lshr_b32 s16, s47, 1')
    b('s_and_b32 s17, s47, 1')
    b('s_lshl_b32 s17, s17, 3')
    b('v_add_u32 v6, s17, v1')
    b('v_lshlrev_b32 v6, 4, v6')
    b('v_lshlrev_b32 v7, 11, v4')
    b('v_lshlrev_b32 v9, 8, v3')
    b('v_add3_u32 v7, v7, v9, v6')
    b('v_lshlrev_b32 v9, 8, v4')
    b('v_lshlrev_b32 v10, 4, v3')
    b('v_add_u32 v9, v9, v10')
    b('s_lshl_b32 s19, s16, 14')
    b('s_add_u32 s19, s19, 0x%x' % WS_PART)
    b('s_lshr_b32 s50, s47, 4')
    flag_off(b, S_SY + 3, F_PART, 50)
    yield
    P = 64
    for ks in range(4):
        if ks:
            b('s_add_u32 s19, s19, 0x200000')
        for v in range(2):
            b('buffer_load_dwordx4 %s, v7, s[%d:%d], s19 offen offset:%d sc1' % (vr(P + 8 * ks + 4 * v, 4), S_WS, S_WS + 3, v * 1024))
    yield
    check_mod(b, mod_loads(9), list(range(GA, GA + 48)), 40)
    A = 96
    for ks in range(4):
        for p in range(8):
            src = P + 8 * ks + p
            if ks == 0:
                b('v_lshlrev_b32 v%d, 16, v%d' % (A + 2 * p, src))
                b('v_and_b32 v%d, 0xffff0000, v%d' % (A + 2 * p + 1, src))
            else:
                b('v_lshlrev_b32 v%d, 16, v%d' % (A + 16 + 2 * p, src))
                b('v_and_b32 v%d, 0xffff0000, v%d' % (A + 17 + 2 * p, src))
        if ks:
            for i in range(16):
                b('v_add_f32 v%d, v%d, v%d' % (A + i, A + i, A + 16 + i))
    P = A
    X = 20
    for p in range(8):
        b('v_lshlrev_b32 v%d, 16, v%d' % (X + 2 * p, XR + p))
        b('v_and_b32 v%d, 0xffff0000, v%d' % (X + 2 * p + 1, XR + p))
    for i in range(16):
        b('v_fmac_f32 v%d, v%d, v%d' % (X + i, GA + i, P + i))
    for p in range(8):
        b('v_cvt_pk_bf16_f32 v%d, v%d, v%d' % (12 + p, X + 2 * p, X + 2 * p + 1))
    b('s_lshl_b32 s18, s16, 14')
    b('s_add_u32 s46, s18, 0x%x' % WS_X1)
    b('buffer_store_dwordx4 v[12:15], v7, s[%d:%d], s46 offen sc1' % (S_WS, S_WS + 3))
    b('buffer_store_dwordx4 v[16:19], v7, s[%d:%d], s46 offen offset:1024 sc1' % (S_WS, S_WS + 3))
    for p in range(8):
        b('v_lshlrev_b32 v%d, 16, v%d' % (X + 2 * p, 12 + p))
        b('v_and_b32 v%d, 0xffff0000, v%d' % (X + 2 * p + 1, 12 + p))
    layernorm16(b, X, 40, 1, LN_LDS)
    for i in range(16):
        b('v_fma_f32 v%d, v%d, v%d, v%d' % (X + i, X + i, CB + i, SB + i))
    for p in range(8):
        b('v_cvt_pk_bf16_f32 v%d, v%d, v%d' % (52 + p, X + 2 * p, X + 2 * p + 1))
    b('s_add_u32 s46, s18, 0x%x' % WS_H2)
    b('buffer_store_dwordx4 v[52:55], v7, s[%d:%d], s46 offen sc1' % (S_WS, S_WS + 3))
    b('buffer_store_dwordx4 v[56:59], v7, s[%d:%d], s46 offen offset:1024 sc1' % (S_WS, S_WS + 3))
    flag_off(b, S_SY, F_H2, 50)
```

```python
from mc import *

MF = 'v_mfma_f32_16x16x32_bf16'
WG_ROW = 2752


def p4(b, name):
    S_M = 20
    S_W, S_QT, S_FG, S_T0, S_T1, S_T2 = 24, 25, 26, 27, 28, 29
    S_AB, S_BB, S_HB, S_ROT = 30, 31, 33, 34
    S_P, S_G1, S_G2, S_A3, S_L3, S_D, S_G3, S_WL = 35, 36, 37, 38, 39, 40, 41, 44
    S_BQ = (8, 12)
    V_WOFF, V_B, V_A, V_T = 248, 6, 8, 20
    V_AF = 32
    V_ACC = 128
    SLOT, NSLOT = 24576, 6
    CH = 64 * WG_ROW
    OOB = 0x10000000
    b('s_and_b32 s%d, s2, 7' % S_T0)
    b('s_lshr_b32 s%d, s2, 3' % S_T1)
    b('s_and_b32 s%d, s%d, 1' % (S_FG, S_T0))
    b('s_lshl_b32 s%d, s%d, 3' % (S_FG, S_FG))
    b('s_and_b32 s%d, s%d, 7' % (S_T2, S_T1))
    b('s_add_u32 s%d, s%d, s%d' % (S_FG, S_FG, S_T2))
    b('s_lshr_b32 s%d, s%d, 1' % (S_QT, S_T0))
    b('s_mov_b32 s%d, s%d' % (S_W, S_WAVE))
    b('s_lshl_b32 s%d, s%d, 2' % (S_QT, S_QT))
    b('s_lshr_b32 s%d, s%d, 3' % (S_T1, S_T1))
    b('s_add_u32 s%d, s%d, s%d' % (S_QT, S_QT, S_T1))
    T = V_T
    b('s_mov_b32 s%d, 0x15555556' % S_T0)
    b('s_mov_b32 s%d, %d' % (S_T1, WG_ROW))
    for i in range(3):
        b('v_add_u32 v%d, %d, v0' % (T, 64 * i))
        b('v_mul_hi_u32 v%d, v%d, s%d' % (T + 1, T, S_T0))
        b('v_mul_u32_u24 v%d, 12, v%d' % (T + 2, T + 1))
        b('v_sub_u32 v%d, v%d, v%d' % (T + 2, T, T + 2))
        b('v_bfe_u32 v%d, v%d, 2, 1' % (T + 3, T + 1))
        b('v_lshlrev_b32 v%d, 1, v%d' % (T + 3, T + 3))
        b('v_xor_b32 v%d, v%d, v%d' % (T + 2, T + 2, T + 3))
        b('v_lshlrev_b32 v%d, 4, v%d' % (T + 2, T + 2))
        b('v_mul_lo_u32 v%d, v%d, s%d' % (T + 1, T + 1, S_T1))
        b('v_add_u32 v%d, v%d, v%d' % (V_WOFF + i, T + 1, T + 2))
        if i:
            b('v_subrev_u32 v%d, %d, v%d' % (V_WOFF + i, 1024 * i, V_WOFF + i))
    b('s_and_b32 s%d, s%d, 1' % (S_T0, S_W))
    b('s_mul_i32 s%d, s%d, %d' % (S_AB, S_T0, 32 * WG_ROW))
    b('s_mul_i32 s%d, s%d, 192' % (S_T1, S_FG))
    b('s_add_u32 s%d, s%d, s%d' % (S_AB, S_AB, S_T1))
    b('s_mul_i32 s%d, s%d, 6144' % (S_WL, S_W))
    b('s_mov_b32 s%d, s%d' % (S_A3, S_AB))
    b('s_mov_b32 s%d, s%d' % (S_L3, S_WL))
    b('s_cmp_ge_u32 s%d, 2' % S_W)
    b('s_cselect_b32 s%d, s%d, s%d' % (S_M, P_WU, P_WG))
    b('s_cselect_b32 s%d, s%d, s%d' % (S_M + 1, P_WU + 1, P_WG + 1))
    b('s_mov_b32 s%d, 0x%x' % (S_M + 2, 512 * WG_ROW))
    b('s_mov_b32 s%d, 0x20000' % (S_M + 3))

    def dma_w(tag):
        out = []
        for half in range(2):
            grp = [('s_add_u32 m0, s%d, %d' % (S_L3, half * 3072), None),
                   ('s_add_u32 s%d, s%d, %d' % (S_T2, S_A3, half * 16 * WG_ROW), None)]
            for i in range(3):
                grp.append(('buffer_load_dwordx4 v%d, s[%d:%d], s%d offen offset:%d lds' %
                            (V_WOFF + i, S_M, S_M + 3, S_T2, i * 1024), tag))
            out.append(grp)
        return out

    def b_load(ring, sreg, step):
        return ['buffer_load_dwordx4 %s, v%d, s[%d:%d], %s offen offset:%d sc1' %
                (ar(8 * ring + 4 * qq, 4), V_B, S_BQ[qq], S_BQ[qq] + 3, sreg, step * 1024) for qq in range(2)]

    def a_reads(buf, step):
        return ['ds_read_b64_tr_b16 %s, v%d offset:%d' % (vr(V_AF + 48 * buf + 4 * (mat * 6 + nb) + 2 * jj, 2), V_A + nb, mat * 12288 + step * 6144 + jj * 3072)
                for nb in range(6) for mat in range(2) for jj in range(2)]

    def advance_a(wrap=False):
        out = ['s_add_u32 s%d, s%d, %d' % (S_A3, S_A3, CH), 's_add_u32 s%d, s%d, %d' % (S_L3, S_L3, SLOT)]
        if wrap:
            out += ['s_cmp_ge_u32 s%d, %d' % (S_L3, NSLOT * SLOT), 's_cselect_b32 s%d, s%d, s%d' % (S_L3, S_WL, S_L3)]
        return out

    def first_chunks(bb):
        lskip = uid('w0')
        bb('s_cmp_eq_u32 s%d, 0' % S_W)
        bb('s_cbranch_scc1 %s' % lskip)
        mk_srd(bb, 52, P_WG, 512 * WG_ROW)
        bb('s_sub_u32 s56, s%d, 1' % S_W)
        bb('s_mul_i32 s57, s56, %d' % SLOT)
        bb('s_mul_i32 s56, s56, %d' % CH)
        bb('s_mul_i32 s58, s%d, 192' % S_FG)
        bb('s_add_u32 s56, s56, s58')
        for half in range(2):
            bb('s_add_u32 m0, s57, %d' % (half * 3072))
            bb('s_add_u32 s58, s56, %d' % (half * 16 * WG_ROW))
            for i in range(3):
                bb('buffer_load_dwordx4 v%d, s[52:55], s58 offen offset:%d lds' % (V_WOFF + i, i * 1024))
        for k in range(3):
            for grp in dma_w(None):
                for t, g in grp: bb(t)
            for t in advance_a(): bb(t)
        ldone = uid('w0d')
        bb('s_branch %s' % ldone)
        bb.label(lskip)
        for k in range(3):
            for t in advance_a(): bb(t)
        bb.label(ldone)
    yield first_chunks
    b('v_lshlrev_b32 v%d, 4, v0' % V_B)
    b('s_lshl_b32 s%d, s%d, 3' % (S_T0, S_QT))
    b('s_lshl_b32 s%d, s%d, 1' % (S_T1, S_W))
    b('s_add_u32 s%d, s%d, s%d' % (S_T0, S_T0, S_T1))
    b('s_lshl_b32 s%d, s%d, 14' % (S_BB, S_T0))
    b('s_add_u32 s%d, s%d, 0x%x' % (S_BB, S_BB, WS_H2))
    mk_srd(b, S_BQ[0], P_WSP, 16384, S_BB)
    b('s_add_u32 s%d, s%d, 16384' % (S_BB, S_BB))
    mk_srd(b, S_BQ[1], P_WSP, 16384, S_BB)
    b('v_bfe_u32 v%d, v0, 2, 2' % T)
    b('v_lshrrev_b32 v%d, 4, v0' % (T + 1))
    b('v_lshl_add_u32 v%d, v%d, 2, v%d' % (T + 2, T + 1, T))
    b('v_mul_u32_u24 v%d, 192, v%d' % (T + 2, T + 2))
    b('v_and_b32 v%d, 3, v0' % (T + 3))
    b('v_lshl_add_u32 v%d, v%d, 3, v%d' % (T + 2, T + 3, T + 2))
    b('v_and_b32 v%d, 1, v%d' % (T + 1, T + 1))
    for nb in range(6):
        b('v_xor_b32 v%d, %d, v%d' % (T + 3, nb, T + 1))
        b('v_lshl_add_u32 v%d, v%d, 5, v%d' % (V_A + nb, T + 3, T + 2))
    for i in range(96):
        b('v_mov_b32 v%d, 0' % (V_ACC + i))
    b('s_mul_i32 s%d, s%d, %d' % (S_HB, S_T0, 43 * 1024))
    b('s_mul_i32 s%d, s%d, 3072' % (S_T1, S_FG))
    b('s_add_u32 s%d, s%d, s%d' % (S_HB, S_HB, S_T1))
    b('s_add_u32 s%d, s%d, 0x%x' % (S_HB, S_HB, WS_HH))
    b('s_mov_b32 s%d, 0' % S_P)
    b('s_mov_b32 s%d, %d' % (S_D, SLOT))
    flag_off(b, S_SY + 3, F_H2, S_QT)
    yield
    b('s_mov_b32 s%d, 4096' % S_G1)
    b('s_mov_b32 s%d, 8192' % S_G2)
    b('s_mov_b32 s%d, 12288' % S_G3)
    for st in range(7):
        for t in b_load(st, '0' if st < 4 else 's%d' % S_G1, st & 3): b(t)
    stamp(b, 16)
    for t in a_reads(0, 0): b(t)

    b.loop_begin()
    b.label(name + '_loop')
    sc = Sched()
    for pos in range(4):
        tag = 'T%d' % pos
        d = dma_w(tag)
        for i in range(2):
            st = 2 * pos + i
            base = 24 * st
            k = 0
            for nb in range(6):
                for mat in range(2):
                    for qq in range(2):
                        dd = vr(V_ACC + ((mat * 6 + nb) * 2 + qq) * 4, 4)
                        sc.mfma(base + k, '%s %s, %s, %s, %s' % (MF, dd, vr(V_AF + 48 * i + 4 * (mat * 6 + nb), 4), ar(8 * st + 4 * qq, 4), dd))
                        k += 1
            rd = a_reads((i + 1) & 1, (i + 1) & 1)
            if i == 1:
                sc.add(base, lambda bb, pos=pos: (bb.waitvm('T%d' % ((pos - 2) % 4), 1 if pos < 2 else 0), bb('s_barrier')))
                dstep = ('s%d' % S_D) if pos == 1 else '0x%x' % SLOT
                for nb in range(6):
                    sc.add(base + nb // 2, 'v_add_u32 v%d, %s, v%d' % (V_A + nb, dstep, V_A + nb))
                for k, t in enumerate(rd):
                    sc.add(base + min(23, max(k, 3) if k < 4 else k), t)
            else:
                for k, t in enumerate(rd):
                    sc.add(base + k, t)
            bl = b_load((st + 7) & 7, 's%d' % (S_G1, S_G2, S_G3)[((st + 7) >> 2) - 1], (st + 7) & 3)
            grp = d[i]
            sc.add(base + 1, grp[0][0]); sc.add(base + 2, grp[1][0])
            sc.add(base + 5, bl[0])
            sc.add(base + 8, grp[2][0], tag)
            sc.add(base + 11, bl[1])
            sc.add(base + 14, grp[3][0], tag)
            sc.add(base + 19, grp[4][0], tag)
        c0 = 48 * pos
        adv = advance_a(wrap=(pos == 2))
        sc.add(c0 + 44, adv[0])
        sc.add(c0 + 45, adv[1])
        for t in adv[2:]:
            sc.add(c0 + 46, t)
    sc.add(30, 's_add_u32 s%d, s%d, 8192' % (S_G1, S_G1))
    sc.add(24 * 5 + 3, 's_add_u32 s%d, s%d, 8192' % (S_G2, S_G2))
    sc.add(190, 's_add_u32 s%d, s%d, 8192' % (S_G3, S_G3))
    sc.add(100, 's_add_u32 s%d, s%d, 1' % (S_P, S_P))
    sc.add(102, 's_mov_b32 s%d, 0x%x' % (S_D, (-5 * SLOT) & 0xffffffff))
    sc.emit(b, 0, 192)
    b('s_cmp_lt_u32 s%d, 2' % S_P)
    b('s_cbranch_scc1 %s_loop' % name)
    b.loop_end(2)
    stamp(b, 17)
    b('v_lshlrev_b32 v%d, 4, v0' % V_T)
    for v in range(3):
        if v == 1:
            b('s_cmp_ge_u32 s%d, 14' % S_FG)
            b('s_cbranch_scc1 %s_stored' % name)
        for qq in range(2):
            t0 = 32 + 8 * (v * 2 + qq)
            for jj in range(2):
                nb = 2 * v + jj
                g = V_ACC + (nb * 2 + qq) * 4
                u = V_ACC + ((6 + nb) * 2 + qq) * 4
                for i in range(4):
                    b('v_mul_f32 v%d, v%d, v%d' % (g + i, g + i, u + i))
                for i in range(2):
                    b('v_cvt_pk_bf16_f32 v%d, v%d, v%d' % (t0 + 2 * jj + i, g + 2 * i, g + 2 * i + 1))
            b('s_add_u32 s%d, s%d, %d' % (S_T0, S_HB, qq * 43 * 1024))
            b('buffer_store_dwordx4 %s, v%d, s[%d:%d], s%d offen offset:%d sc1' % (vr(t0, 4), V_T, S_WS, S_WS + 3, S_T0, v * 1024))
    b.label(name + '_stored')
    flag_off(b, S_SY, F_HH, S_QT)


def p5(b, name):
    S_WD, S_OUT = 8, 16
    S_W, S_QT, S_NT, S_T0, S_T1, S_T2 = 20, 21, 22, 23, 24, 25
    S_A, S_B, S_LB, S_N, S_L, S_D, S_LIM, S_S, S_RING, S_SA = 26, 27, 28, 29, 30, 31, 32, 33, 34, 35
    V_WOFF, V_B, V_A, V_BR, V_T = 2, 4, 8, 12, 16
    V_AF, V_BF = 32, 48
    V_ACC = 64
    STEP, RING = 8192, 4
    NS = 11
    b('s_and_b32 s%d, s2, 7' % S_T0)
    b('s_lshr_b32 s%d, s2, 3' % S_T1)
    b('s_lshr_b32 s%d, s%d, 1' % (S_QT, S_T0))
    b('s_mov_b32 s%d, s%d' % (S_W, S_WAVE))
    b('s_lshl_b32 s%d, s%d, 3' % (S_QT, S_QT))
    b('s_lshr_b32 s%d, s%d, 2' % (S_T2, S_T1))
    b('s_add_u32 s%d, s%d, s%d' % (S_QT, S_QT, S_T2))
    b('s_and_b32 s%d, s%d, 1' % (S_NT, S_T0))
    b('s_lshl_b32 s%d, s%d, 2' % (S_NT, S_NT))
    b('s_and_b32 s%d, s%d, 3' % (S_T1, S_T1))
    b('s_add_u32 s%d, s%d, s%d' % (S_NT, S_NT, S_T1))
    T = V_T
    b('v_lshrrev_b32 v%d, 3, v0' % T)
    b('v_and_b32 v%d, 7, v0' % (T + 1))
    b('v_bfe_u32 v%d, v%d, 1, 2' % (T + 2, T))
    b('v_lshlrev_b32 v%d, 1, v%d' % (T + 2, T + 2))
    b('v_xor_b32 v%d, v%d, v%d' % (T + 1, T + 1, T + 2))
    b('v_lshlrev_b32 v%d, 4, v%d' % (T + 1, T + 1))
    b('v_lshl_add_u32 v%d, v%d, 10, v%d' % (V_WOFF, T, T + 1))
    b('v_lshlrev_b32 v%d, 4, v0' % V_B)
    for qb in range(1, 4):
        b('v_add_u32 v%d, %d, v%d' % (V_B + qb, qb * 43 * 1024, V_B))
    b('s_mul_i32 s%d, s%d, 11' % (S_T0, S_W))
    b('s_lshl_b32 s%d, s%d, 15' % (S_A, S_T0))
    b('s_lshl_b32 s%d, s%d, 7' % (S_T1, S_NT))
    b('s_add_u32 s%d, s%d, s%d' % (S_A, S_A, S_T1))
    b('s_mul_i32 s%d, s%d, %d' % (S_B, S_QT, 4 * 43 * 1024))
    b('s_lshl_b32 s%d, s%d, 10' % (S_T1, S_T0))
    b('s_add_u32 s%d, s%d, s%d' % (S_B, S_B, S_T1))
    b('s_add_u32 s%d, s%d, 0x%x' % (S_B, S_B, WS_HH))
    b('s_lshl_b32 s%d, s%d, 15' % (S_LB, S_W))
    b('s_mov_b32 s%d, s%d' % (S_L, S_LB))
    b('s_cmp_eq_u32 s%d, 3' % S_W)
    b('s_cselect_b32 s%d, 10, 11' % S_LIM)
    b('s_mov_b32 s%d, 0' % S_N)
    mk_srd(b, S_WD, P_WD, 1376 * 1024); mk_srd(b, S_OUT, P_OUT, 2048 * 1024)

    def request():
        ops = []
        for i in range(4):
            ops.append(['s_add_u32 m0, s%d, %d' % (S_L, i * 1024), 's_add_u32 s%d, s%d, %d' % (S_T2, S_A, i * 8192),
                        'buffer_load_dwordx4 v%d, s[%d:%d], s%d offen lds' % (V_WOFF, S_WD, S_WD + 3, S_T2)])
        for qb in range(4):
            ops.append(['s_add_u32 m0, s%d, %d' % (S_L, 4096 + qb * 1024), 's_nop 0',
                        'buffer_load_dwordx4 v%d, s[%d:%d], s%d offen sc1 lds' % (V_B + qb, S_WS, S_WS + 3, S_B)])
        nxt = ['s_add_u32 s%d, s%d, 1' % (S_N, S_N), 's_add_u32 s%d, s%d, 32768' % (S_A, S_A), 's_add_u32 s%d, s%d, 1024' % (S_B, S_B),
               's_cmp_ge_u32 s%d, s%d' % (S_N, S_LIM), 's_cselect_b32 s%d, 0x%x, s%d' % (S_A, OOB, S_A),
               's_cselect_b32 s%d, 0x%x, s%d' % (S_B, OOB, S_B),
               's_add_u32 s%d, s%d, %d' % (S_L, S_L, STEP), 's_and_b32 s%d, s%d, 0x7fff' % (S_L, S_L), 's_add_u32 s%d, s%d, s%d' % (S_L, S_L, S_LB)]
        return ops, nxt

    b('v_bfe_u32 v%d, v0, 2, 2' % T)
    b('v_lshrrev_b32 v%d, 4, v0' % (T + 1))
    b('v_lshl_add_u32 v%d, v%d, 2, v%d' % (T + 1, T + 1, T))
    b('v_bfe_u32 v%d, v%d, 1, 2' % (T + 2, T + 1))
    b('v_lshlrev_b32 v%d, 7, v%d' % (T + 1, T + 1))
    b('v_and_b32 v%d, 3, v0' % (T + 3))
    b('v_lshl_add_u32 v%d, v%d, 3, v%d' % (T + 1, T + 3, T + 1))
    for nb in range(4):
        b('v_xor_b32 v%d, %d, v%d' % (T + 3, nb, T + 2))
        b('v_lshlrev_b32 v%d, 5, v%d' % (T + 3, T + 3))
        b('v_add3_u32 v%d, v%d, v%d, s%d' % (V_A + nb, T + 3, T + 1, S_LB))
    b('v_add_u32 v%d, s%d, v%d' % (V_BR, S_LB, V_B))
    for i in range(64):
        b('v_mov_b32 v%d, 0' % (V_ACC + i))
    b('s_mov_b32 s%d, 0' % S_S)
    b('s_mov_b32 s%d, %d' % (S_RING, STEP))
    b('s_mov_b32 s%d, %d' % (S_D, STEP))
    b('s_lshr_b32 s%d, s%d, 1' % (S_T1, S_QT))
    flag_off(b, S_SY + 3, F_HH, S_T1)
    yield
    b('s_mov_b32 s%d, s%d' % (S_SA, S_A))
    for st in range(RING - 1):
        for i in range(4):
            b('s_add_u32 m0, s%d, %d' % (S_LB, st * STEP + i * 1024))
            b('s_add_u32 s%d, s%d, %d' % (S_T2, S_SA, st * 32768 + i * 8192))
            b('buffer_load_dwordx4 v%d, s[%d:%d], s%d offen lds' % (V_WOFF, S_WD, S_WD + 3, S_T2))
    yield
    for st in range(RING - 1):
        for qb in range(4):
            b('s_add_u32 m0, s%d, %d' % (S_LB, st * STEP + 4096 + qb * 1024))
            b('s_add_u32 s%d, s%d, %d' % (S_T2, S_B, st * 1024))
            b('buffer_load_dwordx4 v%d, s[%d:%d], s%d offen sc1 lds' % (V_B + qb, S_WS, S_WS + 3, S_T2))
    X, G = 192, 200
    b('s_lshl_b32 s%d, s%d, 2' % (S_T0, S_QT))
    b('s_add_u32 s%d, s%d, s%d' % (S_T0, S_T0, S_W))
    b('s_lshl_b32 s%d, s%d, 14' % (S_T1, S_T0))
    b('s_lshl_b32 s%d, s%d, 11' % (S_T2, S_NT))
    b('s_add_u32 s%d, s%d, s%d' % (S_T1, S_T1, S_T2))
    b('s_add_u32 s%d, s%d, 0x%x' % (S_T1, S_T1, WS_X1))
    for v in range(2):
        b('buffer_load_dwordx4 %s, v%d, s[%d:%d], s%d offen offset:%d sc1' % (vr(X + 4 * v, 4), V_B, S_WS, S_WS + 3, S_T1, v * 1024))
    V_G = 216
    b('v_lshrrev_b32 v%d, 4, v0' % V_G)
    b('v_lshlrev_b32 v%d, 4, v%d' % (V_G, V_G))
    b('s_lshl_b32 s36, s%d, 8' % S_NT)
    b('s_add_u32 s36, s36, %d' % (WS_MOD + 5 * 2048))
    g_loads = ['buffer_load_dwordx4 %s, v%d, s[%d:%d], s36 offen offset:%d sc1' % (vr(G + 4 * nb, 4), V_G, S_WS, S_WS + 3, nb * 64) for nb in range(4)]
    for t in g_loads: b(t)
    b('s_mov_b32 s%d, 3' % S_N)
    b('s_add_u32 s%d, s%d, %d' % (S_A, S_A, 3 * 32768))
    b('s_add_u32 s%d, s%d, %d' % (S_B, S_B, 3 * 1024))
    b('s_add_u32 s%d, s%d, %d' % (S_L, S_LB, 3 * STEP))
    b('s_waitcnt vmcnt(10)')
    stamp(b, 20)

    b.loop_begin()
    b.label(name + '_loop')
    b('s_waitcnt vmcnt(16)')
    for nb in range(4):
        for jj in range(2):
            b('ds_read_b64_tr_b16 %s, v%d offset:%d' % (vr(V_AF + 4 * nb + 2 * jj, 2), V_A + nb, jj * 2048))
        if nb == 0:
            for qb in range(4):
                b('ds_read_b128 %s, v%d offset:%d' % (vr(V_BF + 4 * qb, 4), V_BR, 4096 + qb * 1024))
    ops, nxt = request()
    sc = Sched()
    for nb in range(4):
        for qb in range(4):
            d = vr(V_ACC + (nb * 4 + qb) * 4, 4)
            sc.mfma(4 * nb + qb, '%s %s, %s, %s, %s' % (MF, d, vr(V_AF + 4 * nb, 4), vr(V_BF + 4 * qb, 4), d))
    for grp in ops[:2]:
        for t in grp: b(t)
    for k, grp in enumerate(ops[2:]):
        for t in grp: sc.add(2 * k, t)
    sc.add(12, 's_sub_u32 s%d, s%d, s%d' % (S_L, S_L, S_LB))
    for k, t in enumerate(nxt):
        sc.add(12 + (k // 3 if k < 3 else (1 if k < 6 else 2)), t)
    for nb in range(4):
        sc.add(4 * nb + 3, 'v_add_u32 v%d, s%d, v%d' % (V_A + nb, S_D, V_A + nb))
    sc.add(5, 'v_add_u32 v%d, s%d, v%d' % (V_BR, S_D, V_BR))
    sc.emit(b, 0, 16)
    b('s_add_u32 s%d, s%d, 1' % (S_S, S_S))
    b('s_and_b32 s%d, s%d, 3' % (S_T1, S_S))
    b('s_cmp_eq_u32 s%d, 3' % S_T1)
    b('s_cselect_b32 s%d, 0x%x, s%d' % (S_D, (-3 * STEP) & 0xffffffff, S_RING))
    b('s_cmp_lt_u32 s%d, %d' % (S_S, NS))
    b('s_cbranch_scc1 %s_loop' % name)
    b.loop_end(NS)
    stamp(b, 21)
    check_mod(b, g_loads, list(range(G, G + 16)), T + 3)
    b('s_waitcnt vmcnt(0)')
    b('s_barrier')
    b('s_lshl_b32 s%d, s%d, 12' % (S_T1, S_W))
    b('v_add_u32 v%d, s%d, v%d' % (T + 1, S_T1, V_B))
    for qb in range(4):
        for nb in range(4):
            b('ds_write_b128 v%d, %s offset:%d' % (T + 1, vr(V_ACC + (nb * 4 + qb) * 4, 4), qb * 16384 + nb * 1024))
    b('s_waitcnt lgkmcnt(0)')
    b('s_barrier')
    b('s_lshl_b32 s%d, s%d, 14' % (S_T1, S_W))
    b('v_add_u32 v%d, s%d, v%d' % (T + 1, S_T1, V_B))
    R = 128
    for w in range(4):
        for nb in range(4):
            b('ds_read_b128 %s, v%d offset:%d' % (vr(R + 16 * w + 4 * nb, 4), T + 1, w * 4096 + nb * 1024))
    for i in range(16):
        b('v_add_f32 v%d, v%d, v%d' % (R + i, R + i, R + 16 + i))
        b('v_add_f32 v%d, v%d, v%d' % (R + 32 + i, R + 32 + i, R + 48 + i))
    for i in range(16):
        b('v_add_f32 v%d, v%d, v%d' % (R + i, R + i, R + 32 + i))
    Y = 96
    for p in range(8):
        b('v_lshlrev_b32 v%d, 16, v%d' % (Y + 2 * p, X + p))
        b('v_and_b32 v%d, 0xffff0000, v%d' % (Y + 2 * p + 1, X + p))
    for i in range(16):
        b('v_fmac_f32 v%d, v%d, v%d' % (Y + i, G + i, R + i))
    O = 112
    for p in range(8):
        b('v_cvt_pk_bf16_f32 v%d, v%d, v%d' % (O + p, Y + 2 * p, Y + 2 * p + 1))
    for v in range(2):
        b('v_permlane16_swap_b32 v%d, v%d' % (O + 4 * v, O + 4 * v + 2))
        b('v_permlane16_swap_b32 v%d, v%d' % (O + 4 * v + 1, O + 4 * v + 3))
    b('v_and_b32 v%d, 15, v0' % T)
    b('v_lshlrev_b32 v%d, 10, v%d' % (T, T))
    b('v_bfe_u32 v%d, v0, 4, 1' % (T + 1))
    b('v_lshlrev_b32 v%d, 5, v%d' % (T + 1, T + 1))
    b('v_lshrrev_b32 v%d, 5, v0' % (T + 2))
    b('v_lshlrev_b32 v%d, 4, v%d' % (T + 2, T + 2))
    b('v_add3_u32 v%d, v%d, v%d, v%d' % (T, T, T + 1, T + 2))
    b('s_lshl_b32 s%d, s%d, 14' % (S_T1, S_T0))
    b('s_lshl_b32 s%d, s%d, 7' % (S_T2, S_NT))
    b('s_add_u32 s%d, s%d, s%d' % (S_T1, S_T1, S_T2))
    for v in range(2):
        b('buffer_store_dwordx4 %s, v%d, s[%d:%d], s%d offen offset:%d' % (vr(O + 4 * v, 4), T, S_OUT, S_OUT + 3, S_T1, v * 64))
```

```python
import re, os

LG_AGE = int(os.environ.get('LG_AGE', '12'))
VM_AGE = int(os.environ.get('VM_AGE', '0'))
VM_NEAR = int(os.environ.get('VM_NEAR', '20'))

TRANS = ('v_exp_f32', 'v_log_f32', 'v_rcp_f32', 'v_rsq_f32', 'v_sqrt_f32', 'v_sin_f32', 'v_cos_f32', 'v_rcp_iflag_f32')
_reg_re = re.compile(r'^(-|abs\()?([vas])(\d+|\[(\d+):(\d+)\])\)?$')


def regs_of(tok):
    tok = tok.strip()
    if tok in ('vcc',):
        return [('s', 'vcc')]
    if tok in ('vcc_lo', 'vcc_hi'):
        return [('s', 'vcc')]
    if tok == 'exec':
        return [('s', 'exec')]
    if tok == 'm0':
        return [('s', 'm0')]
    m = _reg_re.match(tok)
    if not m:
        return []
    k = m.group(2)
    if m.group(4) is not None:
        return [(k, i) for i in range(int(m.group(4)), int(m.group(5)) + 1)]
    return [(k, int(m.group(3)))]


class Ins:
    __slots__ = ('text', 'op', 'ops', 'mods', 'r', 'w', 'cls', 'tag', 'waittag', 'vm_wait', 'lgkm_wait', 'nops',
                 'passes', 'srcc', 'srcab', 'note', 'pre', 'epoch')

    def __init__(self, text, tag=None):
        self.text = text
        self.tag = tag
        self.epoch = None
        self.waittag = None
        self.vm_wait = None
        self.lgkm_wait = None
        self.nops = 0
        self.passes = 0
        self.srcc = []
        self.srcab = []
        self.note = None
        body = text.split(';')[0].strip()
        parts = body.split(None, 1)
        self.op = parts[0]
        rest = parts[1] if len(parts) > 1 else ''
        toks = [t.strip() for t in rest.split(',')] if rest else []
        self.mods = ''
        if toks:
            last = toks[-1].split(None, 1)
            if len(last) > 1 and not last[0].startswith('hwreg') and not self.op.startswith('s_waitcnt'):
                toks[-1] = last[0]
                self.mods = last[1]
        self.ops = toks
        self.classify()

    def classify(self):
        op, ops, mods = self.op, self.ops, self.mods
        R = lambda idx: [x for i in idx for x in regs_of(ops[i])]
        n = len(ops)
        allr = R(range(n))
        self.r, self.w = [], []
        if op.startswith('v_mfma'):
            self.cls = 'mfma'
            self.w = R([0])
            self.srcab = R([1, 2])
            self.srcc = R([3])
            self.r = self.srcab + self.srcc
            self.passes = 8 if ('32x32x16' in op or '32x32x8' in op) else 4
        elif op.startswith('ds_read') or op.startswith('ds_bpermute') or op.startswith('ds_swizzle') or op.startswith('ds_permute'):
            self.cls = 'ds'
            self.w = R([0])
            self.r = R(range(1, n))
        elif op.startswith('ds_write') or op.startswith('ds_'):
            self.cls = 'ds'
            self.r = allr
        elif op.startswith('buffer_load') or op.startswith('global_load'):
            self.cls = 'vmem'
            if 'lds' in mods.split() or op.startswith('global_load_lds'):
                self.r = allr + [('s', 'm0')]
            else:
                self.w = R([0])
                self.r = R(range(1, n))
        elif op.startswith('buffer_store') or op.startswith('global_store'):
            self.cls = 'vmem'
            self.r = allr
        elif op.startswith('buffer_atomic') or op.startswith('global_atomic'):
            self.cls = 'vmem'
            self.r = allr
            if 'sc0' in mods.split():
                self.w = R([0])
        elif op.startswith('buffer_wbl2') or op.startswith('buffer_inv'):
            self.cls = 'vmem'
        elif op.startswith('s_load') or op.startswith('s_buffer_load'):
            self.cls = 'smem'
            self.w = R([0])
            self.r = R(range(1, n))
        elif op in ('s_memtime', 's_memrealtime'):
            self.cls = 'smem'
            self.w = R([0])
        elif op in ('s_waitcnt', 's_barrier', 's_nop', 's_endpgm', 's_setprio', 's_sleep', 's_branch') or op.startswith('s_cbranch'):
            self.cls = 'ctl'
        elif op.startswith('s_cmp') or op.startswith('s_bitcmp'):
            self.cls = 'salu'
            self.r = allr
        elif op.startswith('s_'):
            self.cls = 'salu'
            self.w = R([0])
            self.r = R(range(1, n))
            if 'saveexec' in op:
                self.w += [('s', 'exec')]
                self.r += [('s', 'exec')]
            if op in ('s_addk_i32', 's_mulk_i32'):
                self.r += self.w
        elif op.startswith('v_'):
            self.cls = 'valu'
            if op.startswith('v_cmp'):
                self.w = R([0])
                self.r = R(range(1, n))
            elif op.startswith('v_permlane') and 'swap' in op:
                self.w = R([0, 1])
                self.r = R([0, 1])
            elif op.startswith(('v_add_co', 'v_sub_co', 'v_addc_co', 'v_subb_co', 'v_subrev_co', 'v_div_scale')):
                self.w = R([0, 1])
                self.r = R(range(2, n))
            else:
                self.w = R([0])
                self.r = R(range(1, n))
                if op.startswith(('v_fmac', 'v_mac', 'v_pk_fmac', 'v_dot2c', 'v_writelane')):
                    self.r += self.w
                if op.startswith('v_cndmask') and n == 3:
                    self.r += [('s', 'vcc')]
            if 'dpp' in op or 'row_' in mods or 'quad_perm' in mods:
                self.r += self.w if 'bound_ctrl' not in mods else []
        else:
            raise ValueError('unknown instruction: ' + self.text)

    def is_trans(self):
        return self.op.replace('_e32', '').replace('_e64', '') in TRANS

    def is_dpp(self):
        return 'dpp' in self.op or 'row_' in self.mods or 'quad_perm' in self.mods

    def is_dma(self):
        return self.cls == 'vmem' and ('lds' in self.mods.split() or self.op.startswith('global_load_lds'))


class Label:
    def __init__(self, name):
        self.name = name


class Raw:
    def __init__(self, text):
        self.text = text


class Loop:
    def __init__(self, body, count):
        self.body = body
        self.count = count


class WaitVm:
    def __init__(self, tag, age=None):
        self.tag = tag
        self.age = age
        self.n = None


class Fence:
    pass


class Block:
    def __init__(self):
        self.items = []
        self._stack = [self.items]
        self._lab = 0

    def __call__(self, text, tag=None, epoch=None):
        out = None
        for line in text.strip().split('\n'):
            line = line.strip()
            if not line or line.startswith(';'):
                continue
            if line.endswith(':'):
                self._stack[-1].append(Label(line[:-1]))
            else:
                out = Ins(line, tag)
                out.epoch = epoch
                self._stack[-1].append(out)
        return out

    def add(self, item):
        self._stack[-1].append(item)

    def label(self, name):
        self._stack[-1].append(Label(name))

    def waitvm(self, tag, age=None):
        self._stack[-1].append(WaitVm(tag, age))

    def fence(self):
        self('s_waitcnt vmcnt(0) lgkmcnt(0)')

    def loop_begin(self):
        self._stack.append([])

    def loop_end(self, count):
        body = self._stack.pop()
        self._stack[-1].append(Loop(body, count))


def _trace_e(items, reps=4):
    out = []
    for it in items:
        if isinstance(it, Loop):
            for k in range(min(it.count, reps)):
                out.extend((x, k) for x, _ in _trace_e(it.body, reps))
        else:
            out.append((it, getattr(it, 'epoch', None)))
    return out


def _trace(items, reps=4):
    return [x for x, _ in _trace_e(items, reps)]


def _parse_wait(ins):
    vm = re.search(r'vmcnt\((\d+)\)', ins.text)
    lg = re.search(r'lgkmcnt\((\d+)\)', ins.text)
    return (int(vm.group(1)) if vm else None, int(lg.group(1)) if lg else None)


def insert_waits(items):
    changed = True
    rounds = 0
    while changed:
        changed = False
        rounds += 1
        assert rounds < 50
        vmq, lgq = [], []
        vborn = {}
        born = {}
        npos = 0
        for it, ep in _trace_e(items):
            npos += 1
            if isinstance(it, WaitVm):
                idx = None
                for i, (q, _, qe) in enumerate(vmq):
                    if q.tag == it.tag and (it.age is None or qe == ep - it.age):
                        idx = i
                need = None if idx is None else len(vmq) - 1 - idx
                if need is not None and (it.n is None or need < it.n):
                    it.n = need
                    changed = True
                if it.n is not None:
                    del vmq[:max(0, len(vmq) - it.n)]
                continue
            if not isinstance(it, Ins):
                continue
            touched = set(it.r) | (set() if it.tag == 'pf' else set(it.w))
            if it.op == 's_waitcnt':
                vm, lg = _parse_wait(it)
                if vm is not None:
                    del vmq[:max(0, len(vmq) - vm)]
                if lg is not None:
                    if lg == 0:
                        lgq.clear()
                    elif not any(q.cls == 'smem' for q, _ in lgq):
                        del lgq[:max(0, len(lgq) - lg)]
                continue
            need = None
            for i, (q, d, _) in enumerate(vmq):
                if d & touched:
                    need = len(vmq) - 1 - i
            if need is not None and VM_AGE:
                first = vborn[len(vborn) - need - 1]
                merged = 0
                while need > 0 and merged < 2 and vborn[len(vborn) - need] - first <= VM_NEAR and npos - vborn[len(vborn) - need] >= VM_AGE:
                    need -= 1
                    merged += 1
            if need is not None and (it.vm_wait is None or need < it.vm_wait):
                it.vm_wait = need
                changed = True
            if it.vm_wait is not None:
                del vmq[:max(0, len(vmq) - it.vm_wait)]
            need = None
            for i, (q, d) in enumerate(lgq):
                if d & touched:
                    need = len(lgq) - 1 - i
                    if any(x.cls == 'smem' for x, _ in lgq):
                        need = 0
            if need is not None and LG_AGE:
                while need > 0 and npos - born[len(born) - need] >= LG_AGE:
                    need -= 1
            if need is not None and (it.lgkm_wait is None or need < it.lgkm_wait):
                it.lgkm_wait = need
                changed = True
            if it.lgkm_wait is not None:
                if it.lgkm_wait == 0:
                    lgq.clear()
                else:
                    del lgq[:max(0, len(lgq) - it.lgkm_wait)]
            if it.cls == 'vmem':
                vmq.append((it, set() if it.tag == 'pf' else set(it.w), ep))
                vborn[len(vborn)] = npos
                if len(vmq) > 63:
                    del vmq[0]
            elif it.cls in ('ds', 'smem'):
                lgq.append((it, set(it.w)))
                born[len(born)] = npos
            if it.op == 's_endpgm':
                vmq.clear(); lgq.clear()


def _states(it):
    n = 0
    if isinstance(it, Ins):
        if it.op == 's_nop':
            n = int(it.ops[0]) + 1
        else:
            n = 1
        if it.vm_wait is not None or it.lgkm_wait is not None:
            n += 1
        n += it.nops
    elif isinstance(it, WaitVm):
        n = 1 if it.n is not None else 0
    return n


def required_gap(p, c):
    need = 0
    pw, pr = set(p.w), set(p.r)
    cr, cw = set(c.r), set(c.w)
    vreg = lambda s: {x for x in s if x[0] in 'va'}
    sreg = lambda s: {x for x in s if x[0] == 's'}
    if p.cls == 'mfma':
        big = p.passes == 8
        if c.cls == 'mfma':
            if pw & set(c.srcab):
                need = max(need, 12 if big else 8)
            if pw & set(c.srcc):
                if not (set(c.srcc) == pw and c.passes == p.passes):
                    need = max(need, 10 if big else 6)
            elif pw & cw:
                need = max(need, 10 if big else 6)
        elif c.cls in ('valu', 'vmem', 'ds'):
            if pw & (cr | cw):
                need = max(need, 12 if big else 8)
            if c.cls == 'valu' and set(p.srcc) & cw:
                need = max(need, 7 if big else 3)
    if p.cls == 'valu':
        if c.cls == 'mfma' and vreg(pw) & cr:
            need = max(need, 2)
        if c.cls == 'vmem' and sreg(pw) & cr:
            need = max(need, 5)
        if c.cls == 'valu' and sreg(pw) & cr:
            need = max(need, 4 if c.op.startswith(('v_readlane', 'v_writelane')) else 2)
        if c.cls in ('salu', 'smem') and sreg(pw) & cr:
            need = max(need, 3)
        if c.cls == 'valu' and vreg(pw) & cr:
            if c.op.startswith(('v_readfirstlane', 'v_readlane')):
                need = max(need, 1)
            if c.op.startswith('v_permlane') or c.is_dpp():
                need = max(need, 2)
            if p.is_trans() and not c.is_trans():
                need = max(need, 1)
        if p.is_trans() and c.cls in ('vmem', 'ds') and vreg(pw) & cr:
            need = max(need, 1)
    if p.cls == 'vmem' and ('store' in p.op or 'atomic' in p.op) and ('x4' in p.op or 'x3' in p.op):
        data = set(regs_of(p.ops[0])) if p.op.startswith('buffer') else set(regs_of(p.ops[1]))
        if data & cw:
            need = max(need, 2)
    if p.cls == 'salu' and ('s', 'm0') in pw and c.is_dma():
        need = max(need, 1)
    if p.cls == 'salu' and ('s', 'exec') in pw and c.cls == 'valu' and (c.is_dpp() or c.op.startswith('v_permlane')):
        need = max(need, 1)
    return need


def insert_nops(items, log=None):
    changed = True
    rounds = 0
    while changed:
        changed = False
        rounds += 1
        assert rounds < 50
        tr = [x for x in _trace(items) if isinstance(x, (Ins, WaitVm))]
        for i, c in enumerate(tr):
            if not isinstance(c, Ins):
                continue
            pre = c.nops + (1 if (c.vm_wait is not None or c.lgkm_wait is not None) else 0)
            dist = pre
            j = i - 1
            while j >= 0 and dist < 12:
                p = tr[j]
                if isinstance(p, Ins):
                    need = required_gap(p, c)
                    if need > dist:
                        c.nops += need - dist
                        if log is not None:
                            log.append('nop +%d before "%s" (after "%s")' % (need - dist, c.text, p.text))
                        dist = need
                        changed = True
                dist += _states(p)
                j -= 1


def _nop_text(n):
    out = []
    while n > 0:
        k = min(n, 16)
        out.append('  s_nop %d' % (k - 1))
        n -= k
    return out


def emit(items, out):
    for it in items:
        if isinstance(it, Loop):
            emit(it.body, out)
        elif isinstance(it, Label):
            out.append(it.name + ':')
        elif isinstance(it, Raw):
            out.append(it.text)
        elif isinstance(it, WaitVm):
            if it.n is not None:
                out.append('  s_waitcnt vmcnt(%d)' % it.n)
        else:
            w = []
            if it.vm_wait is not None:
                w.append('vmcnt(%d)' % it.vm_wait)
            if it.lgkm_wait is not None:
                w.append('lgkmcnt(%d)' % min(it.lgkm_wait, 15))
            out.extend(_nop_text(it.nops))
            if w:
                out.append('  s_waitcnt ' + ' '.join(w))
            out.append('  ' + it.text)


def finalize(block, log=None):
    insert_waits(block.items)
    insert_nops(block.items, log)
    out = []
    emit(block.items, out)
    return '\n'.join(out) + '\n'


def kernel_header(name):
    return '.globl %s\n.p2align 8\n.type %s,@function\n%s:\n' % (name, name, name)


def kernel_descriptor(name, vgpr, agpr=0, sgpr=102):
    acc = (vgpr + 3) // 4 * 4
    tot = acc + agpr if agpr else vgpr
    return """.p2align 6
.amdhsa_kernel %s
  .amdhsa_next_free_vgpr %d
  .amdhsa_next_free_sgpr %d
  .amdhsa_accum_offset %d
  .amdhsa_group_segment_fixed_size 0
  .amdhsa_kernarg_size 112
  .amdhsa_user_sgpr_count 2
  .amdhsa_user_sgpr_kernarg_segment_ptr 1
  .amdhsa_system_sgpr_workgroup_id_x 1
  .amdhsa_float_denorm_mode_32 3
.end_amdhsa_kernel
""" % (name, tot, sgpr, acc)
```

```python
from mc import *

MF = 'v_mfma_f32_16x16x32_bf16'

S_WQ, S_K, S_V = 8, 12, 16
S_HEAD, S_QT, S_W = 24, 25, 26
S_W8K, S_W4K, S_PFO = 28, 29, 30
S_WSRC, S_HB = 32, 33
S_T0, S_T1, S_T2 = 40, 41, 42
S_OB = 43
S_MODE = 44
S_CH = 46
S_WO, S_WG, S_WU, S_WD = 20, 48, 52, 56

V_WOFF = 2
V_KOFF = 6
V_VOFF = 10
V_H = 12
V_TA = 16
V_KA = 24
V_WA = 28
V_LANE16 = 32
V_T = 40
V_Q = 64
V_ACC = 128
V_S = 128
V_NEG = 160
V_P = 176
V_L = 192
V_ONES = 208
V_M = 212
V_R = 216
OUT_SCRATCH = (220, 232)
V_PF = 248
A_O = 0
A_KF = 128
A_VF = 192
SLOT = 32768
MAX_OFF = 24.0
L_LIMIT = 2.0 ** 80


def kv_slot(i):
    return (i + 4) % 5


def dma_kv(i):
    out = []
    base = kv_slot(i) * SLOT
    out.append(('s_add_u32 m0, s%d, %d' % (S_W4K, base), None))
    out.append(('s_add_u32 s%d, s%d, %d' % (S_CH, S_W4K, i * 16384), None))
    for ii in range(4):
        out.append(('buffer_load_dwordx4 v%d, s[%d:%d], s%d offen offset:%d lds' % (V_KOFF + ii, S_K, S_K + 3, S_CH, ii * 1024), 'C%d' % i))
    out.append(('s_add_u32 m0, s%d, %d' % (S_W4K, base + 16384), None))
    for ii in range(4):
        out.append(('buffer_load_dwordx4 v%d, s[%d:%d], s%d offen offset:%d lds' % (V_VOFF + (ii & 1), S_V, S_V + 3, S_CH, ii * 1024), 'C%d' % i))
    return out


def dma_w(p):
    out = []
    for half in range(2):
        out.append(('s_add_u32 m0, s%d, %d' % (S_W8K, p * SLOT + half * 4096), None))
        out.append(('s_add_u32 s%d, s%d, %d' % (S_T0, S_WSRC, p * 128 * 8192 + half * 4 * 32768), None))
        for ii in range(4):
            out.append(('buffer_load_dwordx4 v%d, s[%d:%d], s%d offen offset:%d lds' % (V_WOFF + ii, S_WQ, S_WQ + 3, S_T0, ii * 1024), 'W%d' % p))
    return out


def h_load(u):
    out = []
    if u % 4 == 0:
        out.append(('s_add_u32 s%d, s%d, %d' % (S_T2, S_HB, u * 1024), None))
    for qb in range(4):
        out.append(('buffer_load_dwordx4 %s, v%d, s[%d:%d], s%d offen offset:%d sc1' %
                    (ar(16 * u + 4 * qb, 4), V_H + qb, S_WS, S_WS + 3, S_T2, (u & 3) * 1024), None))
    return out


def setup(b):
    b('s_and_b32 s%d, s2, 7' % S_T0)
    b('s_lshr_b32 s%d, s2, 3' % S_T1)
    b('s_lshr_b32 s%d, s%d, 1' % (S_HEAD, S_T0))
    b('s_lshl_b32 s%d, s%d, 3' % (S_HEAD, S_HEAD))
    b('s_lshr_b32 s%d, s%d, 2' % (S_T2, S_T1))
    b('s_add_u32 s%d, s%d, s%d' % (S_HEAD, S_HEAD, S_T2))
    b('s_and_b32 s%d, s%d, 1' % (S_QT, S_T0))
    b('s_lshl_b32 s%d, s%d, 2' % (S_QT, S_QT))
    b('s_and_b32 s%d, s%d, 3' % (S_T1, S_T1))
    b('s_add_u32 s%d, s%d, s%d' % (S_QT, S_QT, S_T1))
    b('s_mov_b32 s%d, s%d' % (S_W, S_WAVE))
    T = V_T
    b('v_lshrrev_b32 v%d, 4, v0' % T)
    b('v_and_b32 v%d, 15, v0' % (T + 1))
    b('v_lshlrev_b32 v%d, 1, v%d' % (T + 2, T))
    b('v_xor_b32 v%d, v%d, v%d' % (T + 2, T + 2, T + 1))
    b('v_lshlrev_b32 v%d, 4, v%d' % (T + 2, T + 2))
    b('v_lshl_add_u32 v%d, v%d, 8, v%d' % (V_VOFF, T, T + 2))
    b('v_xor_b32 v%d, 128, v%d' % (V_VOFF + 1, V_VOFF))
    b('v_lshl_add_u32 v%d, v%d, 13, v%d' % (V_WOFF, T, T + 2))
    b('v_xor_b32 v%d, 128, v%d' % (T + 4, V_WOFF))
    b('v_add_u32 v%d, %d, v%d' % (V_WOFF + 1, 1 * (32768 - 1024), T + 4))
    b('v_add_u32 v%d, %d, v%d' % (V_WOFF + 2, 2 * (32768 - 1024), V_WOFF))
    b('v_add_u32 v%d, %d, v%d' % (V_WOFF + 3, 3 * (32768 - 1024), T + 4))
    for ii in range(4):
        b('v_add_u32 v%d, %d, v%d' % (T + 2, 4 * ii, T))
        b('v_xor_b32 v%d, v%d, v%d' % (T + 2, T + 2, T + 1))
        b('v_lshlrev_b32 v%d, 4, v%d' % (T + 2, T + 2))
        b('v_lshl_add_u32 v%d, v%d, 8, v%d' % (V_KOFF + ii, T, T + 2))
    b('v_lshlrev_b32 v%d, 4, v0' % V_LANE16)
    for qb in range(4):
        b('v_add_u32 v%d, %d, v%d' % (V_H + qb, qb * 16384, V_LANE16))
    b('v_bfe_u32 v%d, v0, 2, 2' % (T + 2))
    b('v_lshl_add_u32 v%d, v%d, 2, v%d' % (T + 3, T, T + 2))
    b('v_and_b32 v%d, 7, v%d' % (T + 4, T + 3))
    b('v_lshlrev_b32 v%d, 8, v%d' % (T + 3, T + 3))
    b('v_and_b32 v%d, 3, v0' % (T + 5))
    b('v_lshl_add_u32 v%d, v%d, 3, v%d' % (T + 3, T + 5, T + 3))
    for db in range(8):
        b('v_xor_b32 v%d, %d, v%d' % (T + 5, db, T + 4))
        b('v_lshl_add_u32 v%d, v%d, 5, v%d' % (V_TA + db, T + 5, T + 3))
    b('v_lshlrev_b32 v%d, 1, v%d' % (T + 4, T + 4))
    b('v_and_b32 v%d, 3, v0' % (T + 5))
    b('v_xor_b32 v%d, v%d, v%d' % (T + 4, T + 4, T + 5))
    b('v_bfe_u32 v%d, v0, 2, 2' % (T + 2))
    b('v_lshl_add_u32 v%d, v%d, 2, v%d' % (T + 3, T, T + 2))
    b('v_lshlrev_b32 v%d, 8, v%d' % (T + 3, T + 3))
    for u in range(4):
        b('v_xor_b32 v%d, %d, v%d' % (T + 5, 4 * u, T + 4))
        b('v_lshl_add_u32 v%d, v%d, 4, v%d' % (V_WA + u, T + 5, T + 3))
    b('v_xor_b32 v%d, v%d, v%d' % (T + 2, T, T + 1))
    b('v_lshlrev_b32 v%d, 8, v%d' % (T + 3, T + 1))
    for u in range(4):
        b('v_xor_b32 v%d, %d, v%d' % (T + 4, 4 * u, T + 2))
        b('v_lshl_add_u32 v%d, v%d, 4, v%d' % (V_KA + u, T + 4, T + 3))
    b('s_lshl_b32 s%d, s%d, 13' % (S_W8K, S_W))
    b('s_lshl_b32 s%d, s%d, 12' % (S_W4K, S_W))
    b('s_lshl_b32 s%d, s%d, 8' % (S_T0, S_HEAD))
    mk_srd(b, S_WQ, P_WQ, None, S_T0)
    b('s_sub_u32 s%d, %d, s%d' % (S_WQ + 2, 512 * 8192, S_T0))
    b('s_lshl_b32 s%d, s%d, 19' % (S_T0, S_HEAD))
    b('s_add_u32 s%d, s%d, %d' % (S_T0, S_T0, 1536 * 256))
    mk_srd(b, S_K, P_K, 512 * 256, S_T0)
    mk_srd(b, S_V, P_V, 512 * 256, S_T0)
    b('s_lshl_b32 s%d, s%d, 18' % (S_WSRC, S_W))
    b('s_lshl_b32 s%d, s%d, 4' % (S_T0, S_QT))
    b('s_lshl_b32 s%d, s%d, 2' % (S_T1, S_W))
    b('s_add_u32 s%d, s%d, s%d' % (S_T0, S_T0, S_T1))
    b('s_lshl_b32 s%d, s%d, 14' % (S_HB, S_T0))
    b('s_add_u32 s%d, s%d, 0x%x' % (S_HB, S_HB, WS_H))
    b('s_lshl_b32 s%d, s%d, 17' % (S_OB, S_T0))
    b('s_lshl_b32 s%d, s%d, 12' % (S_T1, S_HEAD))
    b('s_add_u32 s%d, s%d, s%d' % (S_OB, S_OB, S_T1))
    b('s_add_u32 s%d, s%d, 0x%x' % (S_OB, S_OB, WS_O))
    b('s_mov_b32 s%d, 0' % S_MODE)
    mk_srd(b, S_WO, P_WO, 4096 * 1024); mk_srd(b, S_WG, P_WG, 512 * 2752); mk_srd(b, S_WU, P_WU, 512 * 2752); mk_srd(b, S_WD, P_WD, 1376 * 1024)
    b('s_bfe_u32 s%d, s2, 0x20001' % S_PFO)
    b('s_lshl_b32 s%d, s%d, 20' % (S_PFO, S_PFO))
    b('s_lshr_b32 s%d, s2, 3' % S_T1)
    b('s_lshl_b32 s%d, s%d, 15' % (S_T1, S_T1))
    b('s_add_u32 s%d, s%d, s%d' % (S_PFO, S_PFO, S_T1))
    b('s_add_u32 s%d, s%d, s%d' % (S_PFO, S_PFO, S_W8K))


def qproj(b):
    AHEAD = int(os.environ.get('HA16', '4'))
    for u in range(AHEAD):
        for t, g in h_load(u): b(t, g)
    if 'wall' in OPT:
        b('s_waitcnt vmcnt(%d)' % (4 * AHEAD))
    else:
        b.waitvm('W0')
    b('s_barrier')
    stamp(b, 5)

    def a_reads(s):
        buf = V_Q + 32 * (s & 1)
        p = s // 4
        return ['ds_read_b64_tr_b16 %s, v%d offset:%d' % (vr(buf + 4 * db + 2 * kk, 2), V_WA + db // 2, (p & 1) * SLOT + (s & 3) * 8192 + kk * 4096 + 8 * (db & 1))
                for db in range(8) for kk in range(2)]
    for t in a_reads(0): b(t)
    stream = []
    streams = ((0, 2, dma_w(2)), (2, 2, dma_kv(0)), (4, 4, dma_w(3)), (8, 4, dma_kv(1)), (12, 4, dma_kv(2)))
    if 'w3pre' in OPT:
        streams = ((0, 4, dma_w(3)), (4, 4, dma_kv(0)), (8, 4, dma_kv(1)), (12, 4, dma_kv(2)))
    if 'wall' in OPT:
        streams = ((2, 4, dma_kv(0)), (8, 4, dma_kv(1)), (12, 4, dma_kv(2)))
    for first, span, ops in streams:
        for k, x in enumerate(ops):
            stream.append((first + (k * span) // len(ops), x))
    sc = Sched()
    for s in range(16):
        base = 32 * s
        for db in range(8):
            for qb in range(4):
                d = vr(V_ACC + (db * 4 + qb) * 4, 4)
                sc.mfma(base + 4 * db + qb, '%s %s, %s, %s, %s' % (MF, d, vr(V_Q + 32 * (s & 1) + 4 * db, 4), ar(16 * s + 4 * qb, 4), '0' if s == 0 else d))
        if s + 1 < 16:
            first = 0
            if (s + 1) % 4 == 0:
                p = (s + 1) // 4
                if 'wall' not in OPT:
                    sc.add(base, lambda bb, p=p: (bb.waitvm('W%d' % p), bb('s_barrier')))
                elif p >= 2:
                    sc.add(base, 's_barrier')
                if p == 2:
                    for u in range(4):
                        sc.add(base + u // 2, 'v_add_u32 v%d, 0x10000, v%d' % (V_WA + u, V_WA + u))
                    first = 2
            for k, t in enumerate(a_reads(s + 1)):
                sc.add(base + max(first, 2 * k) if k < 4 else base + 2 * k, t)
        if s + AHEAD < 16:
            for k, (t, g) in enumerate(h_load(s + AHEAD)):
                sc.add(base + 1 + 6 * k, t, g)
        k = 0
        for (st, (t, g)) in stream:
            if st == s:
                sc.add(base + 3 + 4 * k, t, g)
                k += 1
    sc.emit(b, 0, 512)
    for qb in range(4):
        for u in range(4):
            for jj in range(2):
                acc = V_ACC + ((2 * u + jj) * 4 + qb) * 4
                for i in range(2):
                    b('v_cvt_pk_bf16_f32 v%d, v%d, v%d' % (V_Q + (qb * 4 + u) * 4 + 2 * jj + i, acc + 2 * i, acc + 2 * i + 1))


def k_reads(blk, buf):
    return ['ds_read_b128 %s, v%d offset:%d' % (ar(A_KF + 32 * buf + (kb * 4 + u) * 4, 4), V_KA + u, (blk & 1) * 8192 + kb * 4096)
            for kb in range(2) for u in range(4)]


def v_reads(blk, buf):
    return ['ds_read_b64_tr_b16 %s, v%d offset:%d' % (ar(A_VF + 32 * buf + 4 * db + 2 * jj, 2), V_TA + db, (blk & 1) * 8192 + jj * 4096)
            for db in range(8) for jj in range(2)]


def qk(qb, kb, u, buf, first_c):
    s = vr(V_S + (qb * 2 + kb) * 4, 4)
    return '%s %s, %s, %s, %s' % (MF, s, ar(A_KF + 32 * buf + (kb * 4 + u) * 4, 4), vr(V_Q + (qb * 4 + u) * 4, 4), s if u else first_c)


def pv(qb, db, buf, first):
    o = ar(A_O + (db * 4 + qb) * 4, 4)
    return '%s %s, %s, %s, %s' % (MF, o, ar(A_VF + 32 * buf + 4 * db, 4), vr(V_P + 4 * qb, 4), '0' if first else o)


def lsum(qb, first):
    l = vr(V_L + 4 * qb, 4)
    return '%s %s, %s, %s, %s' % (MF, l, vr(V_ONES, 4), vr(V_P + 4 * qb, 4), '0' if first else l)


def exps(qb):
    return ['v_exp_f32 v%d, v%d' % (V_S + 8 * qb + e, V_S + 8 * qb + e) for e in range(8)]


def cvts(qb):
    return ['v_cvt_pk_bf16_f32 v%d, v%d, v%d' % (V_P + 4 * qb + k, V_S + 8 * qb + 2 * k, V_S + 8 * qb + 2 * k + 1) for k in range(4)]


def lanes_16_32(b, x, tmp, op):
    for sw in ('v_permlane16_swap_b32', 'v_permlane32_swap_b32'):
        b('v_mov_b32 v%d, v%d' % (tmp, x))
        b('%s v%d, v%d' % (sw, x, tmp))
        b('%s v%d, v%d, v%d' % (op, x, x, tmp))


def prefetches():
    DUMMY = 250
    pre = ['v_lshlrev_b32 v%d, 7, v0' % V_PF, 'v_min_u32 v%d, 10, v0' % (V_PF + 1),
           's_lshl_b32 s%d, s2, 2' % S_T1, 's_add_u32 s%d, s%d, s%d' % (S_T1, S_T1, S_W), 's_mul_i32 s%d, s%d, 11' % (S_T1, S_T1),
           'v_add_u32 v%d, s%d, v%d' % (V_PF + 1, S_T1, V_PF + 1), 'v_lshlrev_b32 v%d, 7, v%d' % (V_PF + 1, V_PF + 1)]
    loads = ['buffer_load_dword v%d, v%d, s[%d:%d], s%d offen' % (DUMMY, V_PF, S_WO, S_WO + 3, S_PFO)]
    for srd_ in (S_WG, S_WU, S_WD):
        loads.append('buffer_load_dword v%d, v%d, s[%d:%d], 0 offen' % (DUMMY, V_PF + 1, srd_, srd_ + 3))
    return pre, loads


def out_group(qb, db32):
    t0 = OUT_SCRATCH[db32 & 1]
    ops = []
    for jj in range(2):
        o = A_O + ((2 * db32 + jj) * 4 + qb) * 4
        ops += ['v_accvgpr_read_b32 v%d, a%d' % (t0 + 4 * jj + k, o + k) for k in range(4)]
    ops += ['v_mul_f32 v%d, v%d, v%d' % (t0 + k, t0 + k, V_R + qb) for k in range(8)]
    ops += ['v_cvt_pk_bf16_f32 v%d, v%d, v%d' % (t0 + 8 + k, t0 + 2 * k, t0 + 2 * k + 1) for k in range(4)]
    soff = ['s_add_u32 s%d, s%d, %d' % (S_T2, S_OB, qb * 131072)] if db32 == 0 else []
    st = 'buffer_store_dwordx4 %s, v%d, s[%d:%d], s%d offen offset:%d sc1' % (vr(t0 + 8, 4), V_LANE16, S_WS, S_WS + 3, S_T2, db32 * 1024)
    return ops, soff, st


def attention(b, name):
    b.label(name + '_attn')
    for k in range(4):
        b('v_add_u32 v%d, %d, v%d' % (V_KA + k, kv_slot(0) * SLOT, V_KA + k))
    for k in range(8):
        b('v_add_u32 v%d, %d, v%d' % (V_TA + k, kv_slot(0) * SLOT + 16384, V_TA + k))
    for k in range(4):
        b('v_mov_b32 v%d, 0x3f803f80' % (V_ONES + k))
    b.waitvm('C0')
    b('s_barrier')
    for t in k_reads(0, 0): b(t)
    l = uid('kv12')
    b('s_cmp_eq_u32 s%d, 0' % S_MODE)
    b('s_cbranch_scc1 %s' % l)
    for i in (1, 2):
        for t, g in dma_kv(i):
            raw(b, t)
            if ' m0,' in t: raw(b, 's_nop 0')
    raw(b, 's_waitcnt vmcnt(0)')
    b.label(l)
    for t in k_reads(1, 1): b(t)
    for qb in range(4):
        for kb in range(2):
            for u in range(4):
                b(qk(qb, kb, u, 0, '0'))
        if qb < 2:
            for t in v_reads(0, 0)[8 * qb:8 * qb + 8]: b(t)
    for k in range(4):
        b('v_add_u32 v%d, 0x%x, v%d' % (V_KA + k, ((kv_slot(1) - kv_slot(0)) * SLOT) & 0xffffffff, V_KA + k))
    b('s_cmp_lg_u32 s%d, 0' % S_MODE)
    b('s_cbranch_scc1 %s_havemax' % name)
    for qb in range(4):
        S, M = V_S + 8 * qb, V_M + qb
        b('v_max3_f32 v%d, v%d, v%d, v%d' % (M, S, S + 1, S + 2))
        b('v_max3_f32 v%d, v%d, v%d, v%d' % (M, M, S + 3, S + 4))
        b('v_max3_f32 v%d, v%d, v%d, v%d' % (M, M, S + 5, S + 6))
        b('v_max_f32 v%d, v%d, v%d' % (M, M, S + 7))
    for qb in range(4):
        lanes_16_32(b, V_M + qb, V_T + qb, 'v_max_f32')
        b('v_add_f32 v%d, %s, v%d' % (V_M + qb, f32(MAX_OFF), V_M + qb))
    b.label(name + '_havemax')
    b('s_nop 7')
    for qb in range(4):
        for i in range(4):
            b('v_sub_f32 v%d, 0, v%d' % (V_NEG + 4 * qb + i, V_M + qb))
        for i in range(8):
            b('v_sub_f32 v%d, v%d, v%d' % (V_S + 8 * qb + i, V_S + 8 * qb + i, V_M + qb))
    for qb in range(3):
        for t in exps(qb): b(t)
        for t in cvts(qb): b(t)
    stamp(b, 7)

    NB = 16
    S_C, S_D, S_LREQ, S_SRC, S_SLOT = 34, 35, 36, 37, 38

    def dma_dyn():
        out = [('s_mov_b32 m0, s%d' % S_LREQ, None), ('s_nop 0', None)]
        for ii in range(4):
            out.append(('buffer_load_dwordx4 v%d, s[%d:%d], s%d offen offset:%d lds' % (V_KOFF + ii, S_K, S_K + 3, S_SRC, ii * 1024), None))
        out.append(('s_add_u32 m0, s%d, 16384' % S_LREQ, None))
        for ii in range(4):
            out.append(('buffer_load_dwordx4 v%d, s[%d:%d], s%d offen offset:%d lds' % (V_VOFF + (ii & 1), S_V, S_V + 3, S_SRC, ii * 1024), None))
        return out

    def block(sc, pos, j, loop):
        last = j == NB - 1
        G = 9 if last else 17
        if j > 0:
            sc.add(pos, cvts(2)[3])
        for qb in range(4):
            g0 = pos + G * qb
            for db in range(8):
                sc.mfma(g0 + db, pv(qb, db, j & 1, j == 0))
            sc.mfma(g0 + 8, lsum(qb, j == 0))
            if not last:
                k = 0
                for kb in range(2):
                    for u in range(4):
                        sc.mfma(g0 + 9 + k, qk(qb, kb, u, (j + 1) & 1, vr(V_NEG + 4 * qb, 4)))
                        k += 1
            sq = (qb - 1) % 4
            if not (last and qb > 0):
                e, c = exps(sq), cvts(sq)
                for i in range(8):
                    sc.add(g0 + 2 + 2 * i, e[i])
                for i in range(4):
                    if not (qb == 3 and i == 3):
                        sc.add(g0 + 5 + 4 * i, c[i])
        if j + 1 < NB:
            for k, t in enumerate(v_reads(j + 1, (j + 1) & 1)):
                sc.add(pos + G * (k // 8) + 1 + 2 * (k % 8), t)
        if j + 2 < NB:
            for k, t in enumerate(k_reads(j + 2, j & 1)):
                sc.add(pos + G * (2 + k // 4) + 1 + 4 * (k % 4), t)
        c = j // 2
        free = [G * g + o for g in range(4) for o in (0, 1, 3, 7, 11, 15)]
        lo, hi = [f for f in free if f < 2 * G], [f for f in free if f >= 2 * G]
        step = ('s%d' % S_D) if loop else '0x%x' % (((kv_slot(c + 1) - kv_slot(c)) * SLOT) & 0xffffffff)
        if j % 2 == 0 and j + 2 < NB:
            if loop:
                sc.add(pos, lambda bb: (bb('s_waitcnt vmcnt(16)'), bb('s_barrier')))
            else:
                sc.add(pos, lambda bb, c=c: (bb.waitvm('C%d' % (c + 1)), bb('s_barrier')))
            if c >= 1:
                for k in range(4):
                    sc.add(pos + lo[1 + 2 * k], 'v_add_u32 v%d, %s, v%d' % (V_KA + k, step, V_KA + k))
        if j % 2 == 0 and c + 1 < 8:
            for k in range(8):
                sc.add(pos + hi[1 + k], 'v_add_u32 v%d, %s, v%d' % (V_TA + k, step, V_TA + k))
        if j == 0:
            for k, (t, g) in enumerate(dma_kv(3)):
                sc.add(pos + free[(2, 4, 5, 6, 8, 10, 12, 14, 16, 18, 20)[k]], t, g)
        elif j % 2 == 1 and not last and (loop or c + 4 < 8):
            for k, (t, g) in enumerate(dma_dyn() if loop else dma_kv(c + 4)):
                sc.add(pos + free[2 * k + 1], t, g)
        return 4 * G

    sc = Sched()
    pos = block(sc, 0, 0, False)
    pos += block(sc, pos, 1, False)
    sc.emit(b, 0, pos, valu_last=True)
    if 'lst' in OPT: stamp(b, 24)
    b('s_mov_b32 s%d, 1' % S_C)
    b('s_mov_b32 s%d, %d' % (S_SLOT, SLOT))
    b('s_mov_b32 s%d, %d' % (S_D, SLOT))
    b('s_add_u32 s%d, s%d, %d' % (S_LREQ, S_W4K, kv_slot(5) * SLOT))
    b('s_add_u32 s%d, s%d, %d' % (S_SRC, S_W4K, 5 * 16384))
    b.loop_begin()
    b.label(name + '_kv_loop')
    sc = Sched()
    pos = block(sc, 0, 2, True)
    pos += block(sc, pos, 3, True)
    upd = ['s_add_u32 s%d, s%d, 1' % (S_C, S_C), 's_add_u32 s%d, s%d, 16384' % (S_SRC, S_SRC),
           's_add_u32 s%d, s%d, %d' % (S_LREQ, S_LREQ, SLOT)]
    for k, t in enumerate(upd):
        sc.add(pos - 6 + k, t)
    sc.add(pos - 3, 's_cmp_ge_u32 s%d, %d' % (S_LREQ, 5 * SLOT))
    sc.add(pos - 3, 's_cselect_b32 s%d, s%d, s%d' % (S_LREQ, S_W4K, S_LREQ))
    sc.add(pos - 2, 's_cmp_eq_u32 s%d, 5' % S_C)
    sc.add(pos - 2, 's_cselect_b32 s%d, 0x%x, s%d' % (S_D, (-4 * SLOT) & 0xffffffff, S_SLOT))
    sc.emit(b, 0, pos, valu_last=True)
    pre, loads = prefetches()
    lp = uid('nopf')
    raw(b, 's_cmp_lg_u32 s%d, %s\ns_cbranch_scc1 %s' % (S_C, os.environ.get('PF_AT', '5'), lp))
    for t in pre + loads: raw(b, t)
    raw(b, lp + ':')
    b('s_cmp_lt_u32 s%d, 7' % S_C)
    b('s_cbranch_scc1 %s_kv_loop' % name)
    b.loop_end(6)
    if 'lst' in OPT: stamp(b, 25)
    sc = Sched()
    pos = block(sc, 0, 14, False)
    lb = pos
    pos += block(sc, pos, 15, False)
    for qb in range(3):
        s0 = lb + 9 * (qb + 1) + 2
        sc.add(s0, 'v_rcp_f32 v%d, v%d' % (V_R + qb, V_L + 4 * qb))
        for db32 in range(4):
            ops, soff, st = out_group(qb, db32)
            for t in soff: sc.add(s0, t)
            for t in ops: sc.add(s0 + 1 + 2 * db32 if db32 < 3 else s0 + 6, t)
            sc.add(s0 + 2 + 2 * db32 if db32 < 3 else s0 + 7, st)
    sc.emit(b, 0, pos + 8, valu_last=True)
    stamp(b, 8)


def epilogue(b, name):
    T = V_T
    b('s_cmp_lg_u32 s%d, 0' % S_MODE)
    b('s_cbranch_scc1 %s_noguard' % name)
    b('v_add_f32 v%d, v%d, v%d' % (T + 1, V_L, V_L + 4))
    b('v_add_f32 v%d, v%d, v%d' % (T + 2, V_L + 8, V_L + 12))
    b('v_add_f32 v%d, v%d, v%d' % (T + 1, T + 1, T + 2))
    b('v_mov_b32 v%d, %s' % (T + 2, f32(L_LIMIT)))
    b('v_cmp_nle_f32 vcc, v%d, v%d' % (T + 1, T + 2))
    b('s_cmp_lg_u64 vcc, 0')
    b('s_cselect_b32 s%d, 1, 0' % S_T0)
    b('v_mov_b32 v%d, s%d' % (T + 3, S_T0))
    b('s_lshl_b32 s%d, s%d, 2' % (S_T1, S_W))
    b('s_add_u32 s%d, s%d, %d' % (S_T1, S_T1, 2 * SLOT))
    b('v_mov_b32 v%d, s%d' % (T + 4, S_T1))
    b('ds_write_b32 v%d, v%d' % (T + 4, T + 3))
    b('s_waitcnt lgkmcnt(0)')
    b('s_barrier')
    b('v_mov_b32 v%d, %d' % (T + 4, 2 * SLOT))
    b('ds_read_b128 %s, v%d' % (vr(T + 8, 4), T + 4))
    b('v_or_b32 v%d, v%d, v%d' % (T + 8, T + 8, T + 9))
    b('v_or_b32 v%d, v%d, v%d' % (T + 10, T + 10, T + 11))
    b('v_or_b32 v%d, v%d, v%d' % (T + 8, T + 8, T + 10))
    b('v_readfirstlane_b32 s%d, v%d' % (S_T0, T + 8))
    b('s_cmp_lg_u32 s%d, 0' % S_T0)
    b('s_cbranch_scc1 %s_fallback' % name)
    b.label(name + '_noguard')
    b('s_barrier')
    b('v_rcp_f32 v%d, v%d' % (V_R + 3, V_L + 12))
    for db32 in range(4):
        ops, soff, st = out_group(3, db32)
        for t in soff + ops: b(t)
        b(st)


def fallback(b, name):
    b.label(name + '_fallback')
    b('s_waitcnt vmcnt(0) lgkmcnt(0)')
    b('s_barrier')
    for k in range(4):
        b('v_add_u32 v%d, 0x%x, v%d' % (V_KA + k, (-kv_slot(7) * SLOT) & 0xffffffff, V_KA + k))
    for k in range(8):
        b('v_add_u32 v%d, 0x%x, v%d' % (V_TA + k, (-kv_slot(7) * SLOT - 16384) & 0xffffffff, V_TA + k))
    for qb in range(4):
        b('v_mov_b32 v%d, 0xff800000' % (V_M + qb))
    b('s_mov_b32 s%d, 0' % S_T2)
    b.label(name + '_fb_loop')
    b('s_lshl_b32 s%d, s%d, 14' % (S_CH, S_T2))
    b('s_add_u32 s%d, s%d, s%d' % (S_CH, S_CH, S_W4K))
    b('s_mov_b32 m0, s%d' % S_W4K)
    for ii in range(4):
        b('buffer_load_dwordx4 v%d, s[%d:%d], s%d offen offset:%d lds' % (V_KOFF + ii, S_K, S_K + 3, S_CH, ii * 1024))
    b('s_waitcnt vmcnt(0)')
    b('s_barrier')
    for blk in range(2):
        for t in k_reads(blk, 0): b(t)
        for qb in range(4):
            for kb in range(2):
                for u in range(4):
                    b(qk(qb, kb, u, 0, '0'))
        for qb in range(4):
            for i in range(0, 8, 2):
                b('v_max3_f32 v%d, v%d, v%d, v%d' % (V_M + qb, V_M + qb, V_S + 8 * qb + i, V_S + 8 * qb + i + 1))
    b('s_waitcnt lgkmcnt(0)')
    b('s_barrier')
    b('s_add_u32 s%d, s%d, 1' % (S_T2, S_T2))
    b('s_cmp_lt_u32 s%d, 8' % S_T2)
    b('s_cbranch_scc1 %s_fb_loop' % name)
    for qb in range(4):
        lanes_16_32(b, V_M + qb, V_T + qb, 'v_max_f32')
    b('s_mov_b32 s%d, 1' % S_MODE)
    for t, g in dma_kv(0): b(t)
    b('s_waitcnt vmcnt(0)')
    b('s_branch %s_attn' % name)


def pre(b):
    if 'wall' not in OPT:
        for p in range(3 if 'w3pre' in OPT else 2):
            for t, g in dma_w(p): b(t, g)
        return

    def own(bb, p):
        for t, g in dma_w(p): bb(t)

    def foreign(bb, p):
        for half in range(2):
            bb('s_mov_b32 m0, %d' % (p * SLOT + half * 4096))
            bb('s_mov_b32 s%d, %d' % (S_T0, p * 128 * 8192 + half * 4 * 32768))
            for ii in range(4):
                bb('buffer_load_dwordx4 v%d, s[%d:%d], s%d offen offset:%d lds' % (V_WOFF + ii, S_WQ, S_WQ + 3, S_T0, ii * 1024))

    def code(bb):
        done = uid('wdone')
        l2, l3 = uid('wv2'), uid('wv3')
        bb('s_cmp_eq_u32 s%d, 0' % S_W)
        bb('s_cbranch_scc1 %s' % done)
        own(bb, 0)
        bb('s_cmp_eq_u32 s%d, 2' % S_W)
        bb('s_cbranch_scc1 %s' % l2)
        bb('s_cmp_eq_u32 s%d, 3' % S_W)
        bb('s_cbranch_scc1 %s' % l3)
        foreign(bb, 0); own(bb, 1); own(bb, 2); own(bb, 3); foreign(bb, 3)
        bb('s_branch %s' % done)
        bb.label(l2)
        own(bb, 1); foreign(bb, 1); own(bb, 2); own(bb, 3)
        bb('s_branch %s' % done)
        bb.label(l3)
        own(bb, 1); own(bb, 2); foreign(bb, 2); own(bb, 3)
        bb.label(done)
    hidden(b, code)


def flag_index(b, dst):
    flag_off(b, dst, F_H, S_QT)


def main(b, name):
    qproj(b)
    stamp(b, 6)
    attention(b, name)
    epilogue(b, name)


def out_flag(b, dst):
    b('s_lshl_b32 s%d, s%d, 2' % (dst, S_QT))
    b('s_lshr_b32 s%d, s%d, 3' % (S_T0, S_HEAD))
    b('s_add_u32 s%d, s%d, s%d' % (dst, dst, S_T0))
    flag_off(b, dst, F_O, dst)
```

```python
from mc import *
from front import LN_LDS

MF = 'v_mfma_f32_16x16x32_bf16'


def p3(b, name):
    S_WO = 8
    S_W, S_KS, S_QT, S_NT, S_ROT, S_W8K = 16, 17, 18, 19, 20, 21
    S_AB, S_BB, S_T0, S_T1, S_T2, S_PB = 22, 23, 24, 25, 26, 27
    S_P, S_G1, S_G2, S_A2, S_L2, S_D, S_G3, S_SLOT = 28, 29, 30, 31, 32, 33, 34, 36
    S_BQ = (12, 40)
    V_WOFF, V_B, V_A, V_T = 2, 10, 12, 20
    V_AF = 32
    V_ACC = 128
    SLOT = 32768
    OOB = 0x10000000
    b('s_and_b32 s%d, s2, 7' % S_T0)
    b('s_lshr_b32 s%d, s2, 3' % S_T1)
    b('s_lshr_b32 s%d, s%d, 1' % (S_KS, S_T0))
    b('s_mov_b32 s%d, s%d' % (S_W, S_WAVE))
    b('s_and_b32 s%d, s%d, 1' % (S_T0, S_T0))
    b('s_lshl_b32 s%d, s%d, 3' % (S_T0, S_T0))
    b('s_lshr_b32 s%d, s%d, 2' % (S_QT, S_T1))
    b('s_and_b32 s%d, s%d, 3' % (S_NT, S_T1))
    b('s_add_u32 s%d, s%d, s%d' % (S_QT, S_QT, S_T0))
    T = V_T
    b('v_lshrrev_b32 v%d, 4, v0' % T)
    b('v_and_b32 v%d, 15, v0' % (T + 1))
    b('v_lshlrev_b32 v%d, 1, v%d' % (T + 2, T))
    b('v_xor_b32 v%d, v%d, v%d' % (T + 2, T + 2, T + 1))
    b('v_lshlrev_b32 v%d, 4, v%d' % (T + 2, T + 2))
    b('v_lshl_add_u32 v%d, v%d, 10, v%d' % (V_WOFF, T, T + 2))
    if M16:
        b('v_xor_b32 v%d, 128, v%d' % (T + 3, V_WOFF))
        for ii in range(1, 8):
            b('v_add_u32 v%d, %d, v%d' % (V_WOFF + ii, (ii & 3) * 3072 + (ii >> 2) * 16384, T + 3 if ii & 1 else V_WOFF))
    else:
        b('v_xor_b32 v%d, 128, v%d' % (V_WOFF + 4, V_WOFF))
        b('v_add_u32 v%d, 16384, v%d' % (V_WOFF + 4, V_WOFF + 4))
        for ii in range(1, 4):
            b('v_add_u32 v%d, %d, v%d' % (V_WOFF + ii, ii * 3072, V_WOFF))
            b('v_add_u32 v%d, %d, v%d' % (V_WOFF + 4 + ii, ii * 3072, V_WOFF + 4))
    b('v_lshlrev_b32 v%d, 4, v0' % V_B)
    b('s_lshl_b32 s%d, s%d, 13' % (S_W8K, S_W))
    b('s_lshl_b32 s%d, s%d, 20' % (S_T0, S_KS))
    mk_srd(b, S_WO, P_WO, 0x100000, S_T0)
    b('s_lshl_b32 s%d, s%d, 15' % (S_A2, S_W))
    b('s_lshl_b32 s%d, s%d, 8' % (S_T0, S_NT))
    b('s_add_u32 s%d, s%d, s%d' % (S_A2, S_A2, S_T0))
    b('s_lshl_b32 s%d, s%d, 3' % (S_T0, S_QT))
    b('s_lshl_b32 s%d, s%d, 1' % (S_T1, S_W))
    b('s_add_u32 s%d, s%d, s%d' % (S_T0, S_T0, S_T1))
    b('s_lshl_b32 s%d, s%d, 17' % (S_BB, S_T0))
    b('s_lshl_b32 s%d, s%d, 15' % (S_T1, S_KS))
    b('s_add_u32 s%d, s%d, s%d' % (S_BB, S_BB, S_T1))
    b('s_add_u32 s%d, s%d, 0x%x' % (S_BB, S_BB, WS_O))
    mk_srd(b, S_BQ[0], P_WSP, 32768, S_BB)
    b('s_add_u32 s%d, s%d, 131072' % (S_BB, S_BB))
    mk_srd(b, S_BQ[1], P_WSP, 32768, S_BB)
    b('s_mov_b32 s%d, s%d' % (S_L2, S_W8K))

    def dma_w(tag):
        out = []
        for half in range(2):
            grp = [('s_add_u32 m0, s%d, %d' % (S_L2, half * 4096), None)]
            for ii in range(4):
                grp.append(('buffer_load_dwordx4 v%d, s[%d:%d], s%d offen offset:%d lds' %
                            (V_WOFF + 4 * half + ii, S_WO, S_WO + 3, S_A2, ii * 1024), tag))
            out.append(grp)
        return out

    def b_load(ring, sreg, step):
        return ['buffer_load_dwordx4 %s, v%d, s[%d:%d], %s offen offset:%d sc1' %
                (ar(8 * ring + 4 * qq, 4), V_B, S_BQ[qq], S_BQ[qq] + 3, sreg, step * 1024) for qq in range(2)]

    def a_reads(buf, step):
        return ['ds_read_b64_tr_b16 %s, v%d offset:%d' % (vr(V_AF + 32 * buf + 4 * nb + 2 * jj, 2), V_A + nb, step * 8192 + jj * (4096 if M16 else 2048))
                for nb in range(8) for jj in range(2)]

    def advance_a():
        return ['s_add_u32 s%d, s%d, 0x20000' % (S_A2, S_A2),
                's_add_u32 s%d, s%d, %d' % (S_L2, S_L2, SLOT), 's_cmp_ge_u32 s%d, %d' % (S_L2, 5 * SLOT),
                's_cselect_b32 s%d, s%d, s%d' % (S_L2, S_W8K, S_L2)]

    if M16:
        b('v_bfe_u32 v%d, v0, 2, 2' % T)
        b('v_lshrrev_b32 v%d, 4, v0' % (T + 1))
        b('v_lshl_add_u32 v%d, v%d, 2, v%d' % (T + 3, T + 1, T))
        b('v_and_b32 v%d, 7, v%d' % (T + 1, T + 3))
        b('v_lshlrev_b32 v%d, 8, v%d' % (T + 3, T + 3))
        b('v_and_b32 v%d, 3, v0' % (T + 4))
        b('v_lshl_add_u32 v%d, v%d, 3, v%d' % (T + 3, T + 4, T + 3))
    else:
        b('v_bfe_u32 v%d, v0, 2, 2' % T)
        b('v_bfe_u32 v%d, v0, 4, 1' % (T + 1))
        b('v_lshrrev_b32 v%d, 5, v0' % (T + 2))
        b('v_lshlrev_b32 v%d, 4, v%d' % (T + 3, T + 1))
        b('v_lshlrev_b32 v%d, 2, v%d' % (T + 4, T + 2))
        b('v_add3_u32 v%d, v%d, v%d, v%d' % (T + 3, T + 3, T + 4, T))
        b('v_lshlrev_b32 v%d, 8, v%d' % (T + 3, T + 3))
        b('v_and_b32 v%d, 3, v0' % (T + 4))
        b('v_lshl_add_u32 v%d, v%d, 3, v%d' % (T + 3, T + 4, T + 3))
        b('v_lshlrev_b32 v%d, 2, v%d' % (T + 1, T + 1))
        b('v_or_b32 v%d, v%d, v%d' % (T + 1, T + 1, T))
    for nb in range(8):
        b('v_xor_b32 v%d, %d, v%d' % (T + 4, nb, T + 1))
        b('v_lshl_add_u32 v%d, v%d, 5, v%d' % (V_A + nb, T + 4, T + 3))
    for i in range(64):
        b('v_mov_b32 v%d, 0' % (V_ACC + i))
    b('s_lshl_b32 s%d, s%d, 7' % (S_PB, S_KS))
    b('s_add_u32 s%d, s%d, s%d' % (S_PB, S_PB, S_T0))
    b('s_lshl_b32 s%d, s%d, 14' % (S_PB, S_PB))
    b('s_lshl_b32 s%d, s%d, 12' % (S_T1, S_NT))
    b('s_add_u32 s%d, s%d, s%d' % (S_PB, S_PB, S_T1))
    b('s_add_u32 s%d, s%d, 0x%x' % (S_PB, S_PB, WS_PART))
    b('s_mov_b32 s%d, 0' % S_P)
    b('s_mov_b32 s%d, %d' % (S_D, SLOT))
    b('s_mov_b32 s%d, %d' % (S_SLOT, SLOT))
    b('s_lshr_b32 s%d, s%d, 1' % (S_T1, S_QT))
    b('s_lshl_b32 s%d, s%d, 2' % (S_T1, S_T1))
    b('s_add_u32 s%d, s%d, s%d' % (S_T1, S_T1, S_KS))
    flag_off(b, S_SY + 3, F_O, S_T1)
    yield
    for tag, ep in (('W0', None), ('WA', -1), ('WB', -1)):
        for grp in dma_w(tag):
            for t, g in grp: b(t, g, epoch=ep)
        for t in advance_a(): b(t)
    yield
    b('s_mov_b32 s%d, 4096' % S_G1)
    b('s_mov_b32 s%d, 8192' % S_G2)
    b('s_mov_b32 s%d, 12288' % S_G3)
    if 'dummy' in OPT:
        b('s_mov_b32 s%d, 0x10000' % S_T2)
    for st in range(7):
        for t in b_load(st, '0' if st < 4 else 's%d' % S_G1, st & 3):
            b(t)
            if 'dummy' in OPT:
                b('buffer_load_dword v31, off, s[%d:%d], s%d' % (S_BQ[0], S_BQ[0] + 3, S_T2), 'pf')
    b.waitvm('W0')
    b('s_barrier')
    stamp(b, 11)
    for t in a_reads(0, 0): b(t)

    b.loop_begin()
    b.label(name + '_loop')
    sc = Sched()
    for half in range(2):
        tag = 'WA' if half == 0 else 'WB'
        d = dma_w(tag)
        for i in range(4):
            st = 4 * half + i
            base = 16 * st
            for nb in range(8):
                for qq in range(2):
                    dd = vr(V_ACC + (nb * 2 + qq) * 4, 4)
                    sc.mfma(base + 2 * nb + qq, '%s %s, %s, %s, %s' % (MF, dd, vr(V_AF + 32 * (i & 1) + 4 * nb, 4), ar(8 * st + 4 * qq, 4), dd))
            if i == 3:
                sc.add(base, lambda bb, tag=tag: (bb.waitvm(tag, 1), bb('s_barrier')))
                dstep = ('s%d' % S_D) if half == 0 else '0x%x' % SLOT
                for nb in range(8):
                    sc.add(base + (nb + 1) // 2, 'v_add_u32 v%d, %s, v%d' % (V_A + nb, dstep, V_A + nb))
            rd = a_reads((i + 1) & 1, (i + 1) & 3)
            for k, t in enumerate(rd):
                if i == 3:
                    sc.add(base + min(15, max(k, (k // 2 + 1) // 2 + 1) if k < 4 else k), t)
                else:
                    sc.add(base + k, t)
            bl = b_load((st + 7) & 7, 's%d' % (S_G1, S_G2, S_G3)[((st + 7) >> 2) - 1], (st + 7) & 3)
            grp = d[i // 2]
            if i % 2 == 0:
                sc.add(base + 1, grp[0][0])
            sc.add(base + 3, bl[0])
            sc.add(base + 6, grp[1 + 2 * (i % 2)][0], tag)
            sc.add(base + 9, bl[1])
            sc.add(base + 12, grp[2 + 2 * (i % 2)][0], tag)
        c0 = 64 * half
        adv = advance_a()
        sc.add(c0 + 61, adv[0])
        sc.add(c0 + 62, adv[1])
        for t in adv[2:]:
            sc.add(c0 + 63, t)
    sc.add(20, 's_add_u32 s%d, s%d, 8192' % (S_G1, S_G1))
    sc.add(84, 's_add_u32 s%d, s%d, 8192' % (S_G2, S_G2))
    sc.add(126, 's_add_u32 s%d, s%d, 8192' % (S_G3, S_G3))
    sc.add(70, 's_add_u32 s%d, s%d, 1' % (S_P, S_P))
    sc.add(72, 's_cmp_eq_u32 s%d, 2' % S_P)
    sc.add(72, 's_cselect_b32 s%d, 0x%x, s%d' % (S_D, (-4 * SLOT) & 0xffffffff, S_SLOT))
    sc.emit(b, 0, 128)
    b('s_cmp_lt_u32 s%d, 4' % S_P)
    b('s_cbranch_scc1 %s_loop' % name)
    b.loop_end(4)
    stamp(b, 12)
    b('v_lshlrev_b32 v%d, 4, v0' % V_T)
    for qq in range(2):
        b('s_add_u32 s%d, s%d, %d' % (S_T0, S_PB, qq * 16384))
        for v in range(4):
            o = V_AF + 4 * (qq * 4 + v)
            for jj in range(2):
                acc = V_ACC + ((2 * v + jj) * 2 + qq) * 4
                for i in range(2):
                    b('v_cvt_pk_bf16_f32 v%d, v%d, v%d' % (o + 2 * jj + i, acc + 2 * i, acc + 2 * i + 1))
            b('buffer_store_dwordx4 %s, v%d, s[%d:%d], s%d offen offset:%d sc1' % (vr(o, 4), V_T, S_WS, S_WS + 3, S_T0, v * 1024))
    flag_off(b, S_SY, F_PART, S_QT)


GA, SB, CB, XR = 192, 208, 224, 240


def mod_loads(addr):
    loads = []
    for (reg, row) in ((GA, 2), (SB, 3), (CB, 4)):
        loads.append('s_mov_b32 s45, %d' % (WS_MOD + row * 2048))
        for bb in range(4):
            loads.append('buffer_load_dwordx4 %s, v%d, s[%d:%d], s45 offen offset:%d sc1' % (vr(reg + 4 * bb, 4), addr, S_WS, S_WS + 3, 64 * bb))
    return loads


def p3b_pre(b):
    mk_srd(b, 48, P_X, 2048 * 1024)
    b('s_lshl_b32 s45, s%d, 6' % S_WAVE)
    b('v_add_u32 v32, s45, v0')
    b('v_lshrrev_b32 v32, 3, v32')
    b('v_and_b32 v33, 3, v32')
    b('v_lshrrev_b32 v34, 2, v32')
    b('v_and_b32 v35, 7, v0')
    b('v_lshlrev_b32 v35, 10, v35')
    b('v_lshl_add_u32 v35, v34, 7, v35')
    b('v_lshl_add_u32 v35, v33, 3, v35')
    b('v_lshlrev_b32 v36, 8, v34')
    b('v_lshl_add_u32 v36, v33, 4, v36')
    b('s_and_b32 s47, s2, 7')
    b('s_lshl_b32 s47, s47, 5')
    b('s_lshr_b32 s46, s2, 3')
    b('s_add_u32 s47, s47, s46')
    b('s_lshl_b32 s46, s47, 13')
    for bb in range(4):
        b('buffer_load_dwordx2 %s, v35, s[48:51], s46 offen offset:%d' % (vr(XR + 2 * bb, 2), 32 * bb))
    for t in mod_loads(36): b(t)


def p3b(b, name):
    b('s_lshl_b32 s45, s%d, 6' % S_WAVE)
    b('v_add_u32 v11, s45, v0')
    b('v_and_b32 v1, 7, v0')
    b('v_lshrrev_b32 v2, 3, v11')
    b('v_and_b32 v3, 3, v2')
    b('v_lshrrev_b32 v4, 2, v2')
    b('s_and_b32 s47, s2, 7')
    b('s_lshl_b32 s47, s47, 5')
    b('s_lshr_b32 s48, s2, 3')
    b('s_add_u32 s47, s47, s48')
    b('s_lshr_b32 s16, s47, 1')
    b('s_and_b32 s17, s47, 1')
    b('s_lshl_b32 s17, s17, 3')
    b('v_add_u32 v6, s17, v1')
    b('v_lshlrev_b32 v6, 4, v6')
    b('v_lshlrev_b32 v7, 11, v4')
    b('v_lshlrev_b32 v9, 8, v3')
    b('v_add3_u32 v7, v7, v9, v6')
    b('v_lshlrev_b32 v9, 8, v4')
    b('v_lshlrev_b32 v10, 4, v3')
    b('v_add_u32 v9, v9, v10')
    b('s_lshl_b32 s19, s16, 14')
    b('s_add_u32 s19, s19, 0x%x' % WS_PART)
    b('s_lshr_b32 s50, s47, 4')
    flag_off(b, S_SY + 3, F_PART, 50)
    yield
    P = 64
    for ks in range(4):
        if ks:
            b('s_add_u32 s19, s19, 0x200000')
        for v in range(2):
            b('buffer_load_dwordx4 %s, v7, s[%d:%d], s19 offen offset:%d sc1' % (vr(P + 8 * ks + 4 * v, 4), S_WS, S_WS + 3, v * 1024))
    yield
    check_mod(b, mod_loads(9), list(range(GA, GA + 48)), 40)
    A = 96
    for ks in range(4):
        for p in range(8):
            src = P + 8 * ks + p
            if ks == 0:
                b('v_lshlrev_b32 v%d, 16, v%d' % (A + 2 * p, src))
                b('v_and_b32 v%d, 0xffff0000, v%d' % (A + 2 * p + 1, src))
            else:
                b('v_lshlrev_b32 v%d, 16, v%d' % (A + 16 + 2 * p, src))
                b('v_and_b32 v%d, 0xffff0000, v%d' % (A + 17 + 2 * p, src))
        if ks:
            for i in range(16):
                b('v_add_f32 v%d, v%d, v%d' % (A + i, A + i, A + 16 + i))
    P = A
    X = 20
    for p in range(8):
        b('v_lshlrev_b32 v%d, 16, v%d' % (X + 2 * p, XR + p))
        b('v_and_b32 v%d, 0xffff0000, v%d' % (X + 2 * p + 1, XR + p))
    for i in range(16):
        b('v_fmac_f32 v%d, v%d, v%d' % (X + i, GA + i, P + i))
    for p in range(8):
        b('v_cvt_pk_bf16_f32 v%d, v%d, v%d' % (12 + p, X + 2 * p, X + 2 * p + 1))
    b('s_lshl_b32 s18, s16, 14')
    b('s_add_u32 s46, s18, 0x%x' % WS_X1)
    b('buffer_store_dwordx4 v[12:15], v7, s[%d:%d], s46 offen sc1' % (S_WS, S_WS + 3))
    b('buffer_store_dwordx4 v[16:19], v7, s[%d:%d], s46 offen offset:1024 sc1' % (S_WS, S_WS + 3))
    for p in range(8):
        b('v_lshlrev_b32 v%d, 16, v%d' % (X + 2 * p, 12 + p))
        b('v_and_b32 v%d, 0xffff0000, v%d' % (X + 2 * p + 1, 12 + p))
    layernorm16(b, X, 40, 1, LN_LDS)
    for i in range(16):
        b('v_fma_f32 v%d, v%d, v%d, v%d' % (X + i, X + i, CB + i, SB + i))
    for p in range(8):
        b('v_cvt_pk_bf16_f32 v%d, v%d, v%d' % (52 + p, X + 2 * p, X + 2 * p + 1))
    b('s_add_u32 s46, s18, 0x%x' % WS_H2)
    b('buffer_store_dwordx4 v[52:55], v7, s[%d:%d], s46 offen sc1' % (S_WS, S_WS + 3))
    b('buffer_store_dwordx4 v[56:59], v7, s[%d:%d], s46 offen offset:1024 sc1' % (S_WS, S_WS + 3))
    flag_off(b, S_SY, F_H2, 50)
```

```python
from mc import *

MF = 'v_mfma_f32_16x16x32_bf16'
WG_ROW = 2752


def p4(b, name):
    S_M = 20
    S_W, S_QT, S_FG, S_T0, S_T1, S_T2 = 24, 25, 26, 27, 28, 29
    S_AB, S_BB, S_HB, S_ROT = 30, 31, 33, 34
    S_P, S_G1, S_G2, S_A3, S_L3, S_D, S_G3, S_WL = 35, 36, 37, 38, 39, 40, 41, 44
    S_BQ = (8, 12)
    V_WOFF, V_B, V_A, V_T = 248, 6, 8, 20
    V_AF = 32
    V_ACC = 128
    SLOT, NSLOT = 24576, 6
    CH = 64 * WG_ROW
    OOB = 0x10000000
    b('s_and_b32 s%d, s2, 7' % S_T0)
    b('s_lshr_b32 s%d, s2, 3' % S_T1)
    b('s_and_b32 s%d, s%d, 1' % (S_FG, S_T0))
    b('s_lshl_b32 s%d, s%d, 3' % (S_FG, S_FG))
    b('s_and_b32 s%d, s%d, 7' % (S_T2, S_T1))
    b('s_add_u32 s%d, s%d, s%d' % (S_FG, S_FG, S_T2))
    b('s_lshr_b32 s%d, s%d, 1' % (S_QT, S_T0))
    b('s_mov_b32 s%d, s%d' % (S_W, S_WAVE))
    b('s_lshl_b32 s%d, s%d, 2' % (S_QT, S_QT))
    b('s_lshr_b32 s%d, s%d, 3' % (S_T1, S_T1))
    b('s_add_u32 s%d, s%d, s%d' % (S_QT, S_QT, S_T1))
    T = V_T
    b('s_mov_b32 s%d, 0x15555556' % S_T0)
    b('s_mov_b32 s%d, %d' % (S_T1, WG_ROW))
    for i in range(3):
        b('v_add_u32 v%d, %d, v0' % (T, 64 * i))
        b('v_mul_hi_u32 v%d, v%d, s%d' % (T + 1, T, S_T0))
        b('v_mul_u32_u24 v%d, 12, v%d' % (T + 2, T + 1))
        b('v_sub_u32 v%d, v%d, v%d' % (T + 2, T, T + 2))
        b('v_bfe_u32 v%d, v%d, 2, 1' % (T + 3, T + 1))
        b('v_lshlrev_b32 v%d, 1, v%d' % (T + 3, T + 3))
        b('v_xor_b32 v%d, v%d, v%d' % (T + 2, T + 2, T + 3))
        b('v_lshlrev_b32 v%d, 4, v%d' % (T + 2, T + 2))
        b('v_mul_lo_u32 v%d, v%d, s%d' % (T + 1, T + 1, S_T1))
        b('v_add_u32 v%d, v%d, v%d' % (V_WOFF + i, T + 1, T + 2))
        if i:
            b('v_subrev_u32 v%d, %d, v%d' % (V_WOFF + i, 1024 * i, V_WOFF + i))
    b('s_and_b32 s%d, s%d, 1' % (S_T0, S_W))
    b('s_mul_i32 s%d, s%d, %d' % (S_AB, S_T0, 32 * WG_ROW))
    b('s_mul_i32 s%d, s%d, 192' % (S_T1, S_FG))
    b('s_add_u32 s%d, s%d, s%d' % (S_AB, S_AB, S_T1))
    b('s_mul_i32 s%d, s%d, 6144' % (S_WL, S_W))
    b('s_mov_b32 s%d, s%d' % (S_A3, S_AB))
    b('s_mov_b32 s%d, s%d' % (S_L3, S_WL))
    b('s_cmp_ge_u32 s%d, 2' % S_W)
    b('s_cselect_b32 s%d, s%d, s%d' % (S_M, P_WU, P_WG))
    b('s_cselect_b32 s%d, s%d, s%d' % (S_M + 1, P_WU + 1, P_WG + 1))
    b('s_mov_b32 s%d, 0x%x' % (S_M + 2, 512 * WG_ROW))
    b('s_mov_b32 s%d, 0x20000' % (S_M + 3))

    def dma_w(tag):
        out = []
        for half in range(2):
            grp = [('s_add_u32 m0, s%d, %d' % (S_L3, half * 3072), None),
                   ('s_add_u32 s%d, s%d, %d' % (S_T2, S_A3, half * 16 * WG_ROW), None)]
            for i in range(3):
                grp.append(('buffer_load_dwordx4 v%d, s[%d:%d], s%d offen offset:%d lds' %
                            (V_WOFF + i, S_M, S_M + 3, S_T2, i * 1024), tag))
            out.append(grp)
        return out

    def b_load(ring, sreg, step):
        return ['buffer_load_dwordx4 %s, v%d, s[%d:%d], %s offen offset:%d sc1' %
                (ar(8 * ring + 4 * qq, 4), V_B, S_BQ[qq], S_BQ[qq] + 3, sreg, step * 1024) for qq in range(2)]

    def a_reads(buf, step):
        return ['ds_read_b64_tr_b16 %s, v%d offset:%d' % (vr(V_AF + 48 * buf + 4 * (mat * 6 + nb) + 2 * jj, 2), V_A + nb, mat * 12288 + step * 6144 + jj * 3072)
                for nb in range(6) for mat in range(2) for jj in range(2)]

    def advance_a(wrap=False):
        out = ['s_add_u32 s%d, s%d, %d' % (S_A3, S_A3, CH), 's_add_u32 s%d, s%d, %d' % (S_L3, S_L3, SLOT)]
        if wrap:
            out += ['s_cmp_ge_u32 s%d, %d' % (S_L3, NSLOT * SLOT), 's_cselect_b32 s%d, s%d, s%d' % (S_L3, S_WL, S_L3)]
        return out

    def first_chunks(bb):
        lskip = uid('w0')
        bb('s_cmp_eq_u32 s%d, 0' % S_W)
        bb('s_cbranch_scc1 %s' % lskip)
        mk_srd(bb, 52, P_WG, 512 * WG_ROW)
        bb('s_sub_u32 s56, s%d, 1' % S_W)
        bb('s_mul_i32 s57, s56, %d' % SLOT)
        bb('s_mul_i32 s56, s56, %d' % CH)
        bb('s_mul_i32 s58, s%d, 192' % S_FG)
        bb('s_add_u32 s56, s56, s58')
        for half in range(2):
            bb('s_add_u32 m0, s57, %d' % (half * 3072))
            bb('s_add_u32 s58, s56, %d' % (half * 16 * WG_ROW))
            for i in range(3):
                bb('buffer_load_dwordx4 v%d, s[52:55], s58 offen offset:%d lds' % (V_WOFF + i, i * 1024))
        for k in range(3):
            for grp in dma_w(None):
                for t, g in grp: bb(t)
            for t in advance_a(): bb(t)
        ldone = uid('w0d')
        bb('s_branch %s' % ldone)
        bb.label(lskip)
        for k in range(3):
            for t in advance_a(): bb(t)
        bb.label(ldone)
    yield first_chunks
    b('v_lshlrev_b32 v%d, 4, v0' % V_B)
    b('s_lshl_b32 s%d, s%d, 3' % (S_T0, S_QT))
    b('s_lshl_b32 s%d, s%d, 1' % (S_T1, S_W))
    b('s_add_u32 s%d, s%d, s%d' % (S_T0, S_T0, S_T1))
    b('s_lshl_b32 s%d, s%d, 14' % (S_BB, S_T0))
    b('s_add_u32 s%d, s%d, 0x%x' % (S_BB, S_BB, WS_H2))
    mk_srd(b, S_BQ[0], P_WSP, 16384, S_BB)
    b('s_add_u32 s%d, s%d, 16384' % (S_BB, S_BB))
    mk_srd(b, S_BQ[1], P_WSP, 16384, S_BB)
    b('v_bfe_u32 v%d, v0, 2, 2' % T)
    b('v_lshrrev_b32 v%d, 4, v0' % (T + 1))
    b('v_lshl_add_u32 v%d, v%d, 2, v%d' % (T + 2, T + 1, T))
    b('v_mul_u32_u24 v%d, 192, v%d' % (T + 2, T + 2))
    b('v_and_b32 v%d, 3, v0' % (T + 3))
    b('v_lshl_add_u32 v%d, v%d, 3, v%d' % (T + 2, T + 3, T + 2))
    b('v_and_b32 v%d, 1, v%d' % (T + 1, T + 1))
    for nb in range(6):
        b('v_xor_b32 v%d, %d, v%d' % (T + 3, nb, T + 1))
        b('v_lshl_add_u32 v%d, v%d, 5, v%d' % (V_A + nb, T + 3, T + 2))
    for i in range(96):
        b('v_mov_b32 v%d, 0' % (V_ACC + i))
    b('s_mul_i32 s%d, s%d, %d' % (S_HB, S_T0, 43 * 1024))
    b('s_mul_i32 s%d, s%d, 3072' % (S_T1, S_FG))
    b('s_add_u32 s%d, s%d, s%d' % (S_HB, S_HB, S_T1))
    b('s_add_u32 s%d, s%d, 0x%x' % (S_HB, S_HB, WS_HH))
    b('s_mov_b32 s%d, 0' % S_P)
    b('s_mov_b32 s%d, %d' % (S_D, SLOT))
    flag_off(b, S_SY + 3, F_H2, S_QT)
    yield
    b('s_mov_b32 s%d, 4096' % S_G1)
    b('s_mov_b32 s%d, 8192' % S_G2)
    b('s_mov_b32 s%d, 12288' % S_G3)
    if 'dummy' in OPT:
        b('s_mov_b32 s%d, 0x10000' % S_T2)
    for st in range(7):
        for qq, t in enumerate(b_load(st, '0' if st < 4 else 's%d' % S_G1, st & 3)):
            b(t)
            if 'dummy' in OPT:
                for _ in range(1 + qq):
                    b('buffer_load_dword v31, off, s[%d:%d], s%d' % (S_BQ[0], S_BQ[0] + 3, S_T2), 'pf')
    stamp(b, 16)
    for t in a_reads(0, 0): b(t)

    b.loop_begin()
    b.label(name + '_loop')
    sc = Sched()
    for pos in range(4):
        tag = 'T%d' % pos
        d = dma_w(tag)
        for i in range(2):
            st = 2 * pos + i
            base = 24 * st
            k = 0
            for nb in range(6):
                for mat in range(2):
                    for qq in range(2):
                        dd = vr(V_ACC + ((mat * 6 + nb) * 2 + qq) * 4, 4)
                        sc.mfma(base + k, '%s %s, %s, %s, %s' % (MF, dd, vr(V_AF + 48 * i + 4 * (mat * 6 + nb), 4), ar(8 * st + 4 * qq, 4), dd))
                        k += 1
            rd = a_reads((i + 1) & 1, (i + 1) & 1)
            if i == 1:
                sc.add(base, lambda bb, pos=pos: (bb.waitvm('T%d' % ((pos - 2) % 4), 1 if pos < 2 else 0), bb('s_barrier')))
                dstep = ('s%d' % S_D) if pos == 1 else '0x%x' % SLOT
                for nb in range(6):
                    sc.add(base + nb // 2, 'v_add_u32 v%d, %s, v%d' % (V_A + nb, dstep, V_A + nb))
                for k, t in enumerate(rd):
                    sc.add(base + min(23, max(k, 3) if k < 4 else k), t)
            else:
                for k, t in enumerate(rd):
                    sc.add(base + k, t)
            bl = b_load((st + 7) & 7, 's%d' % (S_G1, S_G2, S_G3)[((st + 7) >> 2) - 1], (st + 7) & 3)
            grp = d[i]
            sc.add(base + 1, grp[0][0]); sc.add(base + 2, grp[1][0])
            sc.add(base + 5, bl[0])
            sc.add(base + 8, grp[2][0], tag)
            sc.add(base + 11, bl[1])
            sc.add(base + 14, grp[3][0], tag)
            sc.add(base + 19, grp[4][0], tag)
        c0 = 48 * pos
        adv = advance_a(wrap=(pos == 2))
        sc.add(c0 + 44, adv[0])
        sc.add(c0 + 45, adv[1])
        for t in adv[2:]:
            sc.add(c0 + 46, t)
    sc.add(30, 's_add_u32 s%d, s%d, 8192' % (S_G1, S_G1))
    sc.add(24 * 5 + 3, 's_add_u32 s%d, s%d, 8192' % (S_G2, S_G2))
    sc.add(190, 's_add_u32 s%d, s%d, 8192' % (S_G3, S_G3))
    sc.add(100, 's_add_u32 s%d, s%d, 1' % (S_P, S_P))
    sc.add(102, 's_mov_b32 s%d, 0x%x' % (S_D, (-5 * SLOT) & 0xffffffff))
    sc.emit(b, 0, 192)
    b('s_cmp_lt_u32 s%d, 2' % S_P)
    b('s_cbranch_scc1 %s_loop' % name)
    b.loop_end(2)
    stamp(b, 17)
    b('v_lshlrev_b32 v%d, 4, v0' % V_T)
    for v in range(3):
        if v == 1:
            b('s_cmp_ge_u32 s%d, 14' % S_FG)
            b('s_cbranch_scc1 %s_stored' % name)
        for qq in range(2):
            t0 = 32 + 8 * (v * 2 + qq)
            for jj in range(2):
                nb = 2 * v + jj
                g = V_ACC + (nb * 2 + qq) * 4
                u = V_ACC + ((6 + nb) * 2 + qq) * 4
                for i in range(4):
                    b('v_mul_f32 v%d, v%d, v%d' % (g + i, g + i, u + i))
                for i in range(2):
                    b('v_cvt_pk_bf16_f32 v%d, v%d, v%d' % (t0 + 2 * jj + i, g + 2 * i, g + 2 * i + 1))
            b('s_add_u32 s%d, s%d, %d' % (S_T0, S_HB, qq * 43 * 1024))
            b('buffer_store_dwordx4 %s, v%d, s[%d:%d], s%d offen offset:%d sc1' % (vr(t0, 4), V_T, S_WS, S_WS + 3, S_T0, v * 1024))
    b.label(name + '_stored')
    flag_off(b, S_SY, F_HH, S_QT)


def p5(b, name):
    S_WD, S_OUT = 8, 16
    S_W, S_QT, S_NT, S_T0, S_T1, S_T2 = 20, 21, 22, 23, 24, 25
    S_A, S_B, S_LB, S_N, S_L, S_D, S_LIM, S_S, S_RING, S_SA = 26, 27, 28, 29, 30, 31, 32, 33, 34, 35
    V_WOFF, V_B, V_A, V_BR, V_T = 2, 4, 8, 12, 16
    V_AF, V_BF = 32, 48
    V_ACC = 64
    STEP, RING = 8192, 4
    NS = 11
    b('s_and_b32 s%d, s2, 7' % S_T0)
    b('s_lshr_b32 s%d, s2, 3' % S_T1)
    b('s_lshr_b32 s%d, s%d, 1' % (S_QT, S_T0))
    b('s_mov_b32 s%d, s%d' % (S_W, S_WAVE))
    b('s_lshl_b32 s%d, s%d, 3' % (S_QT, S_QT))
    b('s_lshr_b32 s%d, s%d, 2' % (S_T2, S_T1))
    b('s_add_u32 s%d, s%d, s%d' % (S_QT, S_QT, S_T2))
    b('s_and_b32 s%d, s%d, 1' % (S_NT, S_T0))
    b('s_lshl_b32 s%d, s%d, 2' % (S_NT, S_NT))
    b('s_and_b32 s%d, s%d, 3' % (S_T1, S_T1))
    b('s_add_u32 s%d, s%d, s%d' % (S_NT, S_NT, S_T1))
    T = V_T
    b('v_lshrrev_b32 v%d, 3, v0' % T)
    b('v_and_b32 v%d, 7, v0' % (T + 1))
    b('v_bfe_u32 v%d, v%d, 1, 2' % (T + 2, T))
    b('v_lshlrev_b32 v%d, 1, v%d' % (T + 2, T + 2))
    b('v_xor_b32 v%d, v%d, v%d' % (T + 1, T + 1, T + 2))
    b('v_lshlrev_b32 v%d, 4, v%d' % (T + 1, T + 1))
    b('v_lshl_add_u32 v%d, v%d, 10, v%d' % (V_WOFF, T, T + 1))
    b('v_lshlrev_b32 v%d, 4, v0' % V_B)
    for qb in range(1, 4):
        b('v_add_u32 v%d, %d, v%d' % (V_B + qb, qb * 43 * 1024, V_B))
    b('s_mul_i32 s%d, s%d, 11' % (S_T0, S_W))
    b('s_lshl_b32 s%d, s%d, 15' % (S_A, S_T0))
    b('s_lshl_b32 s%d, s%d, 7' % (S_T1, S_NT))
    b('s_add_u32 s%d, s%d, s%d' % (S_A, S_A, S_T1))
    b('s_mul_i32 s%d, s%d, %d' % (S_B, S_QT, 4 * 43 * 1024))
    b('s_lshl_b32 s%d, s%d, 10' % (S_T1, S_T0))
    b('s_add_u32 s%d, s%d, s%d' % (S_B, S_B, S_T1))
    b('s_add_u32 s%d, s%d, 0x%x' % (S_B, S_B, WS_HH))
    b('s_lshl_b32 s%d, s%d, 15' % (S_LB, S_W))
    b('s_mov_b32 s%d, s%d' % (S_L, S_LB))
    b('s_cmp_eq_u32 s%d, 3' % S_W)
    b('s_cselect_b32 s%d, 10, 11' % S_LIM)
    b('s_mov_b32 s%d, 0' % S_N)
    mk_srd(b, S_WD, P_WD, 1376 * 1024); mk_srd(b, S_OUT, P_OUT, 2048 * 1024)

    def request():
        ops = []
        for i in range(4):
            ops.append(['s_add_u32 m0, s%d, %d' % (S_L, i * 1024), 's_add_u32 s%d, s%d, %d' % (S_T2, S_A, i * 8192),
                        'buffer_load_dwordx4 v%d, s[%d:%d], s%d offen lds' % (V_WOFF, S_WD, S_WD + 3, S_T2)])
        for qb in range(4):
            ops.append(['s_add_u32 m0, s%d, %d' % (S_L, 4096 + qb * 1024), 's_nop 0',
                        'buffer_load_dwordx4 v%d, s[%d:%d], s%d offen sc1 lds' % (V_B + qb, S_WS, S_WS + 3, S_B)])
        nxt = ['s_add_u32 s%d, s%d, 1' % (S_N, S_N), 's_add_u32 s%d, s%d, 32768' % (S_A, S_A), 's_add_u32 s%d, s%d, 1024' % (S_B, S_B),
               's_cmp_ge_u32 s%d, s%d' % (S_N, S_LIM), 's_cselect_b32 s%d, 0x%x, s%d' % (S_A, OOB, S_A),
               's_cselect_b32 s%d, 0x%x, s%d' % (S_B, OOB, S_B),
               's_add_u32 s%d, s%d, %d' % (S_L, S_L, STEP), 's_and_b32 s%d, s%d, 0x7fff' % (S_L, S_L), 's_add_u32 s%d, s%d, s%d' % (S_L, S_L, S_LB)]
        return ops, nxt

    b('v_bfe_u32 v%d, v0, 2, 2' % T)
    b('v_lshrrev_b32 v%d, 4, v0' % (T + 1))
    b('v_lshl_add_u32 v%d, v%d, 2, v%d' % (T + 1, T + 1, T))
    b('v_bfe_u32 v%d, v%d, 1, 2' % (T + 2, T + 1))
    b('v_lshlrev_b32 v%d, 7, v%d' % (T + 1, T + 1))
    b('v_and_b32 v%d, 3, v0' % (T + 3))
    b('v_lshl_add_u32 v%d, v%d, 3, v%d' % (T + 1, T + 3, T + 1))
    for nb in range(4):
        b('v_xor_b32 v%d, %d, v%d' % (T + 3, nb, T + 2))
        b('v_lshlrev_b32 v%d, 5, v%d' % (T + 3, T + 3))
        b('v_add3_u32 v%d, v%d, v%d, s%d' % (V_A + nb, T + 3, T + 1, S_LB))
    b('v_add_u32 v%d, s%d, v%d' % (V_BR, S_LB, V_B))
    for i in range(64):
        b('v_mov_b32 v%d, 0' % (V_ACC + i))
    b('s_mov_b32 s%d, 0' % S_S)
    b('s_mov_b32 s%d, %d' % (S_RING, STEP))
    b('s_mov_b32 s%d, %d' % (S_D, STEP))
    b('s_lshr_b32 s%d, s%d, 1' % (S_T1, S_QT))
    flag_off(b, S_SY + 3, F_HH, S_T1)
    yield
    b('s_mov_b32 s%d, s%d' % (S_SA, S_A))
    for st in range(RING - 1):
        for i in range(4):
            b('s_add_u32 m0, s%d, %d' % (S_LB, st * STEP + i * 1024))
            b('s_add_u32 s%d, s%d, %d' % (S_T2, S_SA, st * 32768 + i * 8192))
            b('buffer_load_dwordx4 v%d, s[%d:%d], s%d offen lds' % (V_WOFF, S_WD, S_WD + 3, S_T2))
    yield
    for st in range(RING - 1):
        for qb in range(4):
            b('s_add_u32 m0, s%d, %d' % (S_LB, st * STEP + 4096 + qb * 1024))
            b('s_add_u32 s%d, s%d, %d' % (S_T2, S_B, st * 1024))
            b('buffer_load_dwordx4 v%d, s[%d:%d], s%d offen sc1 lds' % (V_B + qb, S_WS, S_WS + 3, S_T2))
    X, G = 192, 200
    b('s_lshl_b32 s%d, s%d, 2' % (S_T0, S_QT))
    b('s_add_u32 s%d, s%d, s%d' % (S_T0, S_T0, S_W))
    b('s_lshl_b32 s%d, s%d, 14' % (S_T1, S_T0))
    b('s_lshl_b32 s%d, s%d, 11' % (S_T2, S_NT))
    b('s_add_u32 s%d, s%d, s%d' % (S_T1, S_T1, S_T2))
    b('s_add_u32 s%d, s%d, 0x%x' % (S_T1, S_T1, WS_X1))
    for v in range(2):
        b('buffer_load_dwordx4 %s, v%d, s[%d:%d], s%d offen offset:%d sc1' % (vr(X + 4 * v, 4), V_B, S_WS, S_WS + 3, S_T1, v * 1024))
    V_G = 216
    b('v_lshrrev_b32 v%d, 4, v0' % V_G)
    b('v_lshlrev_b32 v%d, 4, v%d' % (V_G, V_G))
    b('s_lshl_b32 s36, s%d, 8' % S_NT)
    b('s_add_u32 s36, s36, %d' % (WS_MOD + 5 * 2048))
    g_loads = ['buffer_load_dwordx4 %s, v%d, s[%d:%d], s36 offen offset:%d sc1' % (vr(G + 4 * nb, 4), V_G, S_WS, S_WS + 3, nb * 64) for nb in range(4)]
    for t in g_loads: b(t)
    b('s_mov_b32 s%d, 3' % S_N)
    b('s_add_u32 s%d, s%d, %d' % (S_A, S_A, 3 * 32768))
    b('s_add_u32 s%d, s%d, %d' % (S_B, S_B, 3 * 1024))
    b('s_add_u32 s%d, s%d, %d' % (S_L, S_LB, 3 * STEP))
    b('s_waitcnt vmcnt(10)')
    stamp(b, 20)

    b.loop_begin()
    b.label(name + '_loop')
    b('s_waitcnt vmcnt(16)')
    for nb in range(4):
        for jj in range(2):
            b('ds_read_b64_tr_b16 %s, v%d offset:%d' % (vr(V_AF + 4 * nb + 2 * jj, 2), V_A + nb, jj * 2048))
        if nb == 0:
            for qb in range(4):
                b('ds_read_b128 %s, v%d offset:%d' % (vr(V_BF + 4 * qb, 4), V_BR, 4096 + qb * 1024))
    ops, nxt = request()
    sc = Sched()
    for nb in range(4):
        for qb in range(4):
            d = vr(V_ACC + (nb * 4 + qb) * 4, 4)
            sc.mfma(4 * nb + qb, '%s %s, %s, %s, %s' % (MF, d, vr(V_AF + 4 * nb, 4), vr(V_BF + 4 * qb, 4), d))
    for grp in ops[:2]:
        for t in grp: b(t)
    for k, grp in enumerate(ops[2:]):
        for t in grp: sc.add(2 * k, t)
    sc.add(12, 's_sub_u32 s%d, s%d, s%d' % (S_L, S_L, S_LB))
    for k, t in enumerate(nxt):
        sc.add(12 + (k // 3 if k < 3 else (1 if k < 6 else 2)), t)
    for nb in range(4):
        sc.add(4 * nb + 3, 'v_add_u32 v%d, s%d, v%d' % (V_A + nb, S_D, V_A + nb))
    sc.add(5, 'v_add_u32 v%d, s%d, v%d' % (V_BR, S_D, V_BR))
    sc.emit(b, 0, 16)
    b('s_add_u32 s%d, s%d, 1' % (S_S, S_S))
    b('s_and_b32 s%d, s%d, 3' % (S_T1, S_S))
    b('s_cmp_eq_u32 s%d, 3' % S_T1)
    b('s_cselect_b32 s%d, 0x%x, s%d' % (S_D, (-3 * STEP) & 0xffffffff, S_RING))
    b('s_cmp_lt_u32 s%d, %d' % (S_S, NS))
    b('s_cbranch_scc1 %s_loop' % name)
    b.loop_end(NS)
    stamp(b, 21)
    check_mod(b, g_loads, list(range(G, G + 16)), T + 3)
    b('s_waitcnt vmcnt(0)')
    b('s_barrier')
    b('s_lshl_b32 s%d, s%d, 12' % (S_T1, S_W))
    b('v_add_u32 v%d, s%d, v%d' % (T + 1, S_T1, V_B))
    for qb in range(4):
        for nb in range(4):
            b('ds_write_b128 v%d, %s offset:%d' % (T + 1, vr(V_ACC + (nb * 4 + qb) * 4, 4), qb * 16384 + nb * 1024))
    b('s_waitcnt lgkmcnt(0)')
    b('s_barrier')
    b('s_lshl_b32 s%d, s%d, 14' % (S_T1, S_W))
    b('v_add_u32 v%d, s%d, v%d' % (T + 1, S_T1, V_B))
    R = 128
    for w in range(4):
        for nb in range(4):
            b('ds_read_b128 %s, v%d offset:%d' % (vr(R + 16 * w + 4 * nb, 4), T + 1, w * 4096 + nb * 1024))
    for i in range(16):
        b('v_add_f32 v%d, v%d, v%d' % (R + i, R + i, R + 16 + i))
        b('v_add_f32 v%d, v%d, v%d' % (R + 32 + i, R + 32 + i, R + 48 + i))
    for i in range(16):
        b('v_add_f32 v%d, v%d, v%d' % (R + i, R + i, R + 32 + i))
    Y = 96
    for p in range(8):
        b('v_lshlrev_b32 v%d, 16, v%d' % (Y + 2 * p, X + p))
        b('v_and_b32 v%d, s100, v%d' % (Y + 2 * p + 1, X + p))
    for i in range(16):
        b('v_fmac_f32 v%d, v%d, v%d' % (Y + i, G + i, R + i))
    O = 112
    for p in range(8):
        b('v_cvt_pk_bf16_f32 v%d, v%d, v%d' % (O + p, Y + 2 * p, Y + 2 * p + 1))
    for v in range(2):
        b('v_permlane16_swap_b32 v%d, v%d' % (O + 4 * v, O + 4 * v + 2))
        b('v_permlane16_swap_b32 v%d, v%d' % (O + 4 * v + 1, O + 4 * v + 3))
    b('v_and_b32 v%d, 15, v0' % T)
    b('v_lshlrev_b32 v%d, 10, v%d' % (T, T))
    b('v_bfe_u32 v%d, v0, 4, 1' % (T + 1))
    b('v_lshlrev_b32 v%d, 5, v%d' % (T + 1, T + 1))
    b('v_lshrrev_b32 v%d, 5, v0' % (T + 2))
    b('v_lshlrev_b32 v%d, 4, v%d' % (T + 2, T + 2))
    b('v_add3_u32 v%d, v%d, v%d, v%d' % (T, T, T + 1, T + 2))
    b('s_lshl_b32 s%d, s%d, 14' % (S_T1, S_T0))
    b('s_lshl_b32 s%d, s%d, 7' % (S_T2, S_NT))
    b('s_add_u32 s%d, s%d, s%d' % (S_T1, S_T1, S_T2))
    for v in range(2):
        b('buffer_store_dwordx4 %s, v%d, s[%d:%d], s%d offen offset:%d' % (vr(O + 4 * v, 4), T, S_OUT, S_OUT + 3, S_T1, v * 64))
```

```python
from mc import *

LN_LDS = 163840 - 512
MF = 'v_mfma_f32_16x16x32_bf16'
WQ_AT = os.environ.get('WQ_AT', 'm')
KV_AT = os.environ.get('KV_AT', 'm')


def prefetches(b, wq=True, kv=True):
    lk = uid('pf')
    b('s_cmp_lt_u32 s2, 96')
    b('s_cbranch_scc1 %s' % lk)
    mk_srd(b, 28, P_WQ, 512 * 8192)
    b('v_lshrrev_b32 v72, 4, v0')
    b('v_lshlrev_b32 v72, 13, v72')
    b('v_and_b32 v73, 15, v0')
    b('v_lshl_add_u32 v72, v73, 7, v72')
    b('s_lshr_b32 s32, s2, 3')
    b('s_sub_u32 s32, s32, 12')
    b('s_lshl_b32 s32, s32, 2')
    b('s_add_u32 s32, s32, s%d' % S_WAVE)
    b('s_lshl_b32 s32, s32, 16')
    b('s_bfe_u32 s33, s2, 0x20001')
    b('s_lshl_b32 s33, s33, 11')
    b('s_add_u32 s32, s32, s33')
    b('s_add_u32 s33, s32, 32768')
    if wq:
        raw(b, 'buffer_load_dword v250, v72, s[28:31], s32 offen')
        raw(b, 'buffer_load_dword v250, v72, s[28:31], s33 offen')
    if kv:
        b('s_cmp_ge_u32 s%d, 2' % S_WAVE)
        b('s_cselect_b32 s28, s%d, s%d' % (P_V, P_K))
        b('s_cselect_b32 s29, s%d, s%d' % (P_V + 1, P_K + 1))
        b('s_mov_b32 s30, 0x%x' % (32 * 2048 * 256))
        b('s_mov_b32 s31, 0x20000')
        b('s_lshr_b32 s32, s2, 3')
        b('s_sub_u32 s32, s32, 12')
        b('s_lshr_b32 s33, s32, 1')
        b('s_bfe_u32 s34, s2, 0x20001')
        b('s_lshl_b32 s34, s34, 3')
        b('s_add_u32 s34, s34, s33')
        b('s_lshl_b32 s34, s34, 19')
        b('s_add_u32 s34, s34, %d' % (1536 * 256))
        b('s_and_b32 s35, s32, 1')
        b('s_lshl_b32 s35, s35, 14')
        b('s_add_u32 s34, s34, s35')
        b('s_and_b32 s35, s%d, 1' % S_WAVE)
        b('s_lshl_b32 s35, s35, 13')
        b('s_add_u32 s34, s34, s35')
        b('s_cmp_ge_u32 s33, 8')
        b('s_cselect_b32 s34, 0x%x, s34' % OOB)
        b('v_lshlrev_b32 v72, 7, v0')
        raw(b, 'buffer_load_dword v250, v72, s[28:31], s34 offen')
        if 'kv256' in OPT:
            b('s_add_u32 s34, s34, 32768')
            raw(b, 'buffer_load_dword v250, v72, s[28:31], s34 offen')
    b.label(lk)


def front(b, name):
    S_C, S_WM, S_X = 8, 12, 16
    S_T0, S_T1 = 24, 25
    mk_srd(b, S_DBGS, P_DBG, 256)
    b('s_lshl_b32 s%d, s%d, 6' % (S_T0, S_WAVE))
    b('v_add_u32 v3, s%d, v0' % S_T0)
    l0 = uid('notp0')
    b('s_cmp_ge_u32 s2, 96')
    b('s_cbranch_scc1 %s' % l0)
    mk_srd(b, S_C, P_C, 1024)
    mk_srd(b, S_WM, P_WMOD, 512 * 6144)
    b('v_lshlrev_b32 v80, 2, v0')
    b('s_lshl_b32 s26, s%d, 8' % S_WAVE)
    b('buffer_load_dword v84, v80, s[%d:%d], s26 offen' % (S_C, S_C + 3))
    b('v_lshrrev_b32 v81, 2, v0')
    b('v_mul_u32_u24 v81, 6144, v81')
    b('v_and_b32 v82, 3, v0')
    b('v_lshl_add_u32 v81, v82, 4, v81')
    b('s_and_b32 s37, s2, 7')
    b('s_lshl_b32 s37, s37, 1')
    b('s_bfe_u32 s38, s2, 0x10003')
    b('s_or_b32 s37, s37, s38')
    b('s_and_b32 s38, s2, 0x70')
    b('s_or_b32 s37, s37, s38')
    b('s_mul_i32 s27, s%d, %d' % (S_WAVE, 128 * 6144))
    b('s_lshl_b32 s28, s37, 6')
    b('s_add_u32 s27, s27, s28')
    b('s_lshl_b32 s28, s%d, 13' % S_WAVE)
    for i in range(8):
        b('s_add_u32 m0, s28, %d' % (i * 1024))
        b('s_add_u32 s29, s27, %d' % (i * 16 * 6144))
        b('buffer_load_dwordx4 v81, s[%d:%d], s29 offen lds' % (S_WM, S_WM + 3), 'P0W')
    b.label(l0)
    if WQ_AT == 's' or KV_AT == 's': prefetches(b, WQ_AT == 's', KV_AT == 's')
    l1 = uid('notclr')
    b('s_cmp_lg_u32 s2, 255')
    b('s_cbranch_scc1 %s' % l1)
    b('v_lshlrev_b32 v80, 4, v3')
    for i in range(4):
        b('v_mov_b32 v%d, -1' % (84 + i))
    for i in range(3):
        b('s_mov_b32 s26, %d' % (WS_MOD + i * 4096))
        b('buffer_store_dwordx4 v[84:87], v80, s[%d:%d], s26 offen sc1' % (S_WS, S_WS + 3))
    b('v_lshlrev_b32 v80, 7, v3')
    b('v_mov_b32 v88, 0')
    b('v_cmp_gt_u32 vcc, %d, v3' % F_COUNT)
    b('s_and_saveexec_b64 s[34:35], vcc')
    b('s_mov_b32 s26, 0x%x' % WS_FLAG)
    b('buffer_store_dword v88, v80, s[%d:%d], s26 offen sc1' % (S_WS, S_WS + 3))
    b('s_mov_b64 exec, s[34:35]')
    b('s_waitcnt vmcnt(0)')
    b('s_barrier')
    raw(b, '''s_cmp_lg_u32 s%d, 0
    s_cbranch_scc1 %s
    v_mov_b32 v88, 1
    buffer_store_dword v88, off, s[%d:%d], 0 sc1''' % (S_WAVE, l1, S_DBGS, S_DBGS + 3))
    b.label(l1)
    mk_srd(b, S_X, P_X, 2048 * 1024)
    b('v_and_b32 v1, 7, v0')
    b('v_lshrrev_b32 v2, 3, v3')
    if M16:
        b('v_and_b32 v5, 3, v2')
        b('v_lshrrev_b32 v6, 2, v2')
        b('v_lshlrev_b32 v4, 10, v1')
        b('v_lshl_add_u32 v4, v6, 7, v4')
        b('v_lshl_add_u32 v4, v5, 3, v4')
        b('s_lshl_b32 s36, s2, 13')
        for j in range(4):
            b('buffer_load_dwordx2 v[%d:%d], v4, s[%d:%d], s36 offen offset:%d' % (8 + 2 * j, 9 + 2 * j, S_X, S_X + 3, 32 * j))
        b('v_lshlrev_b32 v7, 8, v6')
        b('v_lshl_add_u32 v7, v5, 4, v7')
        b('v_lshlrev_b32 v74, 11, v6')
        b('v_lshl_add_u32 v74, v5, 8, v74')
        b('s_and_b32 s%d, s2, 1' % S_T0)
    else:
        b('v_lshlrev_b32 v4, 10, v1')
        b('v_lshrrev_b32 v5, 1, v2')
        b('v_lshl_add_u32 v4, v5, 6, v4')
        b('v_and_b32 v6, 1, v2')
        b('v_lshl_add_u32 v4, v6, 3, v4')
        b('s_lshl_b32 s36, s2, 13')
        for j in range(4):
            b('buffer_load_dwordx2 v[%d:%d], v4, s[%d:%d], s36 offen offset:%d' % (8 + 2 * j, 9 + 2 * j, S_X, S_X + 3, 16 * j))
        b('v_lshlrev_b32 v7, 7, v5')
        b('v_lshl_add_u32 v7, v6, 4, v7')
        b('v_lshlrev_b32 v74, 11, v5')
        b('v_lshl_add_u32 v74, v6, 9, v74')
        b('s_and_b32 s%d, s2, 3' % S_T0)
    b('s_lshl_b32 s%d, s%d, 3' % (S_T0, S_T0))
    b('v_add_u32 v6, s%d, v1' % S_T0)
    b('v_lshl_add_u32 v6, v6, 4, v74')
    l2, l2a = uid('p0done'), uid('nop0')
    b('s_cmp_ge_u32 s2, 96')
    b('s_cbranch_scc1 %s' % l2a)
    b('s_waitcnt vmcnt(12)')
    if 'fst' in OPT: raw_stamp(b, 24)
    b('v_lshlrev_b32 v64, 16, v84')
    b('v_and_b32 v65, 0xffff0000, v84')
    for i in range(2):
        b('v_mul_f32 v%d, %s, v%d' % (66 + i, f32(-LOG2E), 64 + i))
    for i in range(2):
        b('v_exp_f32 v%d, v%d' % (66 + i, 66 + i))
    for i in range(2):
        b('v_add_f32 v%d, 1.0, v%d' % (66 + i, 66 + i))
    for i in range(2):
        b('v_rcp_f32 v%d, v%d' % (66 + i, 66 + i))
    for i in range(2):
        b('v_mul_f32 v%d, v%d, v%d' % (64 + i, 64 + i, 66 + i))
    b('v_cvt_pk_bf16_f32 v64, v64, v65')
    b('s_lshl_b32 s26, s%d, 8' % S_WAVE)
    b('s_add_u32 s26, s26, 32768')
    b('v_lshl_add_u32 v65, v0, 2, s26')
    b('ds_write_b32 v65, v64')
    b('v_lshrrev_b32 v66, 4, v0')
    b('v_lshl_add_u32 v67, v66, 4, s26')
    b('v_bfe_u32 v68, v0, 2, 2')
    b('v_lshl_add_u32 v68, v66, 3, v68')
    b('v_lshlrev_b32 v68, 6, v68')
    b('v_and_b32 v69, 3, v0')
    b('v_lshl_add_u32 v68, v69, 3, v68')
    b('s_lshl_b32 s27, s%d, 13' % S_WAVE)
    b('v_add_u32 v68, s27, v68')
    b('s_waitcnt lgkmcnt(0)')
    for u in range(4):
        b('ds_read_b128 v[%d:%d], v67 offset:%d' % (96 + 4 * u, 99 + 4 * u, 64 * u))
    b('s_waitcnt vmcnt(4)' if 'fst' not in OPT else 's_waitcnt vmcnt(5)')
    if 'fst' in OPT: raw_stamp(b, 25)
    for u in range(4):
        for nb in range(2):
            for jj in range(2):
                r = 112 + 8 * u + 4 * nb + 2 * jj
                b('ds_read_b64_tr_b16 v[%d:%d], v68 offset:%d' % (r, r + 1, u * 2048 + jj * 256 + nb * 32))
    for u in range(4):
        for nb in range(2):
            r = 112 + 8 * u + 4 * nb
            d = 'v[%d:%d]' % (144 + 4 * nb, 147 + 4 * nb)
            b('%s %s, v[%d:%d], v[%d:%d], %s' % (MF, d, r, r + 3, 96 + 4 * u, 99 + 4 * u, '0' if u == 0 else d))
    b('s_lshl_b32 s26, s%d, 7' % S_WAVE)
    b('s_add_u32 s26, s26, 34816')
    b('v_lshl_add_u32 v69, v66, 4, s26')
    b('ds_write_b128 v69, v[144:147]')
    b('ds_write_b128 v69, v[148:151] offset:64')
    b('s_waitcnt lgkmcnt(0)')
    b('s_barrier')
    b('v_and_b32 v70, 31, v0')
    b('v_lshlrev_b32 v70, 2, v70')
    for w in range(4):
        b('ds_read_b32 v%d, v70 offset:%d' % (96 + w, 34816 + 128 * w))
    b('v_add_f32 v96, v96, v97')
    b('v_add_f32 v98, v98, v99')
    b('v_add_f32 v96, v96, v98')
    b('v_cvt_pk_bf16_f32 v96, v96, v96')
    b('v_and_b32 v96, 0xffff0000, v96')
    b('v_add_f32 v97, 1.0, v96')
    b('v_cvt_pk_bf16_f32 v97, v97, v97')
    b('v_and_b32 v97, 0xffff0000, v97')
    b('v_mul_f32 v98, %s, v96' % f32(QSCALE))
    b('s_lshr_b32 s26, s37, 4')
    b('s_cmp_eq_u32 s26, 0')
    b('s_cselect_b64 vcc, -1, 0')
    b('v_cndmask_b32 v96, v96, v98, vcc')
    b('s_cmp_eq_u32 s26, 1')
    b('s_cselect_b64 vcc, -1, 0')
    b('v_cndmask_b32 v96, v96, v97, vcc')
    b('s_cmp_eq_u32 s26, 4')
    b('s_cselect_b64 vcc, -1, 0')
    b('v_cndmask_b32 v96, v96, v97, vcc')
    if 'fst' in OPT: raw_stamp(b, 26)
    await_ready(b)
    if 'fst' in OPT: raw_stamp(b, 27)
    b('s_lshl_b32 s27, s37, 7')
    raw(b, '''s_cmp_lg_u32 s%d, 0
    s_cbranch_scc1 %s
    s_mov_b32 exec_hi, 0
    buffer_store_dword v96, v70, s[%d:%d], s27 offen offset:%d sc1
    s_mov_b32 exec_hi, -1''' % (S_WAVE, l2, S_WS, S_WS + 3, WS_MOD))
    b('s_branch %s' % l2)
    b.label(l2a)
    b('s_waitcnt vmcnt(0)')
    b.label(l2)
    stamp(b, 1)
    X = 16
    for p in range(8):
        b('v_lshlrev_b32 v%d, 16, v%d' % (X + 2 * p, 8 + p))
        b('v_and_b32 v%d, 0xffff0000, v%d' % (X + 2 * p + 1, 8 + p))
    if WQ_AT == 'm' or KV_AT == 'm': prefetches(b, WQ_AT == 'm', KV_AT == 'm')
    layernorm16(b, X, 32, 1, LN_LDS, QSCALE)
    if 'fst' in OPT: raw_stamp(b, 28)
    await_ready(b)
    if WQ_AT == 'l' or KV_AT == 'l': prefetches(b, WQ_AT == 'l', KV_AT == 'l')
    if 'fst' in OPT: raw_stamp(b, 29)
    loads = []
    for j in range(4):
        step = 64 if M16 else 32
        loads.append('buffer_load_dwordx4 v[%d:%d], v7, s[%d:%d], 0 offen offset:%d sc1' % (48 + 4 * j, 51 + 4 * j, S_WS, S_WS + 3, WS_MOD + step * j))
        loads.append('buffer_load_dwordx4 v[%d:%d], v7, s[%d:%d], 0 offen offset:%d sc1' % (64 + 4 * j, 67 + 4 * j, S_WS, S_WS + 3, WS_MOD + 2048 + step * j))
    load_mod(b, loads, list(range(48, 80)), 40)
    stamp(b, 2)
    for i in range(16):
        b('v_fma_f32 v%d, v%d, v%d, v%d' % (X + i, X + i, 64 + i, 48 + i))
    for p in range(8):
        b('v_cvt_pk_bf16_f32 v%d, v%d, v%d' % (8 + p, X + 2 * p, X + 2 * p + 1))
    b('s_lshr_b32 s%d, s2, %d' % (S_T0, 1 if M16 else 2))
    b('s_lshl_b32 s%d, s%d, %d' % (S_T0, S_T0, 14 if M16 else 15))
    b('s_add_u32 s%d, s%d, 0x%x' % (S_T0, S_T0, WS_H))
    b('buffer_store_dwordx4 v[8:11], v6, s[%d:%d], s%d offen sc1' % (S_WS, S_WS + 3, S_T0))
    b('buffer_store_dwordx4 v[12:15], v6, s[%d:%d], s%d offen offset:1024 sc1' % (S_WS, S_WS + 3, S_T0))
```

```python
import sys
from mc import *
import front, p3, p45
if M16:
    import p2b as p2
else:
    import p2


def build_kernel(name):
    b = Block()
    b('s_cmp_ge_u32 s2, 256')
    b('s_cbranch_scc1 %s_end' % name)
    if 'nocodepf' not in OPT:
        J0 = int(os.environ.get('CODEPF_J', '0'))
        lc = uid('codepf')
        b('s_lshr_b32 s24, s2, 3')
        b('s_sub_u32 s24, s24, %d' % J0)
        b('s_cmp_ge_u32 s24, 2')
        b('s_cbranch_scc1 %s' % lc)
        raw(b, '''s_getpc_b64 s[8:9]
        s_and_b32 s8, s8, 0xffffff00
        s_mov_b32 s10, %s_end - %s + 256
        s_mov_b32 s11, 0x20000
        v_lshlrev_b32 v2, 7, v0
        s_lshl_b32 s24, s24, 15
        buffer_load_dword v251, v2, s[8:11], s24 offen''' % (name, name))
        b.label(lc)
    b('s_load_dwordx16 s[64:79], s[0:1], 0')
    b('s_load_dwordx8 s[80:87], s[0:1], 64')
    b('s_load_dwordx4 s[88:91], s[0:1], 96')
    b('v_lshrrev_b32 v1, 6, v0')
    b('v_and_b32 v0, 63, v0')
    b('s_nop 0')
    b('v_readfirstlane_b32 s%d, v1' % S_WAVE)
    b('s_waitcnt lgkmcnt(0)')
    mk_srd(b, S_WS, P_WSP, WS_BYTES)
    b('s_mov_b32 s100, 0xffff0000')
    if STAMPS:
        b('s_lshl_b32 s96, s2, 2')
        b('s_add_u32 s96, s96, s%d' % S_WAVE)
        b('s_lshl_b32 s96, s96, 8')
        b('s_add_u32 s96, s96, 0x%x' % WS_STAMP)
    stamp(b, 0)
    if 'dbgtime' in OPT:
        mk_srd(b, 92 - 0 if False else 52, P_DBG, 256)
        raw(b, '''s_memrealtime s[98:99]
        s_waitcnt lgkmcnt(0)
        s_not_b32 s98, s98
        v_mov_b32 v251, s98
        s_mov_b64 exec, 1
        buffer_atomic_umax v251, off, s[52:55], 0 offset:16
        s_mov_b64 exec, -1''')
    front.front(b, name)
    b('s_lshr_b32 s%d, s2, 5' % S_SY)
    flag_off(b, S_SY, F_H, S_SY)
    p2.setup(b)
    signal(b, S_WS, S_SY)
    stamp(b, 3)
    p2.pre(b)
    p2.flag_index(b, S_SY + 3)
    await_flag(b, S_WS, S_SY + 3, 32)
    stamp(b, 4)
    p2.main(b, name)
    p2.out_flag(b, S_SY)
    stamp(b, 9)
    g3 = p3.p3(b, name + '_p3')
    next(g3)
    signal(b, S_WS, S_SY)
    stamp(b, 23)
    p3.p3b_pre(b)
    next(g3)
    await_flag(b, S_WS, S_SY + 3, 8)
    stamp(b, 10)
    for _ in g3: pass
    g4 = p45.p4(b, name + '_p4')
    p4_first = next(g4)
    signal(b, S_WS, S_SY)
    stamp(b, 13)
    g3b = p3.p3b(b, name + '_p3b')
    next(g3b)
    hidden(b, p4_first)
    await_flag(b, S_WS, S_SY + 3, 16)
    stamp(b, 14)
    for _ in g3b: pass
    signal(b, S_WS, S_SY)
    stamp(b, 15)
    b('s_cmp_ge_u32 s26, 15')
    b('s_cbranch_scc1 %s_p4_idle' % name)
    next(g4)
    await_flag(b, S_WS, S_SY + 3, 16)
    for _ in g4: pass
    g5 = p45.p5(b, name + '_p5')
    next(g5)
    signal(b, S_WS, S_SY)
    next(g5)
    b('s_branch %s_p5_wait' % name)
    b.label(name + '_p4_idle')
    g5b = p45.p5(b, name + '_p5x')
    next(g5b)
    next(g5b)
    b.label(name + '_p5_wait')
    stamp(b, 18)
    await_flag(b, S_WS, S_SY + 3, 15)
    b('s_waitcnt vmcnt(0)')
    stamp(b, 19)
    for _ in g5: pass
    stamp(b, 22)
    if 'dbgtime' in OPT:
        mk_srd(b, 52, P_DBG, 256)
        raw(b, '''s_waitcnt vmcnt(0)
        s_memrealtime s[98:99]
        s_waitcnt lgkmcnt(0)
        v_mov_b32 v251, s98
        s_mov_b64 exec, 1
        buffer_atomic_umax v251, off, s[52:55], 0 offset:20''')
    b('s_endpgm')
    p2.fallback(b, name)
    b.label(name + '_end')
    b('s_endpgm')
    return b


def build(path, verbose=False):
    name = KNAME + '_kernel'
    head = open('cdna_kernels/' + KNAME + '.s.ref').read().split('; Override launch geometry')[0]
    b = build_kernel(name)
    log = []
    text = finalize(b, log)
    if verbose:
        print('%d lines, %d nop insertions' % (text.count('\n'), len(log)))
        for l in log:
            if 'permlane' not in l and 'lds"' not in l: print('   ', l)
    form = os.environ.get('FORM', 'single')
    if form == 'single':
        launch = '; @launch grid=(256,1,1) block=(256,1,1) lds=163840'
    else:
        launch = '; @launch kernel=%s grid=(256,1,1) block=(256,1,1) lds=163840' % name
    out = [head.rstrip(), launch, '.amdgcn_target "amdgcn-amd-amdhsa--gfx950"', '.text', kernel_header(name) + text,
           '.section .rodata,"a"', kernel_descriptor(name, 256, 256)]
    open(path, 'w').write('\n'.join(out))


if __name__ == '__main__':
    build(sys.argv[1] if len(sys.argv) > 1 else 'mega.s', verbose=True)
```

```python
from mc import *

LN_LDS = 163840 - 512
MF = 'v_mfma_f32_16x16x32_bf16'
WQ_AT = os.environ.get('WQ_AT', 'm')
KV_AT = os.environ.get('KV_AT', 'm')


def prefetches(b, wq=True, kv=True):
    lk = uid('pf')
    b('s_cmp_lt_u32 s2, 96')
    b('s_cbranch_scc1 %s' % lk)
    mk_srd(b, 28, P_WQ, 512 * 8192)
    b('v_lshrrev_b32 v72, 4, v0')
    b('v_lshlrev_b32 v72, 13, v72')
    b('v_and_b32 v73, 15, v0')
    b('v_lshl_add_u32 v72, v73, 7, v72')
    b('s_lshr_b32 s32, s2, 3')
    b('s_sub_u32 s32, s32, 12')
    b('s_lshl_b32 s32, s32, 2')
    b('s_add_u32 s32, s32, s%d' % S_WAVE)
    b('s_lshl_b32 s32, s32, 16')
    b('s_bfe_u32 s33, s2, 0x20001')
    b('s_lshl_b32 s33, s33, 11')
    b('s_add_u32 s32, s32, s33')
    b('s_add_u32 s33, s32, 32768')
    if wq:
        raw(b, 'buffer_load_dword v250, v72, s[28:31], s32 offen')
        raw(b, 'buffer_load_dword v250, v72, s[28:31], s33 offen')
    if kv:
        b('s_cmp_ge_u32 s%d, 2' % S_WAVE)
        b('s_cselect_b32 s28, s%d, s%d' % (P_V, P_K))
        b('s_cselect_b32 s29, s%d, s%d' % (P_V + 1, P_K + 1))
        b('s_mov_b32 s30, 0x%x' % (32 * 2048 * 256))
        b('s_mov_b32 s31, 0x20000')
        b('s_lshr_b32 s32, s2, 3')
        b('s_sub_u32 s32, s32, 12')
        b('s_lshr_b32 s33, s32, 1')
        b('s_bfe_u32 s34, s2, 0x20001')
        b('s_lshl_b32 s34, s34, 3')
        b('s_add_u32 s34, s34, s33')
        b('s_lshl_b32 s34, s34, 19')
        b('s_add_u32 s34, s34, %d' % (1536 * 256))
        b('s_and_b32 s35, s32, 1')
        b('s_lshl_b32 s35, s35, 14')
        b('s_add_u32 s34, s34, s35')
        b('s_and_b32 s35, s%d, 1' % S_WAVE)
        b('s_lshl_b32 s35, s35, 13')
        b('s_add_u32 s34, s34, s35')
        b('s_cmp_ge_u32 s33, 8')
        b('s_cselect_b32 s34, 0x%x, s34' % OOB)
        b('v_lshlrev_b32 v72, 7, v0')
        raw(b, 'buffer_load_dword v250, v72, s[28:31], s34 offen')
        if 'kv256' in OPT:
            b('s_add_u32 s34, s34, 32768')
            raw(b, 'buffer_load_dword v250, v72, s[28:31], s34 offen')
    b.label(lk)


def front(b, name):
    S_C, S_WM, S_X = 8, 12, 16
    S_T0, S_T1 = 24, 25
    mk_srd(b, S_DBGS, P_DBG, 256)
    b('s_lshl_b32 s%d, s%d, 6' % (S_T0, S_WAVE))
    b('v_add_u32 v3, s%d, v0' % S_T0)
    l0 = uid('notp0')
    b('s_cmp_ge_u32 s2, 96')
    b('s_cbranch_scc1 %s' % l0)
    mk_srd(b, S_C, P_C, 1024)
    mk_srd(b, S_WM, P_WMOD, 512 * 6144)
    b('v_lshlrev_b32 v80, 2, v0')
    b('s_lshl_b32 s26, s%d, 8' % S_WAVE)
    b('buffer_load_dword v84, v80, s[%d:%d], s26 offen' % (S_C, S_C + 3))
    b('v_lshrrev_b32 v81, 2, v0')
    b('v_mul_u32_u24 v81, 6144, v81')
    b('v_and_b32 v82, 3, v0')
    b('v_lshl_add_u32 v81, v82, 4, v81')
    b('s_and_b32 s37, s2, 7')
    b('s_lshl_b32 s37, s37, 1')
    b('s_bfe_u32 s38, s2, 0x10003')
    b('s_or_b32 s37, s37, s38')
    b('s_and_b32 s38, s2, 0x70')
    b('s_or_b32 s37, s37, s38')
    b('s_mul_i32 s27, s%d, %d' % (S_WAVE, 128 * 6144))
    b('s_lshl_b32 s28, s37, 6')
    b('s_add_u32 s27, s27, s28')
    b('s_lshl_b32 s28, s%d, 13' % S_WAVE)
    for i in range(8):
        b('s_add_u32 m0, s28, %d' % (i * 1024))
        b('s_add_u32 s29, s27, %d' % (i * 16 * 6144))
        b('buffer_load_dwordx4 v81, s[%d:%d], s29 offen lds' % (S_WM, S_WM + 3), 'P0W')
    b.label(l0)
    if WQ_AT == 's' or KV_AT == 's': prefetches(b, WQ_AT == 's', KV_AT == 's')
    l1 = uid('notclr')
    b('s_cmp_lg_u32 s2, 255')
    b('s_cbranch_scc1 %s' % l1)
    b('v_lshlrev_b32 v80, 4, v3')
    for i in range(4):
        b('v_mov_b32 v%d, -1' % (84 + i))
    for i in range(3):
        b('s_mov_b32 s26, %d' % (WS_MOD + i * 4096))
        b('buffer_store_dwordx4 v[84:87], v80, s[%d:%d], s26 offen sc1' % (S_WS, S_WS + 3))
    b('v_lshlrev_b32 v80, 7, v3')
    b('v_mov_b32 v88, 0')
    b('v_cmp_gt_u32 vcc, %d, v3' % F_COUNT)
    b('s_and_saveexec_b64 s[34:35], vcc')
    b('s_mov_b32 s26, 0x%x' % WS_FLAG)
    b('buffer_store_dword v88, v80, s[%d:%d], s26 offen sc1' % (S_WS, S_WS + 3))
    b('s_mov_b64 exec, s[34:35]')
    b('s_waitcnt vmcnt(0)')
    b('s_barrier')
    raw(b, '''s_cmp_lg_u32 s%d, 0
    s_cbranch_scc1 %s
    v_mov_b32 v88, 1
    buffer_store_dword v88, off, s[%d:%d], 0 sc1''' % (S_WAVE, l1, S_DBGS, S_DBGS + 3))
    b.label(l1)
    mk_srd(b, S_X, P_X, 2048 * 1024)
    b('v_and_b32 v1, 7, v0')
    b('v_lshrrev_b32 v2, 3, v3')
    if M16:
        b('v_and_b32 v5, 3, v2')
        b('v_lshrrev_b32 v6, 2, v2')
        b('v_lshlrev_b32 v4, 10, v1')
        b('v_lshl_add_u32 v4, v6, 7, v4')
        b('v_lshl_add_u32 v4, v5, 3, v4')
        b('s_lshl_b32 s36, s2, 13')
        for j in range(4):
            b('buffer_load_dwordx2 v[%d:%d], v4, s[%d:%d], s36 offen offset:%d' % (8 + 2 * j, 9 + 2 * j, S_X, S_X + 3, 32 * j))
        b('v_lshlrev_b32 v7, 8, v6')
        b('v_lshl_add_u32 v7, v5, 4, v7')
        b('v_lshlrev_b32 v74, 11, v6')
        b('v_lshl_add_u32 v74, v5, 8, v74')
        b('s_and_b32 s%d, s2, 1' % S_T0)
    else:
        b('v_lshlrev_b32 v4, 10, v1')
        b('v_lshrrev_b32 v5, 1, v2')
        b('v_lshl_add_u32 v4, v5, 6, v4')
        b('v_and_b32 v6, 1, v2')
        b('v_lshl_add_u32 v4, v6, 3, v4')
        b('s_lshl_b32 s36, s2, 13')
        for j in range(4):
            b('buffer_load_dwordx2 v[%d:%d], v4, s[%d:%d], s36 offen offset:%d' % (8 + 2 * j, 9 + 2 * j, S_X, S_X + 3, 16 * j))
        b('v_lshlrev_b32 v7, 7, v5')
        b('v_lshl_add_u32 v7, v6, 4, v7')
        b('v_lshlrev_b32 v74, 11, v5')
        b('v_lshl_add_u32 v74, v6, 9, v74')
        b('s_and_b32 s%d, s2, 3' % S_T0)
    b('s_lshl_b32 s%d, s%d, 3' % (S_T0, S_T0))
    b('v_add_u32 v6, s%d, v1' % S_T0)
    b('v_lshl_add_u32 v6, v6, 4, v74')
    l2, l2a = uid('p0done'), uid('nop0')
    b('s_cmp_ge_u32 s2, 96')
    b('s_cbranch_scc1 %s' % l2a)
    b('s_waitcnt vmcnt(12)')
    if 'fst' in OPT: raw_stamp(b, 24)
    b('v_lshlrev_b32 v64, 16, v84')
    b('v_and_b32 v65, s100, v84')
    for i in range(2):
        b('v_mul_f32 v%d, %s, v%d' % (66 + i, f32(-LOG2E), 64 + i))
    for i in range(2):
        b('v_exp_f32 v%d, v%d' % (66 + i, 66 + i))
    for i in range(2):
        b('v_add_f32 v%d, 1.0, v%d' % (66 + i, 66 + i))
    for i in range(2):
        b('v_rcp_f32 v%d, v%d' % (66 + i, 66 + i))
    for i in range(2):
        b('v_mul_f32 v%d, v%d, v%d' % (64 + i, 64 + i, 66 + i))
    b('v_cvt_pk_bf16_f32 v64, v64, v65')
    b('s_lshl_b32 s26, s%d, 8' % S_WAVE)
    b('s_add_u32 s26, s26, 32768')
    b('v_lshl_add_u32 v65, v0, 2, s26')
    b('ds_write_b32 v65, v64')
    b('v_lshrrev_b32 v66, 4, v0')
    b('v_lshl_add_u32 v67, v66, 4, s26')
    b('v_bfe_u32 v68, v0, 2, 2')
    b('v_lshl_add_u32 v68, v66, 3, v68')
    b('v_lshlrev_b32 v68, 6, v68')
    b('v_and_b32 v69, 3, v0')
    b('v_lshl_add_u32 v68, v69, 3, v68')
    b('s_lshl_b32 s27, s%d, 13' % S_WAVE)
    b('v_add_u32 v68, s27, v68')
    b('s_waitcnt lgkmcnt(0)')
    for u in range(4):
        b('ds_read_b128 v[%d:%d], v67 offset:%d' % (96 + 4 * u, 99 + 4 * u, 64 * u))
    b('s_waitcnt vmcnt(4)' if 'fst' not in OPT else 's_waitcnt vmcnt(5)')
    if 'fst' in OPT: raw_stamp(b, 25)
    for u in range(4):
        for nb in range(2):
            for jj in range(2):
                r = 112 + 8 * u + 4 * nb + 2 * jj
                b('ds_read_b64_tr_b16 v[%d:%d], v68 offset:%d' % (r, r + 1, u * 2048 + jj * 256 + nb * 32))
    for u in range(4):
        for nb in range(2):
            r = 112 + 8 * u + 4 * nb
            d = 'v[%d:%d]' % (144 + 4 * nb, 147 + 4 * nb)
            b('%s %s, v[%d:%d], v[%d:%d], %s' % (MF, d, r, r + 3, 96 + 4 * u, 99 + 4 * u, '0' if u == 0 else d))
    b('s_lshl_b32 s26, s%d, 7' % S_WAVE)
    b('s_add_u32 s26, s26, 34816')
    b('v_lshl_add_u32 v69, v66, 4, s26')
    b('ds_write_b128 v69, v[144:147]')
    b('ds_write_b128 v69, v[148:151] offset:64')
    b('s_waitcnt lgkmcnt(0)')
    b('s_barrier')
    b('v_and_b32 v70, 31, v0')
    b('v_lshlrev_b32 v70, 2, v70')
    for w in range(4):
        b('ds_read_b32 v%d, v70 offset:%d' % (96 + w, 34816 + 128 * w))
    b('v_add_f32 v96, v96, v97')
    b('v_add_f32 v98, v98, v99')
    b('v_add_f32 v96, v96, v98')
    b('v_cvt_pk_bf16_f32 v96, v96, v96')
    b('v_and_b32 v96, s100, v96')
    b('v_add_f32 v97, 1.0, v96')
    b('v_cvt_pk_bf16_f32 v97, v97, v97')
    b('v_and_b32 v97, s100, v97')
    b('v_mul_f32 v98, %s, v96' % f32(QSCALE))
    b('s_lshr_b32 s26, s37, 4')
    b('s_cmp_eq_u32 s26, 0')
    b('s_cselect_b64 vcc, -1, 0')
    b('v_cndmask_b32 v96, v96, v98, vcc')
    b('s_cmp_eq_u32 s26, 1')
    b('s_cselect_b64 vcc, -1, 0')
    b('v_cndmask_b32 v96, v96, v97, vcc')
    b('s_cmp_eq_u32 s26, 4')
    b('s_cselect_b64 vcc, -1, 0')
    b('v_cndmask_b32 v96, v96, v97, vcc')
    if 'fst' in OPT: raw_stamp(b, 26)
    await_ready(b)
    if 'fst' in OPT: raw_stamp(b, 27)
    b('s_lshl_b32 s27, s37, 7')
    raw(b, '''s_cmp_lg_u32 s%d, 0
    s_cbranch_scc1 %s
    s_mov_b32 exec_hi, 0
    buffer_store_dword v96, v70, s[%d:%d], s27 offen offset:%d sc1
    s_mov_b32 exec_hi, -1''' % (S_WAVE, l2, S_WS, S_WS + 3, WS_MOD))
    b('s_branch %s' % l2)
    b.label(l2a)
    b('s_waitcnt vmcnt(0)')
    b.label(l2)
    stamp(b, 1)
    X = 16
    for p in range(8):
        b('v_lshlrev_b32 v%d, 16, v%d' % (X + 2 * p, 8 + p))
        b('v_and_b32 v%d, s100, v%d' % (X + 2 * p + 1, 8 + p))
    if WQ_AT == 'm' or KV_AT == 'm': prefetches(b, WQ_AT == 'm', KV_AT == 'm')
    layernorm16(b, X, 32, 1, LN_LDS, QSCALE)
    if 'fst' in OPT: raw_stamp(b, 28)
    await_ready(b)
    if WQ_AT == 'l' or KV_AT == 'l': prefetches(b, WQ_AT == 'l', KV_AT == 'l')
    if 'fst' in OPT: raw_stamp(b, 29)
    loads = []
    for j in range(4):
        step = 64 if M16 else 32
        loads.append('buffer_load_dwordx4 v[%d:%d], v7, s[%d:%d], 0 offen offset:%d sc1' % (48 + 4 * j, 51 + 4 * j, S_WS, S_WS + 3, WS_MOD + step * j))
        loads.append('buffer_load_dwordx4 v[%d:%d], v7, s[%d:%d], 0 offen offset:%d sc1' % (64 + 4 * j, 67 + 4 * j, S_WS, S_WS + 3, WS_MOD + 2048 + step * j))
    load_mod(b, loads, list(range(48, 80)), 40)
    stamp(b, 2)
    for i in range(16):
        b('v_fmac_f32 v%d, v%d, v%d' % (48 + i, X + i, 64 + i))
    for p in range(8):
        b('v_cvt_pk_bf16_f32 v%d, v%d, v%d' % (8 + p, 48 + 2 * p, 48 + 2 * p + 1))
    b('s_lshr_b32 s%d, s2, %d' % (S_T0, 1 if M16 else 2))
    b('s_lshl_b32 s%d, s%d, %d' % (S_T0, S_T0, 14 if M16 else 15))
    b('s_add_u32 s%d, s%d, 0x%x' % (S_T0, S_T0, WS_H))
    b('buffer_store_dwordx4 v[8:11], v6, s[%d:%d], s%d offen sc1' % (S_WS, S_WS + 3, S_T0))
    b('buffer_store_dwordx4 v[12:15], v6, s[%d:%d], s%d offen offset:1024 sc1' % (S_WS, S_WS + 3, S_T0))
```

```python
from mc import *
from front import LN_LDS

MF = 'v_mfma_f32_16x16x32_bf16'


def p3(b, name):
    S_WO = 8
    S_W, S_KS, S_QT, S_NT, S_ROT, S_W8K = 16, 17, 18, 19, 20, 21
    S_AB, S_BB, S_T0, S_T1, S_T2, S_PB = 22, 23, 24, 25, 26, 27
    S_P, S_G1, S_G2, S_A2, S_L2, S_D, S_G3, S_SLOT = 28, 29, 30, 31, 32, 33, 34, 36
    S_BQ = (12, 40)
    V_WOFF, V_B, V_A, V_T = 2, 10, 12, 20
    V_AF = 32
    V_ACC = 128
    SLOT = 32768
    OOB = 0x10000000
    b('s_and_b32 s%d, s2, 7' % S_T0)
    b('s_lshr_b32 s%d, s2, 3' % S_T1)
    b('s_lshr_b32 s%d, s%d, 1' % (S_KS, S_T0))
    b('s_mov_b32 s%d, s%d' % (S_W, S_WAVE))
    b('s_and_b32 s%d, s%d, 1' % (S_T0, S_T0))
    b('s_lshl_b32 s%d, s%d, 3' % (S_T0, S_T0))
    b('s_lshr_b32 s%d, s%d, 2' % (S_QT, S_T1))
    b('s_and_b32 s%d, s%d, 3' % (S_NT, S_T1))
    b('s_add_u32 s%d, s%d, s%d' % (S_QT, S_QT, S_T0))
    T = V_T
    b('v_lshrrev_b32 v%d, 4, v0' % T)
    b('v_and_b32 v%d, 15, v0' % (T + 1))
    b('v_lshlrev_b32 v%d, 1, v%d' % (T + 2, T))
    b('v_xor_b32 v%d, v%d, v%d' % (T + 2, T + 2, T + 1))
    b('v_lshlrev_b32 v%d, 4, v%d' % (T + 2, T + 2))
    b('v_lshl_add_u32 v%d, v%d, 10, v%d' % (V_WOFF, T, T + 2))
    if M16:
        b('v_xor_b32 v%d, 128, v%d' % (T + 3, V_WOFF))
        for ii in range(1, 8):
            b('v_add_u32 v%d, %d, v%d' % (V_WOFF + ii, (ii & 3) * 3072 + (ii >> 2) * 16384, T + 3 if ii & 1 else V_WOFF))
    else:
        b('v_xor_b32 v%d, 128, v%d' % (V_WOFF + 4, V_WOFF))
        b('v_add_u32 v%d, 16384, v%d' % (V_WOFF + 4, V_WOFF + 4))
        for ii in range(1, 4):
            b('v_add_u32 v%d, %d, v%d' % (V_WOFF + ii, ii * 3072, V_WOFF))
            b('v_add_u32 v%d, %d, v%d' % (V_WOFF + 4 + ii, ii * 3072, V_WOFF + 4))
    b('v_lshlrev_b32 v%d, 4, v0' % V_B)
    b('s_lshl_b32 s%d, s%d, 13' % (S_W8K, S_W))
    b('s_lshl_b32 s%d, s%d, 20' % (S_T0, S_KS))
    mk_srd(b, S_WO, P_WO, 0x100000, S_T0)
    b('s_lshl_b32 s%d, s%d, 15' % (S_A2, S_W))
    b('s_lshl_b32 s%d, s%d, 8' % (S_T0, S_NT))
    b('s_add_u32 s%d, s%d, s%d' % (S_A2, S_A2, S_T0))
    b('s_lshl_b32 s%d, s%d, 3' % (S_T0, S_QT))
    b('s_lshl_b32 s%d, s%d, 1' % (S_T1, S_W))
    b('s_add_u32 s%d, s%d, s%d' % (S_T0, S_T0, S_T1))
    b('s_lshl_b32 s%d, s%d, 17' % (S_BB, S_T0))
    b('s_lshl_b32 s%d, s%d, 15' % (S_T1, S_KS))
    b('s_add_u32 s%d, s%d, s%d' % (S_BB, S_BB, S_T1))
    b('s_add_u32 s%d, s%d, 0x%x' % (S_BB, S_BB, WS_O))
    mk_srd(b, S_BQ[0], P_WSP, 32768, S_BB)
    b('s_add_u32 s%d, s%d, 131072' % (S_BB, S_BB))
    mk_srd(b, S_BQ[1], P_WSP, 32768, S_BB)
    b('s_mov_b32 s%d, s%d' % (S_L2, S_W8K))

    def dma_w(tag):
        out = []
        for half in range(2):
            grp = [('s_add_u32 m0, s%d, %d' % (S_L2, half * 4096), None)]
            for ii in range(4):
                grp.append(('buffer_load_dwordx4 v%d, s[%d:%d], s%d offen offset:%d lds' %
                            (V_WOFF + 4 * half + ii, S_WO, S_WO + 3, S_A2, ii * 1024), tag))
            out.append(grp)
        return out

    def b_load(ring, sreg, step):
        return ['buffer_load_dwordx4 %s, v%d, s[%d:%d], %s offen offset:%d sc1' %
                (ar(8 * ring + 4 * qq, 4), V_B, S_BQ[qq], S_BQ[qq] + 3, sreg, step * 1024) for qq in range(2)]

    def a_reads(buf, step):
        return ['ds_read_b64_tr_b16 %s, v%d offset:%d' % (vr(V_AF + 32 * buf + 4 * nb + 2 * jj, 2), V_A + nb, step * 8192 + jj * (4096 if M16 else 2048))
                for nb in range(8) for jj in range(2)]

    def advance_a():
        return ['s_add_u32 s%d, s%d, 0x20000' % (S_A2, S_A2),
                's_add_u32 s%d, s%d, %d' % (S_L2, S_L2, SLOT), 's_cmp_ge_u32 s%d, %d' % (S_L2, 5 * SLOT),
                's_cselect_b32 s%d, s%d, s%d' % (S_L2, S_W8K, S_L2)]

    if M16:
        b('v_bfe_u32 v%d, v0, 2, 2' % T)
        b('v_lshrrev_b32 v%d, 4, v0' % (T + 1))
        b('v_lshl_add_u32 v%d, v%d, 2, v%d' % (T + 3, T + 1, T))
        b('v_and_b32 v%d, 7, v%d' % (T + 1, T + 3))
        b('v_lshlrev_b32 v%d, 8, v%d' % (T + 3, T + 3))
        b('v_and_b32 v%d, 3, v0' % (T + 4))
        b('v_lshl_add_u32 v%d, v%d, 3, v%d' % (T + 3, T + 4, T + 3))
    else:
        b('v_bfe_u32 v%d, v0, 2, 2' % T)
        b('v_bfe_u32 v%d, v0, 4, 1' % (T + 1))
        b('v_lshrrev_b32 v%d, 5, v0' % (T + 2))
        b('v_lshlrev_b32 v%d, 4, v%d' % (T + 3, T + 1))
        b('v_lshlrev_b32 v%d, 2, v%d' % (T + 4, T + 2))
        b('v_add3_u32 v%d, v%d, v%d, v%d' % (T + 3, T + 3, T + 4, T))
        b('v_lshlrev_b32 v%d, 8, v%d' % (T + 3, T + 3))
        b('v_and_b32 v%d, 3, v0' % (T + 4))
        b('v_lshl_add_u32 v%d, v%d, 3, v%d' % (T + 3, T + 4, T + 3))
        b('v_lshlrev_b32 v%d, 2, v%d' % (T + 1, T + 1))
        b('v_or_b32 v%d, v%d, v%d' % (T + 1, T + 1, T))
    for nb in range(8):
        b('v_xor_b32 v%d, %d, v%d' % (T + 4, nb, T + 1))
        b('v_lshl_add_u32 v%d, v%d, 5, v%d' % (V_A + nb, T + 4, T + 3))
    for i in range(64):
        b('v_mov_b32 v%d, 0' % (V_ACC + i))
    b('s_lshl_b32 s%d, s%d, 7' % (S_PB, S_KS))
    b('s_add_u32 s%d, s%d, s%d' % (S_PB, S_PB, S_T0))
    b('s_lshl_b32 s%d, s%d, 14' % (S_PB, S_PB))
    b('s_lshl_b32 s%d, s%d, 12' % (S_T1, S_NT))
    b('s_add_u32 s%d, s%d, s%d' % (S_PB, S_PB, S_T1))
    b('s_add_u32 s%d, s%d, 0x%x' % (S_PB, S_PB, WS_PART))
    b('s_mov_b32 s%d, 0' % S_P)
    b('s_mov_b32 s%d, %d' % (S_D, SLOT))
    b('s_mov_b32 s%d, %d' % (S_SLOT, SLOT))
    b('s_lshr_b32 s%d, s%d, 1' % (S_T1, S_QT))
    b('s_lshl_b32 s%d, s%d, 2' % (S_T1, S_T1))
    b('s_add_u32 s%d, s%d, s%d' % (S_T1, S_T1, S_KS))
    flag_off(b, S_SY + 3, F_O, S_T1)
    yield
    for tag, ep in (('W0', None), ('WA', -1), ('WB', -1)):
        for grp in dma_w(tag):
            for t, g in grp: b(t, g, epoch=ep)
        for t in advance_a(): b(t)
    yield
    b('s_mov_b32 s%d, 4096' % S_G1)
    b('s_mov_b32 s%d, 8192' % S_G2)
    b('s_mov_b32 s%d, 12288' % S_G3)
    if 'dummy' in OPT:
        b('s_mov_b32 s%d, 0x10000' % S_T2)
    for st in range(7):
        for t in b_load(st, '0' if st < 4 else 's%d' % S_G1, st & 3):
            b(t)
            if 'dummy' in OPT:
                b('buffer_load_dword v31, off, s[%d:%d], s%d' % (S_BQ[0], S_BQ[0] + 3, S_T2), 'pf')
    b.waitvm('W0')
    b('s_barrier')
    stamp(b, 11)
    for t in a_reads(0, 0): b(t)

    b.loop_begin()
    b.label(name + '_loop')
    sc = Sched()
    for half in range(2):
        tag = 'WA' if half == 0 else 'WB'
        d = dma_w(tag)
        for i in range(4):
            st = 4 * half + i
            base = 16 * st
            for nb in range(8):
                for qq in range(2):
                    dd = vr(V_ACC + (nb * 2 + qq) * 4, 4)
                    sc.mfma(base + 2 * nb + qq, '%s %s, %s, %s, %s' % (MF, dd, vr(V_AF + 32 * (i & 1) + 4 * nb, 4), ar(8 * st + 4 * qq, 4), dd))
            if i == 3:
                sc.add(base, lambda bb, tag=tag: (bb.waitvm(tag, 1), bb('s_barrier')))
                dstep = ('s%d' % S_D) if half == 0 else '0x%x' % SLOT
                for nb in range(8):
                    sc.add(base + (nb + 1) // 2, 'v_add_u32 v%d, %s, v%d' % (V_A + nb, dstep, V_A + nb))
            rd = a_reads((i + 1) & 1, (i + 1) & 3)
            for k, t in enumerate(rd):
                if i == 3:
                    sc.add(base + min(15, max(k, (k // 2 + 1) // 2 + 1) if k < 4 else k), t)
                else:
                    sc.add(base + k, t)
            bl = b_load((st + 7) & 7, 's%d' % (S_G1, S_G2, S_G3)[((st + 7) >> 2) - 1], (st + 7) & 3)
            grp = d[i // 2]
            if i % 2 == 0:
                sc.add(base + 1, grp[0][0])
            sc.add(base + 3, bl[0])
            sc.add(base + 6, grp[1 + 2 * (i % 2)][0], tag)
            sc.add(base + 9, bl[1])
            sc.add(base + 12, grp[2 + 2 * (i % 2)][0], tag)
        c0 = 64 * half
        adv = advance_a()
        sc.add(c0 + 61, adv[0])
        sc.add(c0 + 62, adv[1])
        for t in adv[2:]:
            sc.add(c0 + 63, t)
    sc.add(20, 's_add_u32 s%d, s%d, 8192' % (S_G1, S_G1))
    sc.add(84, 's_add_u32 s%d, s%d, 8192' % (S_G2, S_G2))
    sc.add(126, 's_add_u32 s%d, s%d, 8192' % (S_G3, S_G3))
    sc.add(70, 's_add_u32 s%d, s%d, 1' % (S_P, S_P))
    sc.add(72, 's_cmp_eq_u32 s%d, 2' % S_P)
    sc.add(72, 's_cselect_b32 s%d, 0x%x, s%d' % (S_D, (-4 * SLOT) & 0xffffffff, S_SLOT))
    sc.emit(b, 0, 128)
    b('s_cmp_lt_u32 s%d, 4' % S_P)
    b('s_cbranch_scc1 %s_loop' % name)
    b.loop_end(4)
    stamp(b, 12)
    b('v_lshlrev_b32 v%d, 4, v0' % V_T)
    for qq in range(2):
        b('s_add_u32 s%d, s%d, %d' % (S_T0, S_PB, qq * 16384))
        for v in range(4):
            o = V_AF + 4 * (qq * 4 + v)
            for jj in range(2):
                acc = V_ACC + ((2 * v + jj) * 2 + qq) * 4
                for i in range(2):
                    b('v_cvt_pk_bf16_f32 v%d, v%d, v%d' % (o + 2 * jj + i, acc + 2 * i, acc + 2 * i + 1))
            b('buffer_store_dwordx4 %s, v%d, s[%d:%d], s%d offen offset:%d sc1' % (vr(o, 4), V_T, S_WS, S_WS + 3, S_T0, v * 1024))
    flag_off(b, S_SY, F_PART, S_QT)


GA, SB, CB, XR = 192, 208, 224, 240


def mod_loads(addr):
    loads = []
    for (reg, row) in ((GA, 2), (SB, 3), (CB, 4)):
        loads.append('s_mov_b32 s45, %d' % (WS_MOD + row * 2048))
        for bb in range(4):
            loads.append('buffer_load_dwordx4 %s, v%d, s[%d:%d], s45 offen offset:%d sc1' % (vr(reg + 4 * bb, 4), addr, S_WS, S_WS + 3, 64 * bb))
    return loads


def p3b_pre(b):
    mk_srd(b, 48, P_X, 2048 * 1024)
    b('s_lshl_b32 s45, s%d, 6' % S_WAVE)
    b('v_add_u32 v32, s45, v0')
    b('v_lshrrev_b32 v32, 3, v32')
    b('v_and_b32 v33, 3, v32')
    b('v_lshrrev_b32 v34, 2, v32')
    b('v_and_b32 v35, 7, v0')
    b('v_lshlrev_b32 v35, 10, v35')
    b('v_lshl_add_u32 v35, v34, 7, v35')
    b('v_lshl_add_u32 v35, v33, 3, v35')
    b('v_lshlrev_b32 v36, 8, v34')
    b('v_lshl_add_u32 v36, v33, 4, v36')
    b('s_and_b32 s47, s2, 7')
    b('s_lshl_b32 s47, s47, 5')
    b('s_lshr_b32 s46, s2, 3')
    b('s_add_u32 s47, s47, s46')
    b('s_lshl_b32 s46, s47, 13')
    for bb in range(4):
        b('buffer_load_dwordx2 %s, v35, s[48:51], s46 offen offset:%d' % (vr(XR + 2 * bb, 2), 32 * bb))
    for t in mod_loads(36): b(t)


def p3b(b, name):
    b('s_lshl_b32 s45, s%d, 6' % S_WAVE)
    b('v_add_u32 v11, s45, v0')
    b('v_and_b32 v1, 7, v0')
    b('v_lshrrev_b32 v2, 3, v11')
    b('v_and_b32 v3, 3, v2')
    b('v_lshrrev_b32 v4, 2, v2')
    b('s_and_b32 s47, s2, 7')
    b('s_lshl_b32 s47, s47, 5')
    b('s_lshr_b32 s48, s2, 3')
    b('s_add_u32 s47, s47, s48')
    b('s_lshr_b32 s16, s47, 1')
    b('s_and_b32 s17, s47, 1')
    b('s_lshl_b32 s17, s17, 3')
    b('v_add_u32 v6, s17, v1')
    b('v_lshlrev_b32 v6, 4, v6')
    b('v_lshlrev_b32 v7, 11, v4')
    b('v_lshlrev_b32 v9, 8, v3')
    b('v_add3_u32 v7, v7, v9, v6')
    b('v_lshlrev_b32 v9, 8, v4')
    b('v_lshlrev_b32 v10, 4, v3')
    b('v_add_u32 v9, v9, v10')
    b('s_lshl_b32 s19, s16, 14')
    b('s_add_u32 s19, s19, 0x%x' % WS_PART)
    b('s_lshr_b32 s50, s47, 4')
    flag_off(b, S_SY + 3, F_PART, 50)
    yield
    P = 64
    for ks in range(4):
        if ks:
            b('s_add_u32 s19, s19, 0x200000')
        for v in range(2):
            b('buffer_load_dwordx4 %s, v7, s[%d:%d], s19 offen offset:%d sc1' % (vr(P + 8 * ks + 4 * v, 4), S_WS, S_WS + 3, v * 1024))
    yield
    check_mod(b, mod_loads(9), list(range(GA, GA + 48)), 40)
    A = 96
    for ks in range(4):
        for p in range(8):
            src = P + 8 * ks + p
            if ks == 0:
                b('v_lshlrev_b32 v%d, 16, v%d' % (A + 2 * p, src))
                b('v_and_b32 v%d, s100, v%d' % (A + 2 * p + 1, src))
            else:
                b('v_lshlrev_b32 v%d, 16, v%d' % (A + 16 + 2 * p, src))
                b('v_and_b32 v%d, s100, v%d' % (A + 17 + 2 * p, src))
        if ks:
            for i in range(16):
                b('v_add_f32 v%d, v%d, v%d' % (A + i, A + i, A + 16 + i))
    P = A
    X = 20
    for p in range(8):
        b('v_lshlrev_b32 v%d, 16, v%d' % (X + 2 * p, XR + p))
        b('v_and_b32 v%d, s100, v%d' % (X + 2 * p + 1, XR + p))
    for i in range(16):
        b('v_fmac_f32 v%d, v%d, v%d' % (X + i, GA + i, P + i))
    for p in range(8):
        b('v_cvt_pk_bf16_f32 v%d, v%d, v%d' % (12 + p, X + 2 * p, X + 2 * p + 1))
    b('s_lshl_b32 s18, s16, 14')
    b('s_add_u32 s46, s18, 0x%x' % WS_X1)
    b('buffer_store_dwordx4 v[12:15], v7, s[%d:%d], s46 offen sc1' % (S_WS, S_WS + 3))
    b('buffer_store_dwordx4 v[16:19], v7, s[%d:%d], s46 offen offset:1024 sc1' % (S_WS, S_WS + 3))
    for p in range(8):
        b('v_lshlrev_b32 v%d, 16, v%d' % (X + 2 * p, 12 + p))
        b('v_and_b32 v%d, s100, v%d' % (X + 2 * p + 1, 12 + p))
    layernorm16(b, X, 40, 1, LN_LDS)
    for i in range(16):
        b('v_fmac_f32 v%d, v%d, v%d' % (SB + i, X + i, CB + i))
    for p in range(8):
        b('v_cvt_pk_bf16_f32 v%d, v%d, v%d' % (52 + p, SB + 2 * p, SB + 2 * p + 1))
    b('s_add_u32 s46, s18, 0x%x' % WS_H2)
    b('buffer_store_dwordx4 v[52:55], v7, s[%d:%d], s46 offen sc1' % (S_WS, S_WS + 3))
    b('buffer_store_dwordx4 v[56:59], v7, s[%d:%d], s46 offen offset:1024 sc1' % (S_WS, S_WS + 3))
    flag_off(b, S_SY, F_H2, 50)
```

```python
from mc import *

MF = 'v_mfma_f32_16x16x32_bf16'

S_WQ, S_K, S_V = 8, 12, 16
S_HEAD, S_QT, S_W = 24, 25, 26
S_W8K, S_W4K, S_PFO = 28, 29, 30
S_WSRC, S_HB = 32, 33
S_T0, S_T1, S_T2 = 40, 41, 42
S_OB = 43
S_MODE = 44
S_CH = 46
S_WO, S_WG, S_WU, S_WD = 20, 48, 52, 56

V_WOFF = 2
V_KOFF = 6
V_VOFF = 10
V_H = 12
V_TA = 16
V_KA = 24
V_WA = 28
V_LANE16 = 32
V_T = 40
V_Q = 64
V_ACC = 128
V_S = 128
V_NEG = 160
V_P = 176
V_L = 192
V_ONES = 208
V_M = 212
V_R = 216
OUT_SCRATCH = (220, 232)
V_PF = 248
A_O = 0
A_KF = 128
A_VF = 192
SLOT = 32768
MAX_OFF = 24.0
L_LIMIT = 2.0 ** 80


def kv_slot(i):
    return (i + 4) % 5


def dma_kv(i):
    out = []
    base = kv_slot(i) * SLOT
    out.append(('s_add_u32 m0, s%d, %d' % (S_W4K, base), None))
    out.append(('s_add_u32 s%d, s%d, %d' % (S_CH, S_W4K, i * 16384), None))
    for ii in range(4):
        out.append(('buffer_load_dwordx4 v%d, s[%d:%d], s%d offen offset:%d lds' % (V_KOFF + ii, S_K, S_K + 3, S_CH, ii * 1024), 'C%d' % i))
    out.append(('s_add_u32 m0, s%d, %d' % (S_W4K, base + 16384), None))
    for ii in range(4):
        out.append(('buffer_load_dwordx4 v%d, s[%d:%d], s%d offen offset:%d lds' % (V_VOFF + (ii & 1), S_V, S_V + 3, S_CH, ii * 1024), 'C%d' % i))
    return out


def dma_w(p):
    out = []
    for half in range(2):
        out.append(('s_add_u32 m0, s%d, %d' % (S_W8K, p * SLOT + half * 4096), None))
        out.append(('s_add_u32 s%d, s%d, %d' % (S_T0, S_WSRC, p * 128 * 8192 + half * 4 * 32768), None))
        for ii in range(4):
            out.append(('buffer_load_dwordx4 v%d, s[%d:%d], s%d offen offset:%d lds' % (V_WOFF + ii, S_WQ, S_WQ + 3, S_T0, ii * 1024), 'W%d' % p))
    return out


def h_load(u):
    out = []
    if u % 4 == 0:
        out.append(('s_add_u32 s%d, s%d, %d' % (S_T2, S_HB, u * 1024), None))
    for qb in range(4):
        out.append(('buffer_load_dwordx4 %s, v%d, s[%d:%d], s%d offen offset:%d sc1' %
                    (ar(16 * u + 4 * qb, 4), V_H + qb, S_WS, S_WS + 3, S_T2, (u & 3) * 1024), None))
    return out


def setup(b):
    b('s_and_b32 s%d, s2, 7' % S_T0)
    b('s_lshr_b32 s%d, s2, 3' % S_T1)
    b('s_lshr_b32 s%d, s%d, 1' % (S_HEAD, S_T0))
    b('s_lshl_b32 s%d, s%d, 3' % (S_HEAD, S_HEAD))
    b('s_lshr_b32 s%d, s%d, 2' % (S_T2, S_T1))
    b('s_add_u32 s%d, s%d, s%d' % (S_HEAD, S_HEAD, S_T2))
    b('s_and_b32 s%d, s%d, 1' % (S_QT, S_T0))
    b('s_lshl_b32 s%d, s%d, 2' % (S_QT, S_QT))
    b('s_and_b32 s%d, s%d, 3' % (S_T1, S_T1))
    b('s_add_u32 s%d, s%d, s%d' % (S_QT, S_QT, S_T1))
    b('s_mov_b32 s%d, s%d' % (S_W, S_WAVE))
    T = V_T
    b('v_lshrrev_b32 v%d, 4, v0' % T)
    b('v_and_b32 v%d, 15, v0' % (T + 1))
    b('v_lshlrev_b32 v%d, 1, v%d' % (T + 2, T))
    b('v_xor_b32 v%d, v%d, v%d' % (T + 2, T + 2, T + 1))
    b('v_lshlrev_b32 v%d, 4, v%d' % (T + 2, T + 2))
    b('v_lshl_add_u32 v%d, v%d, 8, v%d' % (V_VOFF, T, T + 2))
    b('v_xor_b32 v%d, 128, v%d' % (V_VOFF + 1, V_VOFF))
    b('v_lshl_add_u32 v%d, v%d, 13, v%d' % (V_WOFF, T, T + 2))
    b('v_xor_b32 v%d, 128, v%d' % (T + 4, V_WOFF))
    b('v_add_u32 v%d, %d, v%d' % (V_WOFF + 1, 1 * (32768 - 1024), T + 4))
    b('v_add_u32 v%d, %d, v%d' % (V_WOFF + 2, 2 * (32768 - 1024), V_WOFF))
    b('v_add_u32 v%d, %d, v%d' % (V_WOFF + 3, 3 * (32768 - 1024), T + 4))
    for ii in range(4):
        b('v_add_u32 v%d, %d, v%d' % (T + 2, 4 * ii, T))
        b('v_xor_b32 v%d, v%d, v%d' % (T + 2, T + 2, T + 1))
        b('v_lshlrev_b32 v%d, 4, v%d' % (T + 2, T + 2))
        b('v_lshl_add_u32 v%d, v%d, 8, v%d' % (V_KOFF + ii, T, T + 2))
    b('v_lshlrev_b32 v%d, 4, v0' % V_LANE16)
    for qb in range(4):
        b('v_add_u32 v%d, %d, v%d' % (V_H + qb, qb * 16384, V_LANE16))
    b('v_bfe_u32 v%d, v0, 2, 2' % (T + 2))
    b('v_lshl_add_u32 v%d, v%d, 2, v%d' % (T + 3, T, T + 2))
    b('v_and_b32 v%d, 7, v%d' % (T + 4, T + 3))
    b('v_lshlrev_b32 v%d, 8, v%d' % (T + 3, T + 3))
    b('v_and_b32 v%d, 3, v0' % (T + 5))
    b('v_lshl_add_u32 v%d, v%d, 3, v%d' % (T + 3, T + 5, T + 3))
    for db in range(8):
        b('v_xor_b32 v%d, %d, v%d' % (T + 5, db, T + 4))
        b('v_lshl_add_u32 v%d, v%d, 5, v%d' % (V_TA + db, T + 5, T + 3))
    b('v_lshlrev_b32 v%d, 1, v%d' % (T + 4, T + 4))
    b('v_and_b32 v%d, 3, v0' % (T + 5))
    b('v_xor_b32 v%d, v%d, v%d' % (T + 4, T + 4, T + 5))
    b('v_bfe_u32 v%d, v0, 2, 2' % (T + 2))
    b('v_lshl_add_u32 v%d, v%d, 2, v%d' % (T + 3, T, T + 2))
    b('v_lshlrev_b32 v%d, 8, v%d' % (T + 3, T + 3))
    for u in range(4):
        b('v_xor_b32 v%d, %d, v%d' % (T + 5, 4 * u, T + 4))
        b('v_lshl_add_u32 v%d, v%d, 4, v%d' % (V_WA + u, T + 5, T + 3))
    b('v_xor_b32 v%d, v%d, v%d' % (T + 2, T, T + 1))
    b('v_lshlrev_b32 v%d, 8, v%d' % (T + 3, T + 1))
    for u in range(4):
        b('v_xor_b32 v%d, %d, v%d' % (T + 4, 4 * u, T + 2))
        b('v_lshl_add_u32 v%d, v%d, 4, v%d' % (V_KA + u, T + 4, T + 3))
    b('s_lshl_b32 s%d, s%d, 13' % (S_W8K, S_W))
    b('s_lshl_b32 s%d, s%d, 12' % (S_W4K, S_W))
    b('s_lshl_b32 s%d, s%d, 8' % (S_T0, S_HEAD))
    mk_srd(b, S_WQ, P_WQ, None, S_T0)
    b('s_sub_u32 s%d, %d, s%d' % (S_WQ + 2, 512 * 8192, S_T0))
    b('s_lshl_b32 s%d, s%d, 19' % (S_T0, S_HEAD))
    b('s_add_u32 s%d, s%d, %d' % (S_T0, S_T0, 1536 * 256))
    mk_srd(b, S_K, P_K, 512 * 256, S_T0)
    mk_srd(b, S_V, P_V, 512 * 256, S_T0)
    b('s_lshl_b32 s%d, s%d, 18' % (S_WSRC, S_W))
    b('s_lshl_b32 s%d, s%d, 4' % (S_T0, S_QT))
    b('s_lshl_b32 s%d, s%d, 2' % (S_T1, S_W))
    b('s_add_u32 s%d, s%d, s%d' % (S_T0, S_T0, S_T1))
    b('s_lshl_b32 s%d, s%d, 14' % (S_HB, S_T0))
    b('s_add_u32 s%d, s%d, 0x%x' % (S_HB, S_HB, WS_H))
    b('s_lshl_b32 s%d, s%d, 17' % (S_OB, S_T0))
    b('s_lshl_b32 s%d, s%d, 12' % (S_T1, S_HEAD))
    b('s_add_u32 s%d, s%d, s%d' % (S_OB, S_OB, S_T1))
    b('s_add_u32 s%d, s%d, 0x%x' % (S_OB, S_OB, WS_O))
    b('s_mov_b32 s%d, 0' % S_MODE)
    mk_srd(b, S_WO, P_WO, 4096 * 1024); mk_srd(b, S_WG, P_WG, 512 * 2752); mk_srd(b, S_WU, P_WU, 512 * 2752); mk_srd(b, S_WD, P_WD, 1376 * 1024)
    b('s_bfe_u32 s%d, s2, 0x20001' % S_PFO)
    b('s_lshl_b32 s%d, s%d, 20' % (S_PFO, S_PFO))
    b('s_lshr_b32 s%d, s2, 3' % S_T1)
    b('s_lshl_b32 s%d, s%d, 15' % (S_T1, S_T1))
    b('s_add_u32 s%d, s%d, s%d' % (S_PFO, S_PFO, S_T1))
    b('s_add_u32 s%d, s%d, s%d' % (S_PFO, S_PFO, S_W8K))


def qproj(b):
    AHEAD = int(os.environ.get('HA16', '4'))
    for u in range(AHEAD):
        for t, g in h_load(u): b(t, g)
    if 'wall' in OPT:
        b('s_waitcnt vmcnt(%d)' % (4 * AHEAD))
    else:
        b.waitvm('W0')
    b('s_barrier')
    stamp(b, 5)

    def a_reads(s):
        buf = V_Q + 32 * (s & 1)
        p = s // 4
        return ['ds_read_b64_tr_b16 %s, v%d offset:%d' % (vr(buf + 4 * db + 2 * kk, 2), V_WA + db // 2, (p & 1) * SLOT + (s & 3) * 8192 + kk * 4096 + 8 * (db & 1))
                for db in range(8) for kk in range(2)]
    for t in a_reads(0): b(t)
    stream = []
    streams = ((0, 2, dma_w(2)), (2, 2, dma_kv(0)), (4, 4, dma_w(3)), (8, 4, dma_kv(1)), (12, 4, dma_kv(2)))
    if 'w3pre' in OPT:
        streams = ((0, 4, dma_w(3)), (4, 4, dma_kv(0)), (8, 4, dma_kv(1)), (12, 4, dma_kv(2)))
    if 'wall' in OPT:
        streams = ((2, 4, dma_kv(0)), (8, 4, dma_kv(1)), (12, 4, dma_kv(2)))
    for first, span, ops in streams:
        for k, x in enumerate(ops):
            stream.append((first + (k * span) // len(ops), x))
    sc = Sched()
    for s in range(16):
        base = 32 * s
        for db in range(8):
            for qb in range(4):
                d = vr(V_ACC + (db * 4 + qb) * 4, 4)
                sc.mfma(base + 4 * db + qb, '%s %s, %s, %s, %s' % (MF, d, vr(V_Q + 32 * (s & 1) + 4 * db, 4), ar(16 * s + 4 * qb, 4), '0' if s == 0 else d))
        if s + 1 < 16:
            first = 0
            if (s + 1) % 4 == 0:
                p = (s + 1) // 4
                if 'wall' not in OPT:
                    sc.add(base, lambda bb, p=p: (bb.waitvm('W%d' % p), bb('s_barrier')))
                elif p >= 2:
                    sc.add(base, 's_barrier')
                if p == 2:
                    for u in range(4):
                        sc.add(base + u // 2, 'v_add_u32 v%d, 0x10000, v%d' % (V_WA + u, V_WA + u))
                    first = 2
            for k, t in enumerate(a_reads(s + 1)):
                sc.add(base + max(first, 2 * k) if k < 4 else base + 2 * k, t)
        if s + AHEAD < 16:
            for k, (t, g) in enumerate(h_load(s + AHEAD)):
                sc.add(base + 1 + 6 * k, t, g)
        k = 0
        for (st, (t, g)) in stream:
            if st == s:
                sc.add(base + 3 + 4 * k, t, g)
                k += 1
    last = 32 * 15
    late = []
    for qb in range(4):
        for u in range(4):
            for jj in range(2):
                db = 2 * u + jj
                acc = V_ACC + (db * 4 + qb) * 4
                ready = last + 4 * db + qb + 4
                dst = (qb * 4 + u) * 4
                free = last + 4 * ((dst - 32) // 4) + 4 if dst >= 32 else last
                for i in range(2):
                    t = 'v_cvt_pk_bf16_f32 v%d, v%d, v%d' % (V_Q + dst + 2 * jj + i, acc + 2 * i, acc + 2 * i + 1)
                    slot = max(ready, free)
                    if slot < 512 and 'cvtlate' not in OPT:
                        sc.add(slot, t)
                    else:
                        late.append(t)
    sc.emit(b, 0, 512)
    for t in late: b(t)


def k_reads(blk, buf):
    return ['ds_read_b128 %s, v%d offset:%d' % (ar(A_KF + 32 * buf + (kb * 4 + u) * 4, 4), V_KA + u, (blk & 1) * 8192 + kb * 4096)
            for kb in range(2) for u in range(4)]


def v_reads(blk, buf):
    return ['ds_read_b64_tr_b16 %s, v%d offset:%d' % (ar(A_VF + 32 * buf + 4 * db + 2 * jj, 2), V_TA + db, (blk & 1) * 8192 + jj * 4096)
            for db in range(8) for jj in range(2)]


def qk(qb, kb, u, buf, first_c):
    s = vr(V_S + (qb * 2 + kb) * 4, 4)
    return '%s %s, %s, %s, %s' % (MF, s, ar(A_KF + 32 * buf + (kb * 4 + u) * 4, 4), vr(V_Q + (qb * 4 + u) * 4, 4), s if u else first_c)


def pv(qb, db, buf, first):
    o = ar(A_O + (db * 4 + qb) * 4, 4)
    return '%s %s, %s, %s, %s' % (MF, o, ar(A_VF + 32 * buf + 4 * db, 4), vr(V_P + 4 * qb, 4), '0' if first else o)


def lsum(qb, first):
    l = vr(V_L + 4 * qb, 4)
    return '%s %s, %s, %s, %s' % (MF, l, vr(V_ONES, 4), vr(V_P + 4 * qb, 4), '0' if first else l)


def exps(qb):
    return ['v_exp_f32 v%d, v%d' % (V_S + 8 * qb + e, V_S + 8 * qb + e) for e in range(8)]


def cvts(qb):
    return ['v_cvt_pk_bf16_f32 v%d, v%d, v%d' % (V_P + 4 * qb + k, V_S + 8 * qb + 2 * k, V_S + 8 * qb + 2 * k + 1) for k in range(4)]


def lanes_16_32(b, x, tmp, op):
    for sw in ('v_permlane16_swap_b32', 'v_permlane32_swap_b32'):
        b('v_mov_b32 v%d, v%d' % (tmp, x))
        b('%s v%d, v%d' % (sw, x, tmp))
        b('%s v%d, v%d, v%d' % (op, x, x, tmp))


def prefetches():
    DUMMY = 250
    pre = ['v_lshlrev_b32 v%d, 7, v0' % V_PF, 'v_min_u32 v%d, 10, v0' % (V_PF + 1),
           's_lshl_b32 s%d, s2, 2' % S_T1, 's_add_u32 s%d, s%d, s%d' % (S_T1, S_T1, S_W), 's_mul_i32 s%d, s%d, 11' % (S_T1, S_T1),
           'v_add_u32 v%d, s%d, v%d' % (V_PF + 1, S_T1, V_PF + 1), 'v_lshlrev_b32 v%d, 7, v%d' % (V_PF + 1, V_PF + 1)]
    loads = ['buffer_load_dword v%d, v%d, s[%d:%d], s%d offen' % (DUMMY, V_PF, S_WO, S_WO + 3, S_PFO)]
    for srd_ in (S_WG, S_WU, S_WD):
        loads.append('buffer_load_dword v%d, v%d, s[%d:%d], 0 offen' % (DUMMY, V_PF + 1, srd_, srd_ + 3))
    return pre, loads


def out_group(qb, db32):
    t0 = OUT_SCRATCH[db32 & 1]
    ops = []
    for jj in range(2):
        o = A_O + ((2 * db32 + jj) * 4 + qb) * 4
        ops += ['v_accvgpr_read_b32 v%d, a%d' % (t0 + 4 * jj + k, o + k) for k in range(4)]
    ops += ['v_mul_f32 v%d, v%d, v%d' % (t0 + k, t0 + k, V_R + qb) for k in range(8)]
    ops += ['v_cvt_pk_bf16_f32 v%d, v%d, v%d' % (t0 + 8 + k, t0 + 2 * k, t0 + 2 * k + 1) for k in range(4)]
    soff = ['s_add_u32 s%d, s%d, %d' % (S_T2, S_OB, qb * 131072)] if db32 == 0 else []
    st = 'buffer_store_dwordx4 %s, v%d, s[%d:%d], s%d offen offset:%d sc1' % (vr(t0 + 8, 4), V_LANE16, S_WS, S_WS + 3, S_T2, db32 * 1024)
    return ops, soff, st


def attention(b, name):
    b.label(name + '_attn')
    for k in range(4):
        b('v_add_u32 v%d, %d, v%d' % (V_KA + k, kv_slot(0) * SLOT, V_KA + k))
    for k in range(8):
        b('v_add_u32 v%d, %d, v%d' % (V_TA + k, kv_slot(0) * SLOT + 16384, V_TA + k))
    for k in range(4):
        b('v_mov_b32 v%d, 0x3f803f80' % (V_ONES + k))
    b.waitvm('C0')
    b('s_barrier')
    for t in k_reads(0, 0): b(t)
    l = uid('kv12')
    b('s_cmp_eq_u32 s%d, 0' % S_MODE)
    b('s_cbranch_scc1 %s' % l)
    for i in (1, 2):
        for t, g in dma_kv(i):
            raw(b, t)
            if ' m0,' in t: raw(b, 's_nop 0')
    raw(b, 's_waitcnt vmcnt(0)')
    b.label(l)
    for t in k_reads(1, 1): b(t)
    for qb in range(4):
        for kb in range(2):
            for u in range(4):
                b(qk(qb, kb, u, 0, '0'))
        if qb < 2:
            for t in v_reads(0, 0)[8 * qb:8 * qb + 8]: b(t)
    for k in range(4):
        b('v_add_u32 v%d, 0x%x, v%d' % (V_KA + k, ((kv_slot(1) - kv_slot(0)) * SLOT) & 0xffffffff, V_KA + k))
    b('s_cmp_lg_u32 s%d, 0' % S_MODE)
    b('s_cbranch_scc1 %s_havemax' % name)
    for qb in range(4):
        S, M = V_S + 8 * qb, V_M + qb
        b('v_max3_f32 v%d, v%d, v%d, v%d' % (M, S, S + 1, S + 2))
        b('v_max3_f32 v%d, v%d, v%d, v%d' % (M, M, S + 3, S + 4))
        b('v_max3_f32 v%d, v%d, v%d, v%d' % (M, M, S + 5, S + 6))
        b('v_max_f32 v%d, v%d, v%d' % (M, M, S + 7))
    for qb in range(4):
        lanes_16_32(b, V_M + qb, V_T + qb, 'v_max_f32')
        b('v_add_f32 v%d, %s, v%d' % (V_M + qb, f32(MAX_OFF), V_M + qb))
    b.label(name + '_havemax')
    b('s_nop 7')
    for qb in range(4):
        for i in range(4):
            b('v_sub_f32 v%d, 0, v%d' % (V_NEG + 4 * qb + i, V_M + qb))
        for i in range(8):
            b('v_sub_f32 v%d, v%d, v%d' % (V_S + 8 * qb + i, V_S + 8 * qb + i, V_M + qb))
    for qb in range(3):
        for t in exps(qb): b(t)
        for t in cvts(qb): b(t)
    stamp(b, 7)

    NB = 16
    S_C, S_D, S_LREQ, S_SRC, S_SLOT = 34, 35, 36, 37, 38

    def dma_dyn():
        out = [('s_mov_b32 m0, s%d' % S_LREQ, None), ('s_nop 0', None)]
        for ii in range(4):
            out.append(('buffer_load_dwordx4 v%d, s[%d:%d], s%d offen offset:%d lds' % (V_KOFF + ii, S_K, S_K + 3, S_SRC, ii * 1024), None))
        out.append(('s_add_u32 m0, s%d, 16384' % S_LREQ, None))
        for ii in range(4):
            out.append(('buffer_load_dwordx4 v%d, s[%d:%d], s%d offen offset:%d lds' % (V_VOFF + (ii & 1), S_V, S_V + 3, S_SRC, ii * 1024), None))
        return out

    def block(sc, pos, j, loop):
        last = j == NB - 1
        G = 9 if last else 17
        if j > 0:
            sc.add(pos, cvts(2)[3])
        for qb in range(4):
            g0 = pos + G * qb
            for db in range(8):
                sc.mfma(g0 + db, pv(qb, db, j & 1, j == 0))
            sc.mfma(g0 + 8, lsum(qb, j == 0))
            if not last:
                k = 0
                for kb in range(2):
                    for u in range(4):
                        sc.mfma(g0 + 9 + k, qk(qb, kb, u, (j + 1) & 1, vr(V_NEG + 4 * qb, 4)))
                        k += 1
            sq = (qb - 1) % 4
            if not (last and qb > 0):
                e, c = exps(sq), cvts(sq)
                for i in range(8):
                    sc.add(g0 + 2 + 2 * i, e[i])
                for i in range(4):
                    if not (qb == 3 and i == 3):
                        sc.add(g0 + 5 + 4 * i, c[i])
        if j + 1 < NB:
            for k, t in enumerate(v_reads(j + 1, (j + 1) & 1)):
                sc.add(pos + G * (k // 8) + 1 + 2 * (k % 8), t)
        if j + 2 < NB:
            for k, t in enumerate(k_reads(j + 2, j & 1)):
                sc.add(pos + G * (2 + k // 4) + 1 + 4 * (k % 4), t)
        c = j // 2
        free = [G * g + o for g in range(4) for o in (0, 1, 3, 7, 11, 15)]
        lo, hi = [f for f in free if f < 2 * G], [f for f in free if f >= 2 * G]
        step = ('s%d' % S_D) if loop else '0x%x' % (((kv_slot(c + 1) - kv_slot(c)) * SLOT) & 0xffffffff)
        if j % 2 == 0 and j + 2 < NB:
            if loop:
                sc.add(pos, lambda bb: (bb('s_waitcnt vmcnt(16)'), bb('s_barrier')))
            else:
                sc.add(pos, lambda bb, c=c: (bb.waitvm('C%d' % (c + 1)), bb('s_barrier')))
            if c >= 1:
                for k in range(4):
                    sc.add(pos + lo[1 + 2 * k], 'v_add_u32 v%d, %s, v%d' % (V_KA + k, step, V_KA + k))
        if j % 2 == 0 and c + 1 < 8:
            for k in range(8):
                sc.add(pos + hi[1 + k], 'v_add_u32 v%d, %s, v%d' % (V_TA + k, step, V_TA + k))
        if j == 0:
            for k, (t, g) in enumerate(dma_kv(3)):
                sc.add(pos + free[(2, 4, 5, 6, 8, 10, 12, 14, 16, 18, 20)[k]], t, g)
        elif j % 2 == 1 and not last and (loop or c + 4 < 8):
            for k, (t, g) in enumerate(dma_dyn() if loop else dma_kv(c + 4)):
                sc.add(pos + free[2 * k + 1], t, g)
        return 4 * G

    sc = Sched()
    pos = block(sc, 0, 0, False)
    pos += block(sc, pos, 1, False)
    sc.emit(b, 0, pos, valu_last=True)
    if 'lst' in OPT: stamp(b, 24)
    b('s_mov_b32 s%d, 1' % S_C)
    b('s_mov_b32 s%d, %d' % (S_SLOT, SLOT))
    b('s_mov_b32 s%d, %d' % (S_D, SLOT))
    b('s_add_u32 s%d, s%d, %d' % (S_LREQ, S_W4K, kv_slot(5) * SLOT))
    b('s_add_u32 s%d, s%d, %d' % (S_SRC, S_W4K, 5 * 16384))
    b.loop_begin()
    b.label(name + '_kv_loop')
    sc = Sched()
    pos = block(sc, 0, 2, True)
    pos += block(sc, pos, 3, True)
    upd = ['s_add_u32 s%d, s%d, 1' % (S_C, S_C), 's_add_u32 s%d, s%d, 16384' % (S_SRC, S_SRC),
           's_add_u32 s%d, s%d, %d' % (S_LREQ, S_LREQ, SLOT)]
    for k, t in enumerate(upd):
        sc.add(pos - 6 + k, t)
    sc.add(pos - 3, 's_cmp_ge_u32 s%d, %d' % (S_LREQ, 5 * SLOT))
    sc.add(pos - 3, 's_cselect_b32 s%d, s%d, s%d' % (S_LREQ, S_W4K, S_LREQ))
    sc.add(pos - 2, 's_cmp_eq_u32 s%d, 5' % S_C)
    sc.add(pos - 2, 's_cselect_b32 s%d, 0x%x, s%d' % (S_D, (-4 * SLOT) & 0xffffffff, S_SLOT))
    sc.emit(b, 0, pos, valu_last=True)
    pre, loads = prefetches()
    lp = uid('nopf')
    raw(b, 's_cmp_lg_u32 s%d, %s\ns_cbranch_scc1 %s' % (S_C, os.environ.get('PF_AT', '5'), lp))
    for t in pre + loads: raw(b, t)
    raw(b, lp + ':')
    b('s_cmp_lt_u32 s%d, 7' % S_C)
    b('s_cbranch_scc1 %s_kv_loop' % name)
    b.loop_end(6)
    if 'lst' in OPT: stamp(b, 25)
    sc = Sched()
    pos = block(sc, 0, 14, False)
    lb = pos
    pos += block(sc, pos, 15, False)
    for qb in range(3):
        s0 = lb + 9 * (qb + 1) + 2
        sc.add(s0, 'v_rcp_f32 v%d, v%d' % (V_R + qb, V_L + 4 * qb))
        for db32 in range(4):
            ops, soff, st = out_group(qb, db32)
            for t in soff: sc.add(s0, t)
            for t in ops: sc.add(s0 + 1 + 2 * db32 if db32 < 3 else s0 + 6, t)
            sc.add(s0 + 2 + 2 * db32 if db32 < 3 else s0 + 7, st)
    sc.emit(b, 0, pos + 8, valu_last=True)
    stamp(b, 8)


def epilogue(b, name):
    T = V_T
    b('s_cmp_lg_u32 s%d, 0' % S_MODE)
    b('s_cbranch_scc1 %s_noguard' % name)
    b('v_add_f32 v%d, v%d, v%d' % (T + 1, V_L, V_L + 4))
    b('v_add_f32 v%d, v%d, v%d' % (T + 2, V_L + 8, V_L + 12))
    b('v_add_f32 v%d, v%d, v%d' % (T + 1, T + 1, T + 2))
    b('v_mov_b32 v%d, %s' % (T + 2, f32(L_LIMIT)))
    b('v_cmp_nle_f32 vcc, v%d, v%d' % (T + 1, T + 2))
    b('s_cmp_lg_u64 vcc, 0')
    b('s_cselect_b32 s%d, 1, 0' % S_T0)
    b('v_mov_b32 v%d, s%d' % (T + 3, S_T0))
    b('s_lshl_b32 s%d, s%d, 2' % (S_T1, S_W))
    b('s_add_u32 s%d, s%d, %d' % (S_T1, S_T1, 2 * SLOT))
    b('v_mov_b32 v%d, s%d' % (T + 4, S_T1))
    b('ds_write_b32 v%d, v%d' % (T + 4, T + 3))
    b('s_waitcnt lgkmcnt(0)')
    b('s_barrier')
    b('v_mov_b32 v%d, %d' % (T + 4, 2 * SLOT))
    b('ds_read_b128 %s, v%d' % (vr(T + 8, 4), T + 4))
    b('v_or_b32 v%d, v%d, v%d' % (T + 8, T + 8, T + 9))
    b('v_or_b32 v%d, v%d, v%d' % (T + 10, T + 10, T + 11))
    b('v_or_b32 v%d, v%d, v%d' % (T + 8, T + 8, T + 10))
    b('v_readfirstlane_b32 s%d, v%d' % (S_T0, T + 8))
    b('s_cmp_lg_u32 s%d, 0' % S_T0)
    b('s_cbranch_scc1 %s_fallback' % name)
    b.label(name + '_noguard')
    b('s_barrier')
    b('v_rcp_f32 v%d, v%d' % (V_R + 3, V_L + 12))
    for db32 in range(4):
        ops, soff, st = out_group(3, db32)
        for t in soff + ops: b(t)
        b(st)


def fallback(b, name):
    b.label(name + '_fallback')
    b('s_waitcnt vmcnt(0) lgkmcnt(0)')
    b('s_barrier')
    for k in range(4):
        b('v_add_u32 v%d, 0x%x, v%d' % (V_KA + k, (-kv_slot(7) * SLOT) & 0xffffffff, V_KA + k))
    for k in range(8):
        b('v_add_u32 v%d, 0x%x, v%d' % (V_TA + k, (-kv_slot(7) * SLOT - 16384) & 0xffffffff, V_TA + k))
    for qb in range(4):
        b('v_mov_b32 v%d, 0xff800000' % (V_M + qb))
    b('s_mov_b32 s%d, 0' % S_T2)
    b.label(name + '_fb_loop')
    b('s_lshl_b32 s%d, s%d, 14' % (S_CH, S_T2))
    b('s_add_u32 s%d, s%d, s%d' % (S_CH, S_CH, S_W4K))
    b('s_mov_b32 m0, s%d' % S_W4K)
    for ii in range(4):
        b('buffer_load_dwordx4 v%d, s[%d:%d], s%d offen offset:%d lds' % (V_KOFF + ii, S_K, S_K + 3, S_CH, ii * 1024))
    b('s_waitcnt vmcnt(0)')
    b('s_barrier')
    for blk in range(2):
        for t in k_reads(blk, 0): b(t)
        for qb in range(4):
            for kb in range(2):
                for u in range(4):
                    b(qk(qb, kb, u, 0, '0'))
        for qb in range(4):
            for i in range(0, 8, 2):
                b('v_max3_f32 v%d, v%d, v%d, v%d' % (V_M + qb, V_M + qb, V_S + 8 * qb + i, V_S + 8 * qb + i + 1))
    b('s_waitcnt lgkmcnt(0)')
    b('s_barrier')
    b('s_add_u32 s%d, s%d, 1' % (S_T2, S_T2))
    b('s_cmp_lt_u32 s%d, 8' % S_T2)
    b('s_cbranch_scc1 %s_fb_loop' % name)
    for qb in range(4):
        lanes_16_32(b, V_M + qb, V_T + qb, 'v_max_f32')
    b('s_mov_b32 s%d, 1' % S_MODE)
    for t, g in dma_kv(0): b(t)
    b('s_waitcnt vmcnt(0)')
    b('s_branch %s_attn' % name)


def pre(b):
    if 'wall' not in OPT:
        for p in range(3 if 'w3pre' in OPT else 2):
            for t, g in dma_w(p): b(t, g)
        return

    def own(bb, p):
        for t, g in dma_w(p): bb(t)

    def foreign(bb, p):
        for half in range(2):
            bb('s_mov_b32 m0, %d' % (p * SLOT + half * 4096))
            bb('s_mov_b32 s%d, %d' % (S_T0, p * 128 * 8192 + half * 4 * 32768))
            for ii in range(4):
                bb('buffer_load_dwordx4 v%d, s[%d:%d], s%d offen offset:%d lds' % (V_WOFF + ii, S_WQ, S_WQ + 3, S_T0, ii * 1024))

    def code(bb):
        done = uid('wdone')
        l2, l3 = uid('wv2'), uid('wv3')
        bb('s_cmp_eq_u32 s%d, 0' % S_W)
        bb('s_cbranch_scc1 %s' % done)
        own(bb, 0)
        bb('s_cmp_eq_u32 s%d, 2' % S_W)
        bb('s_cbranch_scc1 %s' % l2)
        bb('s_cmp_eq_u32 s%d, 3' % S_W)
        bb('s_cbranch_scc1 %s' % l3)
        foreign(bb, 0); own(bb, 1); own(bb, 2); own(bb, 3); foreign(bb, 3)
        bb('s_branch %s' % done)
        bb.label(l2)
        own(bb, 1); foreign(bb, 1); own(bb, 2); own(bb, 3)
        bb('s_branch %s' % done)
        bb.label(l3)
        own(bb, 1); own(bb, 2); foreign(bb, 2); own(bb, 3)
        bb.label(done)
    hidden(b, code)


def flag_index(b, dst):
    flag_off(b, dst, F_H, S_QT)


def main(b, name):
    qproj(b)
    stamp(b, 6)
    attention(b, name)
    epilogue(b, name)


def out_flag(b, dst):
    b('s_lshl_b32 s%d, s%d, 2' % (dst, S_QT))
    b('s_lshr_b32 s%d, s%d, 3' % (S_T0, S_HEAD))
    b('s_add_u32 s%d, s%d, s%d' % (dst, dst, S_T0))
    flag_off(b, dst, F_O, dst)
```

```python
import sys
from mc import *
import front, p3, p45
if M16:
    import p2b as p2
else:
    import p2


def build_kernel(name):
    b = Block()
    b('s_cmp_ge_u32 s2, 256')
    b('s_cbranch_scc1 %s_end' % name)
    if 'nocodepf' not in OPT:
        J0 = int(os.environ.get('CODEPF_J', '0'))
        lc = uid('codepf')
        b('s_lshr_b32 s24, s2, 3')
        b('s_sub_u32 s24, s24, %d' % J0)
        b('s_cmp_ge_u32 s24, 2')
        b('s_cbranch_scc1 %s' % lc)
        raw(b, '''s_getpc_b64 s[8:9]
        s_and_b32 s8, s8, 0xffffff00
        s_mov_b32 s10, %s_end - %s + 256
        s_mov_b32 s11, 0x20000
        v_lshlrev_b32 v2, 7, v0
        s_lshl_b32 s24, s24, 15
        buffer_load_dword v251, v2, s[8:11], s24 offen''' % (name, name))
        b.label(lc)
    b('s_load_dwordx16 s[64:79], s[0:1], 0')
    b('s_load_dwordx8 s[80:87], s[0:1], 64')
    b('s_load_dwordx4 s[88:91], s[0:1], 96')
    b('v_lshrrev_b32 v1, 6, v0')
    b('v_and_b32 v0, 63, v0')
    b('s_nop 0')
    b('v_readfirstlane_b32 s%d, v1' % S_WAVE)
    b('s_waitcnt lgkmcnt(0)')
    mk_srd(b, S_WS, P_WSP, WS_BYTES)
    b('s_mov_b32 s100, 0xffff0000')
    if STAMPS:
        b('s_lshl_b32 s96, s2, 2')
        b('s_add_u32 s96, s96, s%d' % S_WAVE)
        b('s_lshl_b32 s96, s96, 8')
        b('s_add_u32 s96, s96, 0x%x' % WS_STAMP)
    stamp(b, 0)
    if 'dbgtime' in OPT:
        mk_srd(b, 92 - 0 if False else 52, P_DBG, 256)
        raw(b, '''s_memrealtime s[98:99]
        s_waitcnt lgkmcnt(0)
        s_not_b32 s98, s98
        v_mov_b32 v251, s98
        s_mov_b64 exec, 1
        buffer_atomic_umax v251, off, s[52:55], 0 offset:16
        s_mov_b64 exec, -1''')
    front.front(b, name)
    b('s_lshr_b32 s%d, s2, 5' % S_SY)
    flag_off(b, S_SY, F_H, S_SY)
    if 'setupfirst' in OPT: p2.setup(b)
    signal(b, S_WS, S_SY)
    stamp(b, 3)
    if 'setupfirst' not in OPT: p2.setup(b)
    p2.pre(b)
    p2.flag_index(b, S_SY + 3)
    await_flag(b, S_WS, S_SY + 3, 32)
    stamp(b, 4)
    p2.main(b, name)
    p2.out_flag(b, S_SY)
    stamp(b, 9)
    g3 = p3.p3(b, name + '_p3')
    next(g3)
    signal(b, S_WS, S_SY)
    stamp(b, 23)
    p3.p3b_pre(b)
    next(g3)
    await_flag(b, S_WS, S_SY + 3, 8)
    stamp(b, 10)
    for _ in g3: pass
    g4 = p45.p4(b, name + '_p4')
    p4_first = next(g4)
    signal(b, S_WS, S_SY)
    stamp(b, 13)
    g3b = p3.p3b(b, name + '_p3b')
    next(g3b)
    hidden(b, p4_first)
    await_flag(b, S_WS, S_SY + 3, 16)
    stamp(b, 14)
    for _ in g3b: pass
    signal(b, S_WS, S_SY)
    stamp(b, 15)
    b('s_cmp_ge_u32 s26, 15')
    b('s_cbranch_scc1 %s_p4_idle' % name)
    next(g4)
    await_flag(b, S_WS, S_SY + 3, 16)
    for _ in g4: pass
    g5 = p45.p5(b, name + '_p5')
    if 'setupfirst' in OPT: next(g5)
    signal(b, S_WS, S_SY)
    if 'setupfirst' not in OPT: next(g5)
    next(g5)
    b('s_branch %s_p5_wait' % name)
    b.label(name + '_p4_idle')
    g5b = p45.p5(b, name + '_p5x')
    next(g5b)
    next(g5b)
    b.label(name + '_p5_wait')
    stamp(b, 18)
    await_flag(b, S_WS, S_SY + 3, 15)
    b('s_waitcnt vmcnt(0)')
    stamp(b, 19)
    for _ in g5: pass
    stamp(b, 22)
    if 'dbgtime' in OPT:
        mk_srd(b, 52, P_DBG, 256)
        raw(b, '''s_waitcnt vmcnt(0)
        s_memrealtime s[98:99]
        s_waitcnt lgkmcnt(0)
        v_mov_b32 v251, s98
        s_mov_b64 exec, 1
        buffer_atomic_umax v251, off, s[52:55], 0 offset:20''')
    b('s_endpgm')
    p2.fallback(b, name)
    b.label(name + '_end')
    b('s_endpgm')
    return b


def build(path, verbose=False):
    name = KNAME + '_kernel'
    head = open('cdna_kernels/' + KNAME + '.s.ref').read().split('; Override launch geometry')[0]
    b = build_kernel(name)
    log = []
    text = finalize(b, log)
    if verbose:
        print('%d lines, %d nop insertions' % (text.count('\n'), len(log)))
        for l in log:
            if 'permlane' not in l and 'lds"' not in l: print('   ', l)
    form = os.environ.get('FORM', 'single')
    if form == 'single':
        launch = '; @launch grid=(256,1,1) block=(256,1,1) lds=163840'
    else:
        launch = '; @launch kernel=%s grid=(256,1,1) block=(256,1,1) lds=163840' % name
    out = [head.rstrip(), launch, '.amdgcn_target "amdgcn-amd-amdhsa--gfx950"', '.text', kernel_header(name) + text,
           '.section .rodata,"a"', kernel_descriptor(name, 256, 256)]
    open(path, 'w').write('\n'.join(out))


if __name__ == '__main__':
    build(sys.argv[1] if len(sys.argv) > 1 else 'mega.s', verbose=True)
```

```python
from mc import *

LN_LDS = 163840 - 512
MF = 'v_mfma_f32_16x16x32_bf16'
WQ_AT = os.environ.get('WQ_AT', 'm')
KV_AT = os.environ.get('KV_AT', 'm')


def prefetches(b, wq=True, kv=True):
    lk = uid('pf')
    b('s_cmp_lt_u32 s2, 96')
    b('s_cbranch_scc1 %s' % lk)
    mk_srd(b, 28, P_WQ, 512 * 8192)
    b('v_lshrrev_b32 v72, 4, v0')
    b('v_lshlrev_b32 v72, 13, v72')
    b('v_and_b32 v73, 15, v0')
    b('v_lshl_add_u32 v72, v73, 7, v72')
    b('s_lshr_b32 s32, s2, 3')
    b('s_sub_u32 s32, s32, 12')
    b('s_lshl_b32 s32, s32, 2')
    b('s_add_u32 s32, s32, s%d' % S_WAVE)
    b('s_lshl_b32 s32, s32, 16')
    b('s_bfe_u32 s33, s2, 0x20001')
    b('s_lshl_b32 s33, s33, 11')
    b('s_add_u32 s32, s32, s33')
    b('s_add_u32 s33, s32, 32768')
    if wq:
        raw(b, 'buffer_load_dword v250, v72, s[28:31], s32 offen')
        raw(b, 'buffer_load_dword v250, v72, s[28:31], s33 offen')
    if kv:
        b('s_cmp_ge_u32 s%d, 2' % S_WAVE)
        b('s_cselect_b32 s28, s%d, s%d' % (P_V, P_K))
        b('s_cselect_b32 s29, s%d, s%d' % (P_V + 1, P_K + 1))
        b('s_mov_b32 s30, 0x%x' % (32 * 2048 * 256))
        b('s_mov_b32 s31, 0x20000')
        b('s_lshr_b32 s32, s2, 3')
        b('s_sub_u32 s32, s32, 12')
        b('s_lshr_b32 s33, s32, 1')
        b('s_bfe_u32 s34, s2, 0x20001')
        b('s_lshl_b32 s34, s34, 3')
        b('s_add_u32 s34, s34, s33')
        b('s_lshl_b32 s34, s34, 19')
        b('s_add_u32 s34, s34, %d' % (1536 * 256))
        b('s_and_b32 s35, s32, 1')
        b('s_lshl_b32 s35, s35, 14')
        b('s_add_u32 s34, s34, s35')
        b('s_and_b32 s35, s%d, 1' % S_WAVE)
        b('s_lshl_b32 s35, s35, 13')
        b('s_add_u32 s34, s34, s35')
        b('s_cmp_ge_u32 s33, 8')
        b('s_cselect_b32 s34, 0x%x, s34' % OOB)
        b('v_lshlrev_b32 v72, 7, v0')
        raw(b, 'buffer_load_dword v250, v72, s[28:31], s34 offen')
        if 'kv256' in OPT:
            b('s_add_u32 s34, s34, 32768')
            raw(b, 'buffer_load_dword v250, v72, s[28:31], s34 offen')
    b.label(lk)


def front(b, name):
    S_C, S_WM, S_X = 8, 12, 16
    S_T0, S_T1 = 24, 25
    mk_srd(b, S_DBGS, P_DBG, 256)
    b('s_lshl_b32 s%d, s%d, 6' % (S_T0, S_WAVE))
    b('v_add_u32 v3, s%d, v0' % S_T0)
    l0 = uid('notp0')
    b('s_cmp_ge_u32 s2, 96')
    b('s_cbranch_scc1 %s' % l0)
    mk_srd(b, S_C, P_C, 1024)
    mk_srd(b, S_WM, P_WMOD, 512 * 6144)
    b('v_lshlrev_b32 v80, 2, v0')
    b('s_lshl_b32 s26, s%d, 8' % S_WAVE)
    b('buffer_load_dword v84, v80, s[%d:%d], s26 offen' % (S_C, S_C + 3))
    b('v_lshrrev_b32 v81, 2, v0')
    b('v_mul_u32_u24 v81, 6144, v81')
    b('v_and_b32 v82, 3, v0')
    b('v_lshl_add_u32 v81, v82, 4, v81')
    b('s_and_b32 s37, s2, 7')
    b('s_lshl_b32 s37, s37, 1')
    b('s_bfe_u32 s38, s2, 0x10003')
    b('s_or_b32 s37, s37, s38')
    b('s_and_b32 s38, s2, 0x70')
    b('s_or_b32 s37, s37, s38')
    b('s_mul_i32 s27, s%d, %d' % (S_WAVE, 128 * 6144))
    b('s_lshl_b32 s28, s37, 6')
    b('s_add_u32 s27, s27, s28')
    b('s_lshl_b32 s28, s%d, 13' % S_WAVE)
    for i in range(8):
        b('s_add_u32 m0, s28, %d' % (i * 1024))
        b('s_add_u32 s29, s27, %d' % (i * 16 * 6144))
        b('buffer_load_dwordx4 v81, s[%d:%d], s29 offen lds' % (S_WM, S_WM + 3), 'P0W')
    b.label(l0)
    if WQ_AT == 's' or KV_AT == 's': prefetches(b, WQ_AT == 's', KV_AT == 's')
    l1 = uid('notclr')
    b('s_cmp_lg_u32 s2, 255')
    b('s_cbranch_scc1 %s' % l1)
    b('v_lshlrev_b32 v80, 4, v3')
    for i in range(4):
        b('v_mov_b32 v%d, -1' % (84 + i))
    for i in range(3):
        b('s_mov_b32 s26, %d' % (WS_MOD + i * 4096))
        b('buffer_store_dwordx4 v[84:87], v80, s[%d:%d], s26 offen sc1' % (S_WS, S_WS + 3))
    b('v_lshlrev_b32 v80, 7, v3')
    b('v_mov_b32 v88, 0')
    b('v_cmp_gt_u32 vcc, %d, v3' % F_COUNT)
    b('s_and_saveexec_b64 s[34:35], vcc')
    b('s_mov_b32 s26, 0x%x' % WS_FLAG)
    b('buffer_store_dword v88, v80, s[%d:%d], s26 offen sc1' % (S_WS, S_WS + 3))
    b('s_mov_b64 exec, s[34:35]')
    b('s_waitcnt vmcnt(0)')
    b('s_barrier')
    raw(b, '''s_cmp_lg_u32 s%d, 0
    s_cbranch_scc1 %s
    v_mov_b32 v88, 1
    buffer_store_dword v88, off, s[%d:%d], 0 sc1''' % (S_WAVE, l1, S_DBGS, S_DBGS + 3))
    b.label(l1)
    mk_srd(b, S_X, P_X, 2048 * 1024)
    b('v_and_b32 v1, 7, v0')
    b('v_lshrrev_b32 v2, 3, v3')
    if M16:
        b('v_and_b32 v5, 3, v2')
        b('v_lshrrev_b32 v6, 2, v2')
        b('v_lshlrev_b32 v4, 10, v1')
        b('v_lshl_add_u32 v4, v6, 7, v4')
        b('v_lshl_add_u32 v4, v5, 3, v4')
        b('s_lshl_b32 s36, s2, 13')
        for j in range(4):
            b('buffer_load_dwordx2 v[%d:%d], v4, s[%d:%d], s36 offen offset:%d' % (8 + 2 * j, 9 + 2 * j, S_X, S_X + 3, 32 * j))
        b('v_lshlrev_b32 v7, 8, v6')
        b('v_lshl_add_u32 v7, v5, 4, v7')
        b('v_lshlrev_b32 v74, 11, v6')
        b('v_lshl_add_u32 v74, v5, 8, v74')
        b('s_and_b32 s%d, s2, 1' % S_T0)
    else:
        b('v_lshlrev_b32 v4, 10, v1')
        b('v_lshrrev_b32 v5, 1, v2')
        b('v_lshl_add_u32 v4, v5, 6, v4')
        b('v_and_b32 v6, 1, v2')
        b('v_lshl_add_u32 v4, v6, 3, v4')
        b('s_lshl_b32 s36, s2, 13')
        for j in range(4):
            b('buffer_load_dwordx2 v[%d:%d], v4, s[%d:%d], s36 offen offset:%d' % (8 + 2 * j, 9 + 2 * j, S_X, S_X + 3, 16 * j))
        b('v_lshlrev_b32 v7, 7, v5')
        b('v_lshl_add_u32 v7, v6, 4, v7')
        b('v_lshlrev_b32 v74, 11, v5')
        b('v_lshl_add_u32 v74, v6, 9, v74')
        b('s_and_b32 s%d, s2, 3' % S_T0)
    b('s_lshl_b32 s%d, s%d, 3' % (S_T0, S_T0))
    b('v_add_u32 v6, s%d, v1' % S_T0)
    b('v_lshl_add_u32 v6, v6, 4, v74')
    l2, l2a = uid('p0done'), uid('nop0')
    b('s_cmp_ge_u32 s2, 96')
    b('s_cbranch_scc1 %s' % l2a)
    b('s_waitcnt vmcnt(12)')
    if 'fst' in OPT: raw_stamp(b, 24)
    b('v_lshlrev_b32 v64, 16, v84')
    b('v_and_b32 v65, s100, v84')
    for i in range(2):
        b('v_mul_f32 v%d, %s, v%d' % (66 + i, f32(-LOG2E), 64 + i))
    for i in range(2):
        b('v_exp_f32 v%d, v%d' % (66 + i, 66 + i))
    for i in range(2):
        b('v_add_f32 v%d, 1.0, v%d' % (66 + i, 66 + i))
    for i in range(2):
        b('v_rcp_f32 v%d, v%d' % (66 + i, 66 + i))
    for i in range(2):
        b('v_mul_f32 v%d, v%d, v%d' % (64 + i, 64 + i, 66 + i))
    b('v_cvt_pk_bf16_f32 v64, v64, v65')
    b('s_lshl_b32 s26, s%d, 8' % S_WAVE)
    b('s_add_u32 s26, s26, 32768')
    b('v_lshl_add_u32 v65, v0, 2, s26')
    b('ds_write_b32 v65, v64')
    b('v_lshrrev_b32 v66, 4, v0')
    b('v_lshl_add_u32 v67, v66, 4, s26')
    b('v_bfe_u32 v68, v0, 2, 2')
    b('v_lshl_add_u32 v68, v66, 3, v68')
    b('v_lshlrev_b32 v68, 6, v68')
    b('v_and_b32 v69, 3, v0')
    b('v_lshl_add_u32 v68, v69, 3, v68')
    b('s_lshl_b32 s27, s%d, 13' % S_WAVE)
    b('v_add_u32 v68, s27, v68')
    b('s_waitcnt lgkmcnt(0)')
    for u in range(4):
        b('ds_read_b128 v[%d:%d], v67 offset:%d' % (96 + 4 * u, 99 + 4 * u, 64 * u))
    b('s_waitcnt vmcnt(4)' if 'fst' not in OPT else 's_waitcnt vmcnt(5)')
    if 'fst' in OPT: raw_stamp(b, 25)
    raw(b, 'buffer_load_dword v71, off, s[%d:%d], 0 sc1' % (S_DBGS, S_DBGS + 3))
    for u in range(4):
        for nb in range(2):
            for jj in range(2):
                r = 112 + 8 * u + 4 * nb + 2 * jj
                b('ds_read_b64_tr_b16 v[%d:%d], v68 offset:%d' % (r, r + 1, u * 2048 + jj * 256 + nb * 32))
    for u in range(4):
        for nb in range(2):
            r = 112 + 8 * u + 4 * nb
            d = 'v[%d:%d]' % (144 + 4 * nb, 147 + 4 * nb)
            b('%s %s, v[%d:%d], v[%d:%d], %s' % (MF, d, r, r + 3, 96 + 4 * u, 99 + 4 * u, '0' if u == 0 else d))
    b('s_lshl_b32 s26, s%d, 7' % S_WAVE)
    b('s_add_u32 s26, s26, 34816')
    b('v_lshl_add_u32 v69, v66, 4, s26')
    b('ds_write_b128 v69, v[144:147]')
    b('ds_write_b128 v69, v[148:151] offset:64')
    b('s_waitcnt lgkmcnt(0)')
    b('s_barrier')
    b('v_and_b32 v70, 31, v0')
    b('v_lshlrev_b32 v70, 2, v70')
    for w in range(4):
        b('ds_read_b32 v%d, v70 offset:%d' % (96 + w, 34816 + 128 * w))
    b('v_add_f32 v96, v96, v97')
    b('v_add_f32 v98, v98, v99')
    b('v_add_f32 v96, v96, v98')
    b('v_cvt_pk_bf16_f32 v96, v96, v96')
    b('v_and_b32 v96, s100, v96')
    b('v_add_f32 v97, 1.0, v96')
    b('v_cvt_pk_bf16_f32 v97, v97, v97')
    b('v_and_b32 v97, s100, v97')
    b('v_mul_f32 v98, %s, v96' % f32(QSCALE))
    b('s_lshr_b32 s26, s37, 4')
    b('s_cmp_eq_u32 s26, 0')
    b('s_cselect_b64 vcc, -1, 0')
    b('v_cndmask_b32 v96, v96, v98, vcc')
    b('s_cmp_eq_u32 s26, 1')
    b('s_cselect_b64 vcc, -1, 0')
    b('v_cndmask_b32 v96, v96, v97, vcc')
    b('s_cmp_eq_u32 s26, 4')
    b('s_cselect_b64 vcc, -1, 0')
    b('v_cndmask_b32 v96, v96, v97, vcc')
    if 'fst' in OPT: raw_stamp(b, 26)
    lr = uid('isready')
    raw(b, '''s_waitcnt vmcnt(0)
    v_readfirstlane_b32 s%d, v71
    s_nop 3
    s_cmp_lg_u32 s%d, 0
    s_cbranch_scc1 %s''' % (S_SY + 2, S_SY + 2, lr))
    await_ready(b)
    raw(b, lr + ':')
    if 'fst' in OPT: raw_stamp(b, 27)
    b('s_lshl_b32 s27, s37, 7')
    raw(b, '''s_cmp_lg_u32 s%d, 0
    s_cbranch_scc1 %s
    s_mov_b32 exec_hi, 0
    buffer_store_dword v96, v70, s[%d:%d], s27 offen offset:%d sc1
    s_mov_b32 exec_hi, -1''' % (S_WAVE, l2, S_WS, S_WS + 3, WS_MOD))
    b('s_branch %s' % l2)
    b.label(l2a)
    b('s_waitcnt vmcnt(0)')
    b.label(l2)
    stamp(b, 1)
    X = 16
    for p in range(8):
        b('v_lshlrev_b32 v%d, 16, v%d' % (X + 2 * p, 8 + p))
        b('v_and_b32 v%d, s100, v%d' % (X + 2 * p + 1, 8 + p))
    if WQ_AT == 'm' or KV_AT == 'm': prefetches(b, WQ_AT == 'm', KV_AT == 'm')
    layernorm16(b, X, 32, 1, LN_LDS, QSCALE)
    if 'fst' in OPT: raw_stamp(b, 28)
    await_ready(b)
    if WQ_AT == 'l' or KV_AT == 'l': prefetches(b, WQ_AT == 'l', KV_AT == 'l')
    if 'fst' in OPT: raw_stamp(b, 29)
    loads = []
    for j in range(4):
        step = 64 if M16 else 32
        loads.append('buffer_load_dwordx4 v[%d:%d], v7, s[%d:%d], 0 offen offset:%d sc1' % (48 + 4 * j, 51 + 4 * j, S_WS, S_WS + 3, WS_MOD + step * j))
        loads.append('buffer_load_dwordx4 v[%d:%d], v7, s[%d:%d], 0 offen offset:%d sc1' % (64 + 4 * j, 67 + 4 * j, S_WS, S_WS + 3, WS_MOD + 2048 + step * j))
    load_mod(b, loads, list(range(48, 80)), 40)
    stamp(b, 2)
    for i in range(16):
        b('v_fmac_f32 v%d, v%d, v%d' % (48 + i, X + i, 64 + i))
    for p in range(8):
        b('v_cvt_pk_bf16_f32 v%d, v%d, v%d' % (8 + p, 48 + 2 * p, 48 + 2 * p + 1))
    b('s_lshr_b32 s%d, s2, %d' % (S_T0, 1 if M16 else 2))
    b('s_lshl_b32 s%d, s%d, %d' % (S_T0, S_T0, 14 if M16 else 15))
    b('s_add_u32 s%d, s%d, 0x%x' % (S_T0, S_T0, WS_H))
    b('buffer_store_dwordx4 v[8:11], v6, s[%d:%d], s%d offen sc1' % (S_WS, S_WS + 3, S_T0))
    b('buffer_store_dwordx4 v[12:15], v6, s[%d:%d], s%d offen offset:1024 sc1' % (S_WS, S_WS + 3, S_T0))
```
